```python
import torch

def _softmax(x, axis=-1):
    return torch.softmax(x, dim=axis)
def _gelu(x):
    return torch.nn.functional.gelu(x, approximate="tanh")
def _silu(x):
    return torch.nn.functional.silu(x)
def _sigmoid(x):
    return torch.sigmoid(x)
def _layernorm(x, axis=-1, eps=1e-5):
    m = x.mean(dim=axis, keepdim=True)
    v = x.var(dim=axis, keepdim=True, unbiased=False)
    return (x - m) / torch.sqrt(v + eps)
def _scatter_add(tgt, idx, src, axis=0):
    return tgt.clone().index_add_(axis, idx, src)
def _segment_sum(src, seg, n):
    out = torch.zeros((n,) + src.shape[1:], dtype=src.dtype)
    return out.index_add_(0, seg, src)
def _pad(x, pw):
    flat = tuple(v for pair in reversed(pw) for v in pair)
    return torch.nn.functional.pad(x, flat)

kernel_name = 'recurrent_scan__sliding_local_dilated__mixer_channel_mlp__prompt'

def setup_inputs():

    _w = (lambda a: (lambda t: t.to(torch.bfloat16) if t.is_floating_point() else t)(torch.as_tensor(a)))
    def _A_setup():
        B, S, D = 1, 2048, 448
        return {
            "x": _w((lambda *s: torch.randn(*s, dtype=torch.bfloat16) * 0.05)(B, S, D)),
            "wqkv": _w((lambda *s: torch.randn(*s, dtype=torch.bfloat16) * 0.05)(D, 3 * D)),
            "wo": _w((lambda *s: torch.randn(*s, dtype=torch.bfloat16) * 0.05)(D, D)),
        }
    _A_in = _A_setup()

    def _B_setup():
        B, S, D, F = 1, 2048, 448, 1792
        return {
            "x": _w((lambda *s: torch.randn(*s, dtype=torch.bfloat16) * 0.05)(B, S, D)),
            "w1": _w((lambda *s: torch.randn(*s, dtype=torch.bfloat16) * 0.8)(D, F) * (D ** -0.5)),
            "b1": _w((lambda *s: torch.randn(*s, dtype=torch.bfloat16) * 0.4)(F)),
            "w2": _w((lambda *s: torch.randn(*s, dtype=torch.bfloat16) * 0.05)(F, D) * (F ** -0.5)),
            "b2": _w((lambda *s: torch.randn(*s, dtype=torch.bfloat16) * 0.05)(D)),
        }
    _B_in = _B_setup()

    return {
        "A_x": _A_in["x"],
        "A_wqkv": _A_in["wqkv"],
        "A_wo": _A_in["wo"],
        "B_x": _B_in["x"],
        "B_w1": _B_in["w1"],
        "B_b1": _B_in["b1"],
        "B_w2": _B_in["w2"],
        "B_b2": _B_in["b2"],
    }

def reference(A_x, A_wqkv, A_wo, B_x, B_w1, B_b1, B_w2, B_b2):
    def _A_ref(x, wqkv, wo):
        B, S, D = x.shape
        H = 16; Dh = D // H
        W, dil = 8, 2
        qkv = (lambda x, *d: x.permute(*d))((x @ wqkv).reshape(B, S, 3, H, Dh), 2, 0, 3, 1, 4)
        q, k, v = qkv[0], qkv[1], qkv[2]
        scale = Dh ** -0.5
        pos = torch.arange(S)
        off = torch.arange(W) * dil
        idx = pos[:, None] - off[None, :]
        mask = idx >= 0
        idx_c = torch.where(mask, idx, 0).reshape(-1)
        kg = k[:, :, idx_c, :].reshape(B, H, S, W, Dh)
        vg = v[:, :, idx_c, :].reshape(B, H, S, W, Dh)
        logits = torch.einsum("bhsd,bhswd->bhsw", q, kg) * scale
        logits = torch.where(mask[None, None, :, :], logits, -1e9)
        attn = _softmax(logits, axis=-1)
        o = torch.einsum("bhsw,bhswd->bhsd", attn, vg)
        return (lambda x, *d: x.permute(*d))(o, 0, 2, 1, 3).reshape(B, S, D) @ wo

    def _B_ref(x, w1, b1, w2, b2):
        y = _layernorm(x, axis=-1)
        h = _gelu(torch.einsum("bsd,df->bsf", y, w1) + b1)
        return torch.einsum("bsf,fd->bsd", h, w2) + b2

    x = A_x
    xn = _layernorm(x, axis=-1)
    s = _A_ref(xn, A_wqkv, A_wo)
    g = _silu(_B_ref(xn, B_w1, B_b1, B_w2, B_b2))
    return x + s * g
```

```python
import re

TRANS = ('v_exp_f32', 'v_rcp_f32', 'v_rsq_f32', 'v_sqrt_f32', 'v_log_f32')

def _regs(tok):
    tok = tok.strip()
    if tok.startswith('-'): tok = tok[1:]
    m = re.fullmatch(r'abs\((.*)\)', tok)
    if m: tok = m.group(1)
    m = re.fullmatch(r'([vs])\[(\d+):(\d+)\]', tok)
    if m: return {(m.group(1), i) for i in range(int(m.group(2)), int(m.group(3)) + 1)}
    m = re.fullmatch(r'([vs])(\d+)', tok)
    if m: return {(m.group(1), int(m.group(2)))}
    if tok == 'm0': return {('m0', 0)}
    if tok in ('vcc', 'vcc_lo', 'vcc_hi'): return {('vcc', 0)}
    if tok in ('exec', 'exec_lo', 'exec_hi'): return {('exec', 0)}
    return set()

class Ins:
    def __init__(self, text):
        self.text = text
        t = text.split(';')[0].strip()
        self.label = t.endswith(':')
        self.directive = t.startswith('.') and not self.label
        self.kind = None; self.w = set(); self.r = set(); self.states = 1
        self.mn = ''
        if self.label or self.directive or not t:
            self.states = 0
            return
        parts = t.split(None, 1)
        mn = parts[0]; self.mn = mn
        rest = parts[1] if len(parts) > 1 else ''
        ops = [o.strip() for o in re.split(r',(?![^\[]*\])', rest)] if rest else []
        mods = ''
        if ops:
            sp = ops[-1].split(None, 1)
            ops[-1] = sp[0]
            mods = sp[1] if len(sp) > 1 else ''
        self.ops = ops; self.mods = mods
        R = [_regs(o) for o in ops]
        U = lambda xs: set().union(*xs) if xs else set()
        if mn == 's_nop':
            self.kind = 'nop'; self.states = int(ops[0], 0) + 1
        elif mn.startswith('v_mfma'):
            self.kind = 'mfma'; self.w = R[0]; self.A = R[1]; self.B = R[2]; self.C = R[3]
            self.r = R[1] | R[2] | R[3]
            self.passes = 8 if '32x32' in mn else 4
        elif mn.startswith('v_'):
            self.kind = 'valu'
            self.trans = mn.replace('_e32', '').replace('_e64', '') in TRANS
            self.dot = mn.startswith('v_dot')
            self.perm = mn.startswith('v_permlane')
            self.dpp = 'dpp' in mn or 'row_' in mods or 'quad_perm' in mods
            self.rl = mn.startswith('v_readfirstlane') or mn.startswith('v_readlane')
            if self.perm:
                self.w = R[0] | R[1]; self.r = R[0] | R[1]
            else:
                self.w = R[0]; self.r = U(R[1:])
                if mn.startswith(('v_fmac', 'v_dot2c', 'v_mac')): self.r |= R[0]
                if mn.startswith('v_cndmask') and len(ops) == 3: self.r |= {('vcc', 0)}
        elif mn.startswith('ds_'):
            self.kind = 'ds'
            if mn.startswith(('ds_read', 'ds_bpermute', 'ds_swizzle')):
                self.w = R[0]; self.r = U(R[1:])
            else:
                self.r = U(R)
        elif mn.startswith(('buffer_', 'global_')):
            self.kind = 'vmem'
            self.lds = bool(re.search(r'\blds\b', mods))
            self.store = 'store' in mn or 'atomic' in mn
            self.wide = mn.endswith(('x3', 'x4'))
            if self.lds:
                self.r = U(R) | {('m0', 0)}
            elif self.store:
                self.r = U(R)
                self.data = R[0] if mn.startswith('buffer') else R[1]
            else:
                self.w = R[0]; self.r = U(R[1:])
        elif mn.startswith('s_'):
            self.kind = 'salu'
            if mn.startswith(('s_cmp', 's_cbranch', 's_branch', 's_waitcnt', 's_barrier', 's_endpgm', 's_sleep', 's_setprio', 's_bitcmp')):
                self.r = U(R)
            else:
                self.w = R[0] if R else set(); self.r = U(R[1:])
                if 'saveexec' in mn: self.w |= {('exec', 0)}
        else:
            raise ValueError('unknown instr ' + text)

def vg(s): return {x for x in s if x[0] == 'v'}
def sg(s): return {x for x in s if x[0] in ('s', 'vcc')}

def need(p, c):
    n = 0
    if p.kind == 'valu':
        pv = vg(p.w); ps = sg(p.w)
        if c.kind == 'mfma' and pv & c.r: n = max(n, 2)
        if c.kind == 'valu':
            if p.trans and not c.trans and pv & c.r: n = max(n, 1)
            if p.trans and c.trans and pv & c.r: n = max(n, 1)
            if (c.perm or c.dpp) and pv & c.r: n = max(n, 2)
            if c.rl and pv & c.r: n = max(n, 1)
            if ps & c.r: n = max(n, 4 if c.rl else 2)
            if p.dot and (pv & (c.r | c.w)):
                same = c.mn == p.mn
                if same and not (pv & set().union(*[_regs(o) for o in c.ops[1:]])): pass
                else: n = max(n, 3)
        if p.dot and c.kind in ('mfma', 'ds', 'vmem') and pv & c.r: n = max(n, 3)
        if c.kind == 'vmem' and ps & c.r: n = max(n, 5)
        if c.kind == 'salu' and ps & c.r: n = max(n, 1)
    if p.kind == 'mfma':
        big = 12 if p.passes == 8 else 8
        mid = 10 if p.passes == 8 else 6
        if c.kind == 'mfma':
            if p.w & (c.A | c.B): n = max(n, big)
            if p.w & c.C:
                if not (p.w == c.C and p.passes == c.passes): n = max(n, mid)
            if p.w & c.w and not (p.w == c.C and p.passes == c.passes): n = max(n, mid)
        elif c.kind in ('valu', 'ds', 'vmem'):
            if p.w & (c.r | c.w): n = max(n, big)
            if c.kind == 'valu' and p.C & c.w: n = max(n, 7 if p.passes == 8 else 3)
            if c.kind in ('ds', 'vmem') and p.C & c.w: n = max(n, 7 if p.passes == 8 else 3)
    if p.kind == 'salu' and ('m0', 0) in p.w and c.kind == 'vmem' and c.lds: n = max(n, 1)
    if p.kind == 'vmem' and p.store and p.wide and c.kind in ('valu', 'mfma', 'ds', 'vmem') and p.data & c.w:
        n = max(n, 2)
    if p.kind == 'ds' and p.mn.startswith('ds_write_b128') and c.kind in ('valu', 'mfma') and vg(p.r) & c.w:
        n = max(n, 0)
    return n

def _required(hist, c):
    dist = 0; req = 0
    for p in reversed(hist):
        if p.states == 0: continue
        if dist >= 14: break
        if p.kind not in ('nop', None):
            k = need(p, c)
            if k > dist: req = max(req, k - dist)
        dist += p.states
    return req

def fix_hazards(lines):
    ins = [Ins(l) for l in lines]
    out = []
    for c in ins:
        if c.states and c.kind != 'nop':
            h = []
            for p in reversed(out[-40:]):
                if p.mn in ('s_branch', 's_endpgm'): break
                h.append(p)
            h.reverse()
            k = _required(h, c)
            while k > 0:
                n = min(k, 16)
                out.append(Ins(f's_nop {n-1}')); k -= n
        out.append(c)
    changed = True
    while changed:
        changed = False
        labels = {x.text.split(';')[0].strip()[:-1]: i for i, x in enumerate(out) if x.label}
        for i, b in enumerate(out):
            if b.mn.startswith(('s_cbranch', 's_branch')):
                tgt = b.ops[0]
                j = labels[tgt]
                h = []
                for p in reversed(out[max(0, i - 40):i + 1]):
                    if p is not b and p.mn in ('s_branch', 's_endpgm'): break
                    h.append(p)
                h.reverse()
                k = j + 1; hh = list(h); cnt = 0
                while k < len(out) and cnt < 16:
                    c = out[k]
                    if c.states and c.kind != 'nop':
                        r = _required(hh, c)
                        if r > 0:
                            out.insert(j + 1, Ins(f's_nop {r-1}'))
                            changed = True
                            break
                    if c.mn in ('s_branch', 's_endpgm'): break
                    hh.append(c); cnt += c.states; k += 1
                if changed: break
    return [x.text for x in out]

class Ctr:
    def __init__(self, name, maxv): self.name = name; self.q = []; self.maxv = maxv
    def copy(self):
        c = Ctr(self.name, self.maxv); c.q = list(self.q); return c
    def issue(self, tag): self.q.append(tag)
    def wait_n(self, pred):
        idx = -1
        for i, t in enumerate(self.q):
            if pred(t): idx = i
        if idx < 0: return None
        n = len(self.q) - 1 - idx
        n2 = min(n, self.maxv)
        self.q = self.q[len(self.q) - n2:] if n2 else []
        return n2

class Prog:
    def __init__(self):
        self.L = []
        self.vm = Ctr('vmcnt', 63); self.lg = Ctr('lgkmcnt', 15)
        self.nst = 0; self.names = []
    def I(self, s):
        for l in s.strip().split('\n'):
            l = l.strip()
            if l: self.L.append(l)
    def label(self, n): self.L.append(n + ':')
    def V(self, s, tag=None):
        self.L.append(s); self.vm.issue(tag)
        assert len(self.vm.q) <= 63, 'vmcnt overflow'
    def D(self, s, tag=None):
        self.L.append(s); self.lg.issue(tag)
    def wait_vm(self, *tags):
        n = self.vm.wait_n(lambda t: t in tags)
        if n is not None: self.L.append(f's_waitcnt vmcnt({n})')
    def wait_lg(self, *tags):
        n = self.lg.wait_n(lambda t: t in tags)
        if n is not None: self.L.append(f's_waitcnt lgkmcnt({n})')
    def vm0(self): self.vm.q = []; self.L.append('s_waitcnt vmcnt(0)')
    def lg0(self): self.lg.q = []; self.L.append('s_waitcnt lgkmcnt(0)')
    def state(self): return (self.vm.copy(), self.lg.copy(), self.nst, list(self.names))
    def restore(self, st): self.vm, self.lg, self.nst, self.names = st[0].copy(), st[1].copy(), st[2], list(st[3])

def vr(a, n=1): return f'v{a}' if n == 1 else f'v[{a}:{a+n-1}]'
def sr(a, n=1): return f's{a}' if n == 1 else f's[{a}:{a+n-1}]'
import struct
def f32(x): return '0x%08x' % struct.unpack('<I', struct.pack('<f', x))[0]
```

```python
import sys, math, argparse
from asmlib import *

NAME = 'recurrent_scan__sliding_local_dilated__mixer_channel_mlp__prompt'
XB = 896; W1S = 3584; WQS = 2688
H_OFF = 0; O_OFF = 0x700000; CNT_OFF = 0x900000; WS_SIZE = 0x910000
SLOT = 8192; MISC = 19 * SLOT
EPS = 1e-5
LOG2E = 1.4426950408889634
GK0 = -2.0 * LOG2E * math.sqrt(2.0 / math.pi)
GK1 = GK0 * 0.044715
NEG = -1e30

sX, sW, sWS, sB1, sWO, sW2, sOUT, sB2, sDBG = 28, 32, 36, 40, 44, 48, 52, 56, 60
sWAVE, sXCD, sJ, sMT, sSUB, sT0, sT1, sT2, sWX, sWW = 64, 65, 66, 67, 68, 69, 70, 71, 72, 73

def srd(P, d, ptr, size):
    P.I(f's_mov_b32 s{d}, s{ptr}\ns_mov_b32 s{d+1}, s{ptr+1}\ns_mov_b32 s{d+2}, {size}\ns_mov_b32 s{d+3}, 0x20000')

class Cfg:
    fused = False
    sc = ' sc1'
    prof = False

def stamp(P, cfg, idx):
    if cfg.prof:
        P.I(f's_memtime s[{80+2*idx}:{81+2*idx}]')

def prologue(P, nwg, endlabel):
    P.I(f'''
    s_cmp_ge_u32 s2, {nwg}
    s_cbranch_scc1 {endlabel}
    s_load_dwordx16 s[4:19], s[0:1], 0
    s_load_dwordx4 s[20:23], s[0:1], 64
    s_load_dwordx2 s[24:25], s[0:1], 80
    v_lshrrev_b32 v2, 6, v0
    v_and_b32 v1, 63, v0
    v_readfirstlane_b32 s{sWAVE}, v2
    s_and_b32 s{sXCD}, s2, 7
    s_lshr_b32 s{sJ}, s2, 3
    ''')

def stage1_ids(P):
    P.I(f'''
    s_and_b32 s{sT0}, s{sXCD}, 1
    s_lshl_b32 s{sT0}, s{sT0}, 3
    s_bfe_u32 s{sT1}, s{sJ}, 0x30001
    s_add_u32 s{sMT}, s{sT0}, s{sT1}
    s_and_b32 s{sT0}, s{sXCD}, 6
    s_and_b32 s{sT1}, s{sJ}, 1
    s_add_u32 s{sSUB}, s{sT0}, s{sT1}
    s_lshl_b32 s{sWX}, s{sWAVE}, 11
    s_lshl_b32 s{sWW}, s{sWAVE}, 10
    ''')

vLANE, vXD0, vXD1 = 1, 2, 3
def xdma_addr(P, t0, t1):
    P.I(f'''
    s_lshl_b32 s{sT0}, s{sMT}, 7
    s_lshl_b32 s{sT1}, s{sWAVE}, 4
    s_add_u32 s{sT0}, s{sT0}, s{sT1}
    v_lshrrev_b32 v{t0}, 3, v{vLANE}
    v_add_u32 v{t0}, s{sT0}, v{t0}
    v_mul_u32_u24 v{t0}, {XB}, v{t0}
    v_lshrrev_b32 v{t1}, 4, v{vLANE}
    v_xor_b32 v{t1}, v{t1}, v{vLANE}
    v_and_b32 v{t1}, 7, v{t1}
    v_lshl_add_u32 v{vXD0}, v{t1}, 4, v{t0}
    v_xor_b32 v{t1}, 4, v{t1}
    v_add_u32 v{t0}, {8*XB}, v{t0}
    v_lshl_add_u32 v{vXD1}, v{t1}, 4, v{t0}
    ''')

def dma_x(P, c, base, tag):
    for i in range(2):
        P.I(f's_add_u32 m0, s{sWX}, {base + 1024*i - 128*c}')
        P.V(f'buffer_load_dwordx4 v{vXD0+i}, s[{sX}:{sX+3}], 0 offen offset:{128*c} lds', tag)

def mlp_path(P, cfg, after):
    sCOLP, sCOLS, sHP, sHSG, sBP, sBS, sG = 74, 75, 76, 77, 78, 79, 27
    vWD, vWDs = 4, 5
    vWa = [6, 7, 8]; vWc = [9, 10, 11]; vXa = [12, 13, 14, 15]
    XF = 16; ACC = 128; WF = 144; NWF = 5; WCS = 164; CSA = 168; SEL = 172; BX = 176; AX = 180
    vK0, vK1, vRI = 184, 185, 186; BR = 187; U = 192; PK = 208; vHS = 216; vT = 217; ST = 220; vONE = 224
    vCSW, vCSR, vSTA = 225, 226, 227; T4 = 228
    CS_LDS = MISC; ST_LDS = MISC + 1024
    xdma_addr(P, vT, vT + 1)
    P.I(f'''
    s_lshr_b32 s{sG}, s{sWAVE}, 2
    s_and_b32 s{sT2}, s{sSUB}, 1
    s_mul_i32 s{sT0}, s{sSUB}, 448
    s_lshl_b32 s{sT1}, s{sT2}, 6
    s_add_u32 s{sCOLP}, s{sT0}, s{sT1}
    s_add_u32 s{sCOLS}, s{sT0}, 384
    s_sub_u32 s{sBS}, s{sT0}, 64
    s_cmp_eq_u32 s{sT2}, 0
    s_cselect_b32 s{sCOLS}, s{sCOLS}, s{sBS}
    s_add_u32 s{sBS}, s{sCOLS}, s{sT1}
    v_lshrrev_b32 v{vT}, 3, v{vLANE}
    s_lshl_b32 s{sT0}, s{sWAVE}, 3
    v_add_u32 v{vT}, s{sT0}, v{vT}
    v_mul_u32_u24 v{vT}, {W1S}, v{vT}
    v_lshrrev_b32 v{vT+1}, 2, v{vLANE}
    v_and_b32 v{vT+1}, 4, v{vT+1}
    v_xor_b32 v{vT+1}, v{vT+1}, v{vLANE}
    v_and_b32 v{vT+1}, 7, v{vT+1}
    v_lshl_add_u32 v{vWD}, v{vT+1}, 4, v{vT}
    v_xor_b32 v{vWDs}, s{sT1}, v{vWD}
    s_waitcnt lgkmcnt(0)
    ''')
    srd(P, sX, 4, 2048 * XB)
    srd(P, sW, 12, 448 * W1S)

    def dma_w(blk, c, slot, tag):
        P.I(f's_add_u32 m0, s{sWW}, {slot*SLOT}')
        if blk < 3:
            P.I(f's_add_u32 s{sT0}, s{sCOLP}, {c*64*W1S + 128*blk}')
            P.V(f'buffer_load_dwordx4 v{vWD}, s[{sW}:{sW+3}], s{sT0} offen lds', tag)
        else:
            P.I(f's_add_u32 s{sT0}, s{sCOLS}, {c*64*W1S}')
            P.V(f'buffer_load_dwordx4 v{vWDs}, s[{sW}:{sW+3}], s{sT0} offen lds', tag)

    wslot = {}
    xbase = {}
    for c in range(7): wslot[(0, c)] = c
    for c in range(6): xbase[c] = (7 + 2 * c) * SLOT
    xbase[6] = xbase[0]
    for c in range(6):
        dma_x(P, c, xbase[c], ('c', c))
        dma_w(0, c, c, ('c', c))
    dma_w(0, 6, 6, ('c', 6))
    stamp(P, cfg, 0)
    srd(P, sWS, 24, WS_SIZE)
    srd(P, sB1, 14, 1792 * 2)
    P.I(f'''
    s_lshl_b32 s{sT0}, s{sMT}, 2
    s_and_b32 s{sT1}, s{sWAVE}, 3
    s_add_u32 s{sT0}, s{sT0}, s{sT1}
    s_mul_i32 s{sT0}, s{sT0}, {112*1024}
    s_lshl_b32 s{sT2}, s{sBS}, 5
    s_add_u32 s{sHSG}, s{sT0}, s{sT2}
    s_lshl_b32 s{sT2}, s{sG}, 6
    s_add_u32 s{sBP}, s{sCOLP}, s{sT2}
    s_lshl_b32 s{sT2}, s{sBP}, 5
    s_add_u32 s{sHP}, s{sT0}, s{sT2}
    v_and_b32 v{vT}, 31, v{vLANE}
    v_lshlrev_b32 v{vT+1}, 1, v{vT}
    ''')
    for t in range(3):
        P.V(f'buffer_load_ushort v{BR+t}, v{vT+1}, s[{sB1}:{sB1+3}], s{sBP} offen offset:{128*t}', 'bias')
    P.V(f'buffer_load_ushort v{BR+3}, v{vT+1}, s[{sB1}:{sB1+3}], s{sBS} offen', 'bias')
    P.I(f'''
    v_lshlrev_b32 v{vHS}, 4, v{vLANE}
    v_lshrrev_b32 v{vT+1}, 5, v{vLANE}
    v_lshlrev_b32 v{vT+1}, 3, v{vT+1}
    v_bfe_u32 v{vT+2}, v{vLANE}, 2, 2
    v_add_u32 v{vT+1}, v{vT+1}, v{vT+2}
    v_lshlrev_b32 v{vT+1}, 7, v{vT+1}
    v_and_b32 v{vT+2}, 16, v{vLANE}
    v_lshlrev_b32 v{vT+2}, 1, v{vT+2}
    v_and_b32 v{T4}, 3, v{vLANE}
    v_lshl_add_u32 v{vT+2}, v{T4}, 3, v{vT+2}
    s_lshl_b32 s{sT2}, s{sG}, 6
    v_add_u32 v{vT+2}, s{sT2}, v{vT+2}
    v_and_b32 v{T4}, 8, v{vLANE}
    v_lshlrev_b32 v{T4}, 3, v{T4}
    v_xor_b32 v{vT+2}, v{vT+2}, v{T4}
    v_add_u32 v{vWa[0]}, v{vT+1}, v{vT+2}
    v_add_u32 v{vWa[1]}, 0x10000, v{vWa[0]}
    v_add_u32 v{vWa[2]}, 0x20000, v{vWa[0]}
    s_lshl_b32 s{sT2}, s{sT1}, 11
    v_add_u32 v{vWc[0]}, s{sT2}, v{vWa[0]}
    v_add_u32 v{vWc[1]}, s{sT2}, v{vWa[1]}
    v_add_u32 v{vWc[2]}, s{sT2}, v{vWa[2]}
    ''')
    P.I(f'''
    s_lshl_b32 s{sT2}, s{sT1}, 5
    v_add_u32 v{vT+1}, s{sT2}, v{vT}
    v_bfe_u32 v{vT+2}, v{vLANE}, 1, 3
    v_lshrrev_b32 v{T4}, 5, v{vLANE}
    v_xor_b32 v{vT+2}, v{vT+2}, v{T4}
    v_lshlrev_b32 v{vT+2}, 4, v{vT+2}
    v_lshl_add_u32 v{vXa[0]}, v{vT+1}, 7, v{vT+2}
    v_xor_b32 v{vXa[1]}, 32, v{vXa[0]}
    v_xor_b32 v{vXa[2]}, 64, v{vXa[0]}
    v_xor_b32 v{vXa[3]}, 0x60, v{vXa[0]}
    v_lshlrev_b32 v{vSTA}, 4, v{vT+1}
    v_add_u32 v{vSTA}, {ST_LDS}, v{vSTA}
    ''')
    P.I(f'''
    s_lshl_b32 s{sT2}, s{sG}, 9
    s_add_u32 s{sT2}, s{sT2}, {CS_LDS}
    v_lshlrev_b32 v{vCSR}, 4, v{vT}
    v_add_u32 v{vCSR}, s{sT2}, v{vCSR}
    s_lshl_b32 s{sT2}, s{sT1}, 2
    v_add_u32 v{vCSW}, s{sT2}, v{vCSR}
    v_mov_b32 v{vONE}, 0x3f803f80
    v_lshrrev_b32 v{vT+1}, 2, v{vLANE}
    v_lshrrev_b32 v{vT+2}, 4, v{vLANE}
    v_xor_b32 v{vT+1}, v{vT+1}, v{vT+2}
    v_and_b32 v{vT+1}, 1, v{vT+1}
    v_sub_u32 v{vT+1}, v{vT+1}, 1
    v_and_b32 v{SEL}, v{vONE}, v{vT+1}
    v_mov_b32 v{SEL+1}, v{SEL}
    v_mov_b32 v{SEL+2}, v{SEL}
    v_mov_b32 v{SEL+3}, v{SEL}
    v_mov_b32 v{AX+3}, 0
    v_mov_b32 v{BX+3}, 0
    s_cmp_eq_u32 s{sG}, 0
    s_cbranch_scc0 L_mlp_g1
    ''')
    wq = [(b, c) for b in (1, 2, 3) for c in range(7)]
    sched = {}
    free = []
    def place(n):
        r = []
        for _ in range(n):
            if not wq: break
            bc = wq.pop(0); s = free.pop(0); wslot[bc] = s; r.append((bc, s))
        return r
    for c in range(2, 7):
        sl = xbase[c - 1] // SLOT; free += [sl, sl + 1]
        sched[('p0', c)] = place(2)
    sl = xbase[6] // SLOT; free += [sl, sl + 1]
    sched[('p', 1)] = place(2)
    free += list(range(7)); sched[('p', 2)] = place(7)
    free += [wslot[(1, c)] for c in range(7)]; sched[('p', 4)] = place(7)
    assert not wq
    def do_sched(ev):
        if ev == ('p0', 1): dma_x(P, 6, xbase[6], ('c', 6))
        for (b, c), s in sched.get(ev, []): dma_w(b, c, s, ('w', b))

    def tr(dst, areg, slot, s, tag):
        off = (slot % 8) * SLOT + s * 2048
        P.D(f'ds_read_b64_tr_b16 v[{dst}:{dst+1}], v{areg[slot//8]} offset:{off}', tag)
        P.D(f'ds_read_b64_tr_b16 v[{dst+2}:{dst+3}], v{areg[slot//8]} offset:{off+512}', tag)
    def xreads(c):
        for s in range(4):
            P.I(f'v_add_u32 v{vT+s%2}, {xbase[c]}, v{vXa[s]}')
            d = XF + 4 * (4 * c + s)
            P.D(f'ds_read_b128 v[{d}:{d+3}], v{vT+s%2}', ('x', 4 * c + s))
    def mfma(s):
        w = WF + 4 * (s % NWF); x = XF + 4 * s
        c = '0' if s == 0 else f'v[{ACC}:{ACC+15}]'
        P.I(f'v_mfma_f32_32x32x16_bf16 v[{ACC}:{ACC+15}], v[{w}:{w+3}], v[{x}:{x+3}], {c}')
    def mfma_cs(c):
        cc = '0' if c == 0 else f'v[{CSA}:{CSA+3}]'
        P.I(f'v_mfma_f32_16x16x32_bf16 v[{CSA}:{CSA+3}], v[{SEL}:{SEL+3}], v[{WCS}:{WCS+3}], {cc}')
    def m_phase(blk):
        AH = 3
        def rd(s):
            if s < 28: tr(WF + 4 * (s % NWF), vWa, wslot[(blk, s // 4)], s % 4, ('w', s))
        for s in range(AH): rd(s)
        for s in range(28):
            rd(s + AH)
            if s % 4 == 0: tr(WCS, vWc, wslot[(blk, s // 4)], 0, ('cs', s // 4))
            P.wait_lg(('w', s))
            mfma(s)
            if s % 4 == 2:
                P.wait_lg(('cs', s // 4)); mfma_cs(s // 4)
        P.D(f'ds_write_b32 v{vCSW}, v{CSA}', 'csw')
        P.lg0()
    def prep_consts(R, RI, M):
        t = vT
        P.I(f'''
        v_mul_f32 v{vK0}, {f32(GK0)}, v{R}
        v_mul_f32 v{t}, v{R}, v{R}
        v_mul_f32 v{t}, v{t}, v{R}
        v_mul_f32 v{vK1}, {f32(GK1)}, v{t}
        v_mov_b32 v{vRI}, v{RI}
        v_cmp_gt_u32 vcc, 32, v{vLANE}
        v_cndmask_b32 v{t}, 0, v{M}, vcc
        v_cndmask_b32 v{t+1}, 0, v{RI}, vcc
        v_sub_f32 v{t}, 0, v{t}
        v_cvt_pk_bf16_f32 v{BX+1}, v{t}, v{t+1}
        v_lshlrev_b32 v{t+2}, 16, v{BX+1}
        v_sub_f32 v{t+2}, v{t}, v{t+2}
        v_cvt_pk_bf16_f32 v{BX}, v{t}, v{t+2}
        v_and_b32 v{t+2}, 0xffff0000, v{BX+1}
        v_sub_f32 v{t+2}, v{t+1}, v{t+2}
        v_mov_b32 v{t}, 0
        v_cvt_pk_bf16_f32 v{BX+2}, v{t+2}, v{t}
        ''')
    def e_phase(tile, ev):
        P.D(f'ds_read_b128 v[{T4}:{T4+3}], v{vCSR}', 'csr')
        P.wait_vm('bias')
        P.I(f'v_lshlrev_b32 v{vT}, 16, v{BR+tile}\nv_mov_b32 v{AX+2}, v{BR+tile}')
        P.wait_lg('csr')
        P.I(f'''
        v_add_f32 v{T4}, v{T4}, v{T4+1}
        v_add_f32 v{T4+2}, v{T4+2}, v{T4+3}
        v_add_f32 v{T4}, v{T4}, v{T4+2}
        v_cvt_pk_bf16_f32 v{AX}, v{T4}, v{T4}
        v_lshlrev_b32 v{T4+1}, 16, v{AX}
        v_sub_f32 v{T4+1}, v{T4}, v{T4+1}
        v_cvt_pk_bf16_f32 v{AX+1}, v{T4+1}, v{vT}
        v_mfma_f32_32x32x16_bf16 v[{ACC}:{ACC+15}], v[{AX}:{AX+3}], v[{BX}:{BX+3}], v[{ACC}:{ACC+15}]
        ''')
        do_sched(ev)
        if tile < 3: P.I(f's_add_u32 s{sT1}, s{sHP}, {4096*tile}')
        else: P.I(f's_mov_b32 s{sT1}, s{sHSG}')
        for half in range(2):
            E = range(8 * half, 8 * half + 8)
            for e in E: P.I(f'v_mul_f32 v{U+e}, v{ACC+e}, v{ACC+e}')
            for e in E: P.I(f'v_fma_f32 v{U+e}, v{U+e}, v{vK1}, v{vK0}')
            for e in E: P.I(f'v_mul_f32 v{U+e}, v{ACC+e}, v{U+e}')
            for e in E: P.I(f'v_exp_f32 v{U+e}, v{U+e}')
            for e in E: P.I(f'v_fma_f32 v{U+e}, v{U+e}, v{vRI}, v{vRI}')
            for e in E: P.I(f'v_rcp_f32 v{U+e}, v{U+e}')
            for e in E: P.I(f'v_mul_f32 v{U+e}, v{ACC+e}, v{U+e}')
            for e in range(4): P.I(f'v_cvt_pk_bf16_f32 v{PK+4*half+e}, v{U+8*half+2*e}, v{U+8*half+2*e+1}')
            P.V(f'buffer_store_dwordx4 v[{PK+4*half}:{PK+4*half+3}], v{vHS}, s[{sWS}:{sWS+3}], s{sT1} offen offset:{1024*half}{cfg.sc}', 'st')

    st0 = P.state()
    for c in range(7):
        P.wait_vm(('c', c)); P.I('s_barrier')
        do_sched(('p0', c))
        xreads(c)
        for s in range(4): tr(WF + 4 * ((4 * c + s) % NWF), vWa, c, s, ('w', 4 * c + s))
        tr(WCS, vWc, c, 0, ('cs', c))
        for s in range(4):
            P.wait_lg(('x', 4 * c + s), ('w', 4 * c + s)); mfma(4 * c + s)
        P.wait_lg(('cs', c)); mfma_cs(c)
    P.D(f'ds_write_b32 v{vCSW}, v{CSA}', 'csw'); P.lg0()
    stamp(P, cfg, 1)
    for p in range(1, 8):
        if p % 2 == 0: P.wait_vm(('w', p // 2))
        P.I('s_barrier')
        if p == 1:
            P.D(f'ds_read_b128 v[{ST}:{ST+3}], v{vSTA}', 'st'); P.wait_lg('st')
            prep_consts(ST, ST + 1, ST + 2)
        if p % 2: e_phase((p - 1) // 2, ('p', p))
        else:
            do_sched(('p', p)); m_phase(p // 2)
    stamp(P, cfg, 2)
    P.I(f's_branch {after}')
    P.restore(st0)
    P.label('L_mlp_g1')
    for i in range(4): P.I(f'v_mov_b32 v{ST+i}, 0')
    for c in range(7):
        P.wait_vm(('c', c)); P.I('s_barrier')
        do_sched(('p0', c))
        xreads(c)
        for s in range(4):
            P.wait_lg(('x', 4 * c + s))
            for d in range(4):
                x = XF + 4 * (4 * c + s) + d
                P.I(f'v_dot2c_f32_bf16 v{ST+(d&1)}, v{x}, v{vONE}')
                P.I(f'v_dot2c_f32_bf16 v{ST+2+(d&1)}, v{x}, v{x}')
    t = vT
    P.I(f'''
    v_add_f32 v{ST}, v{ST}, v{ST+1}
    v_add_f32 v{ST+2}, v{ST+2}, v{ST+3}
    v_mov_b32 v{ST+1}, v{ST}
    v_mov_b32 v{ST+3}, v{ST+2}
    v_permlane32_swap_b32 v{ST}, v{ST+1}
    v_permlane32_swap_b32 v{ST+2}, v{ST+3}
    v_add_f32 v{ST}, v{ST}, v{ST+1}
    v_add_f32 v{ST+3}, v{ST+2}, v{ST+3}
    v_mul_f32 v{ST+2}, {f32(1.0/448)}, v{ST}
    v_mul_f32 v{ST+3}, {f32(1.0/448)}, v{ST+3}
    v_fma_f32 v{ST+3}, -v{ST+2}, v{ST+2}, v{ST+3}
    v_max_f32 v{ST+3}, 0, v{ST+3}
    v_add_f32 v{t}, {f32(EPS)}, v{ST+3}
    v_rsq_f32 v{t+1}, v{t}
    v_mul_f32 v{t+2}, v{t+1}, v{t+1}
    v_mul_f32 v{t+2}, v{t+2}, v{ST+3}
    v_add_f32 v{t+2}, {f32(EPS)}, v{t+2}
    v_rsq_f32 v{ST}, v{t+2}
    v_mul_f32 v{ST}, v{ST}, v{t+1}
    v_mul_f32 v{t}, v{t}, v{t+2}
    v_sqrt_f32 v{ST+1}, v{t}
    ''')
    P.D(f'ds_write_b128 v{vSTA}, v[{ST}:{ST+3}]', 'stw')
    prep_consts(ST, ST + 1, ST + 2)
    P.lg0()
    stamp(P, cfg, 1)
    for p in range(1, 8):
        if p % 2 == 0: P.wait_vm(('w', p // 2))
        P.I('s_barrier')
        if p == 7: break
        if p % 2:
            do_sched(('p', p)); m_phase((p - 1) // 2)
        else: e_phase(p // 2 - 1, ('p', p))
    stamp(P, cfg, 2)
    P.I(f's_branch {after}')

def att_path(P, cfg, after):
    sPP, sHH, sOB, sWC = 74, 75, 76, 77
    AREA = 40960; HALO = 3 * AREA
    AM = HALO + 14336
    HP_LDS = AM
    STR_LDS = AM + 1024
    CS_LDS = AM + 3072
    EX_LDS = AM + 4096
    vWD, vHD = 4, 5
    vXa = [6, 7]; vXs = [8, 9]; vWa = [10, 11]; vWh, vWq = 12, 13; vXh = [14, 15]
    ADV = vXa + vXs + vWa + [vWh, vWq]
    ACC = 16
    AH, CH, CQ, ONES = 64, 68, 72, 76
    FR = 80
    FSZ = 48
    ST = 176; vT = 180
    MKP, MKC, MKP0 = 192, 196, 200
    acc = lambda part, bb, t: ACC + 4 * (part * 4 + bb * 2 + t)
    xdma_addr(P, vT, vT + 1)
    P.I(f'''
    s_and_b32 s{sPP}, s{sWAVE}, 3
    s_lshr_b32 s{sHH}, s{sWAVE}, 2
    s_and_b32 s{sT2}, s{sWAVE}, 1
    s_lshl_b32 s{sT0}, s{sMT}, 7
    s_lshl_b32 s{sT1}, s{sT2}, 3
    s_add_u32 s{sT0}, s{sT0}, s{sT1}
    s_sub_u32 s{sT0}, s{sT0}, 16
    s_mul_i32 s{sT0}, s{sT0}, {XB}
    v_lshrrev_b32 v{vT}, 3, v{vLANE}
    v_mul_u32_u24 v{vT+2}, {XB}, v{vT}
    v_add_u32 v{vT+2}, s{sT0}, v{vT+2}
    v_lshrrev_b32 v{vT+1}, 4, v{vLANE}
    v_xor_b32 v{vT+1}, v{vT+1}, v{vLANE}
    s_lshl_b32 s{sT1}, s{sT2}, 2
    v_xor_b32 v{vT+1}, s{sT1}, v{vT+1}
    v_and_b32 v{vT+1}, 7, v{vT+1}
    v_lshl_add_u32 v{vHD}, v{vT+1}, 4, v{vT+2}
    s_lshl_b32 s{sT0}, s{sWAVE}, 3
    v_add_u32 v{vT}, s{sT0}, v{vT}
    v_mul_u32_u24 v{vT}, {WQS}, v{vT}
    v_lshrrev_b32 v{vT+1}, 3, v{vLANE}
    v_and_b32 v{vT+1}, 2, v{vT+1}
    v_xor_b32 v{vT+1}, s{sT1}, v{vT+1}
    v_xor_b32 v{vT+1}, v{vT+1}, v{vLANE}
    v_and_b32 v{vT+1}, 7, v{vT+1}
    v_min_u32 v{vT+1}, 6, v{vT+1}
    v_lshl_add_u32 v{vWD}, v{vT+1}, 4, v{vT}
    s_mul_i32 s{sWC}, s{sSUB}, 112
    s_waitcnt lgkmcnt(0)
    ''')
    srd(P, sX, 4, 2048 * XB)
    srd(P, sW, 6, 448 * WQS)
    P.I(f'''
    s_lshr_b32 s{sT0}, s{sWAVE}, 1
    s_lshl_b32 s{sT0}, s{sT0}, 7
    s_add_u32 m0, s{sWW}, {HALO}
    ''')
    P.V(f'buffer_load_dwordx4 v{vHD}, s[{sX}:{sX+3}], s{sT0} offen lds', 'halo')
    P.I(f'''
    s_cmp_lt_u32 s{sWAVE}, 6
    s_cselect_b32 s{sT1}, 512, 0
    s_cselect_b32 s{sT2}, 8192, 0
    s_add_u32 s{sT0}, s{sT0}, s{sT1}
    s_add_u32 s{sT2}, s{sT2}, s{sWW}
    s_add_u32 m0, s{sT2}, {HALO}
    ''')
    P.V(f'buffer_load_dwordx4 v{vHD}, s[{sX}:{sX+3}], s{sT0} offen lds', 'halo')
    def dma_chunk(c):
        a = (c % 3) * AREA
        for i in range(2):
            if a + 1024 * i - 128 * c >= 0:
                P.I(f's_add_u32 m0, s{sWX}, {a + 1024*i - 128*c}')
                P.V(f'buffer_load_dwordx4 v{vXD0+i}, s[{sX}:{sX+3}], 0 offen offset:{128*c} lds', ('c', c))
            else:
                P.I(f's_add_u32 m0, s{sWX}, {a + 1024*i}\ns_movk_i32 s{sT0}, {128*c}')
                P.V(f'buffer_load_dwordx4 v{vXD0+i}, s[{sX}:{sX+3}], s{sT0} offen lds', ('c', c))
        for p in range(3):
            P.I(f's_add_u32 m0, s{sWW}, {a + 16384 + p*8192}')
            P.I(f's_add_u32 s{sT0}, s{sWC}, {c*64*WQS + p*896}')
            P.V(f'buffer_load_dwordx4 v{vWD}, s[{sW}:{sW+3}], s{sT0} offen lds', ('c', c))
    for c in range(3): dma_chunk(c)
    stamp(P, cfg, 0)
    srd(P, sWS, 24, WS_SIZE)
    i15, g4 = vT + 4, vT + 5
    P.I(f'''
    v_and_b32 v{i15}, 15, v{vLANE}
    v_lshrrev_b32 v{g4}, 4, v{vLANE}
    v_lshrrev_b32 v{vT}, 1, v{i15}
    v_xor_b32 v{vT}, v{vT}, v{g4}
    v_lshlrev_b32 v{vT}, 4, v{vT}
    v_lshl_add_u32 v{vT}, v{i15}, 7, v{vT}
    v_add_u32 v{vXh[0]}, {HALO}, v{vT}
    v_xor_b32 v{vXh[1]}, 64, v{vXh[0]}
    s_lshl_b32 s{sT0}, s{sPP}, 12
    v_add_u32 v{vXa[0]}, s{sT0}, v{vT}
    v_xor_b32 v{vXa[1]}, 64, v{vXa[0]}
    s_lshl_b32 s{sT0}, s{sHH}, 11
    v_add_u32 v{vXs[0]}, s{sT0}, v{vXa[0]}
    v_add_u32 v{vXs[1]}, s{sT0}, v{vXa[1]}
    v_bfe_u32 v{vT}, v{vLANE}, 2, 2
    v_lshl_add_u32 v{vT+1}, v{g4}, 3, v{vT}
    v_lshlrev_b32 v{vT+1}, 7, v{vT+1}
    v_and_b32 v{vT}, 2, v{vT}
    v_and_b32 v{vT+2}, 1, v{g4}
    v_lshl_add_u32 v{vT}, v{vT+2}, 2, v{vT}
    v_lshlrev_b32 v{vT}, 4, v{vT}
    v_and_b32 v{vT+2}, 3, v{vLANE}
    v_lshlrev_b32 v{vT+2}, 3, v{vT+2}
    s_mul_i32 s{sT0}, s{sHH}, 56
    v_add_u32 v{vT+2}, s{sT0}, v{vT+2}
    v_xor_b32 v{vT+3}, v{vT+2}, v{vT}
    v_add_u32 v{vWa[0]}, v{vT+1}, v{vT+3}
    v_add_u32 v{vT+2}, 32, v{vT+2}
    v_xor_b32 v{vT+3}, v{vT+2}, v{vT}
    v_add_u32 v{vWa[1]}, v{vT+1}, v{vT+3}
    s_and_b32 s{sT0}, s{sPP}, 1
    s_cmp_eq_u32 s{sT0}, 0
    s_cselect_b64 vcc, -1, 0
    v_cndmask_b32 v{vT}, v{vWa[1]}, v{vWa[0]}, vcc
    s_lshr_b32 s{sT0}, s{sPP}, 1
    s_lshl_b32 s{sT1}, s{sT0}, 13
    s_lshl_b32 s{sT0}, s{sT0}, 12
    v_add_u32 v{vWh}, s{sT1}, v{vT}
    v_add_u32 v{vWq}, s{sT0}, v{vT}
    ''')
    for i in range(4): P.I(f'v_mov_b32 v{ONES+i}, 0x3f803f80\nv_mov_b32 v{ST+i}, 0')
    P.I(f'v_lshlrev_b32 v{vT}, 2, v{g4}\nv_sub_u32 v{vT}, v{i15}, v{vT}\nv_mov_b32 v{vT+3}, {f32(NEG)}')
    for v in range(4):
        P.I(f'''
        v_subrev_u32 v{vT+1}, {v}, v{vT}
        v_and_b32 v{vT+2}, 0xfffffff1, v{vT+1}
        v_cmp_eq_u32 vcc, 0, v{vT+2}
        v_cndmask_b32 v{MKC+v}, v{vT+3}, 0, vcc
        v_add_u32 v{vT+1}, 16, v{vT+1}
        v_and_b32 v{vT+2}, 0xfffffff1, v{vT+1}
        v_cmp_eq_u32 vcc, 0, v{vT+2}
        v_cndmask_b32 v{MKP+v}, v{vT+3}, 0, vcc
        ''')
    P.I(f'''
    s_or_b32 s{sT0}, s{sMT}, s{sPP}
    s_cmp_eq_u32 s{sT0}, 0
    s_cselect_b64 vcc, -1, 0
    ''')
    for v in range(4): P.I(f'v_cndmask_b32 v{MKP0+v}, v{MKP+v}, v{vT+3}, vcc')
    P.I(f'''
    s_lshl_b32 s{sT0}, s{sMT}, 2
    s_add_u32 s{sT0}, s{sT0}, s{sPP}
    s_lshl_b32 s{sT0}, s{sT0}, 15
    s_lshl_b32 s{sT1}, s{sSUB}, 1
    s_add_u32 s{sT1}, s{sT1}, s{sHH}
    s_lshl_b32 s{sT1}, s{sT1}, 11
    s_add_u32 s{sOB}, s{sT0}, s{sT1}
    s_add_u32 s{sOB}, s{sOB}, {O_OFF}
    ''')
    def reduce4(a, tmp):
        P.I(f'''
        v_mov_b32 v{tmp}, v{a}
        v_permlane16_swap_b32 v{a}, v{tmp}
        v_add_f32 v{a}, v{a}, v{tmp}
        v_mov_b32 v{tmp}, v{a}
        v_permlane32_swap_b32 v{a}, v{tmp}
        v_add_f32 v{a}, v{a}, v{tmp}
        ''')
    def finish_stats(sm, sq, r, mr, t):
        P.I(f'''
        v_mul_f32 v{sm}, {f32(1.0/448)}, v{sm}
        v_mul_f32 v{sq}, {f32(1.0/448)}, v{sq}
        v_fma_f32 v{sq}, -v{sm}, v{sm}, v{sq}
        v_max_f32 v{sq}, 0, v{sq}
        v_add_f32 v{t}, {f32(EPS)}, v{sq}
        v_rsq_f32 v{r}, v{t}
        v_mul_f32 v{mr}, v{sm}, v{r}
        ''')
    P.wait_vm('halo'); P.I('s_barrier')
    P.I(f'''
    s_and_b32 s{sT0}, s{sWAVE}, 1
    s_lshl_b32 s{sT0}, s{sT0}, 6
    s_lshr_b32 s{sT1}, s{sWAVE}, 1
    s_lshl_b32 s{sT1}, s{sT1}, 11
    v_xor_b32 v{vT}, s{sT0}, v{vXh[0]}
    v_add_u32 v{vT}, s{sT1}, v{vT}
    s_cmp_lt_u32 s{sWAVE}, 6
    s_cselect_b32 s{sT1}, 8192, 0
    s_cselect_b32 s{sT2}, 1.0, 0
    v_add_u32 v{vT+1}, s{sT1}, v{vT}
    ''')
    P.D(f'ds_read_b128 v[{FR}:{FR+3}], v{vT}', 'h0'); P.D(f'ds_read_b128 v[{FR+4}:{FR+7}], v{vT+1}', 'h1')
    P.lg0()
    for k in range(2):
        for d in range(4):
            P.I(f'v_dot2c_f32_bf16 v{ST+k}, v{FR+4*k+d}, v{ONES}\nv_dot2c_f32_bf16 v{ST+2+k}, v{FR+4*k+d}, v{FR+4*k+d}')
    P.I(f'v_fma_f32 v{ST}, v{ST+1}, s{sT2}, v{ST}\nv_fma_f32 v{ST+1}, v{ST+3}, s{sT2}, v{ST+2}')
    reduce4(ST, vT); reduce4(ST + 1, vT)
    P.I(f'''
    s_lshl_b32 s{sT0}, s{sWAVE}, 3
    s_add_u32 s{sT0}, s{sT0}, {HP_LDS}
    v_lshlrev_b32 v{vT}, 6, v{i15}
    v_add_u32 v{vT}, s{sT0}, v{vT}
    ''')
    P.D(f'ds_write_b64 v{vT}, v[{ST}:{ST+1}]', 'hw')
    for i in range(4): P.I(f'v_mov_b32 v{ST+i}, 0')
    P.I(f's_cmp_lt_u32 s{sPP}, 2\ns_cbranch_scc0 L_att_v')
    st0 = P.state()

    def fr(set_, k): return FR + FSZ * set_ + 4 * k
    def reads(n):
        c, s2 = divmod(n, 2); se = n % 2; L = []
        def b128(k, a, off): L.append(lambda: P.D(f'ds_read_b128 v[{fr(se,k)}:{fr(se,k)+3}], v{a} offset:{off}', ('r', n)))
        def trr(k, a, off):
            L.append(lambda: P.D(f'ds_read_b64_tr_b16 v[{fr(se,k)}:{fr(se,k)+1}], v{a} offset:{off}', ('r', n)))
            L.append(lambda: P.D(f'ds_read_b64_tr_b16 v[{fr(se,k)+2}:{fr(se,k)+3}], v{a} offset:{off+512}', ('r', n)))
        b128(0, vXa[s2], 0); b128(1, vXa[s2], 2048)
        for p in range(3):
            for t in range(2): trr(4 + 2 * p + t, vWa[t], 16384 + p * 8192 + s2 * 4096)
        b128(2, vXh[s2], c * 2048); trr(10, vWh, 16384 + 8192 + s2 * 4096)
        b128(3, vXs[s2], 0)
        if s2 == 0: trr(11, vWq, 16384)
        return L
    def mf(d, a, b, first):
        c = '0' if first else f'v[{d}:{d+3}]'
        return f'v_mfma_f32_16x16x32_bf16 v[{d}:{d+3}], v[{a}:{a+3}], v[{b}:{b+3}], {c}'
    def body(vvar):
        P.wait_vm(('c', 0)); P.lg0(); P.I('s_barrier')
        for f in reads(0): f()
        for n in range(14):
            c, s2 = divmod(n, 2); se = n % 2; first = n == 0
            P.lg0()
            if s2 == 1 and c < 6:
                P.wait_vm(('c', c + 1)); P.I('s_barrier')
                if c + 3 < 7: dma_chunk(c + 3)
                delta = AREA if (c + 1) % 3 else -2 * AREA
                for a in ADV: P.I(f'v_add_u32 v{a}, {delta & 0xffffffff:#x}, v{a}')
            if n == 1:
                P.I(f'v_lshlrev_b32 v{vT}, 6, v{i15}\nv_add_u32 v{vT}, {HP_LDS}, v{vT}')
                for k in range(4): P.D(f'ds_read_b128 v[{204+4*k}:{204+4*k+3}], v{vT} offset:{16*k}', 'hp')
                P.lg0()
                for k in (0, 1):
                    P.I(f'v_add_f32 v{204+k}, v{204+k}, v{206+k}\nv_add_f32 v{208+k}, v{208+k}, v{210+k}\nv_add_f32 v{212+k}, v{212+k}, v{214+k}\nv_add_f32 v{216+k}, v{216+k}, v{218+k}')
                    P.I(f'v_add_f32 v{204+k}, v{204+k}, v{208+k}\nv_add_f32 v{212+k}, v{212+k}, v{216+k}\nv_add_f32 v{204+k}, v{204+k}, v{212+k}')
                finish_stats(204, 205, 206, 207, vT + 1)
                P.I(f'v_lshlrev_b32 v{vT}, 2, v{i15}\nv_add_u32 v{vT}, {STR_LDS}, v{vT}')
                P.D(f'ds_write_b32 v{vT}, v206', 'x'); P.D(f'ds_write_b32 v{vT}, v207 offset:1024', 'x')
            nxt = reads(n + 1) if n < 13 else []
            M = []
            for p in range(3):
                for t in range(2):
                    for bb in range(2):
                        w = fr(se, 4 + 2 * p + t); x = fr(se, bb)
                        M.append(mf(acc(p, bb, t), w, x, first) if p < 2 else mf(acc(p, bb, t), x, w, first))
            M.append(mf(AH, fr(se, 2), fr(se, 10), first) if vvar else mf(AH, fr(se, 10), fr(se, 2), first))
            M.append(mf(CH, ONES, fr(se, 10), first))
            if s2 == 0: M.append(mf(CQ, ONES, fr(se, 11), first))
            for i, m in enumerate(M):
                P.I(m)
                for _ in range(2):
                    if nxt: nxt.pop(0)()
            assert not nxt
            for d in range(4):
                x = fr(se, 3) + d
                P.I(f'v_dot2c_f32_bf16 v{ST+(d&1)}, v{x}, v{ONES}\nv_dot2c_f32_bf16 v{ST+2+(d&1)}, v{x}, v{x}')
        stamp(P, cfg, 1)
        P.I(f'v_add_f32 v{ST}, v{ST}, v{ST+1}\nv_add_f32 v{ST+1}, v{ST+2}, v{ST+3}')
        reduce4(ST, vT); reduce4(ST + 1, vT)
        finish_stats(ST, ST + 1, ST + 2, ST + 3, vT)
        P.I(f'''
        s_lshl_b32 s{sT0}, s{sPP}, 1
        s_add_u32 s{sT0}, s{sT0}, s{sHH}
        s_lshl_b32 s{sT0}, s{sT0}, 6
        s_add_u32 s{sT0}, s{sT0}, {STR_LDS + 64}
        v_lshlrev_b32 v{vT+1}, 2, v{i15}
        v_add_u32 v{vT}, s{sT0}, v{vT+1}
        ''')
        P.D(f'ds_write_b32 v{vT}, v{ST+2}', 'x'); P.D(f'ds_write_b32 v{vT}, v{ST+3} offset:1024', 'x')
        P.I(f'''
        s_lshl_b32 s{sT0}, s{sHH}, 9
        s_lshl_b32 s{sT1}, s{sPP}, 6
        s_add_u32 s{sT0}, s{sT0}, {CS_LDS}
        s_add_u32 s{sT1}, s{sT1}, s{sT0}
        v_add_u32 v{vT}, s{sT1}, v{vT+1}
        ''')
        P.D(f'ds_write_b32 v{vT}, v{CQ}', 'x'); P.D(f'ds_write_b32 v{vT}, v{CH} offset:256', 'x')
        P.lg0(); P.I('s_barrier')
        F = FR
        rL, mL = F, F + 3
        rR, mR = F + 8, F + 20
        csR = F + 32
        csL = F + 56
        csH = F + 58
        P.I(f'''
        s_lshl_b32 s{sT1}, s{sPP}, 7
        s_add_u32 s{sT1}, s{sT1}, {STR_LDS + 64}
        v_add_u32 v{vT}, s{sT1}, v{vT+1}
        v_add_u32 v{vT+2}, {STR_LDS}, v{vT+1}
        v_lshlrev_b32 v{vT+3}, 4, v{g4}
        v_add_u32 v{vT+6}, s{sT1}, v{vT+3}
        v_add_u32 v{vT+7}, {STR_LDS}, v{vT+3}
        v_add_u32 v{vT+8}, s{sT0}, v{vT+3}
        v_add_u32 v{vT+9}, s{sT0}, v{vT+1}
        s_lshl_b32 s{sT1}, s{sPP}, 6
        v_add_u32 v{vT+10}, s{sT1}, v{vT+9 if vvar else vT+8}
        ''')
        for bb in range(2):
            P.D(f'ds_read_b32 v{rL+bb}, v{vT} offset:{64*bb}', 'a'); P.D(f'ds_read_b32 v{mL+bb}, v{vT} offset:{1024+64*bb}', 'a')
        for e in range(6): P.D(f'ds_read_b128 v[{csR+4*e}:{csR+4*e+3}], v{vT+8} offset:{64*e}', 'a')
        P.lg0()
        for bb in range(2):
            P.D(f'ds_read_b128 v[{rR+4*bb}:{rR+4*bb+3}], v{vT+6} offset:{64*bb}', 'b'); P.D(f'ds_read_b128 v[{mR+4*bb}:{mR+4*bb+3}], v{vT+6} offset:{1024+64*bb}', 'b')
        for t in range(2): P.D(f'ds_read_b32 v{csL+t}, v{vT+9} offset:{64*(6+t)}', 'b')
        if vvar:
            P.D(f'ds_read_b128 v[{rR+8}:{rR+11}], v{vT+7}', 'b'); P.D(f'ds_read_b128 v[{mR+8}:{mR+11}], v{vT+7} offset:1024', 'b')
            P.D(f'ds_read_b32 v{csH}, v{vT+10} offset:256', 'b')
        else:
            P.D(f'ds_read_b32 v{rL+2}, v{vT+2}', 'b'); P.D(f'ds_read_b32 v{mL+2}, v{vT+2} offset:1024', 'b')
            P.D(f'ds_read_b128 v[{csH}:{csH+3}], v{vT+10} offset:256', 'b')
        for e in range(8): P.I(f'v_add_f32 v{csR+e}, v{csR+e}, v{csR+8+e}')
        QOP = F + 64; KOP = F + 72
        VOP = F + 84
        qs = 28 ** -0.5 * LOG2E
        rq, mq = 204, 208
        P.I(f'v_cmp_gt_u32 vcc, 48, v{vLANE}')
        for bb in range(2):
            P.I(f'''
            v_mul_f32 v{rq+2*bb}, {f32(qs)}, v{rL+bb}
            v_mul_f32 v{mq+2*bb}, {f32(qs)}, v{mL+bb}
            v_cndmask_b32 v{rq+2*bb+1}, 0, v{rq+2*bb}, vcc
            v_cndmask_b32 v{mq+2*bb+1}, 0, v{mq+2*bb}, vcc
            ''')
        def fold_T(a, r, m, cs, dst):
            for v in range(4): P.I(f'v_mul_f32 v{vT+v}, v{m}, v{cs+v}')
            for v in range(4): P.I(f'v_fma_f32 v{a+v}, v{a+v}, v{r}, -v{vT+v}')
            P.I(f'v_cvt_pk_bf16_f32 v{dst}, v{a}, v{a+1}\nv_cvt_pk_bf16_f32 v{dst+1}, v{a+2}, v{a+3}')
        def fold_N(a, r, m, cs, dst):
            for v in range(4): P.I(f'v_mul_f32 v{vT+v}, v{m+v}, v{cs}')
            for v in range(4): P.I(f'v_fma_f32 v{a+v}, v{a+v}, v{r+v}, -v{vT+v}')
            P.I(f'v_cvt_pk_bf16_f32 v{dst}, v{a}, v{a+1}\nv_cvt_pk_bf16_f32 v{dst+1}, v{a+2}, v{a+3}')
        P.I(f'''
        s_mul_i32 s{sT0}, s{sHH}, 10240
        s_add_u32 s{sT0}, s{sT0}, {EX_LDS}
        s_lshl_b32 s{sT1}, s{sPP}, 11
        s_add_u32 s{sT1}, s{sT1}, s{sT0}
        v_lshlrev_b32 v{vT+6}, 4, v{vLANE}
        v_add_u32 v{vT+7}, s{sT1}, v{vT+6}
        s_and_b32 s{sT1}, s{sPP}, 1
        s_lshl_b32 s{sT1}, s{sT1}, 3
        s_add_u32 s{sT1}, s{sT1}, s{sT0}
        v_add_u32 v{vT+8}, s{sT1}, v{vT+6}
        ''')
        for t in range(2): fold_T(acc(1, 1, t), rL + 1, mL + 1, csR + 16 + 4 * t, KOP + 8 + 2 * t)
        P.D(f'ds_write_b128 v{vT+7}, v[{KOP+8}:{KOP+11}] offset:2048', 'x')
        P.wait_lg('b')
        for t in range(2): fold_N(acc(2, 1, t), rR + 4, mR + 4, csL + t, VOP + 6 * t + 4)
        for t in range(2): P.D(f'ds_write_b64 v{vT+7}, v[{VOP+6*t+4}:{VOP+6*t+5}] offset:{2048+1024+8*t}', 'x')
        if vvar:
            fold_N(AH, rR + 8, mR + 8, csH, vT + 10)
            P.D(f'ds_write_b64 v{vT+8}, v[{vT+10}:{vT+11}] offset:1024', 'x')
        else:
            fold_T(AH, rL + 2, mL + 2, csH, vT + 10)
            P.D(f'ds_write_b64 v{vT+8}, v[{vT+10}:{vT+11}]', 'x')
        for t in range(2): fold_T(acc(1, 0, t), rL, mL, csR + 16 + 4 * t, KOP + 4 + 2 * t)
        for t in range(2): fold_N(acc(2, 0, t), rR, mR, csL + t, VOP + 6 * t + 2)
        P.lg0(); P.I('s_barrier')
        P.D(f'ds_read_b128 v[{KOP}:{KOP+3}], v{vT+7}', 'e')
        for t in range(2): P.D(f'ds_read_b64 v[{VOP+6*t}:{VOP+6*t+1}], v{vT+7} offset:{1024+8*t}', 'e')
        for bb in range(2):
            for t in range(2): fold_T(acc(0, bb, t), rq + 2 * bb + t, mq + 2 * bb + t, csR + 4 * t, QOP + 4 * bb + 2 * t)
        vO = vT + 9
        P.I(f'''
        v_lshlrev_b32 v{vO}, 9, v{g4}
        v_lshl_add_u32 v{vO}, v{i15}, 4, v{vO}
        ''')
        P.lg0()
        S = ACC
        for bb in range(2):
            mp = MKP0 if bb == 0 else MKP
            P.I(f'v_mfma_f32_16x16x32_bf16 v[{S+8*bb}:{S+8*bb+3}], v[{KOP+4*bb}:{KOP+4*bb+3}], v[{QOP+4*bb}:{QOP+4*bb+3}], v[{mp}:{mp+3}]')
            P.I(f'v_mfma_f32_16x16x32_bf16 v[{S+8*bb+4}:{S+8*bb+7}], v[{KOP+4*bb+4}:{KOP+4*bb+7}], v[{QOP+4*bb}:{QOP+4*bb+3}], v[{MKC}:{MKC+3}]')
        PP = ACC + 16; OO = ACC + 24
        mx = [vT, vT + 2]
        for bb in range(2):
            s = S + 8 * bb; m = mx[bb]
            P.I(f'''
            v_max3_f32 v{m}, v{s}, v{s+1}, v{s+2}
            v_max3_f32 v{m+1}, v{s+3}, v{s+4}, v{s+5}
            v_max3_f32 v{m}, v{m}, v{s+6}, v{s+7}
            v_max_f32 v{m}, v{m}, v{m+1}
            v_mov_b32 v{m+1}, v{m}
            ''')
        for bb in range(2): P.I(f'v_permlane16_swap_b32 v{mx[bb]}, v{mx[bb]+1}')
        for bb in range(2): P.I(f'v_max_f32 v{mx[bb]}, v{mx[bb]}, v{mx[bb]+1}\nv_mov_b32 v{mx[bb]+1}, v{mx[bb]}')
        for bb in range(2): P.I(f'v_permlane32_swap_b32 v{mx[bb]}, v{mx[bb]+1}')
        for bb in range(2): P.I(f'v_max_f32 v{mx[bb]}, v{mx[bb]}, v{mx[bb]+1}')
        for bb in range(2):
            s = S + 8 * bb
            for v in range(8): P.I(f'v_sub_f32 v{s+v}, v{s+v}, v{mx[bb]}')
            for v in range(8): P.I(f'v_exp_f32 v{s+v}, v{s+v}')
            for v in range(4): P.I(f'v_cvt_pk_bf16_f32 v{PP+4*bb+v}, v{s+2*v}, v{s+2*v+1}')
        for bb in range(2):
            o = OO + 12 * bb; p = PP + 4 * bb
            P.I(f'v_mfma_f32_16x16x32_bf16 v[{o+8}:{o+11}], v[{ONES}:{ONES+3}], v[{p}:{p+3}], 0')
            for t in range(2):
                a = VOP + 6 * t + 2 * bb
                P.I(f'v_mfma_f32_16x16x32_bf16 v[{o+4*t}:{o+4*t+3}], v[{a}:{a+3}], v[{p}:{p+3}], 0')
        for bb in range(2):
            o = OO + 12 * bb
            P.I(f'v_rcp_f32 v{o+8}, v{o+8}')
            P.I(f'v_cndmask_b32 v{o+9}, 0, v{o+8}, vcc')
            for v in range(4): P.I(f'v_mul_f32 v{o+v}, v{o+v}, v{o+8}')
            for v in range(4): P.I(f'v_mul_f32 v{o+4+v}, v{o+4+v}, v{o+9}')
            for v in range(4): P.I(f'v_cvt_pk_bf16_f32 v{PP+4*bb+v}, v{o+2*v}, v{o+2*v+1}')
            P.V(f'buffer_store_dwordx4 v[{PP+4*bb}:{PP+4*bb+3}], v{vO}, s[{sWS}:{sWS+3}], s{sOB} offen offset:{256*bb}{cfg.sc}', 'st')
        stamp(P, cfg, 2)
        P.I(f's_branch {after}')
    body(False)
    P.restore(st0)
    P.label('L_att_v')
    body(True)

def stage2(P, cfg, endlabel):
    sM2, sN2, sKQ, sTT, sHB, sOB2, sLD, sRW = 74, 75, 76, 77, 78, 79, 27, 26
    vWD, vH = 2, 3; vA = [4, 5]; vT = 6
    WR = 16
    AM, AS = 144, 176
    HR = 208; NH = 8
    XR = 240; B2R = 244
    WL = 16
    NR = 16
    P.I(f'''
    s_cmp_ge_u32 s{sJ}, 28
    s_cbranch_scc1 {endlabel}
    s_mul_i32 s{sT0}, s{sJ}, 37
    s_lshr_b32 s{sT0}, s{sT0}, 8
    s_mul_i32 s{sT1}, s{sT0}, 7
    s_sub_u32 s{sN2}, s{sJ}, s{sT1}
    s_lshl_b32 s{sM2}, s{sXCD}, 2
    s_add_u32 s{sM2}, s{sM2}, s{sT0}
    s_lshr_b32 s{sKQ}, s{sWAVE}, 1
    s_and_b32 s{sTT}, s{sWAVE}, 1
    v_lshrrev_b32 v{vT}, 3, v{vLANE}
    s_lshl_b32 s{sT0}, s{sTT}, 3
    v_add_u32 v{vT}, s{sT0}, v{vT}
    v_mul_u32_u24 v{vT}, {XB}, v{vT}
    v_lshrrev_b32 v{vT+1}, 2, v{vLANE}
    v_and_b32 v{vT+1}, 4, v{vT+1}
    v_xor_b32 v{vT+1}, v{vT+1}, v{vLANE}
    v_and_b32 v{vT+1}, 7, v{vT+1}
    v_lshl_add_u32 v{vWD}, v{vT+1}, 4, v{vT}
    s_lshl_b32 s{sT0}, s{sN2}, 7
    v_add_u32 v{vWD}, s{sT0}, v{vWD}
    v_lshlrev_b32 v{vH}, 4, v{vLANE}
    ''')
    if not cfg.fused:
        P.I('s_waitcnt lgkmcnt(0)')
        srd(P, sX, 4, 2048 * XB); srd(P, sWS, 24, WS_SIZE)
    srd(P, sWO, 8, 448 * XB); srd(P, sW2, 16, 1792 * XB); srd(P, sOUT, 20, 2048 * XB); srd(P, sB2, 18, 896)
    P.I(f'''
    v_lshrrev_b32 v{vT}, 5, v{vLANE}
    v_lshlrev_b32 v{vT}, 2, v{vT}
    v_bfe_u32 v{vT+1}, v{vLANE}, 2, 2
    v_add_u32 v{vT}, v{vT}, v{vT+1}
    v_lshlrev_b32 v{vT}, 7, v{vT}
    v_and_b32 v{vT+1}, 16, v{vLANE}
    v_lshlrev_b32 v{vT+1}, 1, v{vT+1}
    v_and_b32 v{vT+2}, 3, v{vLANE}
    v_lshl_add_u32 v{vT+1}, v{vT+2}, 3, v{vT+1}
    v_and_b32 v{vT+2}, 8, v{vLANE}
    v_lshlrev_b32 v{vT+2}, 3, v{vT+2}
    v_xor_b32 v{vT+1}, v{vT+1}, v{vT+2}
    v_add_u32 v{vT}, v{vT}, v{vT+1}
    s_lshl_b32 s{sT0}, s{sKQ}, 15
    v_add_u32 v{vA[0]}, s{sT0}, v{vT}
    v_xor_b32 v{vA[1]}, 64, v{vA[0]}
    s_lshl_b32 s{sT1}, s{sTT}, 10
    s_add_u32 s{sLD}, s{sT0}, s{sT1}
    s_lshl_b32 s{sT0}, s{sM2}, 1
    s_add_u32 s{sT0}, s{sT0}, s{sTT}
    s_mul_i32 s{sHB}, s{sT0}, {112*1024}
    s_lshl_b32 s{sOB2}, s{sT0}, 15
    s_add_u32 s{sOB2}, s{sOB2}, {O_OFF}
    s_mul_i32 s{sT1}, s{sKQ}, {36*1024}
    s_sub_u32 s{sT1}, s{sT1}, {32*1024}
    s_mul_i32 s{sRW}, s{sKQ}, {576*XB}
    s_sub_u32 s{sRW}, s{sRW}, {512*XB}
    ''')
    vO = 248
    P.I(f'''
    v_and_b32 v{vT+1}, 31, v{vLANE}
    s_lshl_b32 s{sT0}, s{sT0}, 5
    v_add_u32 v{vT+1}, s{sT0}, v{vT+1}
    v_mul_u32_u24 v{vT+1}, {XB}, v{vT+1}
    v_lshrrev_b32 v{vT+2}, 5, v{vLANE}
    v_lshlrev_b32 v{vT+2}, 4, v{vT+2}
    s_lshl_b32 s{sT0}, s{sN2}, 7
    s_lshl_b32 s{sT2}, s{sKQ}, 5
    s_add_u32 s{sT0}, s{sT0}, s{sT2}
    v_add_u32 v{vT+2}, s{sT0}, v{vT+2}
    v_add_u32 v{vO}, v{vT+1}, v{vT+2}
    s_cmp_eq_u32 s{sKQ}, 0
    s_cbranch_scc1 L_s2_k0
    s_add_u32 s{sHB}, s{sHB}, s{sT1}
    ''')
    st0 = P.state()
    def dma(srdn, rowoff_expr_imm, rowreg, lds_imm, tag):
        P.I(f's_add_u32 m0, s{sLD}, {lds_imm}')
        if rowreg is None: P.I(f's_mov_b32 s{sT0}, {rowoff_expr_imm}')
        else: P.I(f's_add_u32 s{sT0}, s{rowreg}, {rowoff_expr_imm}')
        P.V(f'buffer_load_dwordx4 v{vWD}, s[{srdn}:{srdn+3}], s{sT0} offen lds', tag)
    def body(k0):
        lab = 'k0' if k0 else 'kn'
        steps = []
        if k0:
            for i in range(4): steps.append(('h', i * 1024, 176 + 16 * i, 1024))
            for e in range(32):
                row = 28 * (e >> 1) + 8 * (e & 1)
                steps.append(('o', e * 1024, row if e < 12 else row - 168, 2048))
            for ii in range(11): dma(sWO, 16 * ii * XB, None, 2048 * ii, 'R')
            for ii in range(4): dma(sW2, 16 * ii * XB, None, 2048 * (11 + ii), 'R')
        else:
            for i in range(36): steps.append(('h', i * 1024, 16 * i if i < NR else 16 * (i - NR), 1024))
            for ii in range(16): dma(sW2, 16 * ii * XB, sRW, 2048 * ii, 'R')
        P.V(f'buffer_load_dwordx4 v[{XR}:{XR+3}], v{vO}, s[{sX}:{sX+3}], 0 offen', 'xr')
        P.V(f'buffer_load_dwordx4 v[{B2R}:{B2R+3}], v{vT+2}, s[{sB2}:{sB2+3}], 0 offen', 'xr')
        def hload(i):
            if i >= 36: return
            kind, go, _, _ = steps[i]
            base = sHB if kind == 'h' else sOB2
            d = HR + 4 * (i % NH)
            P.I(f's_add_u32 s{sT1}, s{base}, {go & ~4095}')
            P.V(f'buffer_load_dwordx4 v[{d}:{d+3}], v{vH}, s[{sWS}:{sWS+3}], s{sT1} offen offset:{go & 4095}{cfg.sc}', ('h', i))
        if not cfg.fused:
            for i in range(NH): hload(i)
        P.wait_vm('R'); P.I('s_barrier')
        def trr(dst, i, tag):
            _, _, row, dl = steps[i]
            for j in range(2):
                P.D(f'ds_read_b64_tr_b16 v[{dst+4*j}:{dst+4*j+1}], v{vA[j]} offset:{row*128}', tag)
                P.D(f'ds_read_b64_tr_b16 v[{dst+4*j+2}:{dst+4*j+3}], v{vA[j]} offset:{row*128+dl}', tag)
        for i in range(NR): trr(WR + 8 * i, i, 'wr')
        if not k0:
            P.I(f'''
            s_lshl_b32 s{sT0}, s{sKQ}, 13
            s_sub_u32 s{sT0}, s{sT0}, 4096
            s_add_u32 s{sLD}, s{sLD}, s{sT0}
            ''')
        P.lg0(); P.I('s_barrier')
        if not k0: P.I(f'v_add_u32 v{vA[0]}, s{sT0}, v{vA[0]}\nv_add_u32 v{vA[1]}, s{sT0}, v{vA[1]}')
        if k0:
            for ii in range(18): dma(sWO, (168 + 16 * ii) * XB, None, 2048 * ii, 'L')
        else:
            for ii in range(20): dma(sW2, (256 + 16 * ii) * XB, sRW, 2048 * ii, 'L')
        stamp(P, cfg, 3)
        if cfg.fused:
            poll(P, 0, f'h_{lab}', True)
            n0 = 4 if k0 else NH
            for i in range(n0): hload(i)
            if k0:
                poll(P, 1, 'o', False)
                for i in range(4, NH): hload(i)
        stamp(P, cfg, 4)
        seen = {'h': False, 'o': False}
        AHL = 2
        def wl(i): return WL + 8 * ((i - NR) % 4)
        for i in range(36):
            kind = steps[i][0]
            a = AM if kind == 'h' else AS
            if i == NR - AHL:
                P.wait_vm('L'); P.I('s_barrier')
            if NR <= i + AHL < 36: trr(wl(i + AHL), i + AHL, ('wl', i + AHL))
            w = WR + 8 * i if i < NR else wl(i)
            if i >= NR: P.wait_lg(('wl', i))
            P.wait_vm(('h', i))
            b = HR + 4 * (i % NH)
            for j in range(2):
                c = f'v[{a+16*j}:{a+16*j+15}]' if seen[kind] else '0'
                P.I(f'v_mfma_f32_32x32x16_bf16 v[{a+16*j}:{a+16*j+15}], v[{w+4*j}:{w+4*j+3}], v[{b}:{b+3}], {c}')
            seen[kind] = True
            hload(i + NH)
        stamp(P, cfg, 5)
        P.I('s_barrier')
        P.I(f'''
        s_mul_i32 s{sT0}, s{sTT}, 40960
        s_lshl_b32 s{sT1}, s{sKQ}, 11
        s_add_u32 s{sT1}, s{sT1}, s{sT0}
        v_add_u32 v{vT}, s{sT1}, v{vH}
        s_mul_i32 s{sT1}, s{sKQ}, 10240
        s_add_u32 s{sT1}, s{sT1}, s{sT0}
        v_add_u32 v{vT+1}, s{sT1}, v{vH}
        ''')
        for p in range(4):
            for q in range(2):
                r = AM + 8 * p + 4 * q
                P.D(f'ds_write_b128 v{vT}, v[{r}:{r+3}] offset:{10240*p + 1024*q}', 'rw')
        if k0:
            for p in range(4):
                for q in range(2):
                    r = AS + 8 * p + 4 * q
                    P.D(f'ds_write_b128 v{vT}, v[{r}:{r+3}] offset:{10240*p + 8192 + 1024*q}', 'rw')
        P.lg0(); P.I('s_barrier')
        P.I('s_branch L_s2_fin')
    body(False)
    P.restore(st0)
    P.label('L_s2_k0')
    body(True)
    P.label('L_s2_fin')
    RD = 16
    for src in range(5):
        for q in range(2):
            r = RD + 8 * src + 4 * q
            P.D(f'ds_read_b128 v[{r}:{r+3}], v{vT+1} offset:{2048*src + 1024*q}', 'rr')
    P.vm0()
    P.I(f'''
    v_permlane32_swap_b32 v{XR}, v{XR+2}
    v_permlane32_swap_b32 v{XR+1}, v{XR+3}
    v_permlane32_swap_b32 v{B2R}, v{B2R+2}
    v_permlane32_swap_b32 v{B2R+1}, v{B2R+3}
    ''')
    XF, BF, G = 64, 72, 80
    for d in range(4):
        P.I(f'v_lshlrev_b32 v{XF+2*d}, 16, v{XR+d}\nv_and_b32 v{XF+2*d+1}, 0xffff0000, v{XR+d}')
        P.I(f'v_lshlrev_b32 v{BF+2*d}, 16, v{B2R+d}\nv_and_b32 v{BF+2*d+1}, 0xffff0000, v{B2R+d}')
    P.lg0()
    for e in range(8): P.I(f'v_add_f32 v{RD+e}, v{RD+e}, v{RD+8+e}')
    for e in range(8): P.I(f'v_add_f32 v{RD+16+e}, v{RD+16+e}, v{RD+24+e}')
    for e in range(8): P.I(f'v_add_f32 v{BF+e}, v{BF+e}, v{RD+e}')
    for e in range(8): P.I(f'v_add_f32 v{BF+e}, v{BF+e}, v{RD+16+e}')
    for e in range(8): P.I(f'v_mul_f32 v{G+e}, {f32(-LOG2E)}, v{BF+e}')
    for e in range(8): P.I(f'v_exp_f32 v{G+e}, v{G+e}')
    for e in range(8): P.I(f'v_add_f32 v{G+e}, 1.0, v{G+e}')
    for e in range(8): P.I(f'v_rcp_f32 v{G+e}, v{G+e}')
    for e in range(8): P.I(f'v_mul_f32 v{G+e}, v{G+e}, v{BF+e}')
    for e in range(8): P.I(f'v_fma_f32 v{G+e}, v{G+e}, v{RD+32+e}, v{XF+e}')
    for d in range(4): P.I(f'v_cvt_pk_bf16_f32 v{XR+d}, v{G+2*d}, v{G+2*d+1}')
    P.I(f'v_permlane32_swap_b32 v{XR}, v{XR+2}\nv_permlane32_swap_b32 v{XR+1}, v{XR+3}')
    P.V(f'buffer_store_dwordx4 v[{XR}:{XR+3}], v{vO}, s[{sOUT}:{sOUT+3}], 0 offen', 'out')
    stamp(P, cfg, 6)

def poll(P, which, lab, wg_barrier):
    raise NotImplementedError

def prof_dump(P, cfg, n, slot):
    if not cfg.prof: return
    P.I('s_waitcnt lgkmcnt(0)')
    P.I(f'''
    s_lshl_b32 s{sT0}, s2, 3
    s_add_u32 s{sT0}, s{sT0}, s{sWAVE}
    s_lshl_b32 s{sT0}, s{sT0}, 6
    s_add_u32 s{sT0}, s{sT0}, {0x1000000 + slot * 0x100000}
    s_mov_b32 s{sWS+2}, 0x2000000
    v_mov_b32 v1, 0
    ''')
    for i in range(n):
        P.I(f'v_mov_b32 v2, s{80+2*i}')
        P.I(f'buffer_store_dword v2, v1, s[{sWS}:{sWS+3}], s{sT0} offen offset:{4*i}')

def kd(name, vg=256, sg=102):
    return f'''.p2align 6
.amdhsa_kernel {name}
  .amdhsa_next_free_vgpr {vg}
  .amdhsa_next_free_sgpr {sg}
  .amdhsa_accum_offset {vg}
  .amdhsa_group_segment_fixed_size 0
  .amdhsa_kernarg_size 88
  .amdhsa_user_sgpr_count 2
  .amdhsa_user_sgpr_kernarg_segment_ptr 1
  .amdhsa_system_sgpr_workgroup_id_x 1
  .amdhsa_float_denorm_mode_32 3
.end_amdhsa_kernel
'''

def build(cfg):
    hdr = open('cdna_kernels/' + NAME + '.s.ref').read().split('; Override launch')[0]
    out = [hdr]
    kernels = []
    if not cfg.fused:
        out.append('; @launch kernel=stage1_kernel grid=(256,1,1) block=(512,1,1) lds=163840\n')
        out.append('; @launch kernel=stage2_kernel grid=(256,1,1) block=(512,1,1) lds=163840\n')
        P = Prog()
        if cfg.prof: P.I('s_memtime s[96:97]')
        prologue(P, 256, 'L_end1')
        stage1_ids(P)
        P.I(f's_cmp_ge_u32 s{sJ}, 16\ns_cbranch_scc1 L_att')
        st = P.state()
        mlp_path(P, cfg, 'L_s1_done')
        P.restore(st)
        P.label('L_att')
        att_path(P, cfg, 'L_s1_done')
        P.label('L_s1_done')
        if cfg.prof:
            P.I('s_waitcnt vmcnt(0)\ns_memtime s[86:87]\ns_mov_b32 s88, s96')
            P.I('s_waitcnt lgkmcnt(0)\ns_mov_b32 s88, s96')
            prof_dump(P, cfg, 5, 0)
        P.label('L_end1')
        P.I('s_endpgm')
        kernels.append(('stage1_kernel', P))
        P = Prog()
        if cfg.prof: P.I('s_memtime s[80:81]')
        prologue(P, 256, 'L_end2')
        stage2(P, cfg, 'L_end2')
        if cfg.prof:
            P.I('s_waitcnt vmcnt(0)\ns_memtime s[94:95]')
            prof_dump(P, cfg, 8, 1)
        P.label('L_end2')
        P.I('s_endpgm')
        kernels.append(('stage2_kernel', P))
    out.append('.amdgcn_target "amdgcn-amd-amdhsa--gfx950"\n.text\n')
    for name, P in kernels:
        out.append(f'.globl {name}\n.p2align 8\n.type {name},@function\n{name}:\n')
        for l in fix_hazards(P.L):
            out.append(l + '\n' if l.endswith(':') else '    ' + l + '\n')
    out.append('.section .rodata,"a"\n')
    for name, _ in kernels: out.append(kd(name))
    return ''.join(out)

if __name__ == '__main__':
    ap = argparse.ArgumentParser()
    ap.add_argument('-o', default='cdna_kernels/' + NAME + '.s')
    ap.add_argument('--prof', action='store_true')
    ap.add_argument('--fused', action='store_true')
    a = ap.parse_args()
    cfg = Cfg(); cfg.prof = a.prof; cfg.fused = a.fused
    open(a.o, 'w').write(build(cfg))
```

```python
import sys, math, argparse
from asmlib import *

NAME = 'recurrent_scan__sliding_local_dilated__mixer_channel_mlp__prompt'
XB = 896; W1S = 3584; WQS = 2688
H_OFF = 0; O_OFF = 0x700000; CNT_OFF = 0x900000; WS_SIZE = 0x910000
SLOT = 8192; MISC = 19 * SLOT
EPS = 1e-5
LOG2E = 1.4426950408889634
GK0 = -2.0 * LOG2E * math.sqrt(2.0 / math.pi)
GK1 = GK0 * 0.044715
NEG = -1e30
SPIN = 400000

sX, sW, sWS, sB1, sWO, sW2, sOUT, sB2, sDBG = 28, 32, 36, 40, 44, 48, 52, 56, 60
sWAVE, sXCD, sJ, sMT, sSUB, sT0, sT1, sT2, sWX, sWW = 64, 65, 66, 67, 68, 69, 70, 71, 72, 73

def srd(P, d, ptr, size):
    P.I(f's_mov_b32 s{d}, s{ptr}\ns_mov_b32 s{d+1}, s{ptr+1}\ns_mov_b32 s{d+2}, {size}\ns_mov_b32 s{d+3}, 0x20000')

class Cfg:
    fused = False
    sc = ' sc1'
    prof = False
    paths = []
    def path_id(self, names):
        self.paths.append(list(names)); return len(self.paths) - 1

def stamp(P, cfg, name=None):
    if not cfg.prof: return
    i = P.nst; P.nst += 1
    P.names.append(name)
    if i >= 2: P.I(f'v_writelane_b32 v{P.pv}, s{80+2*((i-2)%4)}, {i-2}')
    P.I(f's_memtime s[{80+2*(i%4)}:{81+2*(i%4)}]')

def stamp_flush(P, cfg):
    if not cfg.prof: return
    P.I('s_waitcnt lgkmcnt(0)')
    for i in range(max(0, P.nst - 2), P.nst): P.I(f'v_writelane_b32 v{P.pv}, s{80+2*(i%4)}, {i}')
    P.I(f'v_writelane_b32 v{P.pv}, {cfg.path_id(P.names)}, 63')
    P.nst = 0; P.names = []

def prologue(P, nwg, endlabel):
    P.I(f'''
    s_cmp_ge_u32 s2, {nwg}
    s_cbranch_scc1 {endlabel}
    s_load_dwordx16 s[4:19], s[0:1], 0
    s_load_dwordx4 s[20:23], s[0:1], 64
    s_load_dwordx2 s[24:25], s[0:1], 80
    v_lshrrev_b32 v2, 6, v0
    v_and_b32 v1, 63, v0
    v_readfirstlane_b32 s{sWAVE}, v2
    s_and_b32 s{sXCD}, s2, 7
    s_lshr_b32 s{sJ}, s2, 3
    ''')

def stage1_ids(P):
    P.I(f'''
    s_lshr_b32 s{sT0}, s{sXCD}, 2
    s_lshl_b32 s{sT0}, s{sT0}, 3
    s_bfe_u32 s{sT1}, s{sJ}, 0x30001
    s_add_u32 s{sMT}, s{sT0}, s{sT1}
    s_and_b32 s{sT0}, s{sXCD}, 3
    s_lshl_b32 s{sT0}, s{sT0}, 1
    s_and_b32 s{sT1}, s{sJ}, 1
    s_add_u32 s{sSUB}, s{sT0}, s{sT1}
    s_lshl_b32 s{sWX}, s{sWAVE}, 11
    s_lshl_b32 s{sWW}, s{sWAVE}, 10
    ''')

vFLAG = 253
def init_zero(P, cfg, t):
    if not cfg.fused: return
    srd(P, sWS, 24, WS_SIZE); srd(P, sDBG, 22, 256)
    P.I(f'''
    s_or_b32 s{sT0}, s2, s{sWAVE}
    s_cmp_eq_u32 s{sT0}, 0
    s_cbranch_scc0 L_noinit
    v_lshlrev_b32 v{t}, 7, v{vLANE}
    v_mov_b32 v{t+1}, 0
    s_mov_b32 s{sT0}, {CNT_OFF}
    buffer_store_dword v{t+1}, v{t}, s[{sWS}:{sWS+3}], s{sT0} offen sc1
    L_noinit:
    ''')
def init_flag(P, cfg, t, lab):
    if not cfg.fused: return
    P.I(f'''
    s_or_b32 s{sT0}, s2, s{sWAVE}
    s_cmp_eq_u32 s{sT0}, 0
    s_cbranch_scc0 L_noflag{lab}
    v_mov_b32 v{t}, 0
    v_mov_b32 v{t+1}, 1
    buffer_store_dword v{t+1}, v{t}, s[{sDBG}:{sDBG+3}], 0 offen sc1
    L_noflag{lab}:
    ''')
def flag_prefetch(P, cfg):
    if not cfg.fused: return
    P.V(f'buffer_load_dword v{vFLAG}, off, s[{sDBG}:{sDBG+3}], 0 sc1', 'flag')
def publish(P, cfg, which, lab):
    if not cfg.fused: return
    P.wait_vm('st', 'flag')
    P.I('s_barrier')
    P.I(f'''
    v_readfirstlane_b32 s{sT0}, v{vFLAG}
    s_cmp_lg_u32 s{sT0}, 0
    s_cbranch_scc1 L_fok{lab}
    s_mov_b32 s{sT2}, {SPIN}
    L_fw{lab}:
    buffer_load_dword v{vFLAG}, off, s[{sDBG}:{sDBG+3}], 0 sc1
    s_sub_u32 s{sT2}, s{sT2}, 1
    s_cbranch_scc1 L_fok{lab}
    s_waitcnt vmcnt(0)
    v_readfirstlane_b32 s{sT0}, v{vFLAG}
    s_cmp_lg_u32 s{sT0}, 0
    s_cbranch_scc0 L_fw{lab}
    L_fok{lab}:
    s_cmp_eq_u32 s{sWAVE}, 0
    s_cbranch_scc0 L_np{lab}
    s_lshl_b32 s{sT0}, s{sMT}, 7
    s_add_u32 s{sT0}, s{sT0}, {CNT_OFF + which * 2048}
    v_mov_b32 v{vFLAG}, 1
    s_mov_b64 exec, 1
    buffer_atomic_add v{vFLAG}, off, s[{sWS}:{sWS+3}], s{sT0} sc1
    s_mov_b64 exec, -1
    L_np{lab}:
    ''')

vLANE, vXD0, vXD1 = 1, 2, 3
def xdma_addr(P, t0, t1):
    P.I(f'''
    s_lshl_b32 s{sT0}, s{sMT}, 7
    s_lshl_b32 s{sT1}, s{sWAVE}, 4
    s_add_u32 s{sT0}, s{sT0}, s{sT1}
    v_lshrrev_b32 v{t0}, 3, v{vLANE}
    v_add_u32 v{t0}, s{sT0}, v{t0}
    v_mul_u32_u24 v{t0}, {XB}, v{t0}
    v_lshrrev_b32 v{t1}, 4, v{vLANE}
    v_xor_b32 v{t1}, v{t1}, v{vLANE}
    v_and_b32 v{t1}, 7, v{t1}
    v_lshl_add_u32 v{vXD0}, v{t1}, 4, v{t0}
    v_xor_b32 v{t1}, 4, v{t1}
    v_add_u32 v{t0}, {8*XB}, v{t0}
    v_lshl_add_u32 v{vXD1}, v{t1}, 4, v{t0}
    ''')

def dma_x(P, c, base, tag):
    for i in range(2):
        P.I(f's_add_u32 m0, s{sWX}, {base + 1024*i - 128*c}')
        P.V(f'buffer_load_dwordx4 v{vXD0+i}, s[{sX}:{sX+3}], 0 offen offset:{128*c} lds', tag)

def mlp_path(P, cfg, after):
    sCOLP, sCOLS, sHP, sHSG, sBP, sBS, sG = 74, 75, 76, 77, 78, 79, 27
    vWD, vWDs = 4, 5
    vWa = [6, 7, 8]; vWc = [9, 10, 11]; vXa = [12, 13, 14, 15]
    XF = 16; ACC = 128; WF = 144; NWF = 5; WCS = 164; CSA = 168; SEL = 172; BX = 176; AX = 180
    vK0, vK1, vRI = 184, 185, 186; BR = 187; U = 192; PK = 208; vHS = 216; vT = 217; ST = 220; vONE = 224
    vCSW, vCSR, vSTA = 225, 226, 227; T4 = 228
    CS_LDS = MISC; ST_LDS = MISC + 1024
    xdma_addr(P, vT, vT + 1)
    P.I(f'''
    s_lshr_b32 s{sG}, s{sWAVE}, 2
    s_and_b32 s{sT2}, s{sSUB}, 1
    s_mul_i32 s{sT0}, s{sSUB}, 448
    s_lshl_b32 s{sT1}, s{sT2}, 6
    s_add_u32 s{sCOLP}, s{sT0}, s{sT1}
    s_add_u32 s{sCOLS}, s{sT0}, 384
    s_sub_u32 s{sBS}, s{sT0}, 64
    s_cmp_eq_u32 s{sT2}, 0
    s_cselect_b32 s{sCOLS}, s{sCOLS}, s{sBS}
    s_add_u32 s{sBS}, s{sCOLS}, s{sT1}
    v_lshrrev_b32 v{vT}, 3, v{vLANE}
    s_lshl_b32 s{sT0}, s{sWAVE}, 3
    v_add_u32 v{vT}, s{sT0}, v{vT}
    v_mul_u32_u24 v{vT}, {W1S}, v{vT}
    v_lshrrev_b32 v{vT+1}, 2, v{vLANE}
    v_and_b32 v{vT+1}, 4, v{vT+1}
    v_xor_b32 v{vT+1}, v{vT+1}, v{vLANE}
    v_and_b32 v{vT+1}, 7, v{vT+1}
    v_lshl_add_u32 v{vWD}, v{vT+1}, 4, v{vT}
    v_xor_b32 v{vWDs}, s{sT1}, v{vWD}
    s_waitcnt lgkmcnt(0)
    ''')
    srd(P, sX, 4, 2048 * XB)
    srd(P, sW, 12, 448 * W1S)
    init_zero(P, cfg, vT)

    def dma_w(blk, c, slot, tag):
        P.I(f's_add_u32 m0, s{sWW}, {slot*SLOT}')
        if blk < 3:
            P.I(f's_add_u32 s{sT0}, s{sCOLP}, {c*64*W1S + 128*blk}')
            P.V(f'buffer_load_dwordx4 v{vWD}, s[{sW}:{sW+3}], s{sT0} offen lds', tag)
        else:
            P.I(f's_add_u32 s{sT0}, s{sCOLS}, {c*64*W1S}')
            P.V(f'buffer_load_dwordx4 v{vWDs}, s[{sW}:{sW+3}], s{sT0} offen lds', tag)

    wslot = {}
    xbase = {}
    for c in range(7): wslot[(0, c)] = c
    for c in range(6): xbase[c] = (7 + 2 * c) * SLOT
    xbase[6] = xbase[0]
    NI = 3
    for c in range(NI):
        dma_x(P, c, xbase[c], ('c', c))
        dma_w(0, c, c, ('c', c))
    stamp(P, cfg, 'issued')
    if not cfg.fused: srd(P, sWS, 24, WS_SIZE)
    srd(P, sB1, 14, 1792 * 2)
    P.I(f'''
    s_lshl_b32 s{sT0}, s{sMT}, 2
    s_and_b32 s{sT1}, s{sWAVE}, 3
    s_add_u32 s{sT0}, s{sT0}, s{sT1}
    s_mul_i32 s{sT0}, s{sT0}, {112*1024}
    s_lshl_b32 s{sT2}, s{sBS}, 5
    s_add_u32 s{sHSG}, s{sT0}, s{sT2}
    s_lshl_b32 s{sT2}, s{sG}, 6
    s_add_u32 s{sBP}, s{sCOLP}, s{sT2}
    s_lshl_b32 s{sT2}, s{sBP}, 5
    s_add_u32 s{sHP}, s{sT0}, s{sT2}
    v_and_b32 v{vT}, 31, v{vLANE}
    v_lshlrev_b32 v{vT+1}, 1, v{vT}
    ''')
    for t in range(3):
        P.V(f'buffer_load_ushort v{BR+t}, v{vT+1}, s[{sB1}:{sB1+3}], s{sBP} offen offset:{128*t}', 'bias')
    P.V(f'buffer_load_ushort v{BR+3}, v{vT+1}, s[{sB1}:{sB1+3}], s{sBS} offen', 'bias')
    P.I(f'''
    v_lshlrev_b32 v{vHS}, 4, v{vLANE}
    v_lshrrev_b32 v{vT+1}, 5, v{vLANE}
    v_lshlrev_b32 v{vT+1}, 3, v{vT+1}
    v_bfe_u32 v{vT+2}, v{vLANE}, 2, 2
    v_add_u32 v{vT+1}, v{vT+1}, v{vT+2}
    v_lshlrev_b32 v{vT+1}, 7, v{vT+1}
    v_and_b32 v{vT+2}, 16, v{vLANE}
    v_lshlrev_b32 v{vT+2}, 1, v{vT+2}
    v_and_b32 v{T4}, 3, v{vLANE}
    v_lshl_add_u32 v{vT+2}, v{T4}, 3, v{vT+2}
    s_lshl_b32 s{sT2}, s{sG}, 6
    v_add_u32 v{vT+2}, s{sT2}, v{vT+2}
    v_and_b32 v{T4}, 8, v{vLANE}
    v_lshlrev_b32 v{T4}, 3, v{T4}
    v_xor_b32 v{vT+2}, v{vT+2}, v{T4}
    v_add_u32 v{vWa[0]}, v{vT+1}, v{vT+2}
    v_add_u32 v{vWa[1]}, 0x10000, v{vWa[0]}
    v_add_u32 v{vWa[2]}, 0x20000, v{vWa[0]}
    s_lshl_b32 s{sT2}, s{sT1}, 11
    v_add_u32 v{vWc[0]}, s{sT2}, v{vWa[0]}
    v_add_u32 v{vWc[1]}, s{sT2}, v{vWa[1]}
    v_add_u32 v{vWc[2]}, s{sT2}, v{vWa[2]}
    ''')
    P.I(f'''
    s_lshl_b32 s{sT2}, s{sT1}, 5
    v_add_u32 v{vT+1}, s{sT2}, v{vT}
    v_bfe_u32 v{vT+2}, v{vLANE}, 1, 3
    v_lshrrev_b32 v{T4}, 5, v{vLANE}
    v_xor_b32 v{vT+2}, v{vT+2}, v{T4}
    v_lshlrev_b32 v{vT+2}, 4, v{vT+2}
    v_lshl_add_u32 v{vXa[0]}, v{vT+1}, 7, v{vT+2}
    v_xor_b32 v{vXa[1]}, 32, v{vXa[0]}
    v_xor_b32 v{vXa[2]}, 64, v{vXa[0]}
    v_xor_b32 v{vXa[3]}, 0x60, v{vXa[0]}
    v_lshlrev_b32 v{vSTA}, 4, v{vT+1}
    v_add_u32 v{vSTA}, {ST_LDS}, v{vSTA}
    ''')
    P.I(f'''
    s_lshl_b32 s{sT2}, s{sG}, 9
    s_add_u32 s{sT2}, s{sT2}, {CS_LDS}
    v_lshlrev_b32 v{vCSR}, 4, v{vT}
    v_add_u32 v{vCSR}, s{sT2}, v{vCSR}
    s_lshl_b32 s{sT2}, s{sT1}, 2
    v_add_u32 v{vCSW}, s{sT2}, v{vCSR}
    v_mov_b32 v{vONE}, 0x3f803f80
    v_lshrrev_b32 v{vT+1}, 2, v{vLANE}
    v_lshrrev_b32 v{vT+2}, 4, v{vLANE}
    v_xor_b32 v{vT+1}, v{vT+1}, v{vT+2}
    v_and_b32 v{vT+1}, 1, v{vT+1}
    v_sub_u32 v{vT+1}, v{vT+1}, 1
    v_and_b32 v{SEL}, v{vONE}, v{vT+1}
    v_mov_b32 v{SEL+1}, v{SEL}
    v_mov_b32 v{SEL+2}, v{SEL}
    v_mov_b32 v{SEL+3}, v{SEL}
    v_mov_b32 v{AX+3}, 0
    v_mov_b32 v{BX+3}, 0
    s_cmp_eq_u32 s{sG}, 0
    s_cbranch_scc0 L_mlp_g1
    ''')
    wq = [(b, c) for b in (1, 2, 3) for c in range(7)]
    sched = {}
    free = []
    def place(n):
        r = []
        for _ in range(n):
            if not wq: break
            bc = wq.pop(0); s = free.pop(0); wslot[bc] = s; r.append((bc, s))
        return r
    for c in range(2, 7):
        sl = xbase[c - 1] // SLOT; free += [sl, sl + 1]
        sched[('p0', c)] = place(3 if c >= 4 else 0)
    sl = xbase[6] // SLOT; free += [sl, sl + 1]
    sched[('p', 1)] = place(3)
    free += list(range(7)); sched[('p', 2)] = place(4); sched[('p', 3)] = place(3)
    free += [wslot[(1, c)] for c in range(7)]; sched[('p', 4)] = place(7)
    assert not wq
    def do_sched(ev):
        if ev[0] == 'p0' and ev[1] + NI < 7:
            c = ev[1] + NI
            dma_x(P, c, xbase[c], ('c', c)); dma_w(0, c, c, ('c', c))
        for (b, c), s in sched.get(ev, []): dma_w(b, c, s, ('w', b))
        if ev == ('p', 3): flag_prefetch(P, cfg)

    def tr(dst, areg, slot, s, tag):
        off = (slot % 8) * SLOT + s * 2048
        P.D(f'ds_read_b64_tr_b16 v[{dst}:{dst+1}], v{areg[slot//8]} offset:{off}', tag)
        P.D(f'ds_read_b64_tr_b16 v[{dst+2}:{dst+3}], v{areg[slot//8]} offset:{off+512}', tag)
    def xreads(c):
        for s in range(4):
            P.I(f'v_add_u32 v{vT+s%2}, {xbase[c]}, v{vXa[s]}')
            d = XF + 4 * (4 * c + s)
            P.D(f'ds_read_b128 v[{d}:{d+3}], v{vT+s%2}', ('x', 4 * c + s))
    def mfma(s):
        w = WF + 4 * (s % NWF); x = XF + 4 * s
        c = '0' if s == 0 else f'v[{ACC}:{ACC+15}]'
        P.I(f'v_mfma_f32_32x32x16_bf16 v[{ACC}:{ACC+15}], v[{w}:{w+3}], v[{x}:{x+3}], {c}')
    def mfma_cs(c):
        cc = '0' if c == 0 else f'v[{CSA}:{CSA+3}]'
        P.I(f'v_mfma_f32_16x16x32_bf16 v[{CSA}:{CSA+3}], v[{SEL}:{SEL+3}], v[{WCS}:{WCS+3}], {cc}')
    def m_phase(blk):
        AH = 3
        def rd(s):
            if s < 28: tr(WF + 4 * (s % NWF), vWa, wslot[(blk, s // 4)], s % 4, ('w', s))
        for s in range(AH): rd(s)
        for s in range(28):
            rd(s + AH)
            if s % 4 == 0: tr(WCS, vWc, wslot[(blk, s // 4)], 0, ('cs', s // 4))
            P.wait_lg(('w', s))
            mfma(s)
            if s % 4 == 2:
                P.wait_lg(('cs', s // 4)); mfma_cs(s // 4)
        P.D(f'ds_write_b32 v{vCSW}, v{CSA}', 'csw')
        P.lg0()
    def prep_consts(R, RI, M):
        t = vT
        P.I(f'''
        v_mul_f32 v{vK0}, {f32(GK0)}, v{R}
        v_mul_f32 v{t}, v{R}, v{R}
        v_mul_f32 v{t}, v{t}, v{R}
        v_mul_f32 v{vK1}, {f32(GK1)}, v{t}
        v_mov_b32 v{vRI}, v{RI}
        v_cmp_gt_u32 vcc, 32, v{vLANE}
        v_cndmask_b32 v{t}, 0, v{M}, vcc
        v_cndmask_b32 v{t+1}, 0, v{RI}, vcc
        v_sub_f32 v{t}, 0, v{t}
        v_cvt_pk_bf16_f32 v{BX+1}, v{t}, v{t+1}
        v_lshlrev_b32 v{t+2}, 16, v{BX+1}
        v_sub_f32 v{t+2}, v{t}, v{t+2}
        v_cvt_pk_bf16_f32 v{BX}, v{t}, v{t+2}
        v_and_b32 v{t+2}, 0xffff0000, v{BX+1}
        v_sub_f32 v{t+2}, v{t+1}, v{t+2}
        v_mov_b32 v{t}, 0
        v_cvt_pk_bf16_f32 v{BX+2}, v{t+2}, v{t}
        ''')
    def e_phase(tile, ev):
        P.D(f'ds_read_b128 v[{T4}:{T4+3}], v{vCSR}', 'csr')
        P.wait_vm('bias')
        P.I(f'v_lshlrev_b32 v{vT}, 16, v{BR+tile}\nv_mov_b32 v{AX+2}, v{BR+tile}')
        P.wait_lg('csr')
        P.I(f'''
        v_add_f32 v{T4}, v{T4}, v{T4+1}
        v_add_f32 v{T4+2}, v{T4+2}, v{T4+3}
        v_add_f32 v{T4}, v{T4}, v{T4+2}
        v_cvt_pk_bf16_f32 v{AX}, v{T4}, v{T4}
        v_lshlrev_b32 v{T4+1}, 16, v{AX}
        v_sub_f32 v{T4+1}, v{T4}, v{T4+1}
        v_cvt_pk_bf16_f32 v{AX+1}, v{T4+1}, v{vT}
        v_mfma_f32_32x32x16_bf16 v[{ACC}:{ACC+15}], v[{AX}:{AX+3}], v[{BX}:{BX+3}], v[{ACC}:{ACC+15}]
        ''')
        do_sched(ev)
        if tile < 3: P.I(f's_add_u32 s{sT1}, s{sHP}, {4096*tile}')
        else: P.I(f's_mov_b32 s{sT1}, s{sHSG}')
        for half in range(2):
            E = range(8 * half, 8 * half + 8)
            for e in E: P.I(f'v_mul_f32 v{U+e}, v{ACC+e}, v{ACC+e}')
            for e in E: P.I(f'v_fma_f32 v{U+e}, v{U+e}, v{vK1}, v{vK0}')
            for e in E: P.I(f'v_mul_f32 v{U+e}, v{ACC+e}, v{U+e}')
            for e in E: P.I(f'v_exp_f32 v{U+e}, v{U+e}')
            for e in E: P.I(f'v_fma_f32 v{U+e}, v{U+e}, v{vRI}, v{vRI}')
            for e in E: P.I(f'v_rcp_f32 v{U+e}, v{U+e}')
            for e in E: P.I(f'v_mul_f32 v{U+e}, v{ACC+e}, v{U+e}')
            for e in range(4): P.I(f'v_cvt_pk_bf16_f32 v{PK+4*half+e}, v{U+8*half+2*e}, v{U+8*half+2*e+1}')
            P.V(f'buffer_store_dwordx4 v[{PK+4*half}:{PK+4*half+3}], v{vHS}, s[{sWS}:{sWS+3}], s{sT1} offen offset:{1024*half}{cfg.sc}', 'st')

    st0 = P.state()
    for c in range(7):
        P.wait_vm(('c', c)); stamp(P, cfg, f'c{c}w'); P.I('s_barrier'); stamp(P, cfg, f'c{c}b')
        if c == 0: init_flag(P, cfg, vT, 'a')
        do_sched(('p0', c))
        xreads(c)
        for s in range(4): tr(WF + 4 * ((4 * c + s) % NWF), vWa, c, s, ('w', 4 * c + s))
        tr(WCS, vWc, c, 0, ('cs', c))
        for s in range(4):
            P.wait_lg(('x', 4 * c + s), ('w', 4 * c + s)); mfma(4 * c + s)
        P.wait_lg(('cs', c)); mfma_cs(c)
    P.D(f'ds_write_b32 v{vCSW}, v{CSA}', 'csw'); P.lg0()
    for p in range(1, 8):
        stamp(P, cfg, f'p{p}e')
        if p % 2 == 0: P.wait_vm(('w', p // 2))
        stamp(P, cfg, f'p{p}w')
        P.I('s_barrier')
        stamp(P, cfg, f'p{p}b')
        if p == 1:
            P.D(f'ds_read_b128 v[{ST}:{ST+3}], v{vSTA}', 'st'); P.wait_lg('st')
            prep_consts(ST, ST + 1, ST + 2)
        if p % 2: e_phase((p - 1) // 2, ('p', p))
        else:
            do_sched(('p', p)); m_phase(p // 2)
    stamp(P, cfg, 'end'); publish(P, cfg, 0, 'g0'); stamp(P, cfg, 'pub'); stamp_flush(P, cfg)
    P.I(f's_branch {after}')
    P.restore(st0)
    P.label('L_mlp_g1')
    for i in range(4): P.I(f'v_mov_b32 v{ST+i}, 0')
    for c in range(7):
        P.wait_vm(('c', c)); stamp(P, cfg, f'c{c}w'); P.I('s_barrier'); stamp(P, cfg, f'c{c}b')
        do_sched(('p0', c))
        xreads(c)
        for s in range(4):
            P.wait_lg(('x', 4 * c + s))
            for d in range(4):
                x = XF + 4 * (4 * c + s) + d
                P.I(f'v_dot2c_f32_bf16 v{ST+(d&1)}, v{x}, v{vONE}')
                P.I(f'v_dot2c_f32_bf16 v{ST+2+(d&1)}, v{x}, v{x}')
    t = vT
    P.I(f'''
    v_add_f32 v{ST}, v{ST}, v{ST+1}
    v_add_f32 v{ST+2}, v{ST+2}, v{ST+3}
    v_mov_b32 v{ST+1}, v{ST}
    v_mov_b32 v{ST+3}, v{ST+2}
    v_permlane32_swap_b32 v{ST}, v{ST+1}
    v_permlane32_swap_b32 v{ST+2}, v{ST+3}
    v_add_f32 v{ST}, v{ST}, v{ST+1}
    v_add_f32 v{ST+3}, v{ST+2}, v{ST+3}
    v_mul_f32 v{ST+2}, {f32(1.0/448)}, v{ST}
    v_mul_f32 v{ST+3}, {f32(1.0/448)}, v{ST+3}
    v_fma_f32 v{ST+3}, -v{ST+2}, v{ST+2}, v{ST+3}
    v_max_f32 v{ST+3}, 0, v{ST+3}
    v_add_f32 v{t}, {f32(EPS)}, v{ST+3}
    v_rsq_f32 v{t+1}, v{t}
    v_mul_f32 v{t+2}, v{t+1}, v{t+1}
    v_mul_f32 v{t+2}, v{t+2}, v{ST+3}
    v_add_f32 v{t+2}, {f32(EPS)}, v{t+2}
    v_rsq_f32 v{ST}, v{t+2}
    v_mul_f32 v{ST}, v{ST}, v{t+1}
    v_mul_f32 v{t}, v{t}, v{t+2}
    v_sqrt_f32 v{ST+1}, v{t}
    ''')
    P.D(f'ds_write_b128 v{vSTA}, v[{ST}:{ST+3}]', 'stw')
    prep_consts(ST, ST + 1, ST + 2)
    P.lg0()
    for p in range(1, 8):
        stamp(P, cfg, f'p{p}e')
        if p % 2 == 0: P.wait_vm(('w', p // 2))
        stamp(P, cfg, f'p{p}w')
        P.I('s_barrier')
        stamp(P, cfg, f'p{p}b')
        if p == 7: break
        if p % 2:
            do_sched(('p', p)); m_phase((p - 1) // 2)
        else: e_phase(p // 2 - 1, ('p', p))
    stamp(P, cfg, 'end'); publish(P, cfg, 0, 'g1'); stamp(P, cfg, 'pub'); stamp_flush(P, cfg)
    P.I(f's_branch {after}')

def att_path(P, cfg, after):
    sPP, sHH, sOB, sWC = 74, 75, 76, 77
    AREA = 40960; HALO = 3 * AREA
    AM = HALO + 14336
    HP_LDS = AM
    STR_LDS = AM + 1024
    CS_LDS = AM + 3072
    EX_LDS = AM + 4096
    vWD, vHD = 4, 5
    vXa = [6, 7]; vXs = [8, 9]; vWa = [10, 11]; vWh, vWq = 12, 13; vXh = [14, 15]
    ADV = vXa + vXs + vWa + [vWh, vWq]
    ACC = 16
    AH, CH, CQ, ONES = 64, 68, 72, 76
    FR = 80
    FSZ = 48
    ST = 176; vT = 180
    MKP, MKC, MKP0 = 192, 196, 200
    acc = lambda part, bb, t: ACC + 4 * (part * 4 + bb * 2 + t)
    xdma_addr(P, vT, vT + 1)
    P.I(f'''
    s_and_b32 s{sPP}, s{sWAVE}, 3
    s_lshr_b32 s{sHH}, s{sWAVE}, 2
    s_and_b32 s{sT2}, s{sWAVE}, 1
    s_lshl_b32 s{sT0}, s{sMT}, 7
    s_lshl_b32 s{sT1}, s{sT2}, 3
    s_add_u32 s{sT0}, s{sT0}, s{sT1}
    s_sub_u32 s{sT0}, s{sT0}, 16
    s_mul_i32 s{sT0}, s{sT0}, {XB}
    v_lshrrev_b32 v{vT}, 3, v{vLANE}
    v_mul_u32_u24 v{vT+2}, {XB}, v{vT}
    v_add_u32 v{vT+2}, s{sT0}, v{vT+2}
    v_lshrrev_b32 v{vT+1}, 4, v{vLANE}
    v_xor_b32 v{vT+1}, v{vT+1}, v{vLANE}
    s_lshl_b32 s{sT1}, s{sT2}, 2
    v_xor_b32 v{vT+1}, s{sT1}, v{vT+1}
    v_and_b32 v{vT+1}, 7, v{vT+1}
    v_lshl_add_u32 v{vHD}, v{vT+1}, 4, v{vT+2}
    s_lshl_b32 s{sT0}, s{sWAVE}, 3
    v_add_u32 v{vT}, s{sT0}, v{vT}
    v_mul_u32_u24 v{vT}, {WQS}, v{vT}
    v_lshrrev_b32 v{vT+1}, 3, v{vLANE}
    v_and_b32 v{vT+1}, 2, v{vT+1}
    v_xor_b32 v{vT+1}, s{sT1}, v{vT+1}
    v_xor_b32 v{vT+1}, v{vT+1}, v{vLANE}
    v_and_b32 v{vT+1}, 7, v{vT+1}
    v_min_u32 v{vT+1}, 6, v{vT+1}
    v_lshl_add_u32 v{vWD}, v{vT+1}, 4, v{vT}
    s_mul_i32 s{sWC}, s{sSUB}, 112
    s_waitcnt lgkmcnt(0)
    ''')
    srd(P, sX, 4, 2048 * XB)
    srd(P, sW, 6, 448 * WQS)
    P.I(f'''
    s_lshr_b32 s{sT0}, s{sWAVE}, 1
    s_lshl_b32 s{sT0}, s{sT0}, 7
    s_add_u32 m0, s{sWW}, {HALO}
    ''')
    P.V(f'buffer_load_dwordx4 v{vHD}, s[{sX}:{sX+3}], s{sT0} offen lds', 'halo')
    P.I(f'''
    s_cmp_lt_u32 s{sWAVE}, 6
    s_cselect_b32 s{sT1}, 512, 0
    s_cselect_b32 s{sT2}, 8192, 0
    s_add_u32 s{sT0}, s{sT0}, s{sT1}
    s_add_u32 s{sT2}, s{sT2}, s{sWW}
    s_add_u32 m0, s{sT2}, {HALO}
    ''')
    P.V(f'buffer_load_dwordx4 v{vHD}, s[{sX}:{sX+3}], s{sT0} offen lds', 'halo')
    def dma_chunk(c):
        a = (c % 3) * AREA
        for i in range(2):
            if a + 1024 * i - 128 * c >= 0:
                P.I(f's_add_u32 m0, s{sWX}, {a + 1024*i - 128*c}')
                P.V(f'buffer_load_dwordx4 v{vXD0+i}, s[{sX}:{sX+3}], 0 offen offset:{128*c} lds', ('c', c))
            else:
                P.I(f's_add_u32 m0, s{sWX}, {a + 1024*i}\ns_movk_i32 s{sT0}, {128*c}')
                P.V(f'buffer_load_dwordx4 v{vXD0+i}, s[{sX}:{sX+3}], s{sT0} offen lds', ('c', c))
        for p in range(3):
            P.I(f's_add_u32 m0, s{sWW}, {a + 16384 + p*8192}')
            P.I(f's_add_u32 s{sT0}, s{sWC}, {c*64*WQS + p*896}')
            P.V(f'buffer_load_dwordx4 v{vWD}, s[{sW}:{sW+3}], s{sT0} offen lds', ('c', c))
    for c in range(3): dma_chunk(c)
    stamp(P, cfg, 'issued')
    srd(P, sWS, 24, WS_SIZE); srd(P, sDBG, 22, 256)
    i15, g4 = vT + 4, vT + 5
    P.I(f'''
    v_and_b32 v{i15}, 15, v{vLANE}
    v_lshrrev_b32 v{g4}, 4, v{vLANE}
    v_lshrrev_b32 v{vT}, 1, v{i15}
    v_xor_b32 v{vT}, v{vT}, v{g4}
    v_lshlrev_b32 v{vT}, 4, v{vT}
    v_lshl_add_u32 v{vT}, v{i15}, 7, v{vT}
    v_add_u32 v{vXh[0]}, {HALO}, v{vT}
    v_xor_b32 v{vXh[1]}, 64, v{vXh[0]}
    s_lshl_b32 s{sT0}, s{sPP}, 12
    v_add_u32 v{vXa[0]}, s{sT0}, v{vT}
    v_xor_b32 v{vXa[1]}, 64, v{vXa[0]}
    s_lshl_b32 s{sT0}, s{sHH}, 11
    v_add_u32 v{vXs[0]}, s{sT0}, v{vXa[0]}
    v_add_u32 v{vXs[1]}, s{sT0}, v{vXa[1]}
    v_bfe_u32 v{vT}, v{vLANE}, 2, 2
    v_lshl_add_u32 v{vT+1}, v{g4}, 3, v{vT}
    v_lshlrev_b32 v{vT+1}, 7, v{vT+1}
    v_and_b32 v{vT}, 2, v{vT}
    v_and_b32 v{vT+2}, 1, v{g4}
    v_lshl_add_u32 v{vT}, v{vT+2}, 2, v{vT}
    v_lshlrev_b32 v{vT}, 4, v{vT}
    v_and_b32 v{vT+2}, 3, v{vLANE}
    v_lshlrev_b32 v{vT+2}, 3, v{vT+2}
    s_mul_i32 s{sT0}, s{sHH}, 56
    v_add_u32 v{vT+2}, s{sT0}, v{vT+2}
    v_xor_b32 v{vT+3}, v{vT+2}, v{vT}
    v_add_u32 v{vWa[0]}, v{vT+1}, v{vT+3}
    v_add_u32 v{vT+2}, 32, v{vT+2}
    v_xor_b32 v{vT+3}, v{vT+2}, v{vT}
    v_add_u32 v{vWa[1]}, v{vT+1}, v{vT+3}
    s_and_b32 s{sT0}, s{sPP}, 1
    s_cmp_eq_u32 s{sT0}, 0
    s_cselect_b64 vcc, -1, 0
    v_cndmask_b32 v{vT}, v{vWa[1]}, v{vWa[0]}, vcc
    s_lshr_b32 s{sT0}, s{sPP}, 1
    s_lshl_b32 s{sT1}, s{sT0}, 13
    s_lshl_b32 s{sT0}, s{sT0}, 12
    v_add_u32 v{vWh}, s{sT1}, v{vT}
    v_add_u32 v{vWq}, s{sT0}, v{vT}
    ''')
    for i in range(4): P.I(f'v_mov_b32 v{ONES+i}, 0x3f803f80\nv_mov_b32 v{ST+i}, 0')
    P.I(f'v_lshlrev_b32 v{vT}, 2, v{g4}\nv_sub_u32 v{vT}, v{i15}, v{vT}\nv_mov_b32 v{vT+3}, {f32(NEG)}')
    for v in range(4):
        P.I(f'''
        v_subrev_u32 v{vT+1}, {v}, v{vT}
        v_and_b32 v{vT+2}, 0xfffffff1, v{vT+1}
        v_cmp_eq_u32 vcc, 0, v{vT+2}
        v_cndmask_b32 v{MKC+v}, v{vT+3}, 0, vcc
        v_add_u32 v{vT+1}, 16, v{vT+1}
        v_and_b32 v{vT+2}, 0xfffffff1, v{vT+1}
        v_cmp_eq_u32 vcc, 0, v{vT+2}
        v_cndmask_b32 v{MKP+v}, v{vT+3}, 0, vcc
        ''')
    P.I(f'''
    s_or_b32 s{sT0}, s{sMT}, s{sPP}
    s_cmp_eq_u32 s{sT0}, 0
    s_cselect_b64 vcc, -1, 0
    ''')
    for v in range(4): P.I(f'v_cndmask_b32 v{MKP0+v}, v{MKP+v}, v{vT+3}, vcc')
    P.I(f'''
    s_lshl_b32 s{sT0}, s{sMT}, 2
    s_add_u32 s{sT0}, s{sT0}, s{sPP}
    s_lshl_b32 s{sT0}, s{sT0}, 15
    s_lshl_b32 s{sT1}, s{sSUB}, 1
    s_add_u32 s{sT1}, s{sT1}, s{sHH}
    s_lshl_b32 s{sT1}, s{sT1}, 11
    s_add_u32 s{sOB}, s{sT0}, s{sT1}
    s_add_u32 s{sOB}, s{sOB}, {O_OFF}
    ''')
    def reduce4(a, tmp):
        P.I(f'''
        v_mov_b32 v{tmp}, v{a}
        v_permlane16_swap_b32 v{a}, v{tmp}
        v_add_f32 v{a}, v{a}, v{tmp}
        v_mov_b32 v{tmp}, v{a}
        v_permlane32_swap_b32 v{a}, v{tmp}
        v_add_f32 v{a}, v{a}, v{tmp}
        ''')
    def finish_stats(sm, sq, r, mr, t):
        P.I(f'''
        v_mul_f32 v{sm}, {f32(1.0/448)}, v{sm}
        v_mul_f32 v{sq}, {f32(1.0/448)}, v{sq}
        v_fma_f32 v{sq}, -v{sm}, v{sm}, v{sq}
        v_max_f32 v{sq}, 0, v{sq}
        v_add_f32 v{t}, {f32(EPS)}, v{sq}
        v_rsq_f32 v{r}, v{t}
        v_mul_f32 v{mr}, v{sm}, v{r}
        ''')
    P.wait_vm('halo'); P.I('s_barrier')
    P.I(f'''
    s_and_b32 s{sT0}, s{sWAVE}, 1
    s_lshl_b32 s{sT0}, s{sT0}, 6
    s_lshr_b32 s{sT1}, s{sWAVE}, 1
    s_lshl_b32 s{sT1}, s{sT1}, 11
    v_xor_b32 v{vT}, s{sT0}, v{vXh[0]}
    v_add_u32 v{vT}, s{sT1}, v{vT}
    s_cmp_lt_u32 s{sWAVE}, 6
    s_cselect_b32 s{sT1}, 8192, 0
    s_cselect_b32 s{sT2}, 1.0, 0
    v_add_u32 v{vT+1}, s{sT1}, v{vT}
    ''')
    P.D(f'ds_read_b128 v[{FR}:{FR+3}], v{vT}', 'h0'); P.D(f'ds_read_b128 v[{FR+4}:{FR+7}], v{vT+1}', 'h1')
    P.lg0()
    for k in range(2):
        for d in range(4):
            P.I(f'v_dot2c_f32_bf16 v{ST+k}, v{FR+4*k+d}, v{ONES}\nv_dot2c_f32_bf16 v{ST+2+k}, v{FR+4*k+d}, v{FR+4*k+d}')
    P.I(f'v_fma_f32 v{ST}, v{ST+1}, s{sT2}, v{ST}\nv_fma_f32 v{ST+1}, v{ST+3}, s{sT2}, v{ST+2}')
    reduce4(ST, vT); reduce4(ST + 1, vT)
    P.I(f'''
    s_lshl_b32 s{sT0}, s{sWAVE}, 3
    s_add_u32 s{sT0}, s{sT0}, {HP_LDS}
    v_lshlrev_b32 v{vT}, 6, v{i15}
    v_add_u32 v{vT}, s{sT0}, v{vT}
    ''')
    P.D(f'ds_write_b64 v{vT}, v[{ST}:{ST+1}]', 'hw')
    for i in range(4): P.I(f'v_mov_b32 v{ST+i}, 0')
    P.I(f's_cmp_lt_u32 s{sPP}, 2\ns_cbranch_scc0 L_att_v')
    st0 = P.state()

    def fr(set_, k): return FR + FSZ * set_ + 4 * k
    def reads(n):
        c, s2 = divmod(n, 2); se = n % 2; L = []
        def b128(k, a, off): L.append(lambda: P.D(f'ds_read_b128 v[{fr(se,k)}:{fr(se,k)+3}], v{a} offset:{off}', ('r', n)))
        def trr(k, a, off):
            L.append(lambda: P.D(f'ds_read_b64_tr_b16 v[{fr(se,k)}:{fr(se,k)+1}], v{a} offset:{off}', ('r', n)))
            L.append(lambda: P.D(f'ds_read_b64_tr_b16 v[{fr(se,k)+2}:{fr(se,k)+3}], v{a} offset:{off+512}', ('r', n)))
        b128(0, vXa[s2], 0); b128(1, vXa[s2], 2048)
        for p in range(3):
            for t in range(2): trr(4 + 2 * p + t, vWa[t], 16384 + p * 8192 + s2 * 4096)
        b128(2, vXh[s2], c * 2048); trr(10, vWh, 16384 + 8192 + s2 * 4096)
        b128(3, vXs[s2], 0)
        if s2 == 0: trr(11, vWq, 16384)
        return L
    def mf(d, a, b, first):
        c = '0' if first else f'v[{d}:{d+3}]'
        return f'v_mfma_f32_16x16x32_bf16 v[{d}:{d+3}], v[{a}:{a+3}], v[{b}:{b+3}], {c}'
    def body(vvar):
        P.wait_vm(('c', 0)); P.lg0(); stamp(P, cfg, 'c0w'); P.I('s_barrier'); stamp(P, cfg, 'c0b')
        for f in reads(0): f()
        for n in range(14):
            c, s2 = divmod(n, 2); se = n % 2; first = n == 0
            P.lg0()
            if s2 == 1 and c < 6:
                stamp(P, cfg, f'c{c+1}e'); P.wait_vm(('c', c + 1)); stamp(P, cfg, f'c{c+1}w'); P.I('s_barrier'); stamp(P, cfg, f'c{c+1}b')
                if c + 3 < 7: dma_chunk(c + 3)
                if c == 4: flag_prefetch(P, cfg)
                delta = AREA if (c + 1) % 3 else -2 * AREA
                for a in ADV: P.I(f'v_add_u32 v{a}, {delta & 0xffffffff:#x}, v{a}')
            if n == 1:
                P.I(f'v_lshlrev_b32 v{vT}, 6, v{i15}\nv_add_u32 v{vT}, {HP_LDS}, v{vT}')
                for k in range(4): P.D(f'ds_read_b128 v[{204+4*k}:{204+4*k+3}], v{vT} offset:{16*k}', 'hp')
                P.lg0()
                for k in (0, 1):
                    P.I(f'v_add_f32 v{204+k}, v{204+k}, v{206+k}\nv_add_f32 v{208+k}, v{208+k}, v{210+k}\nv_add_f32 v{212+k}, v{212+k}, v{214+k}\nv_add_f32 v{216+k}, v{216+k}, v{218+k}')
                    P.I(f'v_add_f32 v{204+k}, v{204+k}, v{208+k}\nv_add_f32 v{212+k}, v{212+k}, v{216+k}\nv_add_f32 v{204+k}, v{204+k}, v{212+k}')
                finish_stats(204, 205, 206, 207, vT + 1)
                P.I(f'v_lshlrev_b32 v{vT}, 2, v{i15}\nv_add_u32 v{vT}, {STR_LDS}, v{vT}')
                P.D(f'ds_write_b32 v{vT}, v206', 'x'); P.D(f'ds_write_b32 v{vT}, v207 offset:1024', 'x')
            nxt = reads(n + 1) if n < 13 else []
            M = []
            for p in range(3):
                for t in range(2):
                    for bb in range(2):
                        w = fr(se, 4 + 2 * p + t); x = fr(se, bb)
                        M.append(mf(acc(p, bb, t), w, x, first) if p < 2 else mf(acc(p, bb, t), x, w, first))
            M.append(mf(AH, fr(se, 2), fr(se, 10), first) if vvar else mf(AH, fr(se, 10), fr(se, 2), first))
            M.append(mf(CH, ONES, fr(se, 10), first))
            if s2 == 0: M.append(mf(CQ, ONES, fr(se, 11), first))
            for i, m in enumerate(M):
                P.I(m)
                for _ in range(2):
                    if nxt: nxt.pop(0)()
            assert not nxt
            for d in range(4):
                x = fr(se, 3) + d
                P.I(f'v_dot2c_f32_bf16 v{ST+(d&1)}, v{x}, v{ONES}\nv_dot2c_f32_bf16 v{ST+2+(d&1)}, v{x}, v{x}')
        stamp(P, cfg, 'loop')
        P.I(f'v_add_f32 v{ST}, v{ST}, v{ST+1}\nv_add_f32 v{ST+1}, v{ST+2}, v{ST+3}')
        reduce4(ST, vT); reduce4(ST + 1, vT)
        finish_stats(ST, ST + 1, ST + 2, ST + 3, vT)
        P.I(f'''
        s_lshl_b32 s{sT0}, s{sPP}, 1
        s_add_u32 s{sT0}, s{sT0}, s{sHH}
        s_lshl_b32 s{sT0}, s{sT0}, 6
        s_add_u32 s{sT0}, s{sT0}, {STR_LDS + 64}
        v_lshlrev_b32 v{vT+1}, 2, v{i15}
        v_add_u32 v{vT}, s{sT0}, v{vT+1}
        ''')
        P.D(f'ds_write_b32 v{vT}, v{ST+2}', 'x'); P.D(f'ds_write_b32 v{vT}, v{ST+3} offset:1024', 'x')
        P.I(f'''
        s_lshl_b32 s{sT0}, s{sHH}, 9
        s_lshl_b32 s{sT1}, s{sPP}, 6
        s_add_u32 s{sT0}, s{sT0}, {CS_LDS}
        s_add_u32 s{sT1}, s{sT1}, s{sT0}
        v_add_u32 v{vT}, s{sT1}, v{vT+1}
        ''')
        P.D(f'ds_write_b32 v{vT}, v{CQ}', 'x'); P.D(f'ds_write_b32 v{vT}, v{CH} offset:256', 'x')
        P.lg0(); P.I('s_barrier'); stamp(P, cfg, 'e1')
        F = FR
        rL, mL = F, F + 3
        rR, mR = F + 8, F + 20
        csR = F + 32
        csL = F + 56
        csH = F + 58
        P.I(f'''
        s_lshl_b32 s{sT1}, s{sPP}, 7
        s_add_u32 s{sT1}, s{sT1}, {STR_LDS + 64}
        v_add_u32 v{vT}, s{sT1}, v{vT+1}
        v_add_u32 v{vT+2}, {STR_LDS}, v{vT+1}
        v_lshlrev_b32 v{vT+3}, 4, v{g4}
        v_add_u32 v{vT+6}, s{sT1}, v{vT+3}
        v_add_u32 v{vT+7}, {STR_LDS}, v{vT+3}
        v_add_u32 v{vT+8}, s{sT0}, v{vT+3}
        v_add_u32 v{vT+9}, s{sT0}, v{vT+1}
        s_lshl_b32 s{sT1}, s{sPP}, 6
        v_add_u32 v{vT+10}, s{sT1}, v{vT+9 if vvar else vT+8}
        ''')
        for bb in range(2):
            P.D(f'ds_read_b32 v{rL+bb}, v{vT} offset:{64*bb}', 'a'); P.D(f'ds_read_b32 v{mL+bb}, v{vT} offset:{1024+64*bb}', 'a')
        for e in range(6): P.D(f'ds_read_b128 v[{csR+4*e}:{csR+4*e+3}], v{vT+8} offset:{64*e}', 'a')
        P.lg0()
        for bb in range(2):
            P.D(f'ds_read_b128 v[{rR+4*bb}:{rR+4*bb+3}], v{vT+6} offset:{64*bb}', 'b'); P.D(f'ds_read_b128 v[{mR+4*bb}:{mR+4*bb+3}], v{vT+6} offset:{1024+64*bb}', 'b')
        for t in range(2): P.D(f'ds_read_b32 v{csL+t}, v{vT+9} offset:{64*(6+t)}', 'b')
        if vvar:
            P.D(f'ds_read_b128 v[{rR+8}:{rR+11}], v{vT+7}', 'b'); P.D(f'ds_read_b128 v[{mR+8}:{mR+11}], v{vT+7} offset:1024', 'b')
            P.D(f'ds_read_b32 v{csH}, v{vT+10} offset:256', 'b')
        else:
            P.D(f'ds_read_b32 v{rL+2}, v{vT+2}', 'b'); P.D(f'ds_read_b32 v{mL+2}, v{vT+2} offset:1024', 'b')
            P.D(f'ds_read_b128 v[{csH}:{csH+3}], v{vT+10} offset:256', 'b')
        for e in range(8): P.I(f'v_add_f32 v{csR+e}, v{csR+e}, v{csR+8+e}')
        QOP = F + 64; KOP = F + 72
        VOP = F + 84
        qs = 28 ** -0.5 * LOG2E
        rq, mq = 204, 208
        P.I(f'v_cmp_gt_u32 vcc, 48, v{vLANE}')
        for bb in range(2):
            P.I(f'''
            v_mul_f32 v{rq+2*bb}, {f32(qs)}, v{rL+bb}
            v_mul_f32 v{mq+2*bb}, {f32(qs)}, v{mL+bb}
            v_cndmask_b32 v{rq+2*bb+1}, 0, v{rq+2*bb}, vcc
            v_cndmask_b32 v{mq+2*bb+1}, 0, v{mq+2*bb}, vcc
            ''')
        def fold_T(a, r, m, cs, dst):
            for v in range(4): P.I(f'v_mul_f32 v{vT+v}, v{m}, v{cs+v}')
            for v in range(4): P.I(f'v_fma_f32 v{a+v}, v{a+v}, v{r}, -v{vT+v}')
            P.I(f'v_cvt_pk_bf16_f32 v{dst}, v{a}, v{a+1}\nv_cvt_pk_bf16_f32 v{dst+1}, v{a+2}, v{a+3}')
        def fold_N(a, r, m, cs, dst):
            for v in range(4): P.I(f'v_mul_f32 v{vT+v}, v{m+v}, v{cs}')
            for v in range(4): P.I(f'v_fma_f32 v{a+v}, v{a+v}, v{r+v}, -v{vT+v}')
            P.I(f'v_cvt_pk_bf16_f32 v{dst}, v{a}, v{a+1}\nv_cvt_pk_bf16_f32 v{dst+1}, v{a+2}, v{a+3}')
        P.I(f'''
        s_mul_i32 s{sT0}, s{sHH}, 10240
        s_add_u32 s{sT0}, s{sT0}, {EX_LDS}
        s_lshl_b32 s{sT1}, s{sPP}, 11
        s_add_u32 s{sT1}, s{sT1}, s{sT0}
        v_lshlrev_b32 v{vT+6}, 4, v{vLANE}
        v_add_u32 v{vT+7}, s{sT1}, v{vT+6}
        s_and_b32 s{sT1}, s{sPP}, 1
        s_lshl_b32 s{sT1}, s{sT1}, 3
        s_add_u32 s{sT1}, s{sT1}, s{sT0}
        v_add_u32 v{vT+8}, s{sT1}, v{vT+6}
        ''')
        for t in range(2): fold_T(acc(1, 1, t), rL + 1, mL + 1, csR + 16 + 4 * t, KOP + 8 + 2 * t)
        P.D(f'ds_write_b128 v{vT+7}, v[{KOP+8}:{KOP+11}] offset:2048', 'x')
        P.wait_lg('b')
        for t in range(2): fold_N(acc(2, 1, t), rR + 4, mR + 4, csL + t, VOP + 6 * t + 4)
        for t in range(2): P.D(f'ds_write_b64 v{vT+7}, v[{VOP+6*t+4}:{VOP+6*t+5}] offset:{2048+1024+8*t}', 'x')
        if vvar:
            fold_N(AH, rR + 8, mR + 8, csH, vT + 10)
            P.D(f'ds_write_b64 v{vT+8}, v[{vT+10}:{vT+11}] offset:1024', 'x')
        else:
            fold_T(AH, rL + 2, mL + 2, csH, vT + 10)
            P.D(f'ds_write_b64 v{vT+8}, v[{vT+10}:{vT+11}]', 'x')
        for t in range(2): fold_T(acc(1, 0, t), rL, mL, csR + 16 + 4 * t, KOP + 4 + 2 * t)
        for t in range(2): fold_N(acc(2, 0, t), rR, mR, csL + t, VOP + 6 * t + 2)
        P.lg0(); P.I('s_barrier'); stamp(P, cfg, 'e2')
        P.D(f'ds_read_b128 v[{KOP}:{KOP+3}], v{vT+7}', 'e')
        for t in range(2): P.D(f'ds_read_b64 v[{VOP+6*t}:{VOP+6*t+1}], v{vT+7} offset:{1024+8*t}', 'e')
        for bb in range(2):
            for t in range(2): fold_T(acc(0, bb, t), rq + 2 * bb + t, mq + 2 * bb + t, csR + 4 * t, QOP + 4 * bb + 2 * t)
        vO = vT + 9
        P.I(f'''
        v_lshlrev_b32 v{vO}, 9, v{g4}
        v_lshl_add_u32 v{vO}, v{i15}, 4, v{vO}
        ''')
        P.lg0()
        S = ACC
        for bb in range(2):
            mp = MKP0 if bb == 0 else MKP
            P.I(f'v_mfma_f32_16x16x32_bf16 v[{S+8*bb}:{S+8*bb+3}], v[{KOP+4*bb}:{KOP+4*bb+3}], v[{QOP+4*bb}:{QOP+4*bb+3}], v[{mp}:{mp+3}]')
            P.I(f'v_mfma_f32_16x16x32_bf16 v[{S+8*bb+4}:{S+8*bb+7}], v[{KOP+4*bb+4}:{KOP+4*bb+7}], v[{QOP+4*bb}:{QOP+4*bb+3}], v[{MKC}:{MKC+3}]')
        PP = ACC + 16; OO = ACC + 24
        mx = [vT, vT + 2]
        for bb in range(2):
            s = S + 8 * bb; m = mx[bb]
            P.I(f'''
            v_max3_f32 v{m}, v{s}, v{s+1}, v{s+2}
            v_max3_f32 v{m+1}, v{s+3}, v{s+4}, v{s+5}
            v_max3_f32 v{m}, v{m}, v{s+6}, v{s+7}
            v_max_f32 v{m}, v{m}, v{m+1}
            v_mov_b32 v{m+1}, v{m}
            ''')
        for bb in range(2): P.I(f'v_permlane16_swap_b32 v{mx[bb]}, v{mx[bb]+1}')
        for bb in range(2): P.I(f'v_max_f32 v{mx[bb]}, v{mx[bb]}, v{mx[bb]+1}\nv_mov_b32 v{mx[bb]+1}, v{mx[bb]}')
        for bb in range(2): P.I(f'v_permlane32_swap_b32 v{mx[bb]}, v{mx[bb]+1}')
        for bb in range(2): P.I(f'v_max_f32 v{mx[bb]}, v{mx[bb]}, v{mx[bb]+1}')
        for bb in range(2):
            s = S + 8 * bb
            for v in range(8): P.I(f'v_sub_f32 v{s+v}, v{s+v}, v{mx[bb]}')
            for v in range(8): P.I(f'v_exp_f32 v{s+v}, v{s+v}')
            for v in range(4): P.I(f'v_cvt_pk_bf16_f32 v{PP+4*bb+v}, v{s+2*v}, v{s+2*v+1}')
        for bb in range(2):
            o = OO + 12 * bb; p = PP + 4 * bb
            P.I(f'v_mfma_f32_16x16x32_bf16 v[{o+8}:{o+11}], v[{ONES}:{ONES+3}], v[{p}:{p+3}], 0')
            for t in range(2):
                a = VOP + 6 * t + 2 * bb
                P.I(f'v_mfma_f32_16x16x32_bf16 v[{o+4*t}:{o+4*t+3}], v[{a}:{a+3}], v[{p}:{p+3}], 0')
        for bb in range(2):
            o = OO + 12 * bb
            P.I(f'v_rcp_f32 v{o+8}, v{o+8}')
            P.I(f'v_cndmask_b32 v{o+9}, 0, v{o+8}, vcc')
            for v in range(4): P.I(f'v_mul_f32 v{o+v}, v{o+v}, v{o+8}')
            for v in range(4): P.I(f'v_mul_f32 v{o+4+v}, v{o+4+v}, v{o+9}')
            for v in range(4): P.I(f'v_cvt_pk_bf16_f32 v{PP+4*bb+v}, v{o+2*v}, v{o+2*v+1}')
            P.V(f'buffer_store_dwordx4 v[{PP+4*bb}:{PP+4*bb+3}], v{vO}, s[{sWS}:{sWS+3}], s{sOB} offen offset:{256*bb}{cfg.sc}', 'st')
        stamp(P, cfg, 'end'); publish(P, cfg, 1, 'av' if vvar else 'ak'); stamp(P, cfg, 'pub'); stamp_flush(P, cfg)
        P.I(f's_branch {after}')
    body(False)
    P.restore(st0)
    P.label('L_att_v')
    body(True)

def stage2(P, cfg, endlabel):
    sM2, sN2, sKQ, sTT, sHB, sOB2, sLD, sRW = 74, 75, 76, 77, 78, 79, 27, 26
    vWD, vH = 2, 3; vA = [4, 5]; vT = 6
    WR = 16
    AM, AS = 144, 176
    HR = 208; NH = 8
    XR = 240; B2R = 244
    WL = 16
    NR = 16
    P.I(f'''
    s_cmp_ge_u32 s{sJ}, 28
    s_cbranch_scc1 {endlabel}
    s_mul_i32 s{sT0}, s{sJ}, 37
    s_lshr_b32 s{sT0}, s{sT0}, 8
    s_mul_i32 s{sT1}, s{sT0}, 7
    s_sub_u32 s{sN2}, s{sJ}, s{sT1}
    s_lshl_b32 s{sM2}, s{sXCD}, 2
    s_add_u32 s{sM2}, s{sM2}, s{sT0}
    s_lshr_b32 s{sKQ}, s{sWAVE}, 1
    s_and_b32 s{sTT}, s{sWAVE}, 1
    v_lshrrev_b32 v{vT}, 3, v{vLANE}
    s_lshl_b32 s{sT0}, s{sTT}, 3
    v_add_u32 v{vT}, s{sT0}, v{vT}
    v_mul_u32_u24 v{vT}, {XB}, v{vT}
    v_lshrrev_b32 v{vT+1}, 2, v{vLANE}
    v_and_b32 v{vT+1}, 4, v{vT+1}
    v_xor_b32 v{vT+1}, v{vT+1}, v{vLANE}
    v_and_b32 v{vT+1}, 7, v{vT+1}
    v_lshl_add_u32 v{vWD}, v{vT+1}, 4, v{vT}
    s_lshl_b32 s{sT0}, s{sN2}, 7
    v_add_u32 v{vWD}, s{sT0}, v{vWD}
    v_lshlrev_b32 v{vH}, 4, v{vLANE}
    ''')
    if not cfg.fused:
        P.I('s_waitcnt lgkmcnt(0)')
        srd(P, sX, 4, 2048 * XB); srd(P, sWS, 24, WS_SIZE)
    srd(P, sWO, 8, 448 * XB); srd(P, sW2, 16, 1792 * XB); srd(P, sOUT, 20, 2048 * XB); srd(P, sB2, 18, 896)
    P.I(f'''
    v_lshrrev_b32 v{vT}, 5, v{vLANE}
    v_lshlrev_b32 v{vT}, 2, v{vT}
    v_bfe_u32 v{vT+1}, v{vLANE}, 2, 2
    v_add_u32 v{vT}, v{vT}, v{vT+1}
    v_lshlrev_b32 v{vT}, 7, v{vT}
    v_and_b32 v{vT+1}, 16, v{vLANE}
    v_lshlrev_b32 v{vT+1}, 1, v{vT+1}
    v_and_b32 v{vT+2}, 3, v{vLANE}
    v_lshl_add_u32 v{vT+1}, v{vT+2}, 3, v{vT+1}
    v_and_b32 v{vT+2}, 8, v{vLANE}
    v_lshlrev_b32 v{vT+2}, 3, v{vT+2}
    v_xor_b32 v{vT+1}, v{vT+1}, v{vT+2}
    v_add_u32 v{vT}, v{vT}, v{vT+1}
    s_lshl_b32 s{sT0}, s{sKQ}, 15
    v_add_u32 v{vA[0]}, s{sT0}, v{vT}
    v_xor_b32 v{vA[1]}, 64, v{vA[0]}
    s_lshl_b32 s{sT1}, s{sTT}, 10
    s_add_u32 s{sLD}, s{sT0}, s{sT1}
    s_lshl_b32 s{sT0}, s{sM2}, 1
    s_add_u32 s{sT0}, s{sT0}, s{sTT}
    s_mul_i32 s{sHB}, s{sT0}, {112*1024}
    s_lshl_b32 s{sOB2}, s{sT0}, 15
    s_add_u32 s{sOB2}, s{sOB2}, {O_OFF}
    s_mul_i32 s{sT1}, s{sKQ}, {36*1024}
    s_sub_u32 s{sT1}, s{sT1}, {32*1024}
    s_mul_i32 s{sRW}, s{sKQ}, {576*XB}
    s_sub_u32 s{sRW}, s{sRW}, {512*XB}
    ''')
    vO = 248
    P.I(f'''
    v_and_b32 v{vT+1}, 31, v{vLANE}
    s_lshl_b32 s{sT0}, s{sT0}, 5
    v_add_u32 v{vT+1}, s{sT0}, v{vT+1}
    v_mul_u32_u24 v{vT+1}, {XB}, v{vT+1}
    v_lshrrev_b32 v{vT+2}, 5, v{vLANE}
    v_lshlrev_b32 v{vT+2}, 4, v{vT+2}
    s_lshl_b32 s{sT0}, s{sN2}, 7
    s_lshl_b32 s{sT2}, s{sKQ}, 5
    s_add_u32 s{sT0}, s{sT0}, s{sT2}
    v_add_u32 v{vT+2}, s{sT0}, v{vT+2}
    v_add_u32 v{vO}, v{vT+1}, v{vT+2}
    s_cmp_eq_u32 s{sKQ}, 0
    s_cbranch_scc1 L_s2_k0
    s_add_u32 s{sHB}, s{sHB}, s{sT1}
    ''')
    st0 = P.state()
    def dma(srdn, rowoff_expr_imm, rowreg, lds_imm, tag):
        P.I(f's_add_u32 m0, s{sLD}, {lds_imm}')
        if rowreg is None: P.I(f's_mov_b32 s{sT0}, {rowoff_expr_imm}')
        else: P.I(f's_add_u32 s{sT0}, s{rowreg}, {rowoff_expr_imm}')
        P.V(f'buffer_load_dwordx4 v{vWD}, s[{srdn}:{srdn+3}], s{sT0} offen lds', tag)
    def body(k0):
        lab = 'k0' if k0 else 'kn'
        steps = []
        if k0:
            for i in range(4): steps.append(('h', i * 1024, 176 + 16 * i, 1024))
            for e in range(32):
                row = 28 * (e >> 1) + 8 * (e & 1)
                steps.append(('o', e * 1024, row if e < 12 else row - 168, 2048))
            for ii in range(11): dma(sWO, 16 * ii * XB, None, 2048 * ii, 'R')
            for ii in range(4): dma(sW2, 16 * ii * XB, None, 2048 * (11 + ii), 'R')
        else:
            for i in range(36): steps.append(('h', i * 1024, 16 * i if i < NR else 16 * (i - NR), 1024))
            for ii in range(16): dma(sW2, 16 * ii * XB, sRW, 2048 * ii, 'R')
        P.V(f'buffer_load_dwordx4 v[{XR}:{XR+3}], v{vO}, s[{sX}:{sX+3}], 0 offen', 'xr')
        P.V(f'buffer_load_dwordx4 v[{B2R}:{B2R+3}], v{vT+2}, s[{sB2}:{sB2+3}], 0 offen', 'xr')
        def hload(i):
            if i >= 36: return
            kind, go, _, _ = steps[i]
            base = sHB if kind == 'h' else sOB2
            d = HR + 4 * (i % NH)
            P.I(f's_add_u32 s{sT1}, s{base}, {go & ~4095}')
            P.V(f'buffer_load_dwordx4 v[{d}:{d+3}], v{vH}, s[{sWS}:{sWS+3}], s{sT1} offen offset:{go & 4095}{cfg.sc}', ('h', i))
        if not cfg.fused:
            for i in range(NH): hload(i)
        stamp(P, cfg, 'Riss'); P.wait_vm('R'); stamp(P, cfg, 'Rw'); P.I('s_barrier'); stamp(P, cfg, 'Rb')
        def trr(dst, i, tag):
            _, _, row, dl = steps[i]
            for j in range(2):
                P.D(f'ds_read_b64_tr_b16 v[{dst+4*j}:{dst+4*j+1}], v{vA[j]} offset:{row*128}', tag)
                P.D(f'ds_read_b64_tr_b16 v[{dst+4*j+2}:{dst+4*j+3}], v{vA[j]} offset:{row*128+dl}', tag)
        for i in range(NR): trr(WR + 8 * i, i, 'wr')
        if not k0:
            P.I(f'''
            s_lshl_b32 s{sT0}, s{sKQ}, 13
            s_sub_u32 s{sT0}, s{sT0}, 4096
            s_add_u32 s{sLD}, s{sLD}, s{sT0}
            ''')
        P.lg0(); P.I('s_barrier'); stamp(P, cfg, 'trb')
        if not k0: P.I(f'v_add_u32 v{vA[0]}, s{sT0}, v{vA[0]}\nv_add_u32 v{vA[1]}, s{sT0}, v{vA[1]}')
        if k0:
            for ii in range(18): dma(sWO, (168 + 16 * ii) * XB, None, 2048 * ii, 'L')
        else:
            for ii in range(20): dma(sW2, (256 + 16 * ii) * XB, sRW, 2048 * ii, 'L')
        stamp(P, cfg, 'Liss')
        if cfg.fused:
            poll(P, 0, 'h', k0, True)
            n0 = 4 if k0 else NH
            for i in range(n0): hload(i)
            if k0:
                poll(P, 1, 'o', True, False)
                for i in range(4, NH): hload(i)
        stamp(P, cfg, 'go')
        seen = {'h': False, 'o': False}
        AHL = 2
        def wl(i): return WL + 8 * ((i - NR) % 4)
        for i in range(36):
            kind = steps[i][0]
            a = AM if kind == 'h' else AS
            if i == NR - AHL:
                stamp(P, cfg, 'Le'); P.wait_vm('L'); P.I('s_barrier'); stamp(P, cfg, 'Lb')
            if NR <= i + AHL < 36: trr(wl(i + AHL), i + AHL, ('wl', i + AHL))
            w = WR + 8 * i if i < NR else wl(i)
            if i >= NR: P.wait_lg(('wl', i))
            P.wait_vm(('h', i))
            b = HR + 4 * (i % NH)
            for j in range(2):
                c = f'v[{a+16*j}:{a+16*j+15}]' if seen[kind] else '0'
                P.I(f'v_mfma_f32_32x32x16_bf16 v[{a+16*j}:{a+16*j+15}], v[{w+4*j}:{w+4*j+3}], v[{b}:{b+3}], {c}')
            seen[kind] = True
            hload(i + NH)
        stamp(P, cfg, 'loop')
        P.I('s_barrier')
        stamp(P, cfg, 'endb')
        P.I(f'''
        s_mul_i32 s{sT0}, s{sTT}, 40960
        s_lshl_b32 s{sT1}, s{sKQ}, 11
        s_add_u32 s{sT1}, s{sT1}, s{sT0}
        v_add_u32 v{vT}, s{sT1}, v{vH}
        s_mul_i32 s{sT1}, s{sKQ}, 10240
        s_add_u32 s{sT1}, s{sT1}, s{sT0}
        v_add_u32 v{vT+1}, s{sT1}, v{vH}
        ''')
        for p in range(4):
            for q in range(2):
                r = AM + 8 * p + 4 * q
                P.D(f'ds_write_b128 v{vT}, v[{r}:{r+3}] offset:{10240*p + 1024*q}', 'rw')
        if k0:
            for p in range(4):
                for q in range(2):
                    r = AS + 8 * p + 4 * q
                    P.D(f'ds_write_b128 v{vT}, v[{r}:{r+3}] offset:{10240*p + 8192 + 1024*q}', 'rw')
        P.lg0(); stamp(P, cfg, 'rw'); P.I('s_barrier'); stamp(P, cfg, 'rb')
        P.I('s_branch L_s2_fin')
    body(False)
    P.restore(st0)
    P.label('L_s2_k0')
    body(True)
    P.label('L_s2_fin')
    RD = 16
    for src in range(5):
        for q in range(2):
            r = RD + 8 * src + 4 * q
            P.D(f'ds_read_b128 v[{r}:{r+3}], v{vT+1} offset:{2048*src + 1024*q}', 'rr')
    P.vm0()
    P.I(f'''
    v_permlane32_swap_b32 v{XR}, v{XR+2}
    v_permlane32_swap_b32 v{XR+1}, v{XR+3}
    v_permlane32_swap_b32 v{B2R}, v{B2R+2}
    v_permlane32_swap_b32 v{B2R+1}, v{B2R+3}
    ''')
    XF, BF, G = 64, 72, 80
    for d in range(4):
        P.I(f'v_lshlrev_b32 v{XF+2*d}, 16, v{XR+d}\nv_and_b32 v{XF+2*d+1}, 0xffff0000, v{XR+d}')
        P.I(f'v_lshlrev_b32 v{BF+2*d}, 16, v{B2R+d}\nv_and_b32 v{BF+2*d+1}, 0xffff0000, v{B2R+d}')
    P.lg0()
    for e in range(8): P.I(f'v_add_f32 v{RD+e}, v{RD+e}, v{RD+8+e}')
    for e in range(8): P.I(f'v_add_f32 v{RD+16+e}, v{RD+16+e}, v{RD+24+e}')
    for e in range(8): P.I(f'v_add_f32 v{BF+e}, v{BF+e}, v{RD+e}')
    for e in range(8): P.I(f'v_add_f32 v{BF+e}, v{BF+e}, v{RD+16+e}')
    for e in range(8): P.I(f'v_mul_f32 v{G+e}, {f32(-LOG2E)}, v{BF+e}')
    for e in range(8): P.I(f'v_exp_f32 v{G+e}, v{G+e}')
    for e in range(8): P.I(f'v_add_f32 v{G+e}, 1.0, v{G+e}')
    for e in range(8): P.I(f'v_rcp_f32 v{G+e}, v{G+e}')
    for e in range(8): P.I(f'v_mul_f32 v{G+e}, v{G+e}, v{BF+e}')
    for e in range(8): P.I(f'v_fma_f32 v{G+e}, v{G+e}, v{RD+32+e}, v{XF+e}')
    for d in range(4): P.I(f'v_cvt_pk_bf16_f32 v{XR+d}, v{G+2*d}, v{G+2*d+1}')
    P.I(f'v_permlane32_swap_b32 v{XR}, v{XR+2}\nv_permlane32_swap_b32 v{XR+1}, v{XR+3}')
    P.V(f'buffer_store_dwordx4 v[{XR}:{XR+3}], v{vO}, s[{sOUT}:{sOUT+3}], 0 offen', 'out')
    stamp(P, cfg, 'st'); P.vm0(); stamp(P, cfg, 'drain'); stamp_flush(P, cfg)

def poll(P, which, lab, do_poll, wg_barrier):
    sM2 = 74; t = 252
    if do_poll:
        P.I(f'''
        s_lshr_b32 s{sT0}, s{sM2}, 1
        s_lshl_b32 s{sT0}, s{sT0}, 7
        s_add_u32 s{sT0}, s{sT0}, {CNT_OFF + which * 2048}
        s_mov_b32 s{sT2}, {SPIN}
        L_poll{lab}:
        buffer_load_dword v{t}, off, s[{sWS}:{sWS+3}], s{sT0} sc1
        s_sub_u32 s{sT2}, s{sT2}, 1
        s_cbranch_scc1 L_pollx{lab}
        s_waitcnt vmcnt(0)
        v_readfirstlane_b32 s{sT1}, v{t}
        s_cmp_ge_u32 s{sT1}, 8
        s_cbranch_scc0 L_poll{lab}
        L_pollx{lab}:
        s_waitcnt vmcnt(0)
        ''')
        P.vm.q = []
    if wg_barrier: P.I('s_barrier')

def prof_dump(P, cfg, regs):
    if not cfg.prof: return
    P.I(f'''
    s_lshl_b32 s{sT0}, s2, 3
    s_add_u32 s{sT0}, s{sT0}, s{sWAVE}
    s_lshl_b32 s{sT0}, s{sT0}, 8
    s_mov_b32 s{sWS+2}, 0x2000000
    v_and_b32 v1, 63, v0
    v_lshlrev_b32 v1, 2, v1
    ''')
    for slot, r in regs:
        P.I(f's_add_u32 s{sT1}, s{sT0}, {0x1000000 + slot * 0x100000}')
        P.I(f'buffer_store_dword v{r}, v1, s[{sWS}:{sWS+3}], s{sT1} offen')

def kd(name, vg=256, sg=102):
    return f'''.p2align 6
.amdhsa_kernel {name}
  .amdhsa_next_free_vgpr {vg}
  .amdhsa_next_free_sgpr {sg}
  .amdhsa_accum_offset {vg}
  .amdhsa_group_segment_fixed_size 0
  .amdhsa_kernarg_size 88
  .amdhsa_user_sgpr_count 2
  .amdhsa_user_sgpr_kernarg_segment_ptr 1
  .amdhsa_system_sgpr_workgroup_id_x 1
  .amdhsa_float_denorm_mode_32 3
.end_amdhsa_kernel
'''

def build(cfg):
    hdr = open('cdna_kernels/' + NAME + '.s.ref').read().split('; Override launch')[0]
    out = [hdr]
    kernels = []
    if not cfg.fused:
        out.append('; @launch kernel=stage1_kernel grid=(256,1,1) block=(512,1,1) lds=163840\n')
        out.append('; @launch kernel=stage2_kernel grid=(256,1,1) block=(512,1,1) lds=163840\n')
        P = Prog(); P.pv = 255
        stamp(P, cfg, 'start')
        prologue(P, 256, 'L_end1')
        stage1_ids(P)
        P.I(f's_cmp_ge_u32 s{sJ}, 16\ns_cbranch_scc1 L_att')
        st = P.state()
        mlp_path(P, cfg, 'L_s1_done')
        P.restore(st)
        P.label('L_att')
        att_path(P, cfg, 'L_s1_done')
        P.label('L_s1_done')
        prof_dump(P, cfg, [(0, 255)])
        P.label('L_end1')
        P.I('s_endpgm')
        kernels.append(('stage1_kernel', P))
        P = Prog(); P.pv = 254
        stamp(P, cfg, 'start')
        prologue(P, 256, 'L_end2')
        stage2(P, cfg, 'L_end2')
        prof_dump(P, cfg, [(1, 254)])
        P.label('L_end2')
        P.I('s_endpgm')
        kernels.append(('stage2_kernel', P))
    else:
        out.append('; @launch grid=(256,1,1) block=(512,1,1) lds=163840\n')
        P = Prog(); P.pv = 255
        stamp(P, cfg, 'start')
        prologue(P, 256, 'L_end')
        stage1_ids(P)
        P.I(f's_cmp_ge_u32 s{sJ}, 16\ns_cbranch_scc1 L_att')
        st = P.state()
        mlp_path(P, cfg, 'L_s1_done')
        P.restore(st)
        P.label('L_att')
        att_path(P, cfg, 'L_s1_done')
        P.label('L_s1_done')
        P.vm.q = []; P.lg.q = []; P.pv = 254
        stamp(P, cfg, 's2')
        stage2(P, cfg, 'L_s2_skip')
        P.label('L_s2_skip')
        prof_dump(P, cfg, [(0, 255), (1, 254)])
        P.label('L_end')
        P.I('s_endpgm')
        kernels.append((NAME + '_kernel', P))
    out.append('.amdgcn_target "amdgcn-amd-amdhsa--gfx950"\n.text\n')
    for name, P in kernels:
        out.append(f'.globl {name}\n.p2align 8\n.type {name},@function\n{name}:\n')
        for l in fix_hazards(P.L):
            out.append(l + '\n' if l.endswith(':') else '    ' + l + '\n')
    out.append('.section .rodata,"a"\n')
    for name, _ in kernels: out.append(kd(name))
    return ''.join(out)

if __name__ == '__main__':
    ap = argparse.ArgumentParser()
    ap.add_argument('-o', default='cdna_kernels/' + NAME + '.s')
    ap.add_argument('--prof', action='store_true')
    ap.add_argument('--fused', action='store_true')
    a = ap.parse_args()
    cfg = Cfg(); cfg.prof = a.prof; cfg.fused = a.fused
    open(a.o, 'w').write(build(cfg))
    if cfg.prof:
        import json; json.dump(cfg.paths, open(a.o + '.paths.json', 'w'))
```

```python
import re

TRANS = ('v_exp_f32', 'v_rcp_f32', 'v_rsq_f32', 'v_sqrt_f32', 'v_log_f32')

def _regs(tok):
    tok = tok.strip()
    if tok.startswith('-'): tok = tok[1:]
    m = re.fullmatch(r'abs\((.*)\)', tok)
    if m: tok = m.group(1)
    m = re.fullmatch(r'([vs])\[(\d+):(\d+)\]', tok)
    if m: return {(m.group(1), i) for i in range(int(m.group(2)), int(m.group(3)) + 1)}
    m = re.fullmatch(r'([vs])(\d+)', tok)
    if m: return {(m.group(1), int(m.group(2)))}
    if tok == 'm0': return {('m0', 0)}
    if tok in ('vcc', 'vcc_lo', 'vcc_hi'): return {('vcc', 0)}
    if tok in ('exec', 'exec_lo', 'exec_hi'): return {('exec', 0)}
    return set()

class Ins:
    def __init__(self, text):
        self.text = text
        t = text.split(';')[0].strip()
        self.label = t.endswith(':')
        self.directive = t.startswith('.') and not self.label
        self.kind = None; self.w = set(); self.r = set(); self.states = 1
        self.mn = ''
        if self.label or self.directive or not t:
            self.states = 0
            return
        parts = t.split(None, 1)
        mn = parts[0]; self.mn = mn
        rest = parts[1] if len(parts) > 1 else ''
        ops = [o.strip() for o in re.split(r',(?![^\[]*\])', rest)] if rest else []
        mods = ''
        if ops:
            sp = ops[-1].split(None, 1)
            ops[-1] = sp[0]
            mods = sp[1] if len(sp) > 1 else ''
        self.ops = ops; self.mods = mods
        R = [_regs(o) for o in ops]
        U = lambda xs: set().union(*xs) if xs else set()
        if mn == 's_nop':
            self.kind = 'nop'; self.states = int(ops[0], 0) + 1
        elif mn.startswith('v_mfma'):
            self.kind = 'mfma'; self.w = R[0]; self.A = R[1]; self.B = R[2]; self.C = R[3]
            self.r = R[1] | R[2] | R[3]
            self.passes = 8 if '32x32' in mn else 4
        elif mn.startswith('v_'):
            self.kind = 'valu'
            self.trans = mn.replace('_e32', '').replace('_e64', '') in TRANS
            self.dot = mn.startswith('v_dot')
            self.perm = mn.startswith('v_permlane')
            self.dpp = 'dpp' in mn or 'row_' in mods or 'quad_perm' in mods
            self.rl = mn.startswith('v_readfirstlane') or mn.startswith('v_readlane')
            if self.perm:
                self.w = R[0] | R[1]; self.r = R[0] | R[1]
            else:
                self.w = R[0]; self.r = U(R[1:])
                if mn.startswith(('v_fmac', 'v_dot2c', 'v_mac')): self.r |= R[0]
                if mn.startswith('v_cndmask') and len(ops) == 3: self.r |= {('vcc', 0)}
        elif mn.startswith('ds_'):
            self.kind = 'ds'
            if mn.startswith(('ds_read', 'ds_bpermute', 'ds_swizzle')):
                self.w = R[0]; self.r = U(R[1:])
            else:
                self.r = U(R)
        elif mn.startswith(('buffer_', 'global_')):
            self.kind = 'vmem'
            self.lds = bool(re.search(r'\blds\b', mods))
            self.store = 'store' in mn or 'atomic' in mn
            self.wide = mn.endswith(('x3', 'x4'))
            if self.lds:
                self.r = U(R) | {('m0', 0)}
            elif self.store:
                self.r = U(R)
                self.data = R[0] if mn.startswith('buffer') else R[1]
            else:
                self.w = R[0]; self.r = U(R[1:])
        elif mn.startswith('s_'):
            self.kind = 'salu'
            if mn.startswith(('s_cmp', 's_cbranch', 's_branch', 's_waitcnt', 's_barrier', 's_endpgm', 's_sleep', 's_setprio', 's_bitcmp')):
                self.r = U(R)
            else:
                self.w = R[0] if R else set(); self.r = U(R[1:])
                if 'saveexec' in mn: self.w |= {('exec', 0)}
        else:
            raise ValueError('unknown instr ' + text)

def vg(s): return {x for x in s if x[0] == 'v'}
def sg(s): return {x for x in s if x[0] in ('s', 'vcc')}

def need(p, c):
    n = 0
    if p.kind == 'valu':
        pv = vg(p.w); ps = sg(p.w)
        if c.kind == 'mfma' and pv & c.r: n = max(n, 2)
        if c.kind == 'valu':
            if p.trans and not c.trans and pv & c.r: n = max(n, 1)
            if p.trans and c.trans and pv & c.r: n = max(n, 1)
            if (c.perm or c.dpp) and pv & c.r: n = max(n, 2)
            if c.rl and pv & c.r: n = max(n, 1)
            if ps & c.r: n = max(n, 4 if c.rl else 2)
            if p.dot and (pv & (c.r | c.w)):
                same = c.mn == p.mn
                if same and not (pv & set().union(*[_regs(o) for o in c.ops[1:]])): pass
                else: n = max(n, 3)
        if p.dot and c.kind in ('mfma', 'ds', 'vmem') and pv & c.r: n = max(n, 3)
        if c.kind == 'vmem' and ps & c.r: n = max(n, 5)
        if c.kind == 'salu' and ps & c.r: n = max(n, 1)
    if p.kind == 'mfma':
        big = 12 if p.passes == 8 else 8
        mid = 10 if p.passes == 8 else 6
        if c.kind == 'mfma':
            if p.w & (c.A | c.B): n = max(n, big)
            if p.w & c.C:
                if not (p.w == c.C and p.passes == c.passes): n = max(n, mid)
            if p.w & c.w and not (p.w == c.C and p.passes == c.passes): n = max(n, mid)
        elif c.kind in ('valu', 'ds', 'vmem'):
            if p.w & (c.r | c.w): n = max(n, big)
            if c.kind == 'valu' and p.C & c.w: n = max(n, 7 if p.passes == 8 else 3)
            if c.kind in ('ds', 'vmem') and p.C & c.w: n = max(n, 7 if p.passes == 8 else 3)
    if p.kind == 'salu' and ('m0', 0) in p.w and c.kind == 'vmem' and c.lds: n = max(n, 1)
    if p.kind == 'vmem' and p.store and p.wide and c.kind in ('valu', 'mfma', 'ds', 'vmem') and p.data & c.w:
        n = max(n, 2)
    if p.kind == 'ds' and p.mn.startswith('ds_write_b128') and c.kind in ('valu', 'mfma') and vg(p.r) & c.w:
        n = max(n, 0)
    return n

def _required(hist, c):
    dist = 0; req = 0
    for p in reversed(hist):
        if p.states == 0: continue
        if dist >= 14: break
        if p.kind not in ('nop', None):
            k = need(p, c)
            if k > dist: req = max(req, k - dist)
        dist += p.states
    return req

def fix_hazards(lines):
    ins = [Ins(l) for l in lines]
    out = []
    for c in ins:
        if c.states and c.kind != 'nop':
            h = []
            for p in reversed(out[-40:]):
                if p.mn in ('s_branch', 's_endpgm'): break
                h.append(p)
            h.reverse()
            k = _required(h, c)
            while k > 0:
                n = min(k, 16)
                out.append(Ins(f's_nop {n-1}')); k -= n
        out.append(c)
    changed = True
    while changed:
        changed = False
        labels = {x.text.split(';')[0].strip()[:-1]: i for i, x in enumerate(out) if x.label}
        for i, b in enumerate(out):
            if b.mn.startswith(('s_cbranch', 's_branch')):
                tgt = b.ops[0]
                j = labels[tgt]
                h = []
                for p in reversed(out[max(0, i - 40):i + 1]):
                    if p is not b and p.mn in ('s_branch', 's_endpgm'): break
                    h.append(p)
                h.reverse()
                k = j + 1; hh = list(h); cnt = 0
                while k < len(out) and cnt < 16:
                    c = out[k]
                    if c.states and c.kind != 'nop':
                        r = _required(hh, c)
                        if r > 0:
                            out.insert(j + 1, Ins(f's_nop {r-1}'))
                            changed = True
                            break
                    if c.mn in ('s_branch', 's_endpgm'): break
                    hh.append(c); cnt += c.states; k += 1
                if changed: break
    return [x.text for x in out]

class Ctr:
    def __init__(self, name, maxv): self.name = name; self.q = []; self.maxv = maxv
    def copy(self):
        c = Ctr(self.name, self.maxv); c.q = list(self.q); return c
    def issue(self, tag): self.q.append(tag)
    def wait_n(self, pred):
        idx = -1
        for i, t in enumerate(self.q):
            if pred(t): idx = i
        if idx < 0: return None
        n = len(self.q) - 1 - idx
        n2 = min(n, self.maxv)
        self.q = self.q[len(self.q) - n2:] if n2 else []
        return n2

class Prog:
    def __init__(self):
        self.L = []
        self.vm = Ctr('vmcnt', 63); self.lg = Ctr('lgkmcnt', 15)
        self.nst = 0; self.names = []
    def I(self, s):
        for l in s.strip().split('\n'):
            l = l.strip()
            if l: self.L.append(l)
    _uid = 0
    def uid(self, new=True):
        if new: self._uid += 1
        return self._uid
    def label(self, n): self.L.append(n + ':')
    def V(self, s, tag=None):
        self.L.append(s); self.vm.issue(tag)
        assert len(self.vm.q) <= 63, 'vmcnt overflow'
    def D(self, s, tag=None):
        self.L.append(s); self.lg.issue(tag)
    def wait_vm(self, *tags):
        n = self.vm.wait_n(lambda t: t in tags)
        if n is not None: self.L.append(f's_waitcnt vmcnt({n})')
    def wait_lg(self, *tags):
        n = self.lg.wait_n(lambda t: t in tags)
        if n is not None: self.L.append(f's_waitcnt lgkmcnt({n})')
    def vm0(self): self.vm.q = []; self.L.append('s_waitcnt vmcnt(0)')
    def lg0(self): self.lg.q = []; self.L.append('s_waitcnt lgkmcnt(0)')
    def state(self): return (self.vm.copy(), self.lg.copy(), self.nst, list(self.names))
    def restore(self, st): self.vm, self.lg, self.nst, self.names = st[0].copy(), st[1].copy(), st[2], list(st[3])

def vr(a, n=1): return f'v{a}' if n == 1 else f'v[{a}:{a+n-1}]'
def sr(a, n=1): return f's{a}' if n == 1 else f's[{a}:{a+n-1}]'
import struct
def f32(x): return '0x%08x' % struct.unpack('<I', struct.pack('<f', x))[0]
```

```python
import sys, math, argparse
from asmlib import *

NAME = 'recurrent_scan__sliding_local_dilated__mixer_channel_mlp__prompt'
XB = 896; W1S = 3584; WQS = 2688
H_OFF = 0; O_OFF = 0x700000; CNT_OFF = 0x900000; STAT_OFF = 0x910000; WS_SIZE = 0x940000
SLOT = 8192; MISC = 19 * SLOT
EPS = 1e-5
LOG2E = 1.4426950408889634
GK0 = -2.0 * LOG2E * math.sqrt(2.0 / math.pi)
GK1 = GK0 * 0.044715
NEG = -1e30
SPIN = 400000

sX, sW, sWS, sB1, sWO, sW2, sOUT, sB2, sDBG = 28, 32, 36, 40, 44, 48, 52, 56, 60
sWAVE, sXCD, sJ, sMT, sSUB, sT0, sT1, sT2, sWX, sWW = 64, 65, 66, 67, 68, 69, 70, 71, 72, 73

def srd(P, d, ptr, size):
    P.I(f's_mov_b32 s{d}, s{ptr}\ns_mov_b32 s{d+1}, s{ptr+1}\ns_mov_b32 s{d+2}, {size}\ns_mov_b32 s{d+3}, 0x20000')

class Cfg:
    fused = False
    sc = ' sc1'
    prof = False
    dbgprof = False
    coarse = False
    keep = {'start', 'issued', 'c0b', 'T0e', 'B2b', 'B3b', 'B4b', 'end', 'pub', 'loop', 'e1', 'e2', 's2', 'Aok', 'b0', 'Bok', 'b@18', 'bm', 'bs', 'st', 'drain', 'c3b'}
    pubmap = {0: [0], 1: [1]}
    hook_late = None
    hook_early = None
    paths = []
    def path_id(self, names):
        self.paths.append(list(names)); return len(self.paths) - 1

def stamp(P, cfg, name=None):
    if not cfg.prof: return
    if cfg.coarse and name not in cfg.keep: return
    i = P.nst; P.nst += 1
    P.names.append(name)
    if i >= 2: P.I(f'v_writelane_b32 v{P.pv}, s{80+2*((i-2)%4)}, {i-2}')
    P.I(f's_memtime s[{80+2*(i%4)}:{81+2*(i%4)}]')

def stamp_flush(P, cfg):
    if not cfg.prof: return
    P.I('s_waitcnt lgkmcnt(0)')
    for i in range(max(0, P.nst - 2), P.nst): P.I(f'v_writelane_b32 v{P.pv}, s{80+2*(i%4)}, {i}')
    P.I(f'v_writelane_b32 v{P.pv}, {cfg.path_id(P.names)}, 63')
    P.nst = 0; P.names = []

def prologue(P, nwg, endlabel):
    P.I(f'''
    s_cmp_ge_u32 s2, {nwg}
    s_cbranch_scc1 {endlabel}
    s_load_dwordx16 s[4:19], s[0:1], 0
    s_load_dwordx4 s[20:23], s[0:1], 64
    s_load_dwordx2 s[24:25], s[0:1], 80
    v_lshrrev_b32 v2, 6, v0
    v_and_b32 v1, 63, v0
    v_readfirstlane_b32 s{sWAVE}, v2
    s_and_b32 s{sXCD}, s2, 7
    s_lshr_b32 s{sJ}, s2, 3
    ''')

def stage1_ids(P):
    P.I(f'''
    s_lshr_b32 s{sT0}, s{sXCD}, 2
    s_lshl_b32 s{sT0}, s{sT0}, 3
    s_bfe_u32 s{sT1}, s{sJ}, 0x30001
    s_add_u32 s{sMT}, s{sT0}, s{sT1}
    s_and_b32 s{sT0}, s{sXCD}, 3
    s_lshl_b32 s{sT0}, s{sT0}, 1
    s_and_b32 s{sT1}, s{sJ}, 1
    s_add_u32 s{sSUB}, s{sT0}, s{sT1}
    s_lshl_b32 s{sWX}, s{sWAVE}, 11
    s_lshl_b32 s{sWW}, s{sWAVE}, 10
    ''')

vFLAG = 253
def init_zero(P, cfg, t):
    if not cfg.fused: return
    srd(P, sWS, 24, WS_SIZE); srd(P, sDBG, 22, 256)
    P.I(f'''
    s_or_b32 s{sT0}, s2, s{sWAVE}
    s_cmp_eq_u32 s{sT0}, 0
    s_cbranch_scc0 L_noinit
    v_lshlrev_b32 v{t}, 7, v{vLANE}
    v_mov_b32 v{t+1}, 0
    s_mov_b32 s{sT0}, {CNT_OFF}
    buffer_store_dword v{t+1}, v{t}, s[{sWS}:{sWS+3}], s{sT0} offen sc1
    s_mov_b32 s{sT0}, {CNT_OFF + 8192}
    buffer_store_dword v{t+1}, v{t}, s[{sWS}:{sWS+3}], s{sT0} offen sc1
    s_mov_b32 s{sT0}, {CNT_OFF + 16384}
    buffer_store_dword v{t+1}, v{t}, s[{sWS}:{sWS+3}], s{sT0} offen sc1
    L_noinit:
    ''')
def init_flag(P, cfg, t, lab):
    if not cfg.fused: return
    P.I(f'''
    s_or_b32 s{sT0}, s2, s{sWAVE}
    s_cmp_eq_u32 s{sT0}, 0
    s_cbranch_scc0 L_noflag{lab}
    v_mov_b32 v{t}, 0
    v_mov_b32 v{t+1}, 1
    buffer_store_dword v{t+1}, v{t}, s[{sDBG}:{sDBG+3}], 0 offen sc1
    L_noflag{lab}:
    ''')
def flag_prefetch(P, cfg):
    if not cfg.fused: return
    P.V(f'buffer_load_dword v{vFLAG}, off, s[{sDBG}:{sDBG+3}], 0 sc1', 'flag')
def publish(P, cfg, which, lab):
    if not cfg.fused: return
    if cfg.hook_late: cfg.hook_late(P)
    P.wait_vm('st', 'flag', 'pa')
    P.I('s_barrier')
    P.I(f'''
    v_readfirstlane_b32 s{sT0}, v{vFLAG}
    s_cmp_lg_u32 s{sT0}, 0
    s_cbranch_scc1 L_fok{lab}
    s_mov_b32 s{sT2}, {SPIN}
    v_mov_b32 v252, 0
    L_fw{lab}:
    buffer_load_dword v{vFLAG}, off, s[{sDBG}:{sDBG+3}], 0 sc1
    s_sub_u32 s{sT2}, s{sT2}, 1
    s_cbranch_scc1 L_fok{lab}
    s_waitcnt vmcnt(0)
    v_readfirstlane_b32 s{sT0}, v{vFLAG}
    s_cmp_lg_u32 s{sT0}, 0
    s_cbranch_scc0 L_fw{lab}
    L_fok{lab}:
    s_cmp_eq_u32 s{sWAVE}, 0
    s_cbranch_scc0 L_np{lab}
    s_lshl_b32 s{sT0}, s{sMT}, 7
    s_add_u32 s{sT0}, s{sT0}, {CNT_OFF}
    v_mov_b32 v{vFLAG}, 1
    s_mov_b64 exec, 1
    {chr(10).join(f'buffer_atomic_add v{vFLAG}, off, s[{sWS}:{sWS+3}], s{sT0} offset:{2048*w} sc1' for w in cfg.pubmap[which])}
    s_mov_b64 exec, -1
    L_np{lab}:
    ''')

vLANE, vXD0, vXD1 = 1, 2, 3
def xdma_addr(P, t0, t1):
    P.I(f'''
    s_lshl_b32 s{sT0}, s{sMT}, 7
    s_lshl_b32 s{sT1}, s{sWAVE}, 4
    s_add_u32 s{sT0}, s{sT0}, s{sT1}
    v_lshrrev_b32 v{t0}, 3, v{vLANE}
    v_add_u32 v{t0}, s{sT0}, v{t0}
    v_mul_u32_u24 v{t0}, {XB}, v{t0}
    v_lshrrev_b32 v{t1}, 4, v{vLANE}
    v_xor_b32 v{t1}, v{t1}, v{vLANE}
    v_and_b32 v{t1}, 7, v{t1}
    v_lshl_add_u32 v{vXD0}, v{t1}, 4, v{t0}
    v_xor_b32 v{t1}, 4, v{t1}
    v_add_u32 v{t0}, {8*XB}, v{t0}
    v_lshl_add_u32 v{vXD1}, v{t1}, 4, v{t0}
    ''')

def dma_x(P, c, base, tag):
    for i in range(2):
        P.I(f's_add_u32 m0, s{sWX}, {base + 1024*i - 128*c}')
        P.V(f'buffer_load_dwordx4 v{vXD0+i}, s[{sX}:{sX+3}], 0 offen offset:{128*c} lds', tag)

def mlp_path(P, cfg, after):
    sCOLP, sCOLS, sHP, sHSG, sBP, sBS, sG = 74, 75, 76, 77, 78, 79, 27
    vWD, vWDs = 4, 5
    vWa = [6, 7, 8]; vWc = [9, 10, 11]; vXa = [12, 13, 14, 15]
    XF = 16; ACC = 128; WF = 144; NWF = 5; WCS = 164; CSA = 168; SEL = 172; BX = 176; AX = 180
    vK0, vK1, vRI = 184, 185, 186; BR = 187; U = 192; PK = 208; vHS = 216; vT = 217; ST = 220; vONE = 224
    vCSW, vCSR, vSTA = 225, 226, 227; T4 = 228
    CS_LDS = MISC; ST_LDS = MISC + 1024
    xdma_addr(P, vT, vT + 1)
    P.I(f'''
    s_lshr_b32 s{sG}, s{sWAVE}, 2
    s_and_b32 s{sT2}, s{sSUB}, 1
    s_mul_i32 s{sT0}, s{sSUB}, 448
    s_lshl_b32 s{sT1}, s{sT2}, 6
    s_add_u32 s{sCOLP}, s{sT0}, s{sT1}
    s_add_u32 s{sCOLS}, s{sT0}, 384
    s_sub_u32 s{sBS}, s{sT0}, 64
    s_cmp_eq_u32 s{sT2}, 0
    s_cselect_b32 s{sCOLS}, s{sCOLS}, s{sBS}
    s_add_u32 s{sBS}, s{sCOLS}, s{sT1}
    v_lshrrev_b32 v{vT}, 3, v{vLANE}
    s_lshl_b32 s{sT0}, s{sWAVE}, 3
    v_add_u32 v{vT}, s{sT0}, v{vT}
    v_mul_u32_u24 v{vT}, {W1S}, v{vT}
    v_lshrrev_b32 v{vT+1}, 2, v{vLANE}
    v_and_b32 v{vT+1}, 4, v{vT+1}
    v_xor_b32 v{vT+1}, v{vT+1}, v{vLANE}
    v_and_b32 v{vT+1}, 7, v{vT+1}
    v_lshl_add_u32 v{vWD}, v{vT+1}, 4, v{vT}
    v_xor_b32 v{vWDs}, s{sT1}, v{vWD}
    s_waitcnt lgkmcnt(0)
    ''')
    srd(P, sX, 4, 2048 * XB)
    srd(P, sW, 12, 448 * W1S)
    init_zero(P, cfg, vT)

    def dma_w(blk, c, slot, tag):
        P.I(f's_add_u32 m0, s{sWW}, {slot*SLOT}')
        if blk < 3:
            P.I(f's_add_u32 s{sT0}, s{sCOLP}, {c*64*W1S + 128*blk}')
            P.V(f'buffer_load_dwordx4 v{vWD}, s[{sW}:{sW+3}], s{sT0} offen lds', tag)
        else:
            P.I(f's_add_u32 s{sT0}, s{sCOLS}, {c*64*W1S}')
            P.V(f'buffer_load_dwordx4 v{vWDs}, s[{sW}:{sW+3}], s{sT0} offen lds', tag)

    wslot = {}
    xbase = {}
    for c in range(7): wslot[(0, c)] = c
    for c in range(6): xbase[c] = (7 + 2 * c) * SLOT
    xbase[6] = xbase[0]
    NI = 3
    for c in range(NI):
        dma_x(P, c, xbase[c], ('c', c))
        dma_w(0, c, c, ('c', c))
    stamp(P, cfg, 'issued')
    if not cfg.fused: srd(P, sWS, 24, WS_SIZE)
    srd(P, sB1, 14, 1792 * 2)
    P.I(f'''
    s_lshl_b32 s{sT0}, s{sMT}, 2
    s_and_b32 s{sT1}, s{sWAVE}, 3
    s_add_u32 s{sT0}, s{sT0}, s{sT1}
    s_mul_i32 s{sT0}, s{sT0}, {112*1024}
    s_lshl_b32 s{sT2}, s{sBS}, 5
    s_add_u32 s{sHSG}, s{sT0}, s{sT2}
    s_lshl_b32 s{sT2}, s{sG}, 6
    s_add_u32 s{sBP}, s{sCOLP}, s{sT2}
    s_lshl_b32 s{sT2}, s{sBP}, 5
    s_add_u32 s{sHP}, s{sT0}, s{sT2}
    v_and_b32 v{vT}, 31, v{vLANE}
    v_lshlrev_b32 v{vT+1}, 1, v{vT}
    ''')
    for t in range(3):
        P.V(f'buffer_load_ushort v{BR+t}, v{vT+1}, s[{sB1}:{sB1+3}], s{sBP} offen offset:{128*t}', 'bias')
    P.V(f'buffer_load_ushort v{BR+3}, v{vT+1}, s[{sB1}:{sB1+3}], s{sBS} offen', 'bias')
    P.I(f'''
    v_lshlrev_b32 v{vHS}, 4, v{vLANE}
    v_lshrrev_b32 v{vT+1}, 5, v{vLANE}
    v_lshlrev_b32 v{vT+1}, 3, v{vT+1}
    v_bfe_u32 v{vT+2}, v{vLANE}, 2, 2
    v_add_u32 v{vT+1}, v{vT+1}, v{vT+2}
    v_lshlrev_b32 v{vT+1}, 7, v{vT+1}
    v_and_b32 v{vT+2}, 16, v{vLANE}
    v_lshlrev_b32 v{vT+2}, 1, v{vT+2}
    v_and_b32 v{T4}, 3, v{vLANE}
    v_lshl_add_u32 v{vT+2}, v{T4}, 3, v{vT+2}
    s_lshl_b32 s{sT2}, s{sG}, 6
    v_add_u32 v{vT+2}, s{sT2}, v{vT+2}
    v_and_b32 v{T4}, 8, v{vLANE}
    v_lshlrev_b32 v{T4}, 3, v{T4}
    v_xor_b32 v{vT+2}, v{vT+2}, v{T4}
    v_add_u32 v{vWa[0]}, v{vT+1}, v{vT+2}
    v_add_u32 v{vWa[1]}, 0x10000, v{vWa[0]}
    v_add_u32 v{vWa[2]}, 0x20000, v{vWa[0]}
    s_lshl_b32 s{sT2}, s{sT1}, 11
    v_add_u32 v{vWc[0]}, s{sT2}, v{vWa[0]}
    v_add_u32 v{vWc[1]}, s{sT2}, v{vWa[1]}
    v_add_u32 v{vWc[2]}, s{sT2}, v{vWa[2]}
    ''')
    P.I(f'''
    s_lshl_b32 s{sT2}, s{sT1}, 5
    v_add_u32 v{vT+1}, s{sT2}, v{vT}
    v_bfe_u32 v{vT+2}, v{vLANE}, 1, 3
    v_lshrrev_b32 v{T4}, 5, v{vLANE}
    v_xor_b32 v{vT+2}, v{vT+2}, v{T4}
    v_lshlrev_b32 v{vT+2}, 4, v{vT+2}
    v_lshl_add_u32 v{vXa[0]}, v{vT+1}, 7, v{vT+2}
    v_xor_b32 v{vXa[1]}, 32, v{vXa[0]}
    v_xor_b32 v{vXa[2]}, 64, v{vXa[0]}
    v_xor_b32 v{vXa[3]}, 0x60, v{vXa[0]}
    v_lshlrev_b32 v{vSTA}, 4, v{vT+1}
    v_add_u32 v{vSTA}, {ST_LDS}, v{vSTA}
    ''')
    P.I(f'''
    s_lshl_b32 s{sT2}, s{sG}, 9
    s_add_u32 s{sT2}, s{sT2}, {CS_LDS}
    v_lshlrev_b32 v{vCSR}, 4, v{vT}
    v_add_u32 v{vCSR}, s{sT2}, v{vCSR}
    s_lshl_b32 s{sT2}, s{sT1}, 2
    v_add_u32 v{vCSW}, s{sT2}, v{vCSR}
    v_mov_b32 v{vONE}, 0x3f803f80
    v_lshrrev_b32 v{vT+1}, 2, v{vLANE}
    v_lshrrev_b32 v{vT+2}, 4, v{vLANE}
    v_xor_b32 v{vT+1}, v{vT+1}, v{vT+2}
    v_and_b32 v{vT+1}, 1, v{vT+1}
    v_sub_u32 v{vT+1}, v{vT+1}, 1
    v_and_b32 v{SEL}, v{vONE}, v{vT+1}
    v_mov_b32 v{SEL+1}, v{SEL}
    v_mov_b32 v{SEL+2}, v{SEL}
    v_mov_b32 v{SEL+3}, v{SEL}
    v_mov_b32 v{AX+3}, 0
    v_mov_b32 v{BX+3}, 0
    s_cmp_eq_u32 s{sG}, 0
    s_cbranch_scc0 L_mlp_g1
    ''')
    wq = [(b, c) for b in (1, 2, 3) for c in range(7)]
    sched = {}
    free = []
    def place(n):
        r = []
        for _ in range(n):
            if not wq: break
            bc = wq.pop(0); s = free.pop(0); wslot[bc] = s; r.append((bc, s))
        return r
    for c in range(2, 7):
        sl = xbase[c - 1] // SLOT; free += [sl, sl + 1]
        sched[('p0', c)] = place(3 if c >= 4 else 0)
    sl = xbase[6] // SLOT; free += [sl, sl + 1]
    sched[('p', 1)] = place(3)
    free += list(range(7)); sched[('p', 2)] = place(4); sched[('p', 3)] = place(3)
    free += [wslot[(1, c)] for c in range(7)]; sched[('p', 4)] = place(7)
    assert not wq
    def do_sched(ev):
        if ev[0] == 'p0' and ev[1] + NI < 7:
            c = ev[1] + NI
            dma_x(P, c, xbase[c], ('c', c)); dma_w(0, c, c, ('c', c))
        for (b, c), s in sched.get(ev, []): dma_w(b, c, s, ('w', b))
        if ev == ('p', 3): flag_prefetch(P, cfg)
        if ev == ('p', 1) and cfg.hook_early: cfg.hook_early(P)

    def tr(dst, areg, slot, s, tag):
        off = (slot % 8) * SLOT + s * 2048
        P.D(f'ds_read_b64_tr_b16 v[{dst}:{dst+1}], v{areg[slot//8]} offset:{off}', tag)
        P.D(f'ds_read_b64_tr_b16 v[{dst+2}:{dst+3}], v{areg[slot//8]} offset:{off+512}', tag)
    def xreads(c):
        for s in range(4):
            P.I(f'v_add_u32 v{vT+s%2}, {xbase[c]}, v{vXa[s]}')
            d = XF + 4 * (4 * c + s)
            P.D(f'ds_read_b128 v[{d}:{d+3}], v{vT+s%2}', ('x', 4 * c + s))
    def mfma(s):
        w = WF + 4 * (s % NWF); x = XF + 4 * s
        c = '0' if s == 0 else f'v[{ACC}:{ACC+15}]'
        P.I(f'v_mfma_f32_32x32x16_bf16 v[{ACC}:{ACC+15}], v[{w}:{w+3}], v[{x}:{x+3}], {c}')
    def mfma_cs(c):
        cc = '0' if c == 0 else f'v[{CSA}:{CSA+3}]'
        P.I(f'v_mfma_f32_16x16x32_bf16 v[{CSA}:{CSA+3}], v[{SEL}:{SEL+3}], v[{WCS}:{WCS+3}], {cc}')
    def m_phase(blk):
        AH = 3
        def rd(s):
            if s < 28: tr(WF + 4 * (s % NWF), vWa, wslot[(blk, s // 4)], s % 4, ('w', s))
        for s in range(AH): rd(s)
        for s in range(28):
            rd(s + AH)
            if s % 4 == 0: tr(WCS, vWc, wslot[(blk, s // 4)], 0, ('cs', s // 4))
            P.wait_lg(('w', s))
            mfma(s)
            if s % 4 == 2:
                P.wait_lg(('cs', s // 4)); mfma_cs(s // 4)
        P.D(f'ds_write_b32 v{vCSW}, v{CSA}', 'csw')
        P.lg0()
    def prep_consts(R, RI, M):
        t = vT
        P.I(f'''
        v_mul_f32 v{vK0}, {f32(GK0)}, v{R}
        v_mul_f32 v{t}, v{R}, v{R}
        v_mul_f32 v{t}, v{t}, v{R}
        v_mul_f32 v{vK1}, {f32(GK1)}, v{t}
        v_mov_b32 v{vRI}, v{RI}
        v_cmp_gt_u32 vcc, 32, v{vLANE}
        v_cndmask_b32 v{t}, 0, v{M}, vcc
        v_cndmask_b32 v{t+1}, 0, v{RI}, vcc
        v_sub_f32 v{t}, 0, v{t}
        v_cvt_pk_bf16_f32 v{BX+1}, v{t}, v{t+1}
        v_lshlrev_b32 v{t+2}, 16, v{BX+1}
        v_sub_f32 v{t+2}, v{t}, v{t+2}
        v_cvt_pk_bf16_f32 v{BX}, v{t}, v{t+2}
        v_and_b32 v{t+2}, 0xffff0000, v{BX+1}
        v_sub_f32 v{t+2}, v{t+1}, v{t+2}
        v_mov_b32 v{t}, 0
        v_cvt_pk_bf16_f32 v{BX+2}, v{t+2}, v{t}
        ''')
    def e_phase(tile, ev):
        P.D(f'ds_read_b128 v[{T4}:{T4+3}], v{vCSR}', 'csr')
        P.wait_vm('bias')
        P.I(f'v_lshlrev_b32 v{vT}, 16, v{BR+tile}\nv_mov_b32 v{AX+2}, v{BR+tile}')
        P.wait_lg('csr')
        P.I(f'''
        v_add_f32 v{T4}, v{T4}, v{T4+1}
        v_add_f32 v{T4+2}, v{T4+2}, v{T4+3}
        v_add_f32 v{T4}, v{T4}, v{T4+2}
        v_cvt_pk_bf16_f32 v{AX}, v{T4}, v{T4}
        v_lshlrev_b32 v{T4+1}, 16, v{AX}
        v_sub_f32 v{T4+1}, v{T4}, v{T4+1}
        v_cvt_pk_bf16_f32 v{AX+1}, v{T4+1}, v{vT}
        v_mfma_f32_32x32x16_bf16 v[{ACC}:{ACC+15}], v[{AX}:{AX+3}], v[{BX}:{BX+3}], v[{ACC}:{ACC+15}]
        ''')
        do_sched(ev)
        if tile < 3: P.I(f's_add_u32 s{sT1}, s{sHP}, {4096*tile}')
        else: P.I(f's_mov_b32 s{sT1}, s{sHSG}')
        for half in range(2):
            E = range(8 * half, 8 * half + 8)
            for e in E: P.I(f'v_mul_f32 v{U+e}, v{ACC+e}, v{ACC+e}')
            for e in E: P.I(f'v_fma_f32 v{U+e}, v{U+e}, v{vK1}, v{vK0}')
            for e in E: P.I(f'v_mul_f32 v{U+e}, v{ACC+e}, v{U+e}')
            for e in E: P.I(f'v_exp_f32 v{U+e}, v{U+e}')
            for e in E: P.I(f'v_fma_f32 v{U+e}, v{U+e}, v{vRI}, v{vRI}')
            for e in E: P.I(f'v_rcp_f32 v{U+e}, v{U+e}')
            for e in E: P.I(f'v_mul_f32 v{U+e}, v{ACC+e}, v{U+e}')
            for e in range(4): P.I(f'v_cvt_pk_bf16_f32 v{PK+4*half+e}, v{U+8*half+2*e}, v{U+8*half+2*e+1}')
            P.V(f'buffer_store_dwordx4 v[{PK+4*half}:{PK+4*half+3}], v{vHS}, s[{sWS}:{sWS+3}], s{sT1} offen offset:{1024*half}{cfg.sc}', 'st')

    st0 = P.state()
    for c in range(7):
        P.wait_vm(('c', c)); stamp(P, cfg, f'c{c}w'); P.I('s_barrier'); stamp(P, cfg, f'c{c}b')
        if c == 0: init_flag(P, cfg, vT, 'a')
        do_sched(('p0', c))
        xreads(c)
        for s in range(4): tr(WF + 4 * ((4 * c + s) % NWF), vWa, c, s, ('w', 4 * c + s))
        tr(WCS, vWc, c, 0, ('cs', c))
        for s in range(4):
            P.wait_lg(('x', 4 * c + s), ('w', 4 * c + s)); mfma(4 * c + s)
        P.wait_lg(('cs', c)); mfma_cs(c)
    P.D(f'ds_write_b32 v{vCSW}, v{CSA}', 'csw'); P.lg0()
    for p in range(1, 8):
        stamp(P, cfg, f'p{p}e')
        if p % 2 == 0: P.wait_vm(('w', p // 2))
        stamp(P, cfg, f'p{p}w')
        P.I('s_barrier')
        stamp(P, cfg, f'p{p}b')
        if p == 1:
            P.D(f'ds_read_b128 v[{ST}:{ST+3}], v{vSTA}', 'st'); P.wait_lg('st')
            prep_consts(ST, ST + 1, ST + 2)
        if p % 2: e_phase((p - 1) // 2, ('p', p))
        else:
            do_sched(('p', p)); m_phase(p // 2)
    stamp(P, cfg, 'end'); publish(P, cfg, 0, 'g0'); stamp(P, cfg, 'pub'); stamp_flush(P, cfg)
    P.I(f's_branch {after}')
    P.restore(st0)
    P.label('L_mlp_g1')
    for i in range(4): P.I(f'v_mov_b32 v{ST+i}, 0')
    for c in range(7):
        P.wait_vm(('c', c)); stamp(P, cfg, f'c{c}w'); P.I('s_barrier'); stamp(P, cfg, f'c{c}b')
        do_sched(('p0', c))
        xreads(c)
        for s in range(4):
            P.wait_lg(('x', 4 * c + s))
            for d in range(4):
                x = XF + 4 * (4 * c + s) + d
                P.I(f'v_dot2c_f32_bf16 v{ST+(d&1)}, v{x}, v{vONE}')
                P.I(f'v_dot2c_f32_bf16 v{ST+2+(d&1)}, v{x}, v{x}')
    t = vT
    P.I(f'''
    v_add_f32 v{ST}, v{ST}, v{ST+1}
    v_add_f32 v{ST+2}, v{ST+2}, v{ST+3}
    v_mov_b32 v{ST+1}, v{ST}
    v_mov_b32 v{ST+3}, v{ST+2}
    v_permlane32_swap_b32 v{ST}, v{ST+1}
    v_permlane32_swap_b32 v{ST+2}, v{ST+3}
    v_add_f32 v{ST}, v{ST}, v{ST+1}
    v_add_f32 v{ST+3}, v{ST+2}, v{ST+3}
    v_mul_f32 v{ST+2}, {f32(1.0/448)}, v{ST}
    v_mul_f32 v{ST+3}, {f32(1.0/448)}, v{ST+3}
    v_fma_f32 v{ST+3}, -v{ST+2}, v{ST+2}, v{ST+3}
    v_max_f32 v{ST+3}, 0, v{ST+3}
    v_add_f32 v{t}, {f32(EPS)}, v{ST+3}
    v_rsq_f32 v{t+1}, v{t}
    v_mul_f32 v{t+2}, v{t+1}, v{t+1}
    v_mul_f32 v{t+2}, v{t+2}, v{ST+3}
    v_add_f32 v{t+2}, {f32(EPS)}, v{t+2}
    v_rsq_f32 v{ST}, v{t+2}
    v_mul_f32 v{ST}, v{ST}, v{t+1}
    v_mul_f32 v{t}, v{t}, v{t+2}
    v_sqrt_f32 v{ST+1}, v{t}
    ''')
    P.D(f'ds_write_b128 v{vSTA}, v[{ST}:{ST+3}]', 'stw')
    prep_consts(ST, ST + 1, ST + 2)
    P.lg0()
    for p in range(1, 8):
        stamp(P, cfg, f'p{p}e')
        if p % 2 == 0: P.wait_vm(('w', p // 2))
        stamp(P, cfg, f'p{p}w')
        P.I('s_barrier')
        stamp(P, cfg, f'p{p}b')
        if p == 7: break
        if p % 2:
            do_sched(('p', p)); m_phase((p - 1) // 2)
        else: e_phase(p // 2 - 1, ('p', p))
    stamp(P, cfg, 'end'); publish(P, cfg, 0, 'g1'); stamp(P, cfg, 'pub'); stamp_flush(P, cfg)
    P.I(f's_branch {after}')

def att_path(P, cfg, after):
    sPP, sHH, sOB, sWC = 74, 75, 76, 77
    AREA = 40960; HALO = 3 * AREA
    AM = HALO + 14336
    HP_LDS = AM
    STR_LDS = AM + 1024
    CS_LDS = AM + 3072
    EX_LDS = AM + 4096
    vWD, vHD = 4, 5
    vXa = [6, 7]; vXs = [8, 9]; vWa = [10, 11]; vWh, vWq = 12, 13; vXh = [14, 15]
    ADV = vXa + vXs + vWa + [vWh, vWq]
    ACC = 16
    AH, CH, CQ, ONES = 64, 68, 72, 76
    FR = 80
    FSZ = 48
    ST = 176; vT = 180
    MKP, MKC, MKP0 = 192, 196, 200
    acc = lambda part, bb, t: ACC + 4 * (part * 4 + bb * 2 + t)
    xdma_addr(P, vT, vT + 1)
    P.I(f'''
    s_and_b32 s{sPP}, s{sWAVE}, 3
    s_lshr_b32 s{sHH}, s{sWAVE}, 2
    s_and_b32 s{sT2}, s{sWAVE}, 1
    s_lshl_b32 s{sT0}, s{sMT}, 7
    s_lshl_b32 s{sT1}, s{sT2}, 3
    s_add_u32 s{sT0}, s{sT0}, s{sT1}
    s_sub_u32 s{sT0}, s{sT0}, 16
    s_mul_i32 s{sT0}, s{sT0}, {XB}
    v_lshrrev_b32 v{vT}, 3, v{vLANE}
    v_mul_u32_u24 v{vT+2}, {XB}, v{vT}
    v_add_u32 v{vT+2}, s{sT0}, v{vT+2}
    v_lshrrev_b32 v{vT+1}, 4, v{vLANE}
    v_xor_b32 v{vT+1}, v{vT+1}, v{vLANE}
    s_lshl_b32 s{sT1}, s{sT2}, 2
    v_xor_b32 v{vT+1}, s{sT1}, v{vT+1}
    v_and_b32 v{vT+1}, 7, v{vT+1}
    v_lshl_add_u32 v{vHD}, v{vT+1}, 4, v{vT+2}
    s_lshl_b32 s{sT0}, s{sWAVE}, 3
    v_add_u32 v{vT}, s{sT0}, v{vT}
    v_mul_u32_u24 v{vT}, {WQS}, v{vT}
    v_lshrrev_b32 v{vT+1}, 3, v{vLANE}
    v_and_b32 v{vT+1}, 2, v{vT+1}
    v_xor_b32 v{vT+1}, s{sT1}, v{vT+1}
    v_xor_b32 v{vT+1}, v{vT+1}, v{vLANE}
    v_and_b32 v{vT+1}, 7, v{vT+1}
    v_min_u32 v{vT+1}, 6, v{vT+1}
    v_lshl_add_u32 v{vWD}, v{vT+1}, 4, v{vT}
    s_mul_i32 s{sWC}, s{sSUB}, 112
    s_waitcnt lgkmcnt(0)
    ''')
    srd(P, sX, 4, 2048 * XB)
    srd(P, sW, 6, 448 * WQS)
    P.I(f'''
    s_lshr_b32 s{sT0}, s{sWAVE}, 1
    s_lshl_b32 s{sT0}, s{sT0}, 7
    s_add_u32 m0, s{sWW}, {HALO}
    ''')
    P.V(f'buffer_load_dwordx4 v{vHD}, s[{sX}:{sX+3}], s{sT0} offen lds', 'halo')
    P.I(f'''
    s_cmp_lt_u32 s{sWAVE}, 6
    s_cselect_b32 s{sT1}, 512, 0
    s_cselect_b32 s{sT2}, 8192, 0
    s_add_u32 s{sT0}, s{sT0}, s{sT1}
    s_add_u32 s{sT2}, s{sT2}, s{sWW}
    s_add_u32 m0, s{sT2}, {HALO}
    ''')
    P.V(f'buffer_load_dwordx4 v{vHD}, s[{sX}:{sX+3}], s{sT0} offen lds', 'halo')
    def dma_chunk(c):
        a = (c % 3) * AREA
        for i in range(2):
            if a + 1024 * i - 128 * c >= 0:
                P.I(f's_add_u32 m0, s{sWX}, {a + 1024*i - 128*c}')
                P.V(f'buffer_load_dwordx4 v{vXD0+i}, s[{sX}:{sX+3}], 0 offen offset:{128*c} lds', ('c', c))
            else:
                P.I(f's_add_u32 m0, s{sWX}, {a + 1024*i}\ns_movk_i32 s{sT0}, {128*c}')
                P.V(f'buffer_load_dwordx4 v{vXD0+i}, s[{sX}:{sX+3}], s{sT0} offen lds', ('c', c))
        for p in range(3):
            P.I(f's_add_u32 m0, s{sWW}, {a + 16384 + p*8192}')
            P.I(f's_add_u32 s{sT0}, s{sWC}, {c*64*WQS + p*896}')
            P.V(f'buffer_load_dwordx4 v{vWD}, s[{sW}:{sW+3}], s{sT0} offen lds', ('c', c))
    for c in range(3): dma_chunk(c)
    stamp(P, cfg, 'issued')
    srd(P, sWS, 24, WS_SIZE); srd(P, sDBG, 22, 256)
    i15, g4 = vT + 4, vT + 5
    P.I(f'''
    v_and_b32 v{i15}, 15, v{vLANE}
    v_lshrrev_b32 v{g4}, 4, v{vLANE}
    v_lshrrev_b32 v{vT}, 1, v{i15}
    v_xor_b32 v{vT}, v{vT}, v{g4}
    v_lshlrev_b32 v{vT}, 4, v{vT}
    v_lshl_add_u32 v{vT}, v{i15}, 7, v{vT}
    v_add_u32 v{vXh[0]}, {HALO}, v{vT}
    v_xor_b32 v{vXh[1]}, 64, v{vXh[0]}
    s_lshl_b32 s{sT0}, s{sPP}, 12
    v_add_u32 v{vXa[0]}, s{sT0}, v{vT}
    v_xor_b32 v{vXa[1]}, 64, v{vXa[0]}
    s_lshl_b32 s{sT0}, s{sHH}, 11
    v_add_u32 v{vXs[0]}, s{sT0}, v{vXa[0]}
    v_add_u32 v{vXs[1]}, s{sT0}, v{vXa[1]}
    v_bfe_u32 v{vT}, v{vLANE}, 2, 2
    v_lshl_add_u32 v{vT+1}, v{g4}, 3, v{vT}
    v_lshlrev_b32 v{vT+1}, 7, v{vT+1}
    v_and_b32 v{vT}, 2, v{vT}
    v_and_b32 v{vT+2}, 1, v{g4}
    v_lshl_add_u32 v{vT}, v{vT+2}, 2, v{vT}
    v_lshlrev_b32 v{vT}, 4, v{vT}
    v_and_b32 v{vT+2}, 3, v{vLANE}
    v_lshlrev_b32 v{vT+2}, 3, v{vT+2}
    s_mul_i32 s{sT0}, s{sHH}, 56
    v_add_u32 v{vT+2}, s{sT0}, v{vT+2}
    v_xor_b32 v{vT+3}, v{vT+2}, v{vT}
    v_add_u32 v{vWa[0]}, v{vT+1}, v{vT+3}
    v_add_u32 v{vT+2}, 32, v{vT+2}
    v_xor_b32 v{vT+3}, v{vT+2}, v{vT}
    v_add_u32 v{vWa[1]}, v{vT+1}, v{vT+3}
    s_and_b32 s{sT0}, s{sPP}, 1
    s_cmp_eq_u32 s{sT0}, 0
    s_cselect_b64 vcc, -1, 0
    v_cndmask_b32 v{vT}, v{vWa[1]}, v{vWa[0]}, vcc
    s_lshr_b32 s{sT0}, s{sPP}, 1
    s_lshl_b32 s{sT1}, s{sT0}, 13
    s_lshl_b32 s{sT0}, s{sT0}, 12
    v_add_u32 v{vWh}, s{sT1}, v{vT}
    v_add_u32 v{vWq}, s{sT0}, v{vT}
    ''')
    for i in range(4): P.I(f'v_mov_b32 v{ONES+i}, 0x3f803f80\nv_mov_b32 v{ST+i}, 0')
    P.I(f'v_lshlrev_b32 v{vT}, 2, v{g4}\nv_sub_u32 v{vT}, v{i15}, v{vT}\nv_mov_b32 v{vT+3}, {f32(NEG)}')
    for v in range(4):
        P.I(f'''
        v_subrev_u32 v{vT+1}, {v}, v{vT}
        v_and_b32 v{vT+2}, 0xfffffff1, v{vT+1}
        v_cmp_eq_u32 vcc, 0, v{vT+2}
        v_cndmask_b32 v{MKC+v}, v{vT+3}, 0, vcc
        v_add_u32 v{vT+1}, 16, v{vT+1}
        v_and_b32 v{vT+2}, 0xfffffff1, v{vT+1}
        v_cmp_eq_u32 vcc, 0, v{vT+2}
        v_cndmask_b32 v{MKP+v}, v{vT+3}, 0, vcc
        ''')
    P.I(f'''
    s_or_b32 s{sT0}, s{sMT}, s{sPP}
    s_cmp_eq_u32 s{sT0}, 0
    s_cselect_b64 vcc, -1, 0
    ''')
    for v in range(4): P.I(f'v_cndmask_b32 v{MKP0+v}, v{MKP+v}, v{vT+3}, vcc')
    P.I(f'''
    s_lshl_b32 s{sT0}, s{sMT}, 2
    s_add_u32 s{sT0}, s{sT0}, s{sPP}
    s_lshl_b32 s{sT0}, s{sT0}, 15
    s_lshl_b32 s{sT1}, s{sSUB}, 1
    s_add_u32 s{sT1}, s{sT1}, s{sHH}
    s_lshl_b32 s{sT1}, s{sT1}, 11
    s_add_u32 s{sOB}, s{sT0}, s{sT1}
    s_add_u32 s{sOB}, s{sOB}, {O_OFF}
    ''')
    def reduce4(a, tmp):
        P.I(f'''
        v_mov_b32 v{tmp}, v{a}
        v_permlane16_swap_b32 v{a}, v{tmp}
        v_add_f32 v{a}, v{a}, v{tmp}
        v_mov_b32 v{tmp}, v{a}
        v_permlane32_swap_b32 v{a}, v{tmp}
        v_add_f32 v{a}, v{a}, v{tmp}
        ''')
    def finish_stats(sm, sq, r, mr, t):
        P.I(f'''
        v_mul_f32 v{sm}, {f32(1.0/448)}, v{sm}
        v_mul_f32 v{sq}, {f32(1.0/448)}, v{sq}
        v_fma_f32 v{sq}, -v{sm}, v{sm}, v{sq}
        v_max_f32 v{sq}, 0, v{sq}
        v_add_f32 v{t}, {f32(EPS)}, v{sq}
        v_rsq_f32 v{r}, v{t}
        v_mul_f32 v{mr}, v{sm}, v{r}
        ''')
    P.wait_vm('halo'); P.I('s_barrier')
    P.I(f'''
    s_and_b32 s{sT0}, s{sWAVE}, 1
    s_lshl_b32 s{sT0}, s{sT0}, 6
    s_lshr_b32 s{sT1}, s{sWAVE}, 1
    s_lshl_b32 s{sT1}, s{sT1}, 11
    v_xor_b32 v{vT}, s{sT0}, v{vXh[0]}
    v_add_u32 v{vT}, s{sT1}, v{vT}
    s_cmp_lt_u32 s{sWAVE}, 6
    s_cselect_b32 s{sT1}, 8192, 0
    s_cselect_b32 s{sT2}, 1.0, 0
    v_add_u32 v{vT+1}, s{sT1}, v{vT}
    ''')
    P.D(f'ds_read_b128 v[{FR}:{FR+3}], v{vT}', 'h0'); P.D(f'ds_read_b128 v[{FR+4}:{FR+7}], v{vT+1}', 'h1')
    P.lg0()
    for k in range(2):
        for d in range(4):
            P.I(f'v_dot2c_f32_bf16 v{ST+k}, v{FR+4*k+d}, v{ONES}\nv_dot2c_f32_bf16 v{ST+2+k}, v{FR+4*k+d}, v{FR+4*k+d}')
    P.I(f'v_fma_f32 v{ST}, v{ST+1}, s{sT2}, v{ST}\nv_fma_f32 v{ST+1}, v{ST+3}, s{sT2}, v{ST+2}')
    reduce4(ST, vT); reduce4(ST + 1, vT)
    P.I(f'''
    s_lshl_b32 s{sT0}, s{sWAVE}, 3
    s_add_u32 s{sT0}, s{sT0}, {HP_LDS}
    v_lshlrev_b32 v{vT}, 6, v{i15}
    v_add_u32 v{vT}, s{sT0}, v{vT}
    ''')
    P.D(f'ds_write_b64 v{vT}, v[{ST}:{ST+1}]', 'hw')
    for i in range(4): P.I(f'v_mov_b32 v{ST+i}, 0')
    P.I(f's_cmp_lt_u32 s{sPP}, 2\ns_cbranch_scc0 L_att_v')
    st0 = P.state()

    def fr(set_, k): return FR + FSZ * set_ + 4 * k
    def reads(n):
        c, s2 = divmod(n, 2); se = n % 2; L = []
        def b128(k, a, off): L.append(lambda: P.D(f'ds_read_b128 v[{fr(se,k)}:{fr(se,k)+3}], v{a} offset:{off}', ('r', n)))
        def trr(k, a, off):
            L.append(lambda: P.D(f'ds_read_b64_tr_b16 v[{fr(se,k)}:{fr(se,k)+1}], v{a} offset:{off}', ('r', n)))
            L.append(lambda: P.D(f'ds_read_b64_tr_b16 v[{fr(se,k)+2}:{fr(se,k)+3}], v{a} offset:{off+512}', ('r', n)))
        b128(0, vXa[s2], 0); b128(1, vXa[s2], 2048)
        for p in range(3):
            for t in range(2): trr(4 + 2 * p + t, vWa[t], 16384 + p * 8192 + s2 * 4096)
        b128(2, vXh[s2], c * 2048); trr(10, vWh, 16384 + 8192 + s2 * 4096)
        b128(3, vXs[s2], 0)
        if s2 == 0: trr(11, vWq, 16384)
        return L
    def mf(d, a, b, first):
        c = '0' if first else f'v[{d}:{d+3}]'
        return f'v_mfma_f32_16x16x32_bf16 v[{d}:{d+3}], v[{a}:{a+3}], v[{b}:{b+3}], {c}'
    def body(vvar):
        P.wait_vm(('c', 0)); P.lg0(); stamp(P, cfg, 'c0w'); P.I('s_barrier'); stamp(P, cfg, 'c0b')
        for f in reads(0): f()
        for n in range(14):
            c, s2 = divmod(n, 2); se = n % 2; first = n == 0
            P.lg0()
            if s2 == 1 and c < 6:
                stamp(P, cfg, f'c{c+1}e'); P.wait_vm(('c', c + 1)); stamp(P, cfg, f'c{c+1}w'); P.I('s_barrier'); stamp(P, cfg, f'c{c+1}b')
                if c + 3 < 7: dma_chunk(c + 3)
                if c == 4: flag_prefetch(P, cfg)
                if c == 3 and cfg.hook_early: cfg.hook_early(P)
                delta = AREA if (c + 1) % 3 else -2 * AREA
                for a in ADV: P.I(f'v_add_u32 v{a}, {delta & 0xffffffff:#x}, v{a}')
            if n == 1:
                P.I(f'v_lshlrev_b32 v{vT}, 6, v{i15}\nv_add_u32 v{vT}, {HP_LDS}, v{vT}')
                for k in range(4): P.D(f'ds_read_b128 v[{204+4*k}:{204+4*k+3}], v{vT} offset:{16*k}', 'hp')
                P.lg0()
                for k in (0, 1):
                    P.I(f'v_add_f32 v{204+k}, v{204+k}, v{206+k}\nv_add_f32 v{208+k}, v{208+k}, v{210+k}\nv_add_f32 v{212+k}, v{212+k}, v{214+k}\nv_add_f32 v{216+k}, v{216+k}, v{218+k}')
                    P.I(f'v_add_f32 v{204+k}, v{204+k}, v{208+k}\nv_add_f32 v{212+k}, v{212+k}, v{216+k}\nv_add_f32 v{204+k}, v{204+k}, v{212+k}')
                finish_stats(204, 205, 206, 207, vT + 1)
                P.I(f'v_lshlrev_b32 v{vT}, 2, v{i15}\nv_add_u32 v{vT}, {STR_LDS}, v{vT}')
                P.D(f'ds_write_b32 v{vT}, v206', 'x'); P.D(f'ds_write_b32 v{vT}, v207 offset:1024', 'x')
            nxt = reads(n + 1) if n < 13 else []
            M = []
            for p in range(3):
                for t in range(2):
                    for bb in range(2):
                        w = fr(se, 4 + 2 * p + t); x = fr(se, bb)
                        M.append(mf(acc(p, bb, t), w, x, first) if p < 2 else mf(acc(p, bb, t), x, w, first))
            M.append(mf(AH, fr(se, 2), fr(se, 10), first) if vvar else mf(AH, fr(se, 10), fr(se, 2), first))
            M.append(mf(CH, ONES, fr(se, 10), first))
            if s2 == 0: M.append(mf(CQ, ONES, fr(se, 11), first))
            for i, m in enumerate(M):
                P.I(m)
                for _ in range(2):
                    if nxt: nxt.pop(0)()
            assert not nxt
            for d in range(4):
                x = fr(se, 3) + d
                P.I(f'v_dot2c_f32_bf16 v{ST+(d&1)}, v{x}, v{ONES}\nv_dot2c_f32_bf16 v{ST+2+(d&1)}, v{x}, v{x}')
        stamp(P, cfg, 'loop')
        P.I(f'v_add_f32 v{ST}, v{ST}, v{ST+1}\nv_add_f32 v{ST+1}, v{ST+2}, v{ST+3}')
        reduce4(ST, vT); reduce4(ST + 1, vT)
        finish_stats(ST, ST + 1, ST + 2, ST + 3, vT)
        P.I(f'''
        s_lshl_b32 s{sT0}, s{sPP}, 1
        s_add_u32 s{sT0}, s{sT0}, s{sHH}
        s_lshl_b32 s{sT0}, s{sT0}, 6
        s_add_u32 s{sT0}, s{sT0}, {STR_LDS + 64}
        v_lshlrev_b32 v{vT+1}, 2, v{i15}
        v_add_u32 v{vT}, s{sT0}, v{vT+1}
        ''')
        P.D(f'ds_write_b32 v{vT}, v{ST+2}', 'x'); P.D(f'ds_write_b32 v{vT}, v{ST+3} offset:1024', 'x')
        P.I(f'''
        s_lshl_b32 s{sT0}, s{sHH}, 9
        s_lshl_b32 s{sT1}, s{sPP}, 6
        s_add_u32 s{sT0}, s{sT0}, {CS_LDS}
        s_add_u32 s{sT1}, s{sT1}, s{sT0}
        v_add_u32 v{vT}, s{sT1}, v{vT+1}
        ''')
        P.D(f'ds_write_b32 v{vT}, v{CQ}', 'x'); P.D(f'ds_write_b32 v{vT}, v{CH} offset:256', 'x')
        P.lg0(); P.I('s_barrier'); stamp(P, cfg, 'e1')
        F = FR
        rL, mL = F, F + 3
        rR, mR = F + 8, F + 20
        csR = F + 32
        csL = F + 56
        csH = F + 58
        P.I(f'''
        s_lshl_b32 s{sT1}, s{sPP}, 7
        s_add_u32 s{sT1}, s{sT1}, {STR_LDS + 64}
        v_add_u32 v{vT}, s{sT1}, v{vT+1}
        v_add_u32 v{vT+2}, {STR_LDS}, v{vT+1}
        v_lshlrev_b32 v{vT+3}, 4, v{g4}
        v_add_u32 v{vT+6}, s{sT1}, v{vT+3}
        v_add_u32 v{vT+7}, {STR_LDS}, v{vT+3}
        v_add_u32 v{vT+8}, s{sT0}, v{vT+3}
        v_add_u32 v{vT+9}, s{sT0}, v{vT+1}
        s_lshl_b32 s{sT1}, s{sPP}, 6
        v_add_u32 v{vT+10}, s{sT1}, v{vT+9 if vvar else vT+8}
        ''')
        for bb in range(2):
            P.D(f'ds_read_b32 v{rL+bb}, v{vT} offset:{64*bb}', 'a'); P.D(f'ds_read_b32 v{mL+bb}, v{vT} offset:{1024+64*bb}', 'a')
        for e in range(6): P.D(f'ds_read_b128 v[{csR+4*e}:{csR+4*e+3}], v{vT+8} offset:{64*e}', 'a')
        P.lg0()
        for bb in range(2):
            P.D(f'ds_read_b128 v[{rR+4*bb}:{rR+4*bb+3}], v{vT+6} offset:{64*bb}', 'b'); P.D(f'ds_read_b128 v[{mR+4*bb}:{mR+4*bb+3}], v{vT+6} offset:{1024+64*bb}', 'b')
        for t in range(2): P.D(f'ds_read_b32 v{csL+t}, v{vT+9} offset:{64*(6+t)}', 'b')
        if vvar:
            P.D(f'ds_read_b128 v[{rR+8}:{rR+11}], v{vT+7}', 'b'); P.D(f'ds_read_b128 v[{mR+8}:{mR+11}], v{vT+7} offset:1024', 'b')
            P.D(f'ds_read_b32 v{csH}, v{vT+10} offset:256', 'b')
        else:
            P.D(f'ds_read_b32 v{rL+2}, v{vT+2}', 'b'); P.D(f'ds_read_b32 v{mL+2}, v{vT+2} offset:1024', 'b')
            P.D(f'ds_read_b128 v[{csH}:{csH+3}], v{vT+10} offset:256', 'b')
        for e in range(8): P.I(f'v_add_f32 v{csR+e}, v{csR+e}, v{csR+8+e}')
        QOP = F + 64; KOP = F + 72
        VOP = F + 84
        qs = 28 ** -0.5 * LOG2E
        rq, mq = 204, 208
        P.I(f'v_cmp_gt_u32 vcc, 48, v{vLANE}')
        for bb in range(2):
            P.I(f'''
            v_mul_f32 v{rq+2*bb}, {f32(qs)}, v{rL+bb}
            v_mul_f32 v{mq+2*bb}, {f32(qs)}, v{mL+bb}
            v_cndmask_b32 v{rq+2*bb+1}, 0, v{rq+2*bb}, vcc
            v_cndmask_b32 v{mq+2*bb+1}, 0, v{mq+2*bb}, vcc
            ''')
        def fold_T(a, r, m, cs, dst):
            for v in range(4): P.I(f'v_mul_f32 v{vT+v}, v{m}, v{cs+v}')
            for v in range(4): P.I(f'v_fma_f32 v{a+v}, v{a+v}, v{r}, -v{vT+v}')
            P.I(f'v_cvt_pk_bf16_f32 v{dst}, v{a}, v{a+1}\nv_cvt_pk_bf16_f32 v{dst+1}, v{a+2}, v{a+3}')
        def fold_N(a, r, m, cs, dst):
            for v in range(4): P.I(f'v_mul_f32 v{vT+v}, v{m+v}, v{cs}')
            for v in range(4): P.I(f'v_fma_f32 v{a+v}, v{a+v}, v{r+v}, -v{vT+v}')
            P.I(f'v_cvt_pk_bf16_f32 v{dst}, v{a}, v{a+1}\nv_cvt_pk_bf16_f32 v{dst+1}, v{a+2}, v{a+3}')
        P.I(f'''
        s_mul_i32 s{sT0}, s{sHH}, 10240
        s_add_u32 s{sT0}, s{sT0}, {EX_LDS}
        s_lshl_b32 s{sT1}, s{sPP}, 11
        s_add_u32 s{sT1}, s{sT1}, s{sT0}
        v_lshlrev_b32 v{vT+6}, 4, v{vLANE}
        v_add_u32 v{vT+7}, s{sT1}, v{vT+6}
        s_and_b32 s{sT1}, s{sPP}, 1
        s_lshl_b32 s{sT1}, s{sT1}, 3
        s_add_u32 s{sT1}, s{sT1}, s{sT0}
        v_add_u32 v{vT+8}, s{sT1}, v{vT+6}
        ''')
        for t in range(2): fold_T(acc(1, 1, t), rL + 1, mL + 1, csR + 16 + 4 * t, KOP + 8 + 2 * t)
        P.D(f'ds_write_b128 v{vT+7}, v[{KOP+8}:{KOP+11}] offset:2048', 'x')
        P.wait_lg('b')
        for t in range(2): fold_N(acc(2, 1, t), rR + 4, mR + 4, csL + t, VOP + 6 * t + 4)
        for t in range(2): P.D(f'ds_write_b64 v{vT+7}, v[{VOP+6*t+4}:{VOP+6*t+5}] offset:{2048+1024+8*t}', 'x')
        if vvar:
            fold_N(AH, rR + 8, mR + 8, csH, vT + 10)
            P.D(f'ds_write_b64 v{vT+8}, v[{vT+10}:{vT+11}] offset:1024', 'x')
        else:
            fold_T(AH, rL + 2, mL + 2, csH, vT + 10)
            P.D(f'ds_write_b64 v{vT+8}, v[{vT+10}:{vT+11}]', 'x')
        for t in range(2): fold_T(acc(1, 0, t), rL, mL, csR + 16 + 4 * t, KOP + 4 + 2 * t)
        for t in range(2): fold_N(acc(2, 0, t), rR, mR, csL + t, VOP + 6 * t + 2)
        P.lg0(); P.I('s_barrier'); stamp(P, cfg, 'e2')
        P.D(f'ds_read_b128 v[{KOP}:{KOP+3}], v{vT+7}', 'e')
        for t in range(2): P.D(f'ds_read_b64 v[{VOP+6*t}:{VOP+6*t+1}], v{vT+7} offset:{1024+8*t}', 'e')
        for bb in range(2):
            for t in range(2): fold_T(acc(0, bb, t), rq + 2 * bb + t, mq + 2 * bb + t, csR + 4 * t, QOP + 4 * bb + 2 * t)
        vO = vT + 9
        P.I(f'''
        v_lshlrev_b32 v{vO}, 9, v{g4}
        v_lshl_add_u32 v{vO}, v{i15}, 4, v{vO}
        ''')
        P.lg0()
        S = ACC
        for bb in range(2):
            mp = MKP0 if bb == 0 else MKP
            P.I(f'v_mfma_f32_16x16x32_bf16 v[{S+8*bb}:{S+8*bb+3}], v[{KOP+4*bb}:{KOP+4*bb+3}], v[{QOP+4*bb}:{QOP+4*bb+3}], v[{mp}:{mp+3}]')
            P.I(f'v_mfma_f32_16x16x32_bf16 v[{S+8*bb+4}:{S+8*bb+7}], v[{KOP+4*bb+4}:{KOP+4*bb+7}], v[{QOP+4*bb}:{QOP+4*bb+3}], v[{MKC}:{MKC+3}]')
        PP = ACC + 16; OO = ACC + 24
        mx = [vT, vT + 2]
        for bb in range(2):
            s = S + 8 * bb; m = mx[bb]
            P.I(f'''
            v_max3_f32 v{m}, v{s}, v{s+1}, v{s+2}
            v_max3_f32 v{m+1}, v{s+3}, v{s+4}, v{s+5}
            v_max3_f32 v{m}, v{m}, v{s+6}, v{s+7}
            v_max_f32 v{m}, v{m}, v{m+1}
            v_mov_b32 v{m+1}, v{m}
            ''')
        for bb in range(2): P.I(f'v_permlane16_swap_b32 v{mx[bb]}, v{mx[bb]+1}')
        for bb in range(2): P.I(f'v_max_f32 v{mx[bb]}, v{mx[bb]}, v{mx[bb]+1}\nv_mov_b32 v{mx[bb]+1}, v{mx[bb]}')
        for bb in range(2): P.I(f'v_permlane32_swap_b32 v{mx[bb]}, v{mx[bb]+1}')
        for bb in range(2): P.I(f'v_max_f32 v{mx[bb]}, v{mx[bb]}, v{mx[bb]+1}')
        for bb in range(2):
            s = S + 8 * bb
            for v in range(8): P.I(f'v_sub_f32 v{s+v}, v{s+v}, v{mx[bb]}')
            for v in range(8): P.I(f'v_exp_f32 v{s+v}, v{s+v}')
            for v in range(4): P.I(f'v_cvt_pk_bf16_f32 v{PP+4*bb+v}, v{s+2*v}, v{s+2*v+1}')
        for bb in range(2):
            o = OO + 12 * bb; p = PP + 4 * bb
            P.I(f'v_mfma_f32_16x16x32_bf16 v[{o+8}:{o+11}], v[{ONES}:{ONES+3}], v[{p}:{p+3}], 0')
            for t in range(2):
                a = VOP + 6 * t + 2 * bb
                P.I(f'v_mfma_f32_16x16x32_bf16 v[{o+4*t}:{o+4*t+3}], v[{a}:{a+3}], v[{p}:{p+3}], 0')
        for bb in range(2):
            o = OO + 12 * bb
            P.I(f'v_rcp_f32 v{o+8}, v{o+8}')
            P.I(f'v_cndmask_b32 v{o+9}, 0, v{o+8}, vcc')
            for v in range(4): P.I(f'v_mul_f32 v{o+v}, v{o+v}, v{o+8}')
            for v in range(4): P.I(f'v_mul_f32 v{o+4+v}, v{o+4+v}, v{o+9}')
            for v in range(4): P.I(f'v_cvt_pk_bf16_f32 v{PP+4*bb+v}, v{o+2*v}, v{o+2*v+1}')
            P.V(f'buffer_store_dwordx4 v[{PP+4*bb}:{PP+4*bb+3}], v{vO}, s[{sWS}:{sWS+3}], s{sOB} offen offset:{256*bb}{cfg.sc}', 'st')
        stamp(P, cfg, 'end'); publish(P, cfg, 1, 'av' if vvar else 'ak'); stamp(P, cfg, 'pub'); stamp_flush(P, cfg)
        P.I(f's_branch {after}')
    body(False)
    P.restore(st0)
    P.label('L_att_v')
    body(True)

def stage2(P, cfg, endlabel):
    sM2, sN2, sKQ, sTT, sHB, sOB2, sLD, sRW = 74, 75, 76, 77, 78, 79, 27, 26
    vWD, vH = 2, 3; vA = [4, 5]; vT = 6
    WR = 16
    AM, AS = 144, 176
    HR = 208; NH = 8
    XR = 240; B2R = 244
    WL = 16
    NR = 16
    P.I(f'''
    s_cmp_ge_u32 s{sJ}, 28
    s_cbranch_scc1 {endlabel}
    s_mul_i32 s{sT0}, s{sJ}, 37
    s_lshr_b32 s{sT0}, s{sT0}, 8
    s_mul_i32 s{sT1}, s{sT0}, 7
    s_sub_u32 s{sN2}, s{sJ}, s{sT1}
    s_lshl_b32 s{sM2}, s{sXCD}, 2
    s_add_u32 s{sM2}, s{sM2}, s{sT0}
    s_lshr_b32 s{sKQ}, s{sWAVE}, 1
    s_and_b32 s{sTT}, s{sWAVE}, 1
    v_lshrrev_b32 v{vT}, 3, v{vLANE}
    s_lshl_b32 s{sT0}, s{sTT}, 3
    v_add_u32 v{vT}, s{sT0}, v{vT}
    v_mul_u32_u24 v{vT}, {XB}, v{vT}
    v_lshrrev_b32 v{vT+1}, 2, v{vLANE}
    v_and_b32 v{vT+1}, 4, v{vT+1}
    v_xor_b32 v{vT+1}, v{vT+1}, v{vLANE}
    v_and_b32 v{vT+1}, 7, v{vT+1}
    v_lshl_add_u32 v{vWD}, v{vT+1}, 4, v{vT}
    s_lshl_b32 s{sT0}, s{sN2}, 7
    v_add_u32 v{vWD}, s{sT0}, v{vWD}
    v_lshlrev_b32 v{vH}, 4, v{vLANE}
    ''')
    if not cfg.fused:
        P.I('s_waitcnt lgkmcnt(0)')
        srd(P, sX, 4, 2048 * XB); srd(P, sWS, 24, WS_SIZE)
    srd(P, sWO, 8, 448 * XB); srd(P, sW2, 16, 1792 * XB); srd(P, sOUT, 20, 2048 * XB); srd(P, sB2, 18, 896)
    P.I(f'''
    v_lshrrev_b32 v{vT}, 5, v{vLANE}
    v_lshlrev_b32 v{vT}, 2, v{vT}
    v_bfe_u32 v{vT+1}, v{vLANE}, 2, 2
    v_add_u32 v{vT}, v{vT}, v{vT+1}
    v_lshlrev_b32 v{vT}, 7, v{vT}
    v_and_b32 v{vT+1}, 16, v{vLANE}
    v_lshlrev_b32 v{vT+1}, 1, v{vT+1}
    v_and_b32 v{vT+2}, 3, v{vLANE}
    v_lshl_add_u32 v{vT+1}, v{vT+2}, 3, v{vT+1}
    v_and_b32 v{vT+2}, 8, v{vLANE}
    v_lshlrev_b32 v{vT+2}, 3, v{vT+2}
    v_xor_b32 v{vT+1}, v{vT+1}, v{vT+2}
    v_add_u32 v{vT}, v{vT}, v{vT+1}
    s_lshl_b32 s{sT0}, s{sKQ}, 15
    v_add_u32 v{vA[0]}, s{sT0}, v{vT}
    v_xor_b32 v{vA[1]}, 64, v{vA[0]}
    s_lshl_b32 s{sT1}, s{sTT}, 10
    s_add_u32 s{sLD}, s{sT0}, s{sT1}
    s_lshl_b32 s{sT0}, s{sM2}, 1
    s_add_u32 s{sT0}, s{sT0}, s{sTT}
    s_mul_i32 s{sHB}, s{sT0}, {112*1024}
    s_lshl_b32 s{sOB2}, s{sT0}, 15
    s_add_u32 s{sOB2}, s{sOB2}, {O_OFF}
    s_mul_i32 s{sT1}, s{sKQ}, {36*1024}
    s_sub_u32 s{sT1}, s{sT1}, {32*1024}
    s_mul_i32 s{sRW}, s{sKQ}, {576*XB}
    s_sub_u32 s{sRW}, s{sRW}, {512*XB}
    ''')
    vO = 248
    P.I(f'''
    v_and_b32 v{vT+1}, 31, v{vLANE}
    s_lshl_b32 s{sT0}, s{sT0}, 5
    v_add_u32 v{vT+1}, s{sT0}, v{vT+1}
    v_mul_u32_u24 v{vT+1}, {XB}, v{vT+1}
    v_lshrrev_b32 v{vT+2}, 5, v{vLANE}
    v_lshlrev_b32 v{vT+2}, 4, v{vT+2}
    s_lshl_b32 s{sT0}, s{sN2}, 7
    s_lshl_b32 s{sT2}, s{sKQ}, 5
    s_add_u32 s{sT0}, s{sT0}, s{sT2}
    v_add_u32 v{vT+2}, s{sT0}, v{vT+2}
    v_add_u32 v{vO}, v{vT+1}, v{vT+2}
    s_cmp_eq_u32 s{sKQ}, 0
    s_cbranch_scc1 L_s2_k0
    s_add_u32 s{sHB}, s{sHB}, s{sT1}
    ''')
    st0 = P.state()
    def dma(srdn, rowoff_expr_imm, rowreg, lds_imm, tag):
        P.I(f's_add_u32 m0, s{sLD}, {lds_imm}')
        if rowreg is None: P.I(f's_mov_b32 s{sT0}, {rowoff_expr_imm}')
        else: P.I(f's_add_u32 s{sT0}, s{rowreg}, {rowoff_expr_imm}')
        P.V(f'buffer_load_dwordx4 v{vWD}, s[{srdn}:{srdn+3}], s{sT0} offen lds', tag)
    def body(k0):
        lab = 'k0' if k0 else 'kn'
        steps = []
        if k0:
            for i in range(4): steps.append(('h', i * 1024, 176 + 16 * i, 1024))
            for e in range(32):
                row = 28 * (e >> 1) + 8 * (e & 1)
                steps.append(('o', e * 1024, row if e < 12 else row - 168, 2048))
            for ii in range(11): dma(sWO, 16 * ii * XB, None, 2048 * ii, 'R')
            for ii in range(4): dma(sW2, 16 * ii * XB, None, 2048 * (11 + ii), 'R')
        else:
            for i in range(36): steps.append(('h', i * 1024, 16 * i if i < NR else 16 * (i - NR), 1024))
            for ii in range(16): dma(sW2, 16 * ii * XB, sRW, 2048 * ii, 'R')
        P.V(f'buffer_load_dwordx4 v[{XR}:{XR+3}], v{vO}, s[{sX}:{sX+3}], 0 offen', 'xr')
        P.V(f'buffer_load_dwordx4 v[{B2R}:{B2R+3}], v{vT+2}, s[{sB2}:{sB2+3}], 0 offen', 'xr')
        def hload(i):
            if i >= 36: return
            kind, go, _, _ = steps[i]
            base = sHB if kind == 'h' else sOB2
            d = HR + 4 * (i % NH)
            P.I(f's_add_u32 s{sT1}, s{base}, {go & ~4095}')
            P.V(f'buffer_load_dwordx4 v[{d}:{d+3}], v{vH}, s[{sWS}:{sWS+3}], s{sT1} offen offset:{go & 4095}{cfg.sc}', ('h', i))
        if not cfg.fused:
            for i in range(NH): hload(i)
        stamp(P, cfg, 'Riss'); P.wait_vm('R'); stamp(P, cfg, 'Rw'); P.I('s_barrier'); stamp(P, cfg, 'Rb')
        def trr(dst, i, tag):
            _, _, row, dl = steps[i]
            for j in range(2):
                P.D(f'ds_read_b64_tr_b16 v[{dst+4*j}:{dst+4*j+1}], v{vA[j]} offset:{row*128}', tag)
                P.D(f'ds_read_b64_tr_b16 v[{dst+4*j+2}:{dst+4*j+3}], v{vA[j]} offset:{row*128+dl}', tag)
        for i in range(NR): trr(WR + 8 * i, i, 'wr')
        if not k0:
            P.I(f'''
            s_lshl_b32 s{sT0}, s{sKQ}, 13
            s_sub_u32 s{sT0}, s{sT0}, 4096
            s_add_u32 s{sLD}, s{sLD}, s{sT0}
            ''')
        P.lg0(); P.I('s_barrier'); stamp(P, cfg, 'trb')
        if not k0: P.I(f'v_add_u32 v{vA[0]}, s{sT0}, v{vA[0]}\nv_add_u32 v{vA[1]}, s{sT0}, v{vA[1]}')
        if k0:
            for ii in range(18): dma(sWO, (168 + 16 * ii) * XB, None, 2048 * ii, 'L')
        else:
            for ii in range(20): dma(sW2, (256 + 16 * ii) * XB, sRW, 2048 * ii, 'L')
        stamp(P, cfg, 'Liss')
        if cfg.fused:
            poll(P, 0, 'h', k0, True)
            n0 = 4 if k0 else NH
            for i in range(n0): hload(i)
            if k0:
                poll(P, 1, 'o', True, False)
                for i in range(4, NH): hload(i)
        stamp(P, cfg, 'go')
        seen = {'h': False, 'o': False}
        AHL = 2
        def wl(i): return WL + 8 * ((i - NR) % 4)
        for i in range(36):
            kind = steps[i][0]
            a = AM if kind == 'h' else AS
            if i == NR - AHL:
                stamp(P, cfg, 'Le'); P.wait_vm('L'); P.I('s_barrier'); stamp(P, cfg, 'Lb')
            if NR <= i + AHL < 36: trr(wl(i + AHL), i + AHL, ('wl', i + AHL))
            w = WR + 8 * i if i < NR else wl(i)
            if i >= NR: P.wait_lg(('wl', i))
            P.wait_vm(('h', i))
            b = HR + 4 * (i % NH)
            for j in range(2):
                c = f'v[{a+16*j}:{a+16*j+15}]' if seen[kind] else '0'
                P.I(f'v_mfma_f32_32x32x16_bf16 v[{a+16*j}:{a+16*j+15}], v[{w+4*j}:{w+4*j+3}], v[{b}:{b+3}], {c}')
            seen[kind] = True
            hload(i + NH)
        stamp(P, cfg, 'loop')
        P.I('s_barrier')
        stamp(P, cfg, 'endb')
        P.I(f'''
        s_mul_i32 s{sT0}, s{sTT}, 40960
        s_lshl_b32 s{sT1}, s{sKQ}, 11
        s_add_u32 s{sT1}, s{sT1}, s{sT0}
        v_add_u32 v{vT}, s{sT1}, v{vH}
        s_mul_i32 s{sT1}, s{sKQ}, 10240
        s_add_u32 s{sT1}, s{sT1}, s{sT0}
        v_add_u32 v{vT+1}, s{sT1}, v{vH}
        ''')
        for p in range(4):
            for q in range(2):
                r = AM + 8 * p + 4 * q
                P.D(f'ds_write_b128 v{vT}, v[{r}:{r+3}] offset:{10240*p + 1024*q}', 'rw')
        if k0:
            for p in range(4):
                for q in range(2):
                    r = AS + 8 * p + 4 * q
                    P.D(f'ds_write_b128 v{vT}, v[{r}:{r+3}] offset:{10240*p + 8192 + 1024*q}', 'rw')
        P.lg0(); stamp(P, cfg, 'rw'); P.I('s_barrier'); stamp(P, cfg, 'rb')
        P.I('s_branch L_s2_fin')
    body(False)
    P.restore(st0)
    P.label('L_s2_k0')
    body(True)
    P.label('L_s2_fin')
    RD = 16
    for src in range(5):
        for q in range(2):
            r = RD + 8 * src + 4 * q
            P.D(f'ds_read_b128 v[{r}:{r+3}], v{vT+1} offset:{2048*src + 1024*q}', 'rr')
    P.vm0()
    P.I(f'''
    v_permlane32_swap_b32 v{XR}, v{XR+2}
    v_permlane32_swap_b32 v{XR+1}, v{XR+3}
    v_permlane32_swap_b32 v{B2R}, v{B2R+2}
    v_permlane32_swap_b32 v{B2R+1}, v{B2R+3}
    ''')
    XF, BF, G = 64, 72, 80
    for d in range(4):
        P.I(f'v_lshlrev_b32 v{XF+2*d}, 16, v{XR+d}\nv_and_b32 v{XF+2*d+1}, 0xffff0000, v{XR+d}')
        P.I(f'v_lshlrev_b32 v{BF+2*d}, 16, v{B2R+d}\nv_and_b32 v{BF+2*d+1}, 0xffff0000, v{B2R+d}')
    P.lg0()
    for e in range(8): P.I(f'v_add_f32 v{RD+e}, v{RD+e}, v{RD+8+e}')
    for e in range(8): P.I(f'v_add_f32 v{RD+16+e}, v{RD+16+e}, v{RD+24+e}')
    for e in range(8): P.I(f'v_add_f32 v{BF+e}, v{BF+e}, v{RD+e}')
    for e in range(8): P.I(f'v_add_f32 v{BF+e}, v{BF+e}, v{RD+16+e}')
    for e in range(8): P.I(f'v_mul_f32 v{G+e}, {f32(-LOG2E)}, v{BF+e}')
    for e in range(8): P.I(f'v_exp_f32 v{G+e}, v{G+e}')
    for e in range(8): P.I(f'v_add_f32 v{G+e}, 1.0, v{G+e}')
    for e in range(8): P.I(f'v_rcp_f32 v{G+e}, v{G+e}')
    for e in range(8): P.I(f'v_mul_f32 v{G+e}, v{G+e}, v{BF+e}')
    for e in range(8): P.I(f'v_fma_f32 v{G+e}, v{G+e}, v{RD+32+e}, v{XF+e}')
    for d in range(4): P.I(f'v_cvt_pk_bf16_f32 v{XR+d}, v{G+2*d}, v{G+2*d+1}')
    P.I(f'v_permlane32_swap_b32 v{XR}, v{XR+2}\nv_permlane32_swap_b32 v{XR+1}, v{XR+3}')
    P.V(f'buffer_store_dwordx4 v[{XR}:{XR+3}], v{vO}, s[{sOUT}:{sOUT+3}], 0 offen', 'out')
    stamp(P, cfg, 'st'); P.vm0(); stamp(P, cfg, 'drain'); stamp_flush(P, cfg)

def poll(P, which, lab, do_poll, wg_barrier):
    sM2 = 74; t = 252
    if do_poll:
        P.I(f'''
        s_lshr_b32 s{sT0}, s{sM2}, 1
        s_lshl_b32 s{sT0}, s{sT0}, 7
        s_add_u32 s{sT0}, s{sT0}, {CNT_OFF + which * 2048}
        s_mov_b32 s{sT2}, {SPIN}
        L_poll{lab}:
        buffer_load_dword v{t}, off, s[{sWS}:{sWS+3}], s{sT0} sc1
        s_sub_u32 s{sT2}, s{sT2}, 1
        s_cbranch_scc1 L_pollx{lab}
        s_waitcnt vmcnt(0)
        v_readfirstlane_b32 s{sT1}, v{t}
        s_cmp_ge_u32 s{sT1}, 8
        s_cbranch_scc0 L_poll{lab}
        L_pollx{lab}:
        s_waitcnt vmcnt(0)
        ''')
        P.vm.q = []
    if wg_barrier: P.I('s_barrier')

def prof_dump(P, cfg, regs):
    if not cfg.prof: return
    P.I(f'''
    s_lshl_b32 s{sT0}, s2, 3
    s_add_u32 s{sT0}, s{sT0}, s{sWAVE}
    s_lshl_b32 s{sT0}, s{sT0}, 8
    s_mov_b32 s{sWS+2}, 0x2000000
    v_and_b32 v1, 63, v0
    v_lshlrev_b32 v1, 2, v1
    ''')
    for slot, r in regs:
        P.I(f's_add_u32 s{sT1}, s{sT0}, {0x1000000 + slot * 0x100000}')
        P.I(f'buffer_store_dword v{r}, v1, s[{sWS}:{sWS+3}], s{sT1} offen')

def kd(name, vg=256, sg=102):
    return f'''.p2align 6
.amdhsa_kernel {name}
  .amdhsa_next_free_vgpr {vg}
  .amdhsa_next_free_sgpr {sg}
  .amdhsa_accum_offset {vg}
  .amdhsa_group_segment_fixed_size 0
  .amdhsa_kernarg_size 88
  .amdhsa_user_sgpr_count 2
  .amdhsa_user_sgpr_kernarg_segment_ptr 1
  .amdhsa_system_sgpr_workgroup_id_x 1
  .amdhsa_float_denorm_mode_32 3
.end_amdhsa_kernel
'''

def build(cfg):
    hdr = open('cdna_kernels/' + NAME + '.s.ref').read().split('; Override launch')[0]
    out = [hdr]
    kernels = []
    if not cfg.fused:
        out.append('; @launch kernel=stage1_kernel grid=(256,1,1) block=(512,1,1) lds=163840\n')
        out.append('; @launch kernel=stage2_kernel grid=(256,1,1) block=(512,1,1) lds=163840\n')
        P = Prog(); P.pv = 255
        stamp(P, cfg, 'start')
        prologue(P, 256, 'L_end1')
        stage1_ids(P)
        P.I(f's_cmp_ge_u32 s{sJ}, 16\ns_cbranch_scc1 L_att')
        st = P.state()
        mlp_path(P, cfg, 'L_s1_done')
        P.restore(st)
        P.label('L_att')
        att_path(P, cfg, 'L_s1_done')
        P.label('L_s1_done')
        prof_dump(P, cfg, [(0, 255)])
        P.label('L_end1')
        P.I('s_endpgm')
        kernels.append(('stage1_kernel', P))
        P = Prog(); P.pv = 254
        stamp(P, cfg, 'start')
        prologue(P, 256, 'L_end2')
        stage2(P, cfg, 'L_end2')
        prof_dump(P, cfg, [(1, 254)])
        P.label('L_end2')
        P.I('s_endpgm')
        kernels.append(('stage2_kernel', P))
    else:
        out.append('; @launch grid=(256,1,1) block=(512,1,1) lds=163840\n')
        P = Prog(); P.pv = 255
        if cfg.dbgprof: P.I('s_memrealtime s[90:91]')
        stamp(P, cfg, 'start')
        prologue(P, 256, 'L_end')
        stage1_ids(P)
        P.I(f's_cmp_ge_u32 s{sJ}, 16\ns_cbranch_scc1 L_att')
        st = P.state()
        mlp_path(P, cfg, 'L_s1_done')
        P.restore(st)
        P.label('L_att')
        att_path(P, cfg, 'L_s1_done')
        P.label('L_s1_done')
        P.vm.q = []; P.lg.q = []; P.pv = 254
        stamp(P, cfg, 's2')
        stage2(P, cfg, 'L_s2_skip')
        P.label('L_s2_skip')
        prof_dump(P, cfg, [(0, 255), (1, 254)])
        if cfg.dbgprof:
            P.I(f'''
            s_memrealtime s[92:93]
            s_waitcnt lgkmcnt(0)
            s_not_b32 s94, s90
            v_mov_b32 v2, s94
            v_mov_b32 v3, s92
            v_mov_b32 v4, s90
            s_mov_b64 exec, 1
            buffer_atomic_umax v2, off, s[{sDBG}:{sDBG+3}], 0 offset:8
            buffer_atomic_umax v3, off, s[{sDBG}:{sDBG+3}], 0 offset:12
            buffer_atomic_umax v4, off, s[{sDBG}:{sDBG+3}], 0 offset:4
            s_mov_b64 exec, -1
            s_lshl_b32 s94, s2, 3
            s_add_u32 s94, s94, s{sWAVE}
            s_cmp_eq_u32 s94, {8*8+2}
            s_cbranch_scc0 L_end
            v_readlane_b32 s94, v255, 0
            s_mov_b64 exec, 1
            ''')
            sel = [(255, 3), (255, 15), (255, 24), (255, 38), (254, 3), (254, 4), (254, 6), (254, 8), (254, 9), (254, 14)]
            for i, (r, l) in enumerate(sel):
                P.I(f'v_readlane_b32 s95, v{r}, {l}\ns_sub_u32 s95, s95, s94\nv_mov_b32 v2, s95\nbuffer_store_dword v2, off, s[{sDBG}:{sDBG+3}], 0 offset:{16+4*i}')
            P.I(f's_sub_u32 s95, s92, s90\nv_mov_b32 v2, s95\nbuffer_store_dword v2, off, s[{sDBG}:{sDBG+3}], 0 offset:{16+4*len(sel)}')
        P.label('L_end')
        P.I('s_endpgm')
        kernels.append((NAME + '_kernel', P))
    out.append('.amdgcn_target "amdgcn-amd-amdhsa--gfx950"\n.text\n')
    for name, P in kernels:
        out.append(f'.globl {name}\n.p2align 8\n.type {name},@function\n{name}:\n')
        for l in fix_hazards(P.L):
            out.append(l + '\n' if l.endswith(':') else '    ' + l + '\n')
    out.append('.section .rodata,"a"\n')
    for name, _ in kernels: out.append(kd(name))
    return ''.join(out)

if __name__ == '__main__':
    ap = argparse.ArgumentParser()
    ap.add_argument('-o', default='cdna_kernels/' + NAME + '.s')
    ap.add_argument('--prof', action='store_true')
    ap.add_argument('--fused', action='store_true')
    ap.add_argument('--dbgprof', action='store_true')
    a = ap.parse_args()
    cfg = Cfg(); cfg.dbgprof = a.dbgprof; cfg.prof = a.prof or a.dbgprof; cfg.fused = a.fused
    open(a.o, 'w').write(build(cfg))
    if cfg.prof:
        import json; json.dump(cfg.paths, open(a.o + '.paths.json', 'w'))
```

```python
from gen import *
from s2v2 import *
import gen

vPF = 250

def s1_prefetch(P, cfg, role, t):
    if cfg.nopf or not cfg.s1pf: return
    u = P.uid()
    P.I(f'''
    s_and_b32 s{sT0}, s{sJ}, 15
    s_lshl_b32 s{sT0}, s{sT0}, 3
    s_add_u32 s{sT0}, s{sT0}, s{sWAVE}
    ''')
    if role == 0:
        P.I(f'''
        s_lshr_b32 s{sT1}, s{sXCD}, 2
        s_mul_i32 s{sT1}, s{sT1}, {1024*XB}
        s_lshl_b32 s{sT2}, s{sT0}, 13
        s_add_u32 s{sT1}, s{sT1}, s{sT2}
        v_lshlrev_b32 v{vPF}, 7, v{vLANE}
        s_cmp_lt_u32 s{sT0}, 112
        s_cbranch_scc0 L_pfc{u}
        buffer_load_dword v{vPF}, v{vPF}, s[{sX}:{sX+3}], s{sT1} offen
        s_branch L_pfd{u}
        L_pfc{u}:
        s_getpc_b64 s[94:95]
        L_pc{u}:
        s_sub_u32 s{sT2}, s{sT2}, {112*8192}
        s_sub_u32 s94, s94, L_pc{u}-{NAME}_kernel
        s_subb_u32 s95, s95, 0
        v_add_u32 v{vPF}, s{sT2}, v{vPF}
        v_min_u32 v{vPF}, L_code_end-{NAME}_kernel-4, v{vPF}
        global_load_dword v{vPF}, v{vPF}, s[94:95]
        L_pfd{u}:
        ''')
        P.vm.issue('pf')
    else:
        P.I(f'''
        s_and_b32 s{sT2}, s{sXCD}, 3
        s_mov_b32 s{sW2}, s12
        s_mov_b32 s{sW2+1}, s13
        s_mov_b32 s{sW2+2}, {448*W1S}
        s_mov_b32 s{sW2+3}, 0x20000
        s_cmp_lt_u32 s{sT0}, 49
        s_cbranch_scc0 L_pfc{u}
        s_lshl_b32 s{sT0}, s{sT0}, 6
        v_add_u32 v{t}, s{sT0}, v{vLANE}
        v_mul_u32_u24 v{t+1}, 9363, v{t}
        v_lshrrev_b32 v{t+1}, 16, v{t+1}
        v_mul_u32_u24 v{vPF}, {W1S - 7*128}, v{t+1}
        v_lshl_add_u32 v{vPF}, v{t}, 7, v{vPF}
        s_mul_i32 s{sT1}, s{sT2}, 896
        s_branch L_pfd{u}
        L_pfc{u}:
        s_mov_b32 s{sW2}, s6
        s_mov_b32 s{sW2+1}, s7
        s_mov_b32 s{sW2+2}, {448*WQS}
        s_sub_u32 s{sT0}, s{sT0}, 49
        s_lshl_b32 s{sT0}, s{sT0}, 6
        v_add_u32 v{t}, s{sT0}, v{vLANE}
        v_mul_u32_u24 v{t+1}, 21846, v{t}
        v_lshrrev_b32 v{t+1}, 16, v{t+1}
        v_mul_u32_u24 v{vPF}, {896 - 3*128}, v{t+1}
        v_lshl_add_u32 v{vPF}, v{t}, 7, v{vPF}
        s_mul_i32 s{sT1}, s{sT2}, 224
        s_and_b32 s{sT1}, s{sT1}, 0xffffff80
        L_pfd{u}:
        ''')
        P.V(f'buffer_load_dword v{vPF}, v{vPF}, s[{sW2}:{sW2+3}], s{sT1} offen', 'pf')

sKX = [4, 5, 6, 7, 10, 11, 12]
def rot_first(P, cfg, role):
    if cfg.norot:
        P.I(f's_mov_b32 s{sKX[0]}, 0'); return
    P.I(f'''
    s_bfe_u32 s{sT0}, s{sJ}, 0x30001
    s_and_b32 s{sT1}, s{sJ}, 1
    s_lshl_b32 s{sT1}, s{sT1}, 1
    s_add_u32 s{sT0}, s{sT0}, s{sT1}
    s_add_u32 s{sT0}, s{sT0}, {4*role}
    s_sub_u32 s{sT1}, s{sT0}, 7
    s_cmp_ge_u32 s{sT0}, 7
    s_cselect_b32 s{sT0}, s{sT1}, s{sT0}
    s_lshl_b32 s{sKX[0]}, s{sT0}, 7
    ''')
def rot_rest(P, lo, hi):
    for c in range(lo, hi):
        P.I(f'''
        s_add_u32 s{sKX[c]}, s{sKX[c-1]}, 128
        s_cmp_eq_u32 s{sKX[c]}, 896
        s_cselect_b32 s{sKX[c]}, 0, s{sKX[c]}
        ''')
def dmax(P, c, base, i, tag):
    P.I(f's_add_u32 m0, s{sWX}, {base + 1024*i}')
    P.V(f'buffer_load_dwordx4 v{vXD0+i}, s[{sX}:{sX+3}], s{sKX[c]} offen lds', tag)

def w2pf_mlp(P, k, t):
    u = P.uid()
    P.I(f'''
    s_lshl_b32 s{sT0}, s{sJ}, 4
    s_lshl_b32 s{sT1}, s{sWAVE}, 1
    s_add_u32 s{sT0}, s{sT0}, s{sT1}
    s_add_u32 s{sT0}, s{sT0}, {k}
    s_lshl_b32 s{sT1}, s{sT0}, 13
    s_mov_b32 s{sW2}, s16
    s_mov_b32 s{sW2+1}, s17
    s_mov_b32 s{sW2+2}, {1792*XB}
    s_mov_b32 s{sW2+3}, 0x20000
    s_cmp_lt_u32 s{sT0}, 196
    s_cbranch_scc1 L_pf{u}
    s_mov_b32 s{sW2}, s8
    s_mov_b32 s{sW2+1}, s9
    s_mov_b32 s{sW2+2}, {448*XB}
    s_sub_u32 s{sT1}, s{sT1}, {196*8192}
    L_pf{u}:
    v_lshlrev_b32 v{t}, 7, v{vLANE}
    ''')
    P.V(f'buffer_load_dword v{vPF}, v{t}, s[{sW2}:{sW2+3}], s{sT1} offen', 'pf')

def wdma_addr(P, dst, stride, t, clamp6=False):
    P.I(f'''
    v_lshrrev_b32 v{t}, 3, v{vLANE}
    s_lshl_b32 s{sT0}, s{sWAVE}, 3
    v_add_u32 v{t}, s{sT0}, v{t}
    v_mul_u32_u24 v{t}, {stride}, v{t}
    v_lshrrev_b32 v{t+1}, 2, v{vLANE}
    v_and_b32 v{t+1}, 4, v{t+1}
    v_xor_b32 v{t+1}, v{t+1}, v{vLANE}
    v_and_b32 v{t+1}, 7, v{t+1}
    ''')
    if clamp6: P.I(f'v_min_u32 v{t+1}, 6, v{t+1}')
    P.I(f'v_lshl_add_u32 v{dst}, v{t+1}, 4, v{t}')

def frag_addrs(P, sLO, sHI, colstep, vXa, vW0, t):
    sR = sT2
    P.I(f'''
    s_xor_b32 s{sR}, s{sHI}, s{sLO}
    v_and_b32 v{t}, 31, v{vLANE}
    s_lshl_b32 s{sT0}, s{sLO}, 5
    v_add_u32 v{t}, s{sT0}, v{t}
    v_bfe_u32 v{t+1}, v{vLANE}, 1, 3
    v_lshrrev_b32 v{t+2}, 5, v{vLANE}
    v_xor_b32 v{t+1}, v{t+1}, v{t+2}
    v_lshlrev_b32 v{t+1}, 4, v{t+1}
    v_lshl_add_u32 v{t+1}, v{t}, 7, v{t+1}
    s_lshl_b32 s{sT0}, s{sR}, 5
    v_xor_b32 v{vXa[0]}, s{sT0}, v{t+1}
    v_xor_b32 v{vXa[1]}, 32, v{vXa[0]}
    v_xor_b32 v{vXa[2]}, 64, v{vXa[0]}
    v_xor_b32 v{vXa[3]}, 0x60, v{vXa[0]}
    v_lshlrev_b32 v{t+2}, 3, v{t+2}
    v_bfe_u32 v{t+1}, v{vLANE}, 2, 2
    v_add_u32 v{t+2}, v{t+2}, v{t+1}
    v_lshlrev_b32 v{t+2}, 7, v{t+2}
    v_and_b32 v{t+1}, 16, v{vLANE}
    v_lshlrev_b32 v{t+1}, 1, v{t+1}
    v_and_b32 v{t+3}, 3, v{vLANE}
    v_lshl_add_u32 v{t+1}, v{t+3}, 3, v{t+1}
    s_mul_i32 s{sT0}, s{sHI}, {colstep}
    v_add_u32 v{t+1}, s{sT0}, v{t+1}
    v_and_b32 v{t+3}, 8, v{vLANE}
    v_lshlrev_b32 v{t+3}, 3, v{t+3}
    v_xor_b32 v{t+1}, v{t+1}, v{t+3}
    v_add_u32 v{t+2}, v{t+2}, v{t+1}
    s_lshl_b32 s{sT0}, s{sR}, 11
    v_xor_b32 v{vW0[0]}, s{sT0}, v{t+2}
    v_xor_b32 v{vW0[1]}, 0x800, v{vW0[0]}
    v_xor_b32 v{vW0[2]}, 0x1000, v{vW0[0]}
    v_xor_b32 v{vW0[3]}, 0x1800, v{vW0[0]}
    ''')

def make_sel(P, SEL, t):
    P.I(f'''
    v_lshrrev_b32 v{t}, 2, v{vLANE}
    v_lshrrev_b32 v{t+1}, 4, v{vLANE}
    v_xor_b32 v{t}, v{t}, v{t+1}
    v_and_b32 v{t}, 1, v{t}
    v_add_u32 v{t}, -1, v{t}
    v_and_b32 v{SEL}, 0x3f803f80, v{t}
    v_mov_b32 v{SEL+1}, v{SEL}
    v_mov_b32 v{SEL+2}, v{SEL}
    v_mov_b32 v{SEL+3}, v{SEL}
    ''')

def sq_ops(x, t, sq, sm=None):
    L = []
    for d in range(4):
        a, b = t + 2 * (d & 1), t + 2 * (d & 1) + 1
        L += [f'v_lshlrev_b32 v{a}, 16, v{x+d}', f'v_and_b32 v{b}, 0xffff0000, v{x+d}',
              f'v_fmac_f32 v{sq}, v{a}, v{a}', f'v_fmac_f32 v{sq+1}, v{b}, v{b}']
        if sm is not None: L += [f'v_add_f32 v{sm}, v{sm}, v{a}', f'v_add_f32 v{sm+1}, v{sm+1}, v{b}']
    return L

def cost(ins):
    if callable(ins): return 4
    mn = ins.split()[0]
    if mn in TRANS or mn.startswith('v_permlane'): return 8
    return 4

class Filler:
    def __init__(self, P): self.P = P; self.q = []
    def add(self, xs): self.q += list(xs)
    def total(self): return sum(cost(x) for x in self.q)
    def emit(self, budget):
        while self.q and budget > 0:
            x = self.q.pop(0); budget -= cost(x)
            if callable(x): x()
            else: self.P.I(x)
    def flush(self): self.emit(1 << 30)

def site(P, sreg, val, fns, register):
    if not fns: return
    u = P.uid()
    P.I(f's_cmp_eq_u32 s{sreg}, {val}\ns_cbranch_scc0 L_site{u}')
    q = list(P.vm.q)
    for f in fns: f()
    if not register: P.vm.q = q
    P.label(f'L_site{u}')

def m32(d, a, b, first):
    c = '0' if first else f'v[{d}:{d+15}]'
    return f'v_mfma_f32_32x32x16_bf16 v[{d}:{d+15}], v[{a}:{a+3}], v[{b}:{b+3}], {c}'
NOM16 = False
def m16(d, a, b, first):
    if NOM16: return 's_nop 0'
    c = '0' if first else f'v[{d}:{d+3}]'
    return f'v_mfma_f32_16x16x32_bf16 v[{d}:{d+3}], v[{a}:{a+3}], v[{b}:{b+3}], {c}'

def publish2(P, cfg, which, lab, wave, barrier=True, tags=('st',)):
    P.wait_vm(*tags, 'flag')
    if barrier: P.I('s_barrier')
    P.I(f'''
    s_cmp_eq_u32 s{sWAVE}, {wave}
    s_cbranch_scc0 L_np{lab}
    s_lshl_b32 s{sT0}, s{sMT}, 7
    s_add_u32 s{sT0}, s{sT0}, {CNT_OFF + 2048*which}
    v_mov_b32 v{vPF}, 1
    s_mov_b64 exec, 1
    buffer_atomic_add v{vPF}, off, s[{sWS}:{sWS+3}], s{sT0} sc1
    s_mov_b64 exec, -1
    L_np{lab}:
    ''')
def flag_check(P, lab):
    P.wait_vm('flag')
    P.I(f'''
    v_readfirstlane_b32 s{sT0}, v{vFLAG}
    s_cmp_lg_u32 s{sT0}, 0
    s_cbranch_scc1 L_fok{lab}
    s_mov_b32 s{sT2}, {SPIN}
    L_fw{lab}:
    buffer_load_dword v{vFLAG}, off, s[{sDBG}:{sDBG+3}], 0 sc1
    s_sub_u32 s{sT2}, s{sT2}, 1
    s_cbranch_scc1 L_fok{lab}
    s_waitcnt vmcnt(0)
    v_readfirstlane_b32 s{sT0}, v{vFLAG}
    s_cmp_lg_u32 s{sT0}, 0
    s_cbranch_scc0 L_fw{lab}
    L_fok{lab}:
    ''')

def mlp_v2(P, cfg, after):
    sCOLP, sCOLS, sHP, sHSG, sBP, sBS, sG, sTT = 74, 75, 76, 77, 78, 79, 27, 26
    vWD, vWDs = 4, 5
    vWa = [[6 + 4 * w + s for s in range(4)] for w in range(3)]
    vXa = [18, 19, 20, 21]
    vHS, vCSW = 22, 23
    XF = 24; ACC = [136, 152]; WF = 168; NWF = 8
    CSA, SEL, BX, AX = 200, 204, 208, 212
    vK0, vK1, vRI = 216, 217, 218; BR = 219; vCSR, vSTW, vSTR = 223, 224, 225
    SQ = 226; SUMA = 228; T = 232; U = 236; PK = 244
    CS_LDS = MISC; ST_LDS = MISC + 2048
    xdma_addr(P, T, T + 1)
    wdma_addr(P, vWD, W1S, T)
    P.I(f'''
    s_lshr_b32 s{sG}, s{sWAVE}, 2
    s_and_b32 s{sTT}, s{sWAVE}, 3
    s_and_b32 s{sT2}, s{sSUB}, 1
    s_mul_i32 s{sT0}, s{sSUB}, 448
    s_lshl_b32 s{sT1}, s{sT2}, 6
    s_add_u32 s{sCOLP}, s{sT0}, s{sT1}
    s_add_u32 s{sCOLS}, s{sT0}, 384
    s_sub_u32 s{sBS}, s{sT0}, 64
    s_cmp_eq_u32 s{sT2}, 0
    s_cselect_b32 s{sCOLS}, s{sCOLS}, s{sBS}
    s_add_u32 s{sBS}, s{sCOLS}, s{sT1}
    v_xor_b32 v{vWDs}, s{sT1}, v{vWD}
    s_waitcnt lgkmcnt(0)
    ''')
    srd(P, sX, 4, 2048 * XB)
    srd(P, sW, 12, 448 * W1S)
    def dma_w(blk, c, slot, tag):
        P.I(f's_add_u32 m0, s{sWW}, {slot*SLOT}')
        P.L[-1] = f's_add_u32 m0, s{sWW}, {slot*SLOT - (128*blk if blk < 3 else 0)}' if slot * SLOT >= 128 * blk else P.L[-1]
        P.I(f's_mul_i32 s{sT0}, s{sKX[c]}, {64*W1S//128}')
        if blk < 3:
            P.I(f's_add_u32 s{sT0}, s{sT0}, s{sCOLP}')
            P.V(f'buffer_load_dwordx4 v{vWD}, s[{sW}:{sW+3}], s{sT0} offen offset:{128*blk}{cfg.wnt} lds', tag)
        else:
            P.I(f's_add_u32 s{sT0}, s{sT0}, s{sCOLS}')
            P.V(f'buffer_load_dwordx4 v{vWDs}, s[{sW}:{sW+3}], s{sT0} offen{cfg.wnt} lds', tag)
    def dma_x1(c, i): dmax(P, c, xbase[c], i, ('c', c))
    def dma_x(P, c, base, tag):
        for i in range(2): dmax(P, c, base, i, tag)
    wslot = {(0, c): c for c in range(7)}
    xbase = {c: (7 + 2 * c) * SLOT for c in range(6)}; xbase[6] = xbase[0]
    NI = cfg.ni
    rot_first(P, cfg, 0)
    dma_x(P, 0, xbase[0], ('c', 0)); dma_w(0, 0, 0, ('c', 0))
    rot_rest(P, 1, 7)
    P.I('s_barrier')
    dma_x(P, 1, xbase[1], ('c', 1)); dma_w(0, 1, 1, ('c', 1))
    init_zero(P, cfg, T)
    s1_prefetch(P, cfg, 0, T)
    stamp(P, cfg, 'issued')
    srd(P, sB1, 14, 1792 * 2)
    P.I(f'''
    s_lshl_b32 s{sT0}, s{sMT}, 2
    s_add_u32 s{sT0}, s{sT0}, s{sTT}
    s_mul_i32 s{sT0}, s{sT0}, {112*1024}
    s_lshl_b32 s{sT2}, s{sBS}, 5
    s_add_u32 s{sHSG}, s{sT0}, s{sT2}
    s_lshl_b32 s{sT2}, s{sG}, 6
    s_add_u32 s{sBP}, s{sCOLP}, s{sT2}
    s_lshl_b32 s{sT2}, s{sBP}, 5
    s_add_u32 s{sHP}, s{sT0}, s{sT2}
    v_and_b32 v{U}, 31, v{vLANE}
    v_lshlrev_b32 v{U+1}, 1, v{U}
    ''')
    for t in range(3):
        P.V(f'buffer_load_ushort v{BR+t}, v{U+1}, s[{sB1}:{sB1+3}], s{sBP} offen offset:{128*t}', 'bias')
    P.V(f'buffer_load_ushort v{BR+3}, v{U+1}, s[{sB1}:{sB1+3}], s{sBS} offen', 'bias')
    frag_addrs(P, sTT, sG, 64, vXa, vWa[0], T)
    for s in range(4): P.I(f'v_add_u32 v{vXa[s]}, {xbase[0]}, v{vXa[s]}')
    for w in (1, 2):
        for s in range(4): P.I(f'v_add_u32 v{vWa[w][s]}, {65536*w}, v{vWa[0][s]}')
    P.I(f'''
    v_lshlrev_b32 v{vHS}, 4, v{vLANE}
    s_lshl_b32 s{sT2}, s{sG}, 9
    s_add_u32 s{sT2}, s{sT2}, {CS_LDS}
    v_lshlrev_b32 v{vCSR}, 4, v{U}
    v_add_u32 v{vCSR}, s{sT2}, v{vCSR}
    s_lshl_b32 s{sT2}, s{sTT}, 2
    v_add_u32 v{vCSW}, s{sT2}, v{vCSR}
    v_lshlrev_b32 v{T}, 3, v{T}
    s_lshl_b32 s{sT2}, s{sG}, 10
    s_add_u32 s{sT2}, s{sT2}, {ST_LDS}
    v_add_u32 v{vSTW}, s{sT2}, v{T}
    v_xor_b32 v{vSTR}, 0x400, v{vSTW}
    v_mov_b32 v{AX+3}, 0
    v_mov_b32 v{BX+3}, 0
    v_mov_b32 v{SQ}, 0
    v_mov_b32 v{SQ+1}, 0
    ''')
    make_sel(P, SEL, T)
    s2_early_setup(P, T)
    for c in range(2, NI):
        dma_x(P, c, xbase[c], ('c', c)); dma_w(0, c, c, ('c', c))
    free = []; sched = {}
    def place(items):
        r = []
        for bc in items:
            s = free.pop(0); wslot[bc] = s; r.append((bc, s))
        return r
    head = lambda b: [(b, 0)]
    tail = lambda b: [(b, c) for c in range(1, 7)]
    q = head(2) + head(1) + tail(1)
    q = [q[1], q[0]] + q[2:]
    avail = []
    plan = {(2, 0): 9, (1, 0): 10}
    for k, c in enumerate(range(1, 7)): plan[(1, c)] = 11 + k
    for k, c in enumerate(range(1, 7)): plan[(2, c)] = [7, 8, 6, 5, 4, 3][k]
    plan[(3, 0)] = 17
    for k, c in enumerate(range(1, 7)): plan[(3, c)] = [18, 12, 13, 14, 15, 16][k]
    def place(items):
        for bc in items: wslot[bc] = plan[bc]
        return [(bc, plan[bc]) for bc in items]
    for c in range(3, 7):
        sl = xbase[c - 2] // SLOT; avail += [sl, sl + 1]
        n = 0
        if c >= 7 - NI:
            while n < 3 and n < len(q) and plan[q[n]] in avail: n += 1
        sched[('c', c)] = place(q[:n]); q = q[n:]
    assert not q, q
    sched[('B', 1)] = place(tail(2) + head(3))
    sched[('B', 2)] = place(tail(3))
    wtag = lambda b, c: ('h' if c < 1 else 't', b)
    def dmas(ev): return [(lambda b=b, c=c, s=s: dma_w(b, c, s, wtag(b, c))) for (b, c), s in sched.get(ev, [])]
    def rd(gs):
        blk, s = divmod(gs, 28)
        if blk > 3: return
        slot = wslot[(blk, s // 4)]; dst = WF + 4 * (gs % NWF)
        off = (slot % 8) * SLOT; a = vWa[slot // 8][s % 4]
        P.D(f'ds_read_b64_tr_b16 v[{dst}:{dst+1}], v{a} offset:{off}', ('w', gs))
        P.D(f'ds_read_b64_tr_b16 v[{dst+2}:{dst+3}], v{a} offset:{off+512}', ('w', gs))
    def xread(c, s):
        d = XF + 4 * (4 * c + s)
        P.D(f'ds_read_b128 v[{d}:{d+3}], v{vXa[s]} offset:{(xbase[c] - xbase[0]) & 0xffff}', ('x', 4 * c + s))
    F = Filler(P)
    def mstep(gs, budget):
        blk, s = divmod(gs, 28)
        w = WF + 4 * (gs % NWF); x = XF + 4 * s
        P.wait_lg(('w', gs), ('x', gs))
        P.I(m32(ACC[blk % 2], w, x, s == 0))
        F.emit(budget)
        if s % 4 == 0:
            P.I(m16(CSA, SEL, w, s == 0))
            F.emit(budget // 2)
    def cs_write(blk): P.D(f'ds_write_b32 v{vCSW}, v{CSA} offset:{1024*(blk%2)}', 'csw')
    for c in range(8):
        DQ = []
        if c < 7:
            P.wait_vm(('c', c))
            if c == 6: P.wait_vm(('h', 1))
            stamp(P, cfg, f'c{c}w'); P.I('s_barrier'); stamp(P, cfg, f'c{c}b')
            if c == 2: init_flag(P, cfg, PK, 'a')
            if c in (4, 6):
                for s in range(4): P.I(f'v_add_u32 v{vXa[s]}, {(65536 if c == 4 else -65536) & 0xffffffff:#x}, v{vXa[s]}')
            if c + NI < 7:
                cc = c + NI
                DQ = [lambda cc=cc: dma_x1(cc, 0), lambda cc=cc: dma_x1(cc, 1), lambda cc=cc: dma_w(0, cc, cc, ('c', cc))]
            DQ += dmas(('c', c))
        def rds(s):
            if c < 7: xread(c, s); rd(4 * c + s)
            elif s < 3: rd(28 + s)
        if c == 0:
            for s in range(4): rds(s)
            for f in DQ: f()
            continue
        cc = c - 1
        for s in range(4):
            gs = 4 * cc + s
            w = WF + 4 * (gs % NWF); x = XF + 4 * gs
            P.wait_lg(('w', gs), ('x', gs))
            if s in (0, 2) and 'nosq' not in cfg.exp: F.add(sq_ops(x, T, SQ))
            P.I(m32(ACC[0], w, x, gs == 0))
            if s == 0: site(P, sG, 0, DQ, False)
            rds(s)
            F.emit(20)
            if s == 0: P.I(m16(CSA, SEL, w, gs == 0))
            if s in (1, 3): P.I(m16(SUMA, SEL, x - 4, gs == 1))
            F.emit(12)
            if s == 3: site(P, sG, 1, DQ, True)
        F.flush()
    P.I(f'''
    v_add_f32 v{SQ}, v{SQ}, v{SQ+1}
    v_mov_b32 v{SQ+1}, v{SQ}
    v_permlane32_swap_b32 v{SQ}, v{SQ+1}
    v_add_f32 v{SQ+1}, v{SQ}, v{SQ+1}
    v_mov_b32 v{SQ}, v{SUMA}
    ''')
    P.D(f'ds_write_b64 v{vSTW}, v[{SQ}:{SQ+1}]', 'csw')
    cs_write(0)
    stamp(P, cfg, 'T0e')

    def stats_ops():
        t = T; R, RI, M, V = U, U + 1, U + 2, U + 3
        L = [lambda: P.wait_lg('str')]
        L += f'''v_add_f32 v{M}, v{SQ}, v{U+4}
        v_add_f32 v{V}, v{SQ+1}, v{U+5}
        v_mul_f32 v{M}, {f32(1.0/448)}, v{M}
        v_mul_f32 v{V}, {f32(1.0/448)}, v{V}
        v_fma_f32 v{V}, -v{M}, v{M}, v{V}
        v_max_f32 v{V}, 0, v{V}
        v_add_f32 v{t}, {f32(EPS)}, v{V}
        v_rsq_f32 v{t+1}, v{t}
        v_cmp_gt_u32 vcc, 32, v{vLANE}
        v_mul_f32 v{t+2}, v{t+1}, v{t+1}
        v_mul_f32 v{t+2}, v{t+2}, v{V}
        v_add_f32 v{t+2}, {f32(EPS)}, v{t+2}
        v_rsq_f32 v{R}, v{t+2}
        v_mul_f32 v{t}, v{t}, v{t+2}
        v_sqrt_f32 v{vRI}, v{t}
        v_mul_f32 v{R}, v{R}, v{t+1}
        v_mul_f32 v{vK0}, {f32(GK0)}, v{R}
        v_mul_f32 v{t}, v{R}, v{R}
        v_mul_f32 v{t}, v{t}, v{R}
        v_mul_f32 v{vK1}, {f32(GK1)}, v{t}
        v_cndmask_b32 v{t}, 0, v{M}, vcc
        v_cndmask_b32 v{t+1}, 0, v{vRI}, vcc
        v_sub_f32 v{t}, 0, v{t}
        v_cvt_pk_bf16_f32 v{BX+1}, v{t}, v{t+1}
        v_lshlrev_b32 v{t+2}, 16, v{BX+1}
        v_sub_f32 v{t+2}, v{t}, v{t+2}
        v_cvt_pk_bf16_f32 v{BX}, v{t}, v{t+2}
        v_and_b32 v{t+2}, 0xffff0000, v{BX+1}
        v_sub_f32 v{t+2}, v{t+1}, v{t+2}
        v_cvt_pk_bf16_f32 v{BX+2}, v{t+2}, v{BX+3}'''.split('\n        ')
        k = [i for i, x in enumerate(L) if isinstance(x, str) and x.startswith('v_cmp_gt_u32')][0]
        L.insert(k + 1, f'v_mov_b32 v{SUMA}, v{t+1}')
        L.append(stat_store)
        return L
    def stat_store():
        u = P.uid()
        P.I(f'''
        s_cmp_eq_u32 s{sG}, 0
        s_cbranch_scc0 L_ss{u}
        s_lshl_b32 s{sT0}, s{sSUB}, 14
        s_lshl_b32 s{sT2}, s{sMT}, 9
        s_add_u32 s{sT0}, s{sT0}, s{sT2}
        s_add_u32 s{sT0}, s{sT0}, {STAT_OFF}
        v_subrev_u32 v{SUMA+1}, {ST_LDS}, v{vSTW}
        v_lshrrev_b32 v{SUMA+1}, 1, v{SUMA+1}
        s_add_u32 s{sT2}, s{sT0}, 8192
        s_mov_b64 exec, 0xffffffff
        buffer_store_dword v{SUMA}, v{SUMA+1}, s[{sWS}:{sWS+3}], s{sT0} offen sc1
        buffer_store_dword v{U+2}, v{SUMA+1}, s[{sWS}:{sWS+3}], s{sT2} offen sc1
        s_mov_b64 exec, -1
        L_ss{u}:
        ''')
    def stat_signal(nD):
        u = P.uid()
        n = len(P.vm.q) - 1 - P.vm.q.index('flag') + nD
        P.I(f's_cmp_eq_u32 s{sG}, 0\ns_cbranch_scc0 L_sg{u}\ns_waitcnt vmcnt({n})')
        q = list(P.vm.q); P.vm.q = []
        flag_check(P, 'ms')
        P.vm.q = q
        P.I(f'''
        s_lshl_b32 s{sT0}, s{sSUB}, 11
        s_lshl_b32 s{sT2}, s{sMT}, 7
        s_add_u32 s{sT0}, s{sT0}, s{sT2}
        s_add_u32 s{sT0}, s{sT0}, {CNT_OFF + 8192}
        v_mov_b32 v{vPF}, 1
        s_mov_b64 exec, 1
        buffer_atomic_add v{vPF}, off, s[{sWS}:{sWS+3}], s{sT0} sc1
        s_mov_b64 exec, -1
        L_sg{u}:
        ''')
    def e_ops(tile, stag):
        A = ACC[tile % 2]
        P.D(f'ds_read_b128 v[{PK}:{PK+3}], v{vCSR} offset:{1024*(tile%2)}', 'csr')
        L = [lambda: P.wait_vm('bias'),
             f'v_lshlrev_b32 v{U}, 16, v{BR+tile}', f'v_mov_b32 v{AX+2}, v{BR+tile}',
             lambda: P.wait_lg('csr'),
             f'v_add_f32 v{T}, v{PK}, v{PK+1}', f'v_add_f32 v{T+2}, v{PK+2}, v{PK+3}', f'v_add_f32 v{T}, v{T}, v{T+2}',
             f'v_cvt_pk_bf16_f32 v{AX}, v{T}, v{T}', f'v_lshlrev_b32 v{T+1}, 16, v{AX}', f'v_sub_f32 v{T+1}, v{T}, v{T+1}',
             f'v_cvt_pk_bf16_f32 v{AX+1}, v{T+1}, v{U}',
             (f's_add_u32 s88, s{sHP}, {4096*tile}' if tile < 3 else f's_mov_b32 s88, s{sHSG}'),
             f's_nop 0',
             m32(A, AX, BX, False)]
        M = []
        for half in range(2):
            E = range(8)
            a = A + 8 * half
            M += [f'v_mul_f32 v{U+e}, v{a+e}, v{a+e}' for e in E]
            M += [f'v_fma_f32 v{U+e}, v{U+e}, v{vK1}, v{vK0}' for e in E]
            M += [f'v_mul_f32 v{U+e}, v{a+e}, v{U+e}' for e in E]
            M += [f'v_exp_f32 v{U+e}, v{U+e}' for e in E]
            M += [f'v_fma_f32 v{U+e}, v{U+e}, v{vRI}, v{vRI}' for e in E]
            M += [f'v_rcp_f32 v{U+e}, v{U+e}' for e in E]
            M += [f'v_mul_f32 v{U+e}, v{a+e}, v{U+e}' for e in E]
            M += [f'v_cvt_pk_bf16_f32 v{PK+e}, v{U+2*e}, v{U+2*e+1}' for e in range(4)]
            if 'nost' not in cfg.exp: M.append(lambda half=half: P.V(f'buffer_store_dwordx4 v[{PK}:{PK+3}], v{vHS}, s[{sWS}:{sWS+3}], s88 offen offset:{1024*half}{cfg.sc}', stag))
        return L, M
    AH = 3
    def barrier_B(j):
        P.wait_vm(('t', j), ('h', j + 1))
        P.wait_lg('csw')
        stamp(P, cfg, f'B{j}w'); P.I('s_barrier'); stamp(P, cfg, f'B{j}b')
    def period(j):
        D = []
        for s in range(28):
            gs = 28 * j + s
            if s == 1:
                barrier_B(j)
                if j == 1: P.D(f'ds_read_b64 v[{U+4}:{U+5}], v{vSTR}', 'str')
                pre, main = e_ops(j - 1, 'stA' if j <= 2 else 'st')
                if j == 1: F.add(stats_ops() + [lambda: flag_prefetch(P, cfg)])
                F.add(pre)
                D = dmas(('B', j))
                if 'nodma' in cfg.exp: D = []
                if j == 3 and cfg.early_w: D = [lambda: s2_srd(P)] + s2_xy(P, 'X')
                h = len(main) // 2
                if j == 1: main.insert(cfg.sigpos, lambda D=D: stat_signal(len(D))); h += 1
                if j < 3: F.add([lambda D=D: site(P, sG, 0, D, False)] + main[:h] + [lambda D=D: site(P, sG, 1, D, True)] + main[h:])
                else:
                    k = len(main) // (len(D) + 1); mix = []
                    for i, m in enumerate(main):
                        if D and i % k == 0: mix.append(D.pop(0))
                        mix.append(m)
                    F.add(mix + D)
            rd(gs + AH)
            left = 28 - s
            budget = 0 if s < 3 else max(8, int(F.total() / (left + 0.5 * ((27 - s) // 4 + 1)) + 3))
            mstep(gs, budget)
        F.flush()
        cs_write(j)
        stamp(P, cfg, f'T{j}e')
    period(1)
    period(2)
    flag_check(P, 'm')
    P.I(f's_cmp_eq_u32 s{sG}, 0\ns_cbranch_scc0 L_mlp_g1')
    st0 = P.state()
    period(3)
    P.wait_vm('stA'); P.wait_lg('csw'); P.I('s_barrier'); stamp(P, cfg, 'B4b')
    pre, main = e_ops(3, 'st')
    F.add(pre + main); F.flush()
    stamp(P, cfg, 'end')
    if cfg.hook_late: cfg.hook_late(P)
    YQ = s2_xy(P, 'Y') if cfg.early_w else []
    for f in YQ[:cfg.ypre]: f()
    publish2(P, cfg, 1, 'g0', 4, tags=('st', 'pa'))
    for f in YQ[cfg.ypre:]: f()
    stamp(P, cfg, 'pub'); stamp_flush(P, cfg)
    P.I(f's_branch {after}')
    P.restore(st0)
    P.label('L_mlp_g1')
    barrier_B(3)
    pre, main = e_ops(2, 'st')
    F.add(pre + main); F.flush()
    stamp(P, cfg, 'T3e')
    if cfg.early_w:
        s2_srd(P)
        for f in s2_xy(P, 'X'): f()
    P.wait_vm('stA'); P.lg0(); P.I('s_barrier'); stamp(P, cfg, 'B4b')
    publish2(P, cfg, 0, 'gA', 4, barrier=False, tags=())
    stamp(P, cfg, 'end')
    if cfg.early_w:
        for f in s2_xy(P, 'Y'): f()
    if cfg.hook_late: cfg.hook_late(P)
    publish2(P, cfg, 1, 'g1', 4, tags=('st', 'pa'))
    stamp(P, cfg, 'pub'); stamp_flush(P, cfg)
    P.I(f's_branch {after}')

def att_v2(P, cfg, after):
    sPP, sHH, sOB, sWC, sPFI = 74, 75, 76, 77, 78
    AREA = 40960; HALO = 3 * AREA
    AM = HALO + 14336
    ST_LDS = AM
    HS_LDS = AM + 2048
    CS_LDS = AM + 3072
    R_LDS = AM + 6144
    EX_LDS = AM + 8192
    HP_LDS = 2 * AREA
    vWD, vHD = 4, 5
    vXa = [6, 7, 8, 9]; vWa = [10, 11, 12, 13]; vXh = 14; vT = 15
    AQ, AK, AV = 24, 40, 56
    KH, VH = 72, 80
    CSA = 88
    SEL, ONES = 100, 104
    MKP, MKC, MKP0 = 108, 112, 116
    SQ, SM, HQ, HM = 120, 122, 124, 126
    ME, MO = 128, 129; T = 130
    XH, XE, XO = 136, 140, 144
    FR = 148; NS = 4
    fr = lambda n, k: FR + 16 * (n % NS) + 4 * k
    xdma_addr(P, vT, vT + 1)
    wdma_addr(P, vWD, WQS, vT, True)
    P.I(f'''
    s_and_b32 s{sPP}, s{sWAVE}, 3
    s_lshr_b32 s{sHH}, s{sWAVE}, 2
    s_and_b32 s{sT2}, s{sWAVE}, 1
    s_lshl_b32 s{sT0}, s{sMT}, 7
    s_lshl_b32 s{sT1}, s{sT2}, 3
    s_add_u32 s{sT0}, s{sT0}, s{sT1}
    s_sub_u32 s{sT0}, s{sT0}, 16
    s_mul_i32 s{sT0}, s{sT0}, {XB}
    v_lshrrev_b32 v{vT}, 3, v{vLANE}
    v_mul_u32_u24 v{vT+2}, {XB}, v{vT}
    v_add_u32 v{vT+2}, s{sT0}, v{vT+2}
    v_lshrrev_b32 v{vT+1}, 4, v{vLANE}
    v_xor_b32 v{vT+1}, v{vT+1}, v{vLANE}
    s_lshl_b32 s{sT1}, s{sT2}, 2
    v_xor_b32 v{vT+1}, s{sT1}, v{vT+1}
    v_and_b32 v{vT+1}, 7, v{vT+1}
    v_lshl_add_u32 v{vHD}, v{vT+1}, 4, v{vT+2}
    s_mul_i32 s{sWC}, s{sSUB}, 112
    s_waitcnt lgkmcnt(0)
    ''')
    srd(P, sX, 4, 2048 * XB)
    srd(P, sW, 6, 448 * WQS)
    def chunk_dmas(c):
        a = (c % 3) * AREA; L = []
        def fx(i): dmax(P, c, a, i, ('c', c))
        def fw(p):
            P.I(f's_add_u32 m0, s{sWW}, {a + 16384 + p*8192 - p*896}')
            if p == 0: P.I(f's_mul_i32 s89, s{sKX[c]}, {64*WQS//128}\ns_add_u32 s89, s89, s{sWC}')
            P.V(f'buffer_load_dwordx4 v{vWD}, s[{sW}:{sW+3}], s89 offen offset:{p*896}{cfg.wnt} lds', ('c', c))
        if 'attidle' in cfg.exp: return []
        return [lambda: fx(0), lambda: fx(1), lambda: fw(0), lambda: fw(1), lambda: fw(2)]
    rot_first(P, cfg, 1)
    for f in chunk_dmas(0): f()
    P.I(f'''
    s_lshr_b32 s{sT0}, s{sWAVE}, 1
    s_lshl_b32 s{sT0}, s{sT0}, 7
    s_add_u32 s{sT0}, s{sT0}, s{sKX[0]}
    s_sub_u32 s{sT1}, s{sT0}, 896
    s_cmp_ge_u32 s{sT0}, 896
    s_cselect_b32 s{sT0}, s{sT1}, s{sT0}
    s_add_u32 m0, s{sWW}, {HALO}
    ''')
    P.V(f'buffer_load_dwordx4 v{vHD}, s[{sX}:{sX+3}], s{sT0} offen lds', ('c', 0))
    P.I(f'''
    s_cmp_lt_u32 s{sWAVE}, 6
    s_cselect_b32 s{sT1}, 512, 0
    s_cselect_b32 s{sT2}, 8192, 0
    s_add_u32 s{sT0}, s{sT0}, s{sT1}
    s_sub_u32 s{sT1}, s{sT0}, 896
    s_cmp_ge_u32 s{sT0}, 896
    s_cselect_b32 s{sT0}, s{sT1}, s{sT0}
    s_add_u32 s{sT2}, s{sT2}, s{sWW}
    s_add_u32 m0, s{sT2}, {HALO}
    ''')
    P.V(f'buffer_load_dwordx4 v{vHD}, s[{sX}:{sX+3}], s{sT0} offen lds', ('c', 0))
    rot_rest(P, 1, 7)
    P.I('s_barrier')
    s1_prefetch(P, cfg, 1, vT)
    stamp(P, cfg, 'issued')
    srd(P, sWS, 24, WS_SIZE); srd(P, sDBG, 22, 256)
    frag_addrs(P, sPP, sHH, 56, vXa, vWa, vT)
    vROW = 240; i15, g4 = 241, 242
    P.I(f'''
    v_mov_b32 v{vROW}, v{vT}
    v_and_b32 v{i15}, 15, v{vLANE}
    v_lshrrev_b32 v{g4}, 4, v{vLANE}
    v_lshrrev_b32 v{vT}, 1, v{i15}
    v_lshrrev_b32 v{vT+1}, 5, v{vLANE}
    v_xor_b32 v{vT}, v{vT}, v{vT+1}
    s_xor_b32 s{sT0}, s{sT2}, 1
    s_lshl_b32 s{sT0}, s{sT0}, 1
    v_xor_b32 v{vT}, s{sT0}, v{vT}
    v_lshlrev_b32 v{vT}, 4, v{vT}
    v_lshl_add_u32 v{vT}, v{i15}, 7, v{vT}
    v_add_u32 v{vXh}, {HALO}, v{vT}
    v_and_b32 v{MO}, 1, v{g4}
    v_add_u32 v{ME}, -1, v{MO}
    v_not_b32 v{MO}, v{ME}
    ''')
    for s in range(4): P.I(f'v_add_u32 v{vWa[s]}, 16384, v{vWa[s]}')
    make_sel(P, SEL, vT)
    for i in range(4): P.I(f'v_mov_b32 v{ONES+i}, 0x3f803f80')
    P.I(f'v_lshlrev_b32 v{vT}, 2, v{g4}\nv_sub_u32 v{vT}, v{i15}, v{vT}\nv_mov_b32 v{vT+3}, {f32(NEG)}')
    for v in range(4):
        P.I(f'''
        v_subrev_u32 v{vT+1}, {v}, v{vT}
        v_and_b32 v{vT+2}, 0xfffffff1, v{vT+1}
        v_cmp_eq_u32 vcc, 0, v{vT+2}
        v_cndmask_b32 v{MKC+v}, v{vT+3}, 0, vcc
        v_add_u32 v{vT+1}, 16, v{vT+1}
        v_and_b32 v{vT+2}, 0xfffffff1, v{vT+1}
        v_cmp_eq_u32 vcc, 0, v{vT+2}
        v_cndmask_b32 v{MKP+v}, v{vT+3}, 0, vcc
        ''')
    P.I(f's_or_b32 s{sT0}, s{sMT}, s{sPP}\ns_cmp_eq_u32 s{sT0}, 0\ns_cselect_b64 vcc, -1, 0')
    for v in range(4): P.I(f'v_cndmask_b32 v{MKP0+v}, v{MKP+v}, v{vT+3}, vcc')
    P.I(f'''
    s_lshl_b32 s{sT0}, s{sMT}, 2
    s_add_u32 s{sT0}, s{sT0}, s{sPP}
    s_lshl_b32 s{sT0}, s{sT0}, 15
    s_lshl_b32 s{sT1}, s{sSUB}, 1
    s_add_u32 s{sT1}, s{sT1}, s{sHH}
    s_lshl_b32 s{sT1}, s{sT1}, 11
    s_add_u32 s{sOB}, s{sT0}, s{sT1}
    s_add_u32 s{sOB}, s{sOB}, {O_OFF}
    s_and_b32 s{sPFI}, s{sJ}, 15
    s_lshl_b32 s{sPFI}, s{sPFI}, 3
    s_add_u32 s{sPFI}, s{sPFI}, s{sWAVE}
    s_lshl_b32 s{sPFI}, s{sPFI}, 2
    v_lshlrev_b32 v{vT+8}, 7, v{vLANE}
    ''')
    aST, aHSW, aHSR, aCSW, aCSR, aHPW, aHPR, aRW = 236, 237, 238, 239, 243, 244, 245, 246
    aRR, aRHW, aRHR, aEXW, aEXR, aEXH, vO = 247, 248, 134, 135, 16, 17, 18
    aEXR, aEXH, vO, mLO, mS, m48 = 19, 20, 21, 22, 251, 5
    P.I(f'''
    s_mul_i32 s{sT0}, s{sHH}, 1536
    s_add_u32 s{sT0}, s{sT0}, {CS_LDS}
    v_and_b32 v{vT}, 31, v{vLANE}
    v_lshlrev_b32 v{aCSR}, 4, v{vT}
    v_add_u32 v{aCSR}, s{sT0}, v{aCSR}
    s_lshl_b32 s{sT1}, s{sPP}, 2
    v_add_u32 v{aCSW}, s{sT1}, v{aCSR}
    v_lshlrev_b32 v{vT+1}, 4, v{vLANE}
    s_lshl_b32 s{sT0}, s{sHH}, 14
    s_add_u32 s{sT0}, s{sT0}, {HP_LDS}
    s_lshl_b32 s{sT1}, s{sPP}, 10
    s_add_u32 s{sT1}, s{sT1}, s{sT0}
    v_add_u32 v{aHPW}, s{sT1}, v{vT+1}
    s_lshl_b32 s{sT1}, s{sPP}, 12
    s_add_u32 s{sT1}, s{sT1}, s{sT0}
    v_add_u32 v{aHPR}, s{sT1}, v{vT+1}
    s_lshl_b32 s{sT0}, s{sPP}, 7
    v_lshrrev_b32 v{aRR}, 5, v{vLANE}
    v_add_u32 v{mLO}, -1, v{aRR}
    v_lshlrev_b32 v{aRR}, 4, v{aRR}
    v_add_u32 v{aRR}, s{sT0}, v{aRR}
    s_lshl_b32 s{sT0}, s{sHH}, 13
    s_add_u32 s{sT0}, s{sT0}, {EX_LDS}
    s_lshr_b32 s{sT1}, s{sPP}, 1
    s_lshl_b32 s{sT1}, s{sT1}, 10
    s_and_b32 s{sT2}, s{sPP}, 1
    s_lshl_b32 s{sT2}, s{sT2}, 3
    s_add_u32 s{sT1}, s{sT1}, s{sT2}
    s_add_u32 s{sT1}, s{sT1}, s{sT0}
    v_add_u32 v{aEXH}, s{sT1}, v{vT+1}
    s_lshl_b32 s{sT1}, s{sPP}, 11
    s_add_u32 s{sT0}, s{sT0}, s{sT1}
    v_add_u32 v{aEXR}, s{sT0}, v{vT+1}
    s_add_u32 s{sT0}, s{sT0}, 2048
    s_cmp_eq_u32 s{sPP}, 3
    s_cselect_b32 s{sT0}, {HP_LDS + 32768}, s{sT0}
    v_add_u32 v{aEXW}, s{sT0}, v{vT+1}
    v_lshlrev_b32 v{vO}, 9, v{g4}
    v_lshl_add_u32 v{vO}, v{i15}, 4, v{vO}
    s_and_b32 s{sT0}, s{sPP}, 1
    s_sub_u32 s{sT0}, 0, s{sT0}
    v_xor_b32 v{mS}, s{sT0}, v{ME}
    v_and_b32 v{mS}, v{mS}, v{mLO}
    v_subrev_u32 v{m48}, 48, v{vLANE}
    v_ashrrev_i32 v{m48}, 31, v{m48}
    ''')
    def w2pf(c):
        u = P.uid()
        P.I(f'''
        s_add_u32 s{sT0}, s{sPFI}, {c}
        s_mul_i32 s{sT1}, s{sT0}, {31*128}
        s_mov_b32 s{sW2}, s16
        s_mov_b32 s{sW2+1}, s17
        s_mov_b32 s{sW2+2}, {1792*XB}
        s_mov_b32 s{sW2+3}, 0x20000
        s_cmp_lt_u32 s{sT0}, 405
        s_cbranch_scc1 L_pf{u}
        s_mov_b32 s{sW2}, s8
        s_mov_b32 s{sW2+1}, s9
        s_mov_b32 s{sW2+2}, {448*XB}
        s_sub_u32 s{sT1}, s{sT1}, {405*31*128}
        L_pf{u}:
        s_mov_b64 exec, 0x7fffffff
        ''')
        P.V(f'buffer_load_dword v{vPF}, v{vT+8}, s[{sW2}:{sW2+3}], s{sT1} offen', 'pf')
        P.I('s_mov_b64 exec, -1')
    sSC, sSB = 79, 26
    R, M, RH, MH = 120, 121, 122, 123
    RR, SC = 212, 228
    RR, SC = 180, 124
    def st_poll():
        flag_check(P, 'a')
        P.I(f'''
        s_lshl_b32 s{sT0}, s{sSUB}, 11
        s_lshl_b32 s{sT1}, s{sMT}, 7
        s_add_u32 s{sSC}, s{sT0}, s{sT1}
        s_add_u32 s{sSC}, s{sSC}, {CNT_OFF + 8192}
        s_cmp_eq_u32 s{sMT}, 0
        s_cselect_b32 s{sT1}, 0, 128
        v_mov_b32 v{T}, s{sT1}
        v_and_b32 v{T}, v{mLO}, v{T}
        v_sub_u32 v{T}, s{sSC}, v{T}
        ''')
        P.V(f'buffer_load_dword v{T+1}, v{T}, s[{sWS}:{sWS+3}], 0 offen sc1', 'sp')
    def st_check():
        P.wait_vm('sp')
        P.I(f'''
        s_mov_b32 s{sT2}, {SPIN}
        L_stp:
        v_cmp_gt_u32 vcc, 4, v{T+1}
        s_cbranch_vccz L_stok
        buffer_load_dword v{T+1}, v{T}, s[{sWS}:{sWS+3}], 0 offen sc1
        s_sub_u32 s{sT2}, s{sT2}, 1
        s_cbranch_scc1 L_stok
        s_waitcnt vmcnt(0)
        s_branch L_stp
        L_stok:
        ''')
    def st_loads():
        P.I(f'''
        s_lshl_b32 s{sT0}, s{sSUB}, 14
        s_lshl_b32 s{sT1}, s{sMT}, 9
        s_add_u32 s{sSB}, s{sT0}, s{sT1}
        s_add_u32 s{sSB}, s{sSB}, {STAT_OFF}
        s_add_u32 s{sT1}, s{sSB}, 8192
        v_lshlrev_b32 v{T}, 2, v{vROW}
        s_cmp_eq_u32 s{sMT}, 0
        s_cselect_b32 s{sT2}, 0x40000000, -64
        v_lshlrev_b32 v{T+1}, 2, v{i15}
        v_add_u32 v{T+1}, s{sT2}, v{T+1}
        v_lshlrev_b32 v{T+2}, 4, v{g4}
        v_add_u32 v{T+2}, s{sT2}, v{T+2}
        v_add_u32 v{T+1}, s{sSB}, v{T+1}
        v_add_u32 v{T+2}, s{sSB}, v{T+2}
        ''')
        ws = f's[{sWS}:{sWS+3}]'
        P.V(f'buffer_load_dword v{R}, v{T}, {ws}, s{sSB} offen sc1', 'sl')
        P.V(f'buffer_load_dword v{M}, v{T}, {ws}, s{sT1} offen sc1', 'sl')
        P.V(f'buffer_load_dword v{RH}, v{T+1}, {ws}, 0 offen sc1', 'sl')
        P.I(f'v_add_u32 v{T+3}, 8192, v{T+1}')
        P.V(f'buffer_load_dword v{MH}, v{T+3}, {ws}, 0 offen sc1', 'sl')
        P.V(f'buffer_load_dwordx4 v[{SC}:{SC+3}], v{T+2}, {ws}, 0 offen sc1', 'sl')
        for q in range(4): P.V(f'buffer_load_dwordx4 v[{RRG+4*q}:{RRG+4*q+3}], v{aRR}, {ws}, s{sSB} offen offset:{32*q} sc1', 'sl')
    RRG = 212
    def reads(n):
        c, s = divmod(n, 4); L = []
        L.append(lambda: P.D(f'ds_read_b128 v[{fr(n,0)}:{fr(n,0)+3}], v{vXa[s]}', ('r', n)))
        for p in range(3):
            d = fr(n, 1 + p)
            L.append(lambda d=d, p=p: P.D(f'ds_read_b64_tr_b16 v[{d}:{d+1}], v{vWa[s]} offset:{p*8192}', ('r', n)))
            L.append(lambda d=d, p=p: P.D(f'ds_read_b64_tr_b16 v[{d+2}:{d+3}], v{vWa[s]} offset:{p*8192+512}', ('r', n)))
        if s == 1: L.append(lambda: P.D(f'ds_read_b128 v[{XH}:{XH+3}], v{vXh} offset:{c*2048}', ('r', n)))
        delta = AREA if (c + 1) % 3 else -2 * AREA
        if c < 6:
            L.append(f'v_add_u32 v{vXa[s]}, {delta & 0xffffffff:#x}, v{vXa[s]}')
            L.append(f'v_add_u32 v{vWa[s]}, {delta & 0xffffffff:#x}, v{vWa[s]}')
        return L
    def run(L, k):
        for _ in range(k):
            if L:
                x = L.pop(0)
                if callable(x): x()
                else: P.I(x)
    F = Filler(P)
    s2_early_setup(P, vT)
    for f in chunk_dmas(1): f()
    P.wait_vm(('c', 0)); P.I('s_barrier'); stamp(P, cfg, 'c0b')
    for n in (0, 1): run(reads(n), 99)
    for f in chunk_dmas(2): f()
    DQ = []
    global NOM16
    NOM16 = 'a_nom16' in cfg.exp
    for n in range(28):
        c, s = divmod(n, 4); first = n == 0
        if s == 2 and c < 6:
            P.wait_vm(('c', c + 1)); P.wait_lg(('r', n + 1))
            if n == 22: st_check()
            P.I('s_barrier'); stamp(P, cfg, f'c{c+1}b')
            DQ = chunk_dmas(c + 3) if c + 3 < 7 else []
            if 'a_nodma' in cfg.exp: DQ = []
            if cfg.attpf and c >= 2: DQ = DQ + [lambda c=c: w2pf(c - 2)]
            if c == 2: DQ.append(lambda: flag_prefetch(P, cfg))
        nxt = reads(n + 2) if n + 2 < 28 else []
        P.wait_lg(('r', n))
        x, wq, wk, wv = fr(n, 0), fr(n, 1), fr(n, 2), fr(n, 3)
        f1 = n == 1; f3 = n == 3
        if s == 1:
            F.flush()
            F.add([f'v_and_b32 v{XE+d}, v{ME}, v{XH+d}' for d in range(4)] + [f'v_and_b32 v{XO+d}, v{MO}, v{XH+d}' for d in range(4)])
        B = 32
        if n == cfg.st_poll: st_poll()
        if n == 23: st_loads()
        P.I(m32(AQ, wq, x, first))
        if s == 2: site(P, sHH, 0, DQ, False)
        run(nxt, 3); F.emit(B)
        if s == 3: P.I(m16(CSA, SEL, wq, f3))
        P.I(m32(AK, wk, x, first))
        run(nxt, 3); F.emit(B)
        if s == 1: P.I(m16(KH, wk, XE, f1)); P.I(m16(KH + 4, wk, XO, f1)); F.emit(16)
        if s == 3: P.I(m16(CSA + 4, SEL, wk, f3))
        P.I(m32(AV, x, wv, first))
        run(nxt, 99); F.emit(B)
        if s == 1: P.I(m16(VH, XE, wv, f1)); P.I(m16(VH + 4, XO, wv, f1)); F.emit(16)
        if s == 3:
            P.I(m16(CSA + 8, SEL, wv, f3)); F.flush()
            site(P, sHH, 1, DQ, True); DQ = []
    NOM16 = False
    stamp(P, cfg, 'loop')
    t = vT
    for k in range(4): P.D(f'ds_write_b128 v{aHPW}, v[{KH+4*k}:{KH+4*k+3}] offset:{4096*k}', 'w')
    for p in range(3): P.D(f'ds_write_b32 v{aCSW}, v{CSA+4*p} offset:{512*p}', 'w')
    Fq = FR
    CP = Fq; AX = Fq + 16; BX = Fq + 28
    HA = KH
    QOP, KOP, VOP = 204, 212, 224
    BS = XE; RR = RRG
    RQ, RZ = T, T + 2
    qs = 28 ** -0.5 * LOG2E
    def negm_split(m, mask, d0, d1, tmp, zero):
        P.I(f'''
        v_and_b32 v{m}, v{mask}, v{m}
        v_sub_f32 v{m}, 0, v{m}
        v_cvt_pk_bf16_f32 v{d1}, v{m}, v{zero}
        v_lshlrev_b32 v{tmp}, 16, v{d1}
        v_sub_f32 v{tmp}, v{m}, v{tmp}
        v_cvt_pk_bf16_f32 v{d0}, v{m}, v{tmp}
        ''')
    for p in range(3): P.I(f'v_mov_b32 v{AX+4*p+2}, 0\nv_mov_b32 v{AX+4*p+3}, 0')
    P.I(f'v_mov_b32 v{BX+2}, 0\nv_mov_b32 v{BX+3}, 0\nv_mov_b32 v{BS+2}, 0\nv_mov_b32 v{BS+3}, 0')
    P.wait_vm('sl')
    negm_split(M, mLO, BX, BX + 1, t, BX + 3)
    negm_split(MH, mS, BS, BS + 1, t, BX + 3)
    P.I(f'v_mul_f32 v{RQ}, {f32(qs)}, v{R}\nv_and_b32 v{RZ}, v{mLO}, v{RQ}')
    P.lg0(); P.I('s_barrier'); stamp(P, cfg, 'e1')
    for p in (2, 1, 0): P.D(f'ds_read_b128 v[{CP+4*p}:{CP+4*p+3}], v{aCSR} offset:{512*p}', ('b', p))
    for k in range(4): P.D(f'ds_read_b128 v[{HA+4*k}:{HA+4*k+3}], v{aHPR} offset:{1024*k}', 'hp')
    XQ = []
    if cfg.early_w:
        s2_srd(P); XQ = s2_xy(P, 'X')
    run(XQ, 2)
    for p in (2, 1, 0):
        P.wait_lg(('b', p))
        c = CP + 4 * p; a = AX + 4 * p
        P.I(f'''
        v_add_f32 v{c}, v{c}, v{c+1}
        v_add_f32 v{c+2}, v{c+2}, v{c+3}
        v_add_f32 v{c}, v{c}, v{c+2}
        v_cvt_pk_bf16_f32 v{a}, v{c}, v{c}
        v_lshlrev_b32 v{c+1}, 16, v{a}
        v_sub_f32 v{c+1}, v{c}, v{c+1}
        v_cvt_pk_bf16_f32 v{a+1}, v{c+1}, v{BX+3}
        ''')
        run(XQ, 1)
        P.I(m32(AV, BX, AX + 8, False) if p == 2 else m32(AK, AX + 4, BX, False) if p == 1 else m32(AQ, AX, BX, False))
    P.wait_lg('hp')
    pr = lambda r: f'v[{r}:{r+1}]'
    for e in (0, 2): P.I(f'v_pk_add_f32 {pr(HA+e)}, {pr(HA+e)}, {pr(HA+4+e)}')
    for e in (0, 2): P.I(f'v_pk_add_f32 {pr(HA+8+e)}, {pr(HA+8+e)}, {pr(HA+12+e)}')
    for e in (0, 2): P.I(f'v_pk_add_f32 {pr(HA+e)}, {pr(HA+e)}, {pr(HA+8+e)}')
    run(XQ, 3)
    P.I(f's_cmp_lt_u32 s{sPP}, 2\ns_cbranch_scc0 L_hv')
    P.I(m16(HA, AX + 4, BS, False))
    P.I('s_branch L_hd')
    P.label('L_hv')
    P.I(m16(HA, BS, AX + 8, False))
    P.label('L_hd')
    pmap = [0, 1, 4, 5, 2, 3, 6, 7]
    pr = lambda r: f'v[{r}:{r+1}]'
    def pack_T(acc, dst, r, rz):
        for v in range(0, 16, 2): P.I(f'v_pk_mul_f32 {pr(acc+v)}, {pr(acc+v)}, {pr(rz if v >= 12 else r)} op_sel_hi:[1,0]')
        for i in range(8): P.I(f'v_cvt_pk_bf16_f32 v{dst+pmap[i]}, v{acc+2*i}, v{acc+2*i+1}')
        for i in range(4): P.I(f'v_permlane32_swap_b32 v{dst+i}, v{dst+4+i}')
        for i in range(4): P.I(f'v_permlane16_swap_b32 v{dst+i}, v{dst+4+i}')
    for v in range(0, 16, 2): P.I(f'v_pk_mul_f32 {pr(AV+v)}, {pr(AV+v)}, {pr(RR+v)}')
    vmap = [VOP + 2, VOP + 3, VOP + 8, VOP + 9, VOP + 4, VOP + 5, VOP + 10, VOP + 11]
    for i in range(8): P.I(f'v_cvt_pk_bf16_f32 v{vmap[i]}, v{AV+2*i}, v{AV+2*i+1}')
    for i in range(2, 6): P.I(f'v_permlane32_swap_b32 v{VOP+i}, v{VOP+6+i}')
    for i in range(2, 6): P.I(f'v_permlane16_swap_b32 v{VOP+i}, v{VOP+6+i}')
    for tt in range(2): P.D(f'ds_write_b64 v{aEXW}, v[{VOP+6*tt+4}:{VOP+6*tt+5}] offset:{1024+8*tt}', 'x')
    pack_T(AK, KOP + 4, R, R)
    P.D(f'ds_write_b128 v{aEXW}, v[{KOP+8}:{KOP+11}]', 'x')
    P.I(f's_cmp_lt_u32 s{sPP}, 2\ns_cbranch_scc0 L_hv2')
    for v in (0, 2): P.I(f'v_pk_mul_f32 {pr(HA+v)}, {pr(HA+v)}, {pr(RH)} op_sel_hi:[1,0]')
    P.I('s_branch L_hd2')
    P.label('L_hv2')
    for v in (0, 2): P.I(f'v_pk_mul_f32 {pr(HA+v)}, {pr(HA+v)}, {pr(SC+v)}')
    P.label('L_hd2')
    P.I(f'v_cvt_pk_bf16_f32 v{HA+4}, v{HA}, v{HA+1}\nv_cvt_pk_bf16_f32 v{HA+5}, v{HA+2}, v{HA+3}')
    P.D(f'ds_write_b64 v{aEXH}, v[{HA+4}:{HA+5}]', 'x')
    P.lg0(); P.I('s_barrier'); stamp(P, cfg, 'e2')
    P.D(f'ds_read_b128 v[{KOP}:{KOP+3}], v{aEXR}', 'e')
    for tt in range(2): P.D(f'ds_read_b64 v[{VOP+6*tt}:{VOP+6*tt+1}], v{aEXR} offset:{1024+8*tt}', 'e')
    pack_T(AQ, QOP, RQ, RZ)
    S = AK; PP = AK + 16; OO = AQ
    OB = [AQ, CSA]
    mfS = lambda d, a, b, c: f'v_mfma_f32_16x16x32_bf16 v[{d}:{d+3}], v[{a}:{a+3}], v[{b}:{b+3}], v[{c}:{c+3}]'
    P.lg0()
    P.I(mfS(S + 8, KOP + 4, QOP + 4, MKP)); P.I(mfS(S + 12, KOP + 8, QOP + 4, MKC)); P.I(mfS(S + 4, KOP + 4, QOP, MKC)); P.I(mfS(S, KOP, QOP, MKP0))
    mx = [t + 1, t + 3]
    order = (1, 0)
    for bb in order:
        s = S + 8 * bb; m = mx[bb]
        P.I(f'''
        v_max3_f32 v{m}, v{s}, v{s+1}, v{s+2}
        v_max3_f32 v{m+1}, v{s+3}, v{s+4}, v{s+5}
        v_max3_f32 v{m}, v{m}, v{s+6}, v{s+7}
        v_max_f32 v{m}, v{m}, v{m+1}
        v_mov_b32 v{m+1}, v{m}
        ''')
    for bb in order: P.I(f'v_permlane16_swap_b32 v{mx[bb]}, v{mx[bb]+1}')
    for bb in order: P.I(f'v_max_f32 v{mx[bb]}, v{mx[bb]}, v{mx[bb]+1}\nv_mov_b32 v{mx[bb]+1}, v{mx[bb]}')
    for bb in order: P.I(f'v_permlane32_swap_b32 v{mx[bb]}, v{mx[bb]+1}')
    for bb in order: P.I(f'v_max_f32 v{mx[bb]}, v{mx[bb]}, v{mx[bb]+1}')
    for bb in order:
        s = S + 8 * bb; o = OB[bb]; p = PP + 4 * bb
        for v in range(0, 8, 2): P.I(f'v_pk_add_f32 {pr(s+v)}, {pr(s+v)}, {pr(mx[bb])} op_sel_hi:[1,0] neg_lo:[0,1] neg_hi:[0,1]')
        for v in range(8): P.I(f'v_exp_f32 v{s+v}, v{s+v}')
        for v in range(4): P.I(f'v_cvt_pk_bf16_f32 v{p+v}, v{s+2*v}, v{s+2*v+1}')
        P.I(m16(o + 8, ONES, p, True))
        for tt in range(2): P.I(m16(o + 4 * tt, VOP + 6 * tt + 2 * bb, p, True))
    for bb in order:
        o = OB[bb]
        P.I(f'v_rcp_f32 v{o+8}, v{o+8}')
        P.I(f'v_and_b32 v{o+10}, v{m48}, v{o+8}')
        for v in (0, 2): P.I(f'v_pk_mul_f32 {pr(o+v)}, {pr(o+v)}, {pr(o+8)} op_sel_hi:[1,0]')
        for v in (4, 6): P.I(f'v_pk_mul_f32 {pr(o+v)}, {pr(o+v)}, {pr(o+10)} op_sel_hi:[1,0]')
        for v in range(4): P.I(f'v_cvt_pk_bf16_f32 v{PP+4*bb+v}, v{o+2*v}, v{o+2*v+1}')
        P.V(f'buffer_store_dwordx4 v[{PP+4*bb}:{PP+4*bb+3}], v{vO}, s[{sWS}:{sWS+3}], s{sOB} offen offset:{256*bb}{cfg.sc}', 'st')
    stamp(P, cfg, 'end')
    assert not XQ
    if cfg.hook_late: cfg.hook_late(P)
    YQ = s2_xy(P, 'Y') if cfg.early_w else []
    for f in YQ[:cfg.ypre]: f()
    publish2(P, cfg, 1, 'at', 0, tags=('st', 'pa'))
    for f in YQ[cfg.ypre:]: f()
    stamp(P, cfg, 'pub'); stamp_flush(P, cfg)
    P.I(f's_branch {after}')
```

```python
from gen import *

def check_flag(P, vreg, soff, expect, lab):
    P.I(f'''
    v_readfirstlane_b32 s{sT1}, v{vreg}
    s_cmp_ge_u32 s{sT1}, {expect}
    s_cbranch_scc1 L_ok{lab}
    s_mov_b32 s{sT2}, {SPIN}
    L_sp{lab}:
    buffer_load_dword v{vreg}, off, s[{sWS}:{sWS+3}], s{soff} sc1
    s_sub_u32 s{sT2}, s{sT2}, 1
    s_cbranch_scc1 L_ok{lab}
    s_waitcnt vmcnt(0)
    v_readfirstlane_b32 s{sT1}, v{vreg}
    s_cmp_ge_u32 s{sT1}, {expect}
    s_cbranch_scc0 L_sp{lab}
    L_ok{lab}:
    ''')

sM2, sN2 = 90, 91
sCA, sCB = 92, 93
vPA = 252

def stage2_ids(P):
    P.I(f'''
    s_mul_i32 s{sT0}, s{sJ}, 37
    s_lshr_b32 s{sT0}, s{sT0}, 8
    s_mul_i32 s{sT1}, s{sT0}, 7
    s_sub_u32 s{sN2}, s{sJ}, s{sT1}
    s_lshl_b32 s{sM2}, s{sXCD}, 2
    s_add_u32 s{sM2}, s{sM2}, s{sT0}
    s_lshr_b32 s{sT0}, s{sM2}, 1
    s_and_b32 s{sT0}, s{sT0}, 15
    s_lshl_b32 s{sT0}, s{sT0}, 7
    s_add_u32 s{sCA}, s{sT0}, {CNT_OFF}
    s_add_u32 s{sCB}, s{sT0}, {CNT_OFF + 2048}
    ''')

def pollA_prefetch(P):
    P.V(f'buffer_load_dword v{vPA}, off, s[{sWS}:{sWS+3}], s{sCA} sc1', 'pa')

XA, YA, ZA = 0, 65536, 131072
vWD2 = 249; sLD2, sRW2 = 98, 99
def s2_early_setup(P, t):
    P.I(f'''
    s_lshr_b32 s{sT2}, s{sWAVE}, 1
    s_and_b32 s{sT1}, s{sWAVE}, 1
    v_lshrrev_b32 v{t}, 3, v{vLANE}
    s_lshl_b32 s{sT0}, s{sT1}, 3
    v_add_u32 v{t}, s{sT0}, v{t}
    v_mul_u32_u24 v{t}, {XB}, v{t}
    v_lshrrev_b32 v{t+1}, 2, v{vLANE}
    v_and_b32 v{t+1}, 4, v{t+1}
    v_xor_b32 v{t+1}, v{t+1}, v{vLANE}
    v_and_b32 v{t+1}, 7, v{t+1}
    v_lshl_add_u32 v{vWD2}, v{t+1}, 4, v{t}
    s_lshl_b32 s{sT0}, s{sN2}, 7
    v_add_u32 v{vWD2}, s{sT0}, v{vWD2}
    s_lshl_b32 s{sT0}, s{sT2}, 14
    s_lshl_b32 s{sT1}, s{sT1}, 10
    s_add_u32 s{sLD2}, s{sT0}, s{sT1}
    s_mul_i32 s{sRW2}, s{sT2}, {448*XB}
    ''')
def s2_srd(P): srd(P, sW2, 16, 1792 * XB)
def s2_xy(P, which):
    L = []
    for i in range(8):
        r = (0 if which == 'X' else 2) + i // 4
        ks = [0, 4, 16, 20][r] + i % 4
        def f(i=i, ks=ks):
            P.I(f's_add_u32 m0, s{sLD2}, {(XA if which == "X" else YA) + 2048*i}')
            P.I(f's_add_u32 s{sT0}, s{sRW2}, {16*ks*XB}')
            P.V(f'buffer_load_dwordx4 v{vWD2}, s[{sW2}:{sW2+3}], s{sT0} offen lds', which)
        L.append(f)
    return L
EA = [0, 4, 16, 20]; EB = [8, 12, 24]

def stage2_v2(P, cfg, endlabel):
    sKQ, sTT, sHB, sOB2, sLD, sRW, sRO = 76, 77, 78, 79, sLD2, sRW2, 74
    vWD, vH = vWD2, 3; vA = {XA: [4, 5], YA: [6, 7], ZA: [8, 9]}; vO = 10; vRW, vRR, vSW, vSR = 11, 12, 13, 14; vT = 15
    XR, B2R = 20, 24
    WL = 28
    AM, AS = 52, 84
    HR = 116
    NH = 33
    vP = 251
    P.I(f'''
    s_cmp_ge_u32 s{sJ}, 28
    s_cbranch_scc1 {endlabel}
    s_lshr_b32 s{sKQ}, s{sWAVE}, 1
    s_and_b32 s{sTT}, s{sWAVE}, 1
    s_lshl_b32 s{sT1}, s{sTT}, 10
    s_mul_i32 s{sRO}, s{sKQ}, {112*XB}
    ''')
    if not cfg.early_w:
        s2_early_setup(P, vT); s2_srd(P)
        P.I(f's_lshl_b32 s{sT1}, s{sTT}, 10')
    srd(P, sWO, 8, 448 * XB)
    def dma(srdn, rowreg, rowoff, lds_imm, tag):
        if 'now' in cfg.exp: return
        P.I(f's_add_u32 m0, s{sLD}, {lds_imm}')
        P.I(f's_add_u32 s{sT0}, s{rowreg}, {rowoff}')
        P.V(f'buffer_load_dwordx4 v{vWD}, s[{srdn}:{srdn+3}], s{sT0} offen lds', tag)
    steps = []
    for r in range(4):
        for u in range(4): steps.append(('h', EA[r] + u, XA if r < 2 else YA, 16 * (4 * (r % 2) + u), 1024))
    for u in range(4): steps.append(('h', EB[0] + u, ZA, 16 * u, 1024))
    for r in (1, 2):
        for u in range(4): steps.append(('h', EB[r] + u, XA, 16 * (4 * (r - 1) + u), 1024))
    for e in range(8): steps.append(('o', e, YA, 28 * (e >> 1) + 8 * (e & 1), 2048))
    def dma_group(lo, hi, tag):
        L = []
        for i in range(lo, hi):
            kind, ks, area, row, _ = steps[i]
            zfix = 0
            if kind == 'h': L.append((sW2, sRW, 16 * ks * XB, area + row * 128))
            else: L.append((sWO, sRO, 16 * (i - lo) * XB, area + (i - lo) * 2048))
        return [(lambda a=a: dma(a[0], a[1], a[2], a[3], tag)) for a in L]
    sLZ = 75
    P.I(f's_lshl_b32 s{sT0}, s{sKQ}, 13\ns_add_u32 s{sLZ}, s{sT0}, s{sT1}')
    def dma_z1(i):
        kind, ks, area, row, _ = steps[i]
        P.I(f's_add_u32 m0, s{sLZ}, {area + row*128}')
        P.I(f's_add_u32 s{sT0}, s{sRW}, {16*ks*XB}')
        P.V(f'buffer_load_dwordx4 v{vWD}, s[{sW2}:{sW2+3}], s{sT0} offen lds', 'Z')
    if not cfg.early_w:
        for f in dma_group(0, 8, 'X'): f()
    stamp(P, cfg, 'Xiss')
    P.I(f'''
    v_lshlrev_b32 v{vH}, 4, v{vLANE}
    s_lshl_b32 s{sT0}, s{sM2}, 1
    s_add_u32 s{sT0}, s{sT0}, s{sTT}
    s_mul_i32 s{sHB}, s{sT0}, {112*1024}
    s_mul_i32 s{sT1}, s{sKQ}, {28*1024}
    s_add_u32 s{sHB}, s{sHB}, s{sT1}
    s_lshl_b32 s{sOB2}, s{sT0}, 15
    s_lshl_b32 s{sT1}, s{sKQ}, 13
    s_add_u32 s{sOB2}, s{sOB2}, s{sT1}
    s_add_u32 s{sOB2}, s{sOB2}, {O_OFF}
    s_lshl_b32 s{sTT+17}, s{sT0}, 5
    ''')
    sROW = sTT + 17
    def hload(i):
        kind, ks, _, _, _ = steps[i]
        base = sHB if kind == 'h' else sOB2
        go = ks * 1024
        d = HR + 4 * (i % NH)
        if 'noh' in cfg.exp: return
        if 'hhot' in cfg.exp:
            P.V(f'buffer_load_dwordx4 v[{d}:{d+3}], v{vH}, s[{sW2}:{sW2+3}], 0 offen offset:{go & 4095}{cfg.sc}', ('h', i)); return
        if 'hplain' in cfg.exp:
            P.I(f's_add_u32 s{sT1}, s{base}, {go & ~4095}')
            P.V(f'buffer_load_dwordx4 v[{d}:{d+3}], v{vH}, s[{sWS}:{sWS+3}], s{sT1} offen offset:{go & 4095}', ('h', i)); return
        if go & ~4095:
            P.I(f's_add_u32 s{sT1}, s{base}, {go & ~4095}')
            P.V(f'buffer_load_dwordx4 v[{d}:{d+3}], v{vH}, s[{sWS}:{sWS+3}], s{sT1} offen offset:{go & 4095}{cfg.sc}', ('h', i))
        else:
            P.V(f'buffer_load_dwordx4 v[{d}:{d+3}], v{vH}, s[{sWS}:{sWS+3}], s{base} offen offset:{go}{cfg.sc}', ('h', i))
    def share_pf(part):
        if cfg.nopf2: return
        ks = [st for st in steps[(0 if part == 'A' else 16):(16 if part == 'A' else 36)]]
        nb = len(ks)
        P.I(f'''
        v_lshrrev_b32 v{vT+3}, 3, v{vLANE}
        v_mul_u32_u24 v{vT+3}, 7, v{vT+3}
        v_add_u32 v{vT+3}, s{sN2}, v{vT+3}
        ''')
        if part == 'A':
            P.I(f'''
            v_and_b32 v{vT+4}, 8, v{vT+3}
            v_add_u32 v{vT+4}, v{vT+4}, v{vT+3}
            v_lshlrev_b32 v{vT+4}, 10, v{vT+4}
            v_add_u32 v{vT+4}, s{sHB}, v{vT+4}
            ''')
        else:
            P.I(f'''
            v_and_b32 v{vT+4}, 8, v{vT+3}
            v_add_u32 v{vT+4}, v{vT+4}, v{vT+3}
            v_add_u32 v{vT+4}, 8, v{vT+4}
            v_lshlrev_b32 v{vT+4}, 10, v{vT+4}
            v_add_u32 v{vT+4}, s{sHB}, v{vT+4}
            s_sub_u32 s{sT1}, s{sOB2}, {12*1024}
            v_lshlrev_b32 v{vP}, 10, v{vT+3}
            v_add_u32 v{vP}, s{sT1}, v{vP}
            v_cmp_gt_u32 vcc, 12, v{vT+3}
            v_cndmask_b32 v{vT+4}, v{vP}, v{vT+4}, vcc
            ''')
        P.I(f'''
        v_and_b32 v{vP}, 7, v{vLANE}
        v_lshl_add_u32 v{vT+4}, v{vP}, 7, v{vT+4}
        v_cmp_gt_u32 vcc, {nb}, v{vT+3}
        s_and_saveexec_b64 s[96:97], vcc
        ''')
        P.V(f'buffer_load_dword v{vP}, v{vT+4}, s[{sWS}:{sWS+3}], 0 offen sc1', 'pf')
        P.I('s_mov_b64 exec, s[96:97]')
    check_flag(P, vPA, sCA, 8, 'A')
    stamp(P, cfg, 'Aok')
    share_pf('A')
    Yq = [] if cfg.early_w else dma_group(8, 16, 'Y')
    hq = list(range(36))
    P.vm.issue('old')
    P.vm.q.remove('old'); P.vm.q.insert(0, 'old')
    for i in range(cfg.lh): hload(hq.pop(0))
    stamp(P, cfg, 'iss')
    srd(P, sOUT, 20, 2048 * XB); srd(P, sB2, 18, 896)
    P.I(f'''
    v_lshrrev_b32 v{vT}, 5, v{vLANE}
    v_lshlrev_b32 v{vT}, 2, v{vT}
    v_bfe_u32 v{vT+1}, v{vLANE}, 2, 2
    v_add_u32 v{vT}, v{vT}, v{vT+1}
    v_lshlrev_b32 v{vT}, 7, v{vT}
    v_and_b32 v{vT+1}, 16, v{vLANE}
    v_lshlrev_b32 v{vT+1}, 1, v{vT+1}
    v_and_b32 v{vT+2}, 3, v{vLANE}
    v_lshl_add_u32 v{vT+1}, v{vT+2}, 3, v{vT+1}
    v_and_b32 v{vT+2}, 8, v{vLANE}
    v_lshlrev_b32 v{vT+2}, 3, v{vT+2}
    v_xor_b32 v{vT+1}, v{vT+1}, v{vT+2}
    v_add_u32 v{vT}, v{vT}, v{vT+1}
    s_lshl_b32 s{sT0}, s{sKQ}, 14
    v_add_u32 v{vA[XA][0]}, s{sT0}, v{vT}
    v_xor_b32 v{vA[XA][1]}, 64, v{vA[XA][0]}
    v_add_u32 v{vA[YA][0]}, {YA}, v{vA[XA][0]}
    v_add_u32 v{vA[YA][1]}, {YA}, v{vA[XA][1]}
    s_lshl_b32 s{sT1}, s{sKQ}, 13
    s_add_u32 s{sT1}, s{sT1}, {ZA}
    v_add_u32 v{vA[ZA][0]}, s{sT1}, v{vT}
    v_xor_b32 v{vA[ZA][1]}, 64, v{vA[ZA][0]}
    v_and_b32 v{vT+1}, 31, v{vLANE}
    v_add_u32 v{vT+1}, s{sROW}, v{vT+1}
    v_mul_u32_u24 v{vT+1}, {XB}, v{vT+1}
    v_lshrrev_b32 v{vT+2}, 5, v{vLANE}
    v_lshlrev_b32 v{vT+2}, 4, v{vT+2}
    s_lshl_b32 s{sT1}, s{sN2}, 7
    s_lshl_b32 s{sT2}, s{sKQ}, 5
    s_add_u32 s{sT1}, s{sT1}, s{sT2}
    v_add_u32 v{vT+2}, s{sT1}, v{vT+2}
    v_add_u32 v{vO}, v{vT+1}, v{vT+2}
    ''')
    P.I(f'''
    s_lshl_b32 s{sT1}, s{sTT}, 13
    s_lshl_b32 s{sT2}, s{sKQ}, 11
    s_add_u32 s{sT2}, s{sT2}, s{sT1}
    v_add_u32 v{vRW}, s{sT2}, v{vH}
    s_add_u32 s{sT0}, s{sT0}, s{sT1}
    v_add_u32 v{vRR}, s{sT0}, v{vH}
    ''')
    def trr(i):
        _, _, area, row, dl = steps[i]
        dst = WL + 8 * (i % 3)
        for j in range(2):
            P.D(f'ds_read_b64_tr_b16 v[{dst+4*j}:{dst+4*j+1}], v{vA[area][j]} offset:{row*128}', ('wl', i))
            P.D(f'ds_read_b64_tr_b16 v[{dst+4*j+2}:{dst+4*j+3}], v{vA[area][j]} offset:{row*128+dl}', ('wl', i))
    if cfg.early_w:
        n = len(P.vm.q) - 1
        P.vm.q.remove('old')
        P.I(f's_waitcnt vmcnt({n})')
    else:
        P.vm.q.remove('old'); P.wait_vm('X')
    P.I('s_barrier'); stamp(P, cfg, 'b0')
    trr(0); trr(1)
    seen = {'h': False, 'o': False}
    ops = []
    LW = cfg.lw; LHH = cfg.lh
    for k, f in enumerate(Yq): ops.append((max(0, 6 - LW), 0, k, 'Y', f))
    for k in range(16, 20): ops.append((14 - LW, 0, k, 'Z', lambda k=k: dma_z1(k)))
    for k, f in enumerate(dma_group(20, 28, 'X2')): ops.append((18 - LW, 6, k, 'X2', f))
    for k, f in enumerate(dma_group(28, 36, 'Y2')): ops.append((26 - LW, 14, k, 'Y2', f))
    for k in hq: ops.append((max(k - LHH, cfg.pb_check if k >= 16 else 0), cfg.pb_check if k >= 16 else 0, 100 + k, 'h', lambda k=k: hload(k)))
    def issue_next(i):
        av = sorted(o[:3] + (n,) for n, o in enumerate(ops) if o[1] <= i)
        if av: ops.pop(av[0][3])[4]()
    def write_partials(acc, kind):
        for q in range(4):
            if q < 3: P.I(f's_cmp_eq_u32 s{sKQ}, {q}\ns_cbranch_scc0 L_w{kind}{q+1}')
            for p in range(4):
                if p == q: continue
                for hf in range(2):
                    r = acc + 8 * p + 4 * hf
                    if kind == 'm':
                        P.L.append(f'ds_write_b128 v{vRW}, v[{r}:{r+3}] offset:{16384*p + 1024*hf}')
                    else:
                        d = (q - p) % 4
                        if d == 1: P.L.append(f'ds_write_b128 v{vSW}, v[{r}:{r+3}] offset:{16384*p + 2048*p + 1024*hf}')
                        else: P.L.append(f'ds_write_b128 v{vSR}, v[{r}:{r+3}] offset:{8192*p + 2048*(d-2) + 1024*hf}')
            own = OWNM if kind == 'm' else OWNS
            for e in range(8): P.I(f'v_mov_b32 v{own+e}, v{acc+8*q+e}')
            if q < 3:
                P.I(f's_branch L_w{kind}4')
                P.label(f'L_w{kind}{q+1}')
        P.label(f'L_w{kind}4')
        for _ in range(6): P.lg.issue('rw')
    OWNM, OWNS = HR + 12, HR + 20
    RD = HR + 28
    XF, BF, G = HR + 60, HR + 68, HR + 76
    for i in range(36):
        kind = steps[i][0]
        a = AM if kind == 'h' else AS
        if i in (6, 14, 18, 26):
            if i != 18: P.lg0()
            need = {6: 'Y', 14: 'Z', 18: 'X2', 26: 'Y2'}[i]
            assert not any(o[3] == need for o in ops)
            P.wait_vm(need)
            P.I('s_barrier'); stamp(P, cfg, f'b@{i}')
        if i == cfg.pb_issue: P.V(f'buffer_load_dword v{vP}, off, s[{sWS}:{sWS+3}], s{sCB} sc1', 'pb')
        if i == cfg.pb_check:
            P.wait_vm('pb')
            check_flag(P, vP, sCB, 16, 'B')
            stamp(P, cfg, 'Bok')
            share_pf('B')
            P.V(f'buffer_load_dwordx4 v[{XR}:{XR+3}], v{vO}, s[{sX}:{sX+3}], 0 offen', 'xr')
            P.V(f'buffer_load_dwordx4 v[{B2R}:{B2R+3}], v{vT+2}, s[{sB2}:{sB2+3}], 0 offen', 'xr')
        if i == 31:
            P.lg0(); P.I('s_barrier'); stamp(P, cfg, 'bm')
            for src in range(4):
                for hf in range(2):
                    r = RD + 8 * src + 4 * hf
                    P.D(f'ds_read_b128 v[{r}:{r+3}], v{vRR} offset:{2048*src + 1024*hf}', 'rr')
        av = sorted(o[:3] for o in ops if o[1] <= i)
        rate = 0
        allo = sorted(o[:3] for o in ops)
        for k, o in enumerate(av):
            later = sum(1 for p in allo if p[1] > i and p[0] <= o[0])
            rate = max(rate, -(-(k + 1 + later) // max(1, o[0] - i + 1)))
        if i == cfg.pb_check: rate = max(rate, cfg.burst)
        rate = min(rate, len(av))
        quota = [(rate + 1) // 2, rate // 2]
        if i + 2 < 36: trr(i + 2)
        P.wait_lg(('wl', i))
        P.wait_vm(('h', i))
        w = WL + 8 * (i % 3); b = HR + 4 * (i % NH)
        for j in range(2):
            c = f'v[{a+16*j}:{a+16*j+15}]' if seen[kind] else '0'
            P.I(f'v_mfma_f32_32x32x16_bf16 v[{a+16*j}:{a+16*j+15}], v[{w+4*j}:{w+4*j+3}], v[{b}:{b+3}], {c}')
            for _ in range(quota[j]):
                issue_next(i)
        seen[kind] = True
        if i == 28:
            write_partials(AM, 'm')
            P.I(f'''
            s_lshl_b32 s{sT1}, s{sTT}, 13
            v_add_u32 v{vSW}, s{sT1}, v{vH}
            s_lshl_b32 s{sT1}, s{sTT}, 12
            s_add_u32 s{sT1}, s{sT1}, {ZA}
            v_add_u32 v{vSR}, s{sT1}, v{vH}
            ''')
        if i == 29:
            P.wait_vm('xr')
            P.I(f'''
            v_permlane32_swap_b32 v{XR}, v{XR+2}
            v_permlane32_swap_b32 v{XR+1}, v{XR+3}
            v_permlane32_swap_b32 v{B2R}, v{B2R+2}
            v_permlane32_swap_b32 v{B2R+1}, v{B2R+3}
            ''')
            for d in range(4):
                P.I(f'v_lshlrev_b32 v{XF+2*d}, 16, v{XR+d}\nv_and_b32 v{XF+2*d+1}, 0xffff0000, v{XR+d}')
                P.I(f'v_lshlrev_b32 v{BF+2*d}, 16, v{B2R+d}\nv_and_b32 v{BF+2*d+1}, 0xffff0000, v{B2R+d}')
            for e in range(8): P.I(f'v_add_f32 v{BF+e}, v{BF+e}, v{OWNM+e}')
        if i == 32:
            P.wait_lg('rr')
            for q in range(4):
                if q < 3: P.I(f's_cmp_eq_u32 s{sKQ}, {q}\ns_cbranch_scc0 L_r{q+1}')
                o = [s for s in range(4) if s != q]
                for e in range(8): P.I(f'v_add_f32 v{BF+e}, v{BF+e}, v{RD+8*o[0]+e}')
                for e in range(8): P.I(f'v_add_f32 v{G+e}, v{RD+8*o[1]+e}, v{RD+8*o[2]+e}')
                if q < 3:
                    P.I('s_branch L_r4'); P.label(f'L_r{q+1}')
            P.label('L_r4')
            for e in range(8): P.I(f'v_add_f32 v{BF+e}, v{BF+e}, v{G+e}')
        if i == 33:
            for e in range(8): P.I(f'v_mul_f32 v{G+e}, {f32(-LOG2E)}, v{BF+e}')
            for e in range(8): P.I(f'v_exp_f32 v{G+e}, v{G+e}')
        if i == 34:
            for e in range(8): P.I(f'v_add_f32 v{G+e}, 1.0, v{G+e}')
            for e in range(8): P.I(f'v_rcp_f32 v{G+e}, v{G+e}')
        if i == 35:
            for e in range(8): P.I(f'v_mul_f32 v{G+e}, v{G+e}, v{BF+e}')
    stamp(P, cfg, 'loop')
    write_partials(AS, 's')
    P.I(f'''
    s_lshl_b32 s{sT1}, s{sKQ}, 11
    v_add_u32 v{vRR}, s{sT1}, v{vRR}
    s_lshl_b32 s{sT1}, s{sKQ}, 13
    v_add_u32 v{vSR}, s{sT1}, v{vSR}
    ''')
    for e in range(8): P.I(f'v_fma_f32 v{XF+e}, v{G+e}, v{OWNS+e}, v{XF+e}')
    P.lg0(); stamp(P, cfg, 'sw'); P.I('s_barrier'); stamp(P, cfg, 'bs')
    for hf in range(2): P.D(f'ds_read_b128 v[{RD+4*hf}:{RD+4*hf+3}], v{vRR} offset:{1024*hf}', 'a')
    for k in range(2):
        for hf in range(2): P.D(f'ds_read_b128 v[{RD+8+8*k+4*hf}:{RD+8+8*k+4*hf+3}], v{vSR} offset:{2048*k + 1024*hf}', 'b')
    P.wait_lg('a')
    for e in range(8): P.I(f'v_fma_f32 v{XF+e}, v{G+e}, v{RD+e}, v{XF+e}')
    P.lg0()
    for e in range(8): P.I(f'v_add_f32 v{RD+8+e}, v{RD+8+e}, v{RD+16+e}')
    for e in range(8): P.I(f'v_fma_f32 v{XF+e}, v{G+e}, v{RD+8+e}, v{XF+e}')
    for d in range(4): P.I(f'v_cvt_pk_bf16_f32 v{XR+d}, v{XF+2*d}, v{XF+2*d+1}')
    P.I(f'v_permlane32_swap_b32 v{XR}, v{XR+2}\nv_permlane32_swap_b32 v{XR+1}, v{XR+3}')
    P.V(f'buffer_store_dwordx4 v[{XR}:{XR+3}], v{vO}, s[{sOUT}:{sOUT+3}], 0 offen', 'out')
    stamp(P, cfg, 'st')
    if cfg.prof: P.vm0()
    stamp(P, cfg, 'drain'); stamp_flush(P, cfg)
```

```python
import sys, argparse, json
from gen import *
import gen
from s2v2 import *

vPF = 250
def w2_prefetch(P):
    P.I(f'''
    s_lshl_b32 s{sT0}, s{sJ}, 3
    s_add_u32 s{sT0}, s{sT0}, s{sWAVE}
    s_lshl_b32 s{sT1}, s{sT0}, 13
    s_mov_b32 s{sW2}, s16
    s_mov_b32 s{sW2+1}, s17
    s_mov_b32 s{sW2+2}, {1792*XB}
    s_mov_b32 s{sW2+3}, 0x20000
    s_cmp_lt_u32 s{sT0}, 196
    s_cbranch_scc1 L_pf{P.uid()}
    s_mov_b32 s{sW2}, s8
    s_mov_b32 s{sW2+1}, s9
    s_mov_b32 s{sW2+2}, {448*XB}
    s_sub_u32 s{sT1}, s{sT1}, {196*8192}
    L_pf{P.uid(False)}:
    v_lshlrev_b32 v{vPF}, 7, v{vLANE}
    ''')
    P.V(f'buffer_load_dword v{vPF}, v{vPF}, s[{sW2}:{sW2+3}], s{sT1} offen', 'pf')

def build2(cfg):
    hdr = open('cdna_kernels/' + NAME + '.s.ref').read().split('; Override launch')[0]
    out = [hdr, '; @launch grid=(256,1,1) block=(512,1,1) lds=163840\n']
    P = Prog(); P.pv = 255
    stamp(P, cfg, 'start')
    prologue(P, 256, 'L_end')
    stage1_ids(P)
    stage2_ids(P)
    P.I(f's_cmp_ge_u32 s{sJ}, 16\ns_cbranch_scc1 L_att')
    st = P.state()
    cfg.mlp(P, cfg, 'L_s1_done')
    P.restore(st)
    P.label('L_att')
    cfg.att(P, cfg, 'L_s1_done')
    P.label('L_s1_done')
    P.vm.q = []; P.lg.q = []; P.pv = 254
    stamp(P, cfg, 's2')
    stage2_v2(P, cfg, 'L_s2_skip')
    P.label('L_s2_skip')
    prof_dump(P, cfg, [(0, 255), (1, 254)])
    P.label('L_end')
    P.I('s_endpgm')
    P.label('L_code_end')
    name = NAME + '_kernel'
    out.append('.amdgcn_target "amdgcn-amd-amdhsa--gfx950"\n.text\n')
    out.append(f'.globl {name}\n.p2align 8\n.type {name},@function\n{name}:\n')
    for l in fix_hazards(P.L):
        out.append(l + '\n' if l.endswith(':') else '    ' + l + '\n')
    out.append('.section .rodata,"a"\n')
    out.append(kd(name))
    return ''.join(out)

if __name__ == '__main__':
    ap = argparse.ArgumentParser()
    ap.add_argument('-o', default='cdna_kernels/' + NAME + '.s')
    ap.add_argument('--prof', action='store_true')
    ap.add_argument('--nopf', action='store_true')
    ap.add_argument('--exp', default='')
    ap.add_argument('--sigpos', type=int, default=40)
    ap.add_argument('--stpoll', type=int, default=20)
    ap.add_argument('--ypre', type=int, default=2)
    ap.add_argument('--norot', action='store_true')
    ap.add_argument('--s1pf', action='store_true')
    ap.add_argument('--pf2', action='store_true')
    ap.add_argument('--lh', type=int, default=6)
    ap.add_argument('--lw', type=int, default=4)
    ap.add_argument('--burst', type=int, default=4)
    ap.add_argument('--wnt', action='store_true')
    ap.add_argument('--pbc', type=int, default=10)
    ap.add_argument('--noearlyw', action='store_true')
    ap.add_argument('--fine', action='store_true')
    ap.add_argument('--ni', type=int, default=3)
    ap.add_argument('--oldmlp', action='store_true')
    ap.add_argument('--oldatt', action='store_true')
    a = ap.parse_args()
    cfg = Cfg(); cfg.prof = a.prof; cfg.fused = True
    cfg.hook_late = pollA_prefetch
    cfg.hook_early = None if a.nopf else w2_prefetch
    cfg.nopf = a.nopf
    cfg.sigpos = a.sigpos; cfg.st_poll = a.stpoll
    cfg.ypre = a.ypre
    cfg.norot = a.norot; cfg.attpf = not a.nopf; cfg.wnt = ' nt' if a.wnt else ''
    cfg.s1pf = a.s1pf
    cfg.nopf2 = not a.pf2; cfg.lh = a.lh; cfg.lw = a.lw; cfg.burst = a.burst; cfg.pb_check = a.pbc; cfg.pb_issue = a.pbc - 3; cfg.early_w = not a.noearlyw
    cfg.coarse = not a.fine
    cfg.ni = a.ni
    cfg.exp = a.exp.split(',')
    cfg.pubmap = {0: [0, 1], 1: [1]}
    cfg.mlp = mlp_path; cfg.att = att_path
    if not a.oldmlp or not a.oldatt:
        import s1v2
        if not a.oldmlp: cfg.mlp = s1v2.mlp_v2
        if not a.oldatt: cfg.att = s1v2.att_v2
    open(a.o, 'w').write(build2(cfg))
    if cfg.prof: json.dump(cfg.paths, open(a.o + '.paths.json', 'w'))
```

```python
import re

TRANS = ('v_exp_f32', 'v_rcp_f32', 'v_rsq_f32', 'v_sqrt_f32', 'v_log_f32')

def _regs(tok):
    tok = tok.strip()
    if tok.startswith('-'): tok = tok[1:]
    m = re.fullmatch(r'abs\((.*)\)', tok)
    if m: tok = m.group(1)
    m = re.fullmatch(r'([vs])\[(\d+):(\d+)\]', tok)
    if m: return {(m.group(1), i) for i in range(int(m.group(2)), int(m.group(3)) + 1)}
    m = re.fullmatch(r'([vs])(\d+)', tok)
    if m: return {(m.group(1), int(m.group(2)))}
    if tok == 'm0': return {('m0', 0)}
    if tok in ('vcc', 'vcc_lo', 'vcc_hi'): return {('vcc', 0)}
    if tok in ('exec', 'exec_lo', 'exec_hi'): return {('exec', 0)}
    return set()

class Ins:
    def __init__(self, text):
        self.text = text
        t = text.split(';')[0].strip()
        self.label = t.endswith(':')
        self.directive = t.startswith('.') and not self.label
        self.kind = None; self.w = set(); self.r = set(); self.states = 1
        self.mn = ''
        if self.label or self.directive or not t:
            self.states = 0
            return
        parts = t.split(None, 1)
        mn = parts[0]; self.mn = mn
        rest = parts[1] if len(parts) > 1 else ''
        ops = [o.strip() for o in re.split(r',(?![^\[]*\])', rest)] if rest else []
        mods = ''
        if ops:
            sp = ops[-1].split(None, 1)
            ops[-1] = sp[0]
            mods = sp[1] if len(sp) > 1 else ''
        self.ops = ops; self.mods = mods
        R = [_regs(o) for o in ops]
        U = lambda xs: set().union(*xs) if xs else set()
        if mn == 's_nop':
            self.kind = 'nop'; self.states = int(ops[0], 0) + 1
        elif mn.startswith('v_mfma'):
            self.kind = 'mfma'; self.w = R[0]; self.A = R[1]; self.B = R[2]; self.C = R[3]
            self.r = R[1] | R[2] | R[3]
            self.passes = 8 if '32x32' in mn else 4
        elif mn.startswith('v_'):
            self.kind = 'valu'
            self.trans = mn.replace('_e32', '').replace('_e64', '') in TRANS
            self.dot = mn.startswith('v_dot')
            self.perm = mn.startswith('v_permlane')
            self.dpp = 'dpp' in mn or 'row_' in mods or 'quad_perm' in mods
            self.rl = mn.startswith('v_readfirstlane') or mn.startswith('v_readlane')
            if self.perm:
                self.w = R[0] | R[1]; self.r = R[0] | R[1]
            else:
                self.w = R[0]; self.r = U(R[1:])
                if mn.startswith(('v_fmac', 'v_dot2c', 'v_mac')): self.r |= R[0]
                if mn.startswith('v_cndmask') and len(ops) == 3: self.r |= {('vcc', 0)}
        elif mn.startswith('ds_'):
            self.kind = 'ds'
            if mn.startswith(('ds_read', 'ds_bpermute', 'ds_swizzle')) or '_rtn_' in mn:
                self.w = R[0]; self.r = U(R[1:])
            else:
                self.r = U(R)
        elif mn.startswith(('buffer_', 'global_')):
            self.kind = 'vmem'
            self.lds = bool(re.search(r'\blds\b', mods))
            self.store = 'store' in mn or 'atomic' in mn
            self.wide = mn.endswith(('x3', 'x4'))
            if self.lds:
                self.r = U(R) | {('m0', 0)}
            elif self.store:
                self.r = U(R)
                self.data = R[0] if mn.startswith('buffer') else R[1]
            else:
                self.w = R[0]; self.r = U(R[1:])
        elif mn.startswith('s_'):
            self.kind = 'salu'
            if mn.startswith(('s_cmp', 's_cbranch', 's_branch', 's_waitcnt', 's_barrier', 's_endpgm', 's_sleep', 's_setprio', 's_bitcmp')):
                self.r = U(R)
            else:
                self.w = R[0] if R else set(); self.r = U(R[1:])
                if 'saveexec' in mn: self.w |= {('exec', 0)}
        else:
            raise ValueError('unknown instr ' + text)

def vg(s): return {x for x in s if x[0] == 'v'}
def sg(s): return {x for x in s if x[0] in ('s', 'vcc')}

def need(p, c):
    n = 0
    if p.kind == 'valu':
        pv = vg(p.w); ps = sg(p.w)
        if c.kind == 'mfma' and pv & c.r: n = max(n, 2)
        if c.kind == 'valu':
            if p.trans and not c.trans and pv & c.r: n = max(n, 1)
            if p.trans and c.trans and pv & c.r: n = max(n, 1)
            if (c.perm or c.dpp) and pv & c.r: n = max(n, 2)
            if c.rl and pv & c.r: n = max(n, 1)
            if ps & c.r: n = max(n, 4 if c.rl else 2)
            if p.dot and (pv & (c.r | c.w)):
                same = c.mn == p.mn
                if same and not (pv & set().union(*[_regs(o) for o in c.ops[1:]])): pass
                else: n = max(n, 3)
        if p.dot and c.kind in ('mfma', 'ds', 'vmem') and pv & c.r: n = max(n, 3)
        if c.kind == 'vmem' and ps & c.r: n = max(n, 5)
        if c.kind == 'salu' and ps & c.r: n = max(n, 1)
    if p.kind == 'mfma':
        big = 12 if p.passes == 8 else 8
        mid = 10 if p.passes == 8 else 6
        if c.kind == 'mfma':
            if p.w & (c.A | c.B): n = max(n, big)
            if p.w & c.C:
                if not (p.w == c.C and p.passes == c.passes): n = max(n, mid)
            if p.w & c.w and not (p.w == c.C and p.passes == c.passes): n = max(n, mid)
        elif c.kind in ('valu', 'ds', 'vmem'):
            if p.w & (c.r | c.w): n = max(n, big)
            if c.kind == 'valu' and p.C & c.w: n = max(n, 7 if p.passes == 8 else 3)
            if c.kind in ('ds', 'vmem') and p.C & c.w: n = max(n, 7 if p.passes == 8 else 3)
    if p.kind == 'salu' and ('m0', 0) in p.w and c.kind == 'vmem' and c.lds: n = max(n, 1)
    if p.kind == 'vmem' and p.store and p.wide and c.kind in ('valu', 'mfma', 'ds', 'vmem') and p.data & c.w:
        n = max(n, 2)
    if p.kind == 'ds' and p.mn.startswith('ds_write_b128') and c.kind in ('valu', 'mfma') and vg(p.r) & c.w:
        n = max(n, 0)
    return n

def _required(hist, c):
    dist = 0; req = 0
    for p in reversed(hist):
        if p.states == 0: continue
        if dist >= 14: break
        if p.kind not in ('nop', None):
            k = need(p, c)
            if k > dist: req = max(req, k - dist)
        dist += p.states
    return req

def fix_hazards(lines):
    ins = [Ins(l) for l in lines]
    out = []
    for c in ins:
        if c.states and c.kind != 'nop':
            h = []
            for p in reversed(out[-40:]):
                if p.mn in ('s_branch', 's_endpgm'): break
                h.append(p)
            h.reverse()
            k = _required(h, c)
            while k > 0:
                n = min(k, 16)
                out.append(Ins(f's_nop {n-1}')); k -= n
        out.append(c)
    changed = True
    while changed:
        changed = False
        labels = {x.text.split(';')[0].strip()[:-1]: i for i, x in enumerate(out) if x.label}
        for i, b in enumerate(out):
            if b.mn.startswith(('s_cbranch', 's_branch')):
                tgt = b.ops[0]
                j = labels[tgt]
                h = []
                for p in reversed(out[max(0, i - 40):i + 1]):
                    if p is not b and p.mn in ('s_branch', 's_endpgm'): break
                    h.append(p)
                h.reverse()
                k = j + 1; hh = list(h); cnt = 0
                while k < len(out) and cnt < 16:
                    c = out[k]
                    if c.states and c.kind != 'nop':
                        r = _required(hh, c)
                        if r > 0:
                            out.insert(j + 1, Ins(f's_nop {r-1}'))
                            changed = True
                            break
                    if c.mn in ('s_branch', 's_endpgm'): break
                    hh.append(c); cnt += c.states; k += 1
                if changed: break
    return [x.text for x in out]

class Ctr:
    def __init__(self, name, maxv): self.name = name; self.q = []; self.maxv = maxv; self.n = 0
    def copy(self):
        c = Ctr(self.name, self.maxv); c.q = list(self.q); c.n = self.n; return c
    def issue(self, tag): self.q.append(tag); self.n += 1
    def wait_n(self, pred):
        idx = -1
        for i, t in enumerate(self.q):
            if pred(t): idx = i
        if idx < 0: return None
        n = len(self.q) - 1 - idx
        n2 = min(n, self.maxv)
        self.q = self.q[len(self.q) - n2:] if n2 else []
        return n2

class Prog:
    def __init__(self):
        self.L = []
        self.vm = Ctr('vmcnt', 63); self.lg = Ctr('lgkmcnt', 15)
        self.nst = 0; self.names = []
    def I(self, s):
        for l in s.strip().split('\n'):
            l = l.strip()
            if l: self.L.append(l)
    _uid = 0
    def uid(self, new=True):
        if new: self._uid += 1
        return self._uid
    def label(self, n): self.L.append(n + ':')
    def V(self, s, tag=None):
        self.L.append(s); self.vm.issue(tag)
        assert len(self.vm.q) <= 63, 'vmcnt overflow'
    def D(self, s, tag=None):
        self.L.append(s); self.lg.issue(tag)
    def wait_vm(self, *tags):
        n = self.vm.wait_n(lambda t: t in tags)
        if n is not None: self.L.append(f's_waitcnt vmcnt({n})')
    def wait_lg(self, *tags):
        n = self.lg.wait_n(lambda t: t in tags)
        if n is not None: self.L.append(f's_waitcnt lgkmcnt({n})')
    def vm0(self): self.vm.q = []; self.L.append('s_waitcnt vmcnt(0)')
    def lg0(self): self.lg.q = []; self.L.append('s_waitcnt lgkmcnt(0)')
    def state(self): return (self.vm.copy(), self.lg.copy(), self.nst, list(self.names))
    def restore(self, st): self.vm, self.lg, self.nst, self.names = st[0].copy(), st[1].copy(), st[2], list(st[3])

def vr(a, n=1): return f'v{a}' if n == 1 else f'v[{a}:{a+n-1}]'
def sr(a, n=1): return f's{a}' if n == 1 else f's[{a}:{a+n-1}]'
import struct
def f32(x): return '0x%08x' % struct.unpack('<I', struct.pack('<f', x))[0]
```

```python
import sys, math, argparse
from asmlib import *

NAME = 'recurrent_scan__sliding_local_dilated__mixer_channel_mlp__prompt'
XB = 896; W1S = 3584; WQS = 2688
H_OFF = 0; O_OFF = 0x700000; CNT_OFF = 0x900000; STAT_OFF = 0x910000; WS_SIZE = 0x940000
SLOT = 8192; MISC = 19 * SLOT
EPS = 1e-5
LOG2E = 1.4426950408889634
GK0 = -2.0 * LOG2E * math.sqrt(2.0 / math.pi)
GK1 = GK0 * 0.044715
NEG = -1e30
SPIN = 400000

sX, sW, sWS, sB1, sWO, sW2, sOUT, sB2, sDBG = 28, 32, 36, 40, 44, 48, 52, 56, 60
sWAVE, sXCD, sJ, sMT, sSUB, sT0, sT1, sT2, sWX, sWW = 64, 65, 66, 67, 68, 69, 70, 71, 72, 73

def srd(P, d, ptr, size):
    P.I(f's_mov_b32 s{d}, s{ptr}\ns_mov_b32 s{d+1}, s{ptr+1}\ns_mov_b32 s{d+2}, {size}\ns_mov_b32 s{d+3}, 0x20000')

class Cfg:
    fused = False
    sc = ' sc1'
    prof = False
    dbgprof = False
    coarse = False
    keep = {'start', 'issued', 'c0b', 'T0e', 'B2b', 'B3b', 'B4b', 'end', 'pub', 'loop', 'e1', 'e2', 's2', 'Aok', 'b0', 'Bok', 'b@18', 'bm', 'bs', 'st', 'drain', 'c3b', 'Bbb', 'Bcb', 'B1b', 'Bpre', 'sw', 'setup', 'w0', 'ob', 'prew', 'karg', 'x0', 'c0w', 'c6b', 'B2xb', 'BAb', 'T1e', 'B1xb', 'Bxb', 'p@6', 'w@6', 'b@6', 'p@14', 'w@14', 'b@14', 'p@18', 'w@18', 'p@26', 'w@26', 'b@26', 'iss'}
    pubmap = {0: [0], 1: [1]}
    hook_late = None
    hook_early = None
    paths = []
    def path_id(self, names):
        self.paths.append(list(names)); return len(self.paths) - 1

def stamp(P, cfg, name=None):
    if name == getattr(cfg, 'padat', None): P.I('s_memrealtime s[100:101]')
    if not cfg.prof: return
    if cfg.coarse and name not in cfg.keep: return
    i = P.nst; P.nst += 1
    P.names.append(name)
    if i >= 2: P.I(f'v_writelane_b32 v{P.pv}, s{80+2*((i-2)%4)}, {i-2}')
    P.I(f's_memtime s[{80+2*(i%4)}:{81+2*(i%4)}]')
    if getattr(cfg, 'rt', False) and i < 28:
        if i >= 1: P.I(f'v_writelane_b32 v{P.pv}, s96, {32+i-1}')
        P.I('s_memrealtime s[96:97]')

def stamp_flush(P, cfg):
    if not cfg.prof: return
    P.I('s_waitcnt lgkmcnt(0)')
    for i in range(max(0, P.nst - 2), P.nst): P.I(f'v_writelane_b32 v{P.pv}, s{80+2*(i%4)}, {i}')
    if getattr(cfg, 'rt', False) and P.nst <= 28: P.I(f'v_writelane_b32 v{P.pv}, s96, {32+P.nst-1}')
    P.I(f'v_writelane_b32 v{P.pv}, {cfg.path_id(P.names)}, 63')
    P.nst = 0; P.names = []

def prologue(P, nwg, endlabel):
    P.I(f'''
    s_cmp_ge_u32 s2, {nwg}
    s_cbranch_scc1 {endlabel}
    s_load_dwordx16 s[4:19], s[0:1], 0
    s_load_dwordx4 s[20:23], s[0:1], 64
    s_load_dwordx2 s[24:25], s[0:1], 80
    v_lshrrev_b32 v2, 6, v0
    v_and_b32 v1, 63, v0
    v_readfirstlane_b32 s{sWAVE}, v2
    s_and_b32 s{sXCD}, s2, 7
    s_lshr_b32 s{sJ}, s2, 3
    ''')

def stage1_ids(P):
    P.I(f'''
    s_lshr_b32 s{sT0}, s{sXCD}, 2
    s_lshl_b32 s{sT0}, s{sT0}, 3
    s_bfe_u32 s{sT1}, s{sJ}, 0x30001
    s_add_u32 s{sMT}, s{sT0}, s{sT1}
    s_and_b32 s{sT0}, s{sXCD}, 3
    s_lshl_b32 s{sT0}, s{sT0}, 1
    s_and_b32 s{sT1}, s{sJ}, 1
    s_add_u32 s{sSUB}, s{sT0}, s{sT1}
    s_lshl_b32 s{sWX}, s{sWAVE}, 11
    s_lshl_b32 s{sWW}, s{sWAVE}, 10
    ''')

vFLAG = 253
def init_zero(P, cfg, t):
    if not cfg.fused: return
    srd(P, sWS, 24, WS_SIZE); srd(P, sDBG, 22, 256)
    P.I(f'''
    s_or_b32 s{sT0}, s2, s{sWAVE}
    s_cmp_eq_u32 s{sT0}, 0
    s_cbranch_scc0 L_noinit
    v_lshlrev_b32 v{t}, 7, v{vLANE}
    v_mov_b32 v{t+1}, 0
    s_mov_b32 s{sT0}, {CNT_OFF}
    buffer_store_dword v{t+1}, v{t}, s[{sWS}:{sWS+3}], s{sT0} offen sc1
    s_mov_b32 s{sT0}, {CNT_OFF + 8192}
    buffer_store_dword v{t+1}, v{t}, s[{sWS}:{sWS+3}], s{sT0} offen sc1
    s_mov_b32 s{sT0}, {CNT_OFF + 16384}
    buffer_store_dword v{t+1}, v{t}, s[{sWS}:{sWS+3}], s{sT0} offen sc1
    L_noinit:
    ''')
def init_flag(P, cfg, t, lab):
    if not cfg.fused: return
    P.I(f'''
    s_or_b32 s{sT0}, s2, s{sWAVE}
    s_cmp_eq_u32 s{sT0}, 0
    s_cbranch_scc0 L_noflag{lab}
    v_mov_b32 v{t}, 0
    v_mov_b32 v{t+1}, 1
    buffer_store_dword v{t+1}, v{t}, s[{sDBG}:{sDBG+3}], 0 offen sc1
    L_noflag{lab}:
    ''')
SVC = 4
def svc_begin(P):
    u = P.uid(); P.I(f's_cmp_eq_u32 s{sWAVE}, {SVC}\ns_cbranch_scc0 L_svc{u}'); return u
def svc_end(P, u): P.label(f'L_svc{u}')
def svc_load(P, reg, srdn, soff, voff=None):
    u = svc_begin(P)
    P.I(f'v_mov_b32 v{reg}, 0')
    if voff is None: P.I(f'buffer_load_dword v{reg}, off, s[{srdn}:{srdn+3}], {soff} sc1')
    else: P.I(f'buffer_load_dword v{reg}, v{voff}, s[{srdn}:{srdn+3}], {soff} offen sc1')
    svc_end(P, u)
def spin(P, reg, srdn, soff, expect, voff=None):
    u = P.uid()
    ld = (f'buffer_load_dword v{reg}, off, s[{srdn}:{srdn+3}], {soff} sc1' if voff is None
          else f'buffer_load_dword v{reg}, v{voff}, s[{srdn}:{srdn+3}], {soff} offen sc1')
    P.I(f'''
    v_cmp_gt_u32 vcc, {expect}, v{reg}
    s_cbranch_vccz L_so{u}
    s_mov_b32 s{sT2}, {SPIN}
    s_waitcnt vmcnt(0)
    L_sl{u}:
    v_cmp_gt_u32 vcc, {expect}, v{reg}
    s_cbranch_vccz L_so{u}
    {ld}
    s_sub_u32 s{sT2}, s{sT2}, 1
    s_cbranch_scc1 L_sx{u}
    s_waitcnt vmcnt(0)
    s_branch L_sl{u}
    L_sx{u}:
    s_waitcnt vmcnt(0)
    L_so{u}:
    ''')
def flag_prefetch(P, cfg):
    if not cfg.fused: return
    svc_load(P, vFLAG, sDBG, '0')
def publish(P, cfg, which, lab):
    if not cfg.fused: return
    if cfg.hook_late: cfg.hook_late(P)
    P.wait_vm('st', 'flag', 'pa')
    P.I('s_barrier')
    P.I(f'''
    v_readfirstlane_b32 s{sT0}, v{vFLAG}
    s_cmp_lg_u32 s{sT0}, 0
    s_cbranch_scc1 L_fok{lab}
    s_mov_b32 s{sT2}, {SPIN}
    v_mov_b32 v252, 0
    L_fw{lab}:
    buffer_load_dword v{vFLAG}, off, s[{sDBG}:{sDBG+3}], 0 sc1
    s_sub_u32 s{sT2}, s{sT2}, 1
    s_cbranch_scc1 L_fok{lab}
    s_waitcnt vmcnt(0)
    v_readfirstlane_b32 s{sT0}, v{vFLAG}
    s_cmp_lg_u32 s{sT0}, 0
    s_cbranch_scc0 L_fw{lab}
    L_fok{lab}:
    s_cmp_eq_u32 s{sWAVE}, 0
    s_cbranch_scc0 L_np{lab}
    s_lshl_b32 s{sT0}, s{sMT}, 7
    s_add_u32 s{sT0}, s{sT0}, {CNT_OFF}
    v_mov_b32 v{vFLAG}, 1
    s_mov_b64 exec, 1
    {chr(10).join(f'buffer_atomic_add v{vFLAG}, off, s[{sWS}:{sWS+3}], s{sT0} offset:{2048*w} sc1' for w in cfg.pubmap[which])}
    s_mov_b64 exec, -1
    L_np{lab}:
    ''')

vLANE, vXD0, vXD1 = 1, 2, 3
def xdma_addr(P, t0, t1):
    P.I(f'''
    s_lshl_b32 s{sT0}, s{sMT}, 7
    s_lshl_b32 s{sT1}, s{sWAVE}, 4
    s_add_u32 s{sT0}, s{sT0}, s{sT1}
    v_lshrrev_b32 v{t0}, 3, v{vLANE}
    v_add_u32 v{t0}, s{sT0}, v{t0}
    v_mul_u32_u24 v{t0}, {XB}, v{t0}
    v_lshrrev_b32 v{t1}, 4, v{vLANE}
    v_xor_b32 v{t1}, v{t1}, v{vLANE}
    v_and_b32 v{t1}, 7, v{t1}
    v_lshl_add_u32 v{vXD0}, v{t1}, 4, v{t0}
    v_xor_b32 v{t1}, 4, v{t1}
    v_add_u32 v{t0}, {8*XB}, v{t0}
    v_lshl_add_u32 v{vXD1}, v{t1}, 4, v{t0}
    ''')

def dma_x(P, c, base, tag):
    for i in range(2):
        P.I(f's_add_u32 m0, s{sWX}, {base + 1024*i - 128*c}')
        P.V(f'buffer_load_dwordx4 v{vXD0+i}, s[{sX}:{sX+3}], 0 offen offset:{128*c} lds', tag)

def mlp_path(P, cfg, after):
    sCOLP, sCOLS, sHP, sHSG, sBP, sBS, sG = 74, 75, 76, 77, 78, 79, 27
    vWD, vWDs = 4, 5
    vWa = [6, 7, 8]; vWc = [9, 10, 11]; vXa = [12, 13, 14, 15]
    XF = 16; ACC = 128; WF = 144; NWF = 5; WCS = 164; CSA = 168; SEL = 172; BX = 176; AX = 180
    vK0, vK1, vRI = 184, 185, 186; BR = 187; U = 192; PK = 208; vHS = 216; vT = 217; ST = 220; vONE = 224
    vCSW, vCSR, vSTA = 225, 226, 227; T4 = 228
    CS_LDS = MISC; ST_LDS = MISC + 1024
    xdma_addr(P, vT, vT + 1)
    P.I(f'''
    s_lshr_b32 s{sG}, s{sWAVE}, 2
    s_and_b32 s{sT2}, s{sSUB}, 1
    s_mul_i32 s{sT0}, s{sSUB}, 448
    s_lshl_b32 s{sT1}, s{sT2}, 6
    s_add_u32 s{sCOLP}, s{sT0}, s{sT1}
    s_add_u32 s{sCOLS}, s{sT0}, 384
    s_sub_u32 s{sBS}, s{sT0}, 64
    s_cmp_eq_u32 s{sT2}, 0
    s_cselect_b32 s{sCOLS}, s{sCOLS}, s{sBS}
    s_add_u32 s{sBS}, s{sCOLS}, s{sT1}
    v_lshrrev_b32 v{vT}, 3, v{vLANE}
    s_lshl_b32 s{sT0}, s{sWAVE}, 3
    v_add_u32 v{vT}, s{sT0}, v{vT}
    v_mul_u32_u24 v{vT}, {W1S}, v{vT}
    v_lshrrev_b32 v{vT+1}, 2, v{vLANE}
    v_and_b32 v{vT+1}, 4, v{vT+1}
    v_xor_b32 v{vT+1}, v{vT+1}, v{vLANE}
    v_and_b32 v{vT+1}, 7, v{vT+1}
    v_lshl_add_u32 v{vWD}, v{vT+1}, 4, v{vT}
    v_xor_b32 v{vWDs}, s{sT1}, v{vWD}
    s_waitcnt lgkmcnt(0)
    ''')
    srd(P, sX, 4, 2048 * XB)
    srd(P, sW, 12, 448 * W1S)
    init_zero(P, cfg, vT)

    def dma_w(blk, c, slot, tag):
        P.I(f's_add_u32 m0, s{sWW}, {slot*SLOT}')
        if blk < 3:
            P.I(f's_add_u32 s{sT0}, s{sCOLP}, {c*64*W1S + 128*blk}')
            P.V(f'buffer_load_dwordx4 v{vWD}, s[{sW}:{sW+3}], s{sT0} offen lds', tag)
        else:
            P.I(f's_add_u32 s{sT0}, s{sCOLS}, {c*64*W1S}')
            P.V(f'buffer_load_dwordx4 v{vWDs}, s[{sW}:{sW+3}], s{sT0} offen lds', tag)

    wslot = {}
    xbase = {}
    for c in range(7): wslot[(0, c)] = c
    for c in range(6): xbase[c] = (7 + 2 * c) * SLOT
    xbase[6] = xbase[0]
    NI = 3
    for c in range(NI):
        dma_x(P, c, xbase[c], ('c', c))
        dma_w(0, c, c, ('c', c))
    stamp(P, cfg, 'issued')
    if not cfg.fused: srd(P, sWS, 24, WS_SIZE)
    srd(P, sB1, 14, 1792 * 2)
    P.I(f'''
    s_lshl_b32 s{sT0}, s{sMT}, 2
    s_and_b32 s{sT1}, s{sWAVE}, 3
    s_add_u32 s{sT0}, s{sT0}, s{sT1}
    s_mul_i32 s{sT0}, s{sT0}, {112*1024}
    s_lshl_b32 s{sT2}, s{sBS}, 5
    s_add_u32 s{sHSG}, s{sT0}, s{sT2}
    s_lshl_b32 s{sT2}, s{sG}, 6
    s_add_u32 s{sBP}, s{sCOLP}, s{sT2}
    s_lshl_b32 s{sT2}, s{sBP}, 5
    s_add_u32 s{sHP}, s{sT0}, s{sT2}
    v_and_b32 v{vT}, 31, v{vLANE}
    v_lshlrev_b32 v{vT+1}, 1, v{vT}
    ''')
    for t in range(3):
        P.V(f'buffer_load_ushort v{BR+t}, v{vT+1}, s[{sB1}:{sB1+3}], s{sBP} offen offset:{128*t}', 'bias')
    P.V(f'buffer_load_ushort v{BR+3}, v{vT+1}, s[{sB1}:{sB1+3}], s{sBS} offen', 'bias')
    P.I(f'''
    v_lshlrev_b32 v{vHS}, 4, v{vLANE}
    v_lshrrev_b32 v{vT+1}, 5, v{vLANE}
    v_lshlrev_b32 v{vT+1}, 3, v{vT+1}
    v_bfe_u32 v{vT+2}, v{vLANE}, 2, 2
    v_add_u32 v{vT+1}, v{vT+1}, v{vT+2}
    v_lshlrev_b32 v{vT+1}, 7, v{vT+1}
    v_and_b32 v{vT+2}, 16, v{vLANE}
    v_lshlrev_b32 v{vT+2}, 1, v{vT+2}
    v_and_b32 v{T4}, 3, v{vLANE}
    v_lshl_add_u32 v{vT+2}, v{T4}, 3, v{vT+2}
    s_lshl_b32 s{sT2}, s{sG}, 6
    v_add_u32 v{vT+2}, s{sT2}, v{vT+2}
    v_and_b32 v{T4}, 8, v{vLANE}
    v_lshlrev_b32 v{T4}, 3, v{T4}
    v_xor_b32 v{vT+2}, v{vT+2}, v{T4}
    v_add_u32 v{vWa[0]}, v{vT+1}, v{vT+2}
    v_add_u32 v{vWa[1]}, 0x10000, v{vWa[0]}
    v_add_u32 v{vWa[2]}, 0x20000, v{vWa[0]}
    s_lshl_b32 s{sT2}, s{sT1}, 11
    v_add_u32 v{vWc[0]}, s{sT2}, v{vWa[0]}
    v_add_u32 v{vWc[1]}, s{sT2}, v{vWa[1]}
    v_add_u32 v{vWc[2]}, s{sT2}, v{vWa[2]}
    ''')
    P.I(f'''
    s_lshl_b32 s{sT2}, s{sT1}, 5
    v_add_u32 v{vT+1}, s{sT2}, v{vT}
    v_bfe_u32 v{vT+2}, v{vLANE}, 1, 3
    v_lshrrev_b32 v{T4}, 5, v{vLANE}
    v_xor_b32 v{vT+2}, v{vT+2}, v{T4}
    v_lshlrev_b32 v{vT+2}, 4, v{vT+2}
    v_lshl_add_u32 v{vXa[0]}, v{vT+1}, 7, v{vT+2}
    v_xor_b32 v{vXa[1]}, 32, v{vXa[0]}
    v_xor_b32 v{vXa[2]}, 64, v{vXa[0]}
    v_xor_b32 v{vXa[3]}, 0x60, v{vXa[0]}
    v_lshlrev_b32 v{vSTA}, 4, v{vT+1}
    v_add_u32 v{vSTA}, {ST_LDS}, v{vSTA}
    ''')
    P.I(f'''
    s_lshl_b32 s{sT2}, s{sG}, 9
    s_add_u32 s{sT2}, s{sT2}, {CS_LDS}
    v_lshlrev_b32 v{vCSR}, 4, v{vT}
    v_add_u32 v{vCSR}, s{sT2}, v{vCSR}
    s_lshl_b32 s{sT2}, s{sT1}, 2
    v_add_u32 v{vCSW}, s{sT2}, v{vCSR}
    v_mov_b32 v{vONE}, 0x3f803f80
    v_lshrrev_b32 v{vT+1}, 2, v{vLANE}
    v_lshrrev_b32 v{vT+2}, 4, v{vLANE}
    v_xor_b32 v{vT+1}, v{vT+1}, v{vT+2}
    v_and_b32 v{vT+1}, 1, v{vT+1}
    v_sub_u32 v{vT+1}, v{vT+1}, 1
    v_and_b32 v{SEL}, v{vONE}, v{vT+1}
    v_mov_b32 v{SEL+1}, v{SEL}
    v_mov_b32 v{SEL+2}, v{SEL}
    v_mov_b32 v{SEL+3}, v{SEL}
    v_mov_b32 v{AX+3}, 0
    v_mov_b32 v{BX+3}, 0
    s_cmp_eq_u32 s{sG}, 0
    s_cbranch_scc0 L_mlp_g1
    ''')
    wq = [(b, c) for b in (1, 2, 3) for c in range(7)]
    sched = {}
    free = []
    def place(n):
        r = []
        for _ in range(n):
            if not wq: break
            bc = wq.pop(0); s = free.pop(0); wslot[bc] = s; r.append((bc, s))
        return r
    for c in range(2, 7):
        sl = xbase[c - 1] // SLOT; free += [sl, sl + 1]
        sched[('p0', c)] = place(3 if c >= 4 else 0)
    sl = xbase[6] // SLOT; free += [sl, sl + 1]
    sched[('p', 1)] = place(3)
    free += list(range(7)); sched[('p', 2)] = place(4); sched[('p', 3)] = place(3)
    free += [wslot[(1, c)] for c in range(7)]; sched[('p', 4)] = place(7)
    assert not wq
    def do_sched(ev):
        if ev[0] == 'p0' and ev[1] + NI < 7:
            c = ev[1] + NI
            dma_x(P, c, xbase[c], ('c', c)); dma_w(0, c, c, ('c', c))
        for (b, c), s in sched.get(ev, []): dma_w(b, c, s, ('w', b))
        if ev == ('p', 3): flag_prefetch(P, cfg)
        if ev == ('p', 1) and cfg.hook_early: cfg.hook_early(P)

    def tr(dst, areg, slot, s, tag):
        off = (slot % 8) * SLOT + s * 2048
        P.D(f'ds_read_b64_tr_b16 v[{dst}:{dst+1}], v{areg[slot//8]} offset:{off}', tag)
        P.D(f'ds_read_b64_tr_b16 v[{dst+2}:{dst+3}], v{areg[slot//8]} offset:{off+512}', tag)
    def xreads(c):
        for s in range(4):
            P.I(f'v_add_u32 v{vT+s%2}, {xbase[c]}, v{vXa[s]}')
            d = XF + 4 * (4 * c + s)
            P.D(f'ds_read_b128 v[{d}:{d+3}], v{vT+s%2}', ('x', 4 * c + s))
    def mfma(s):
        w = WF + 4 * (s % NWF); x = XF + 4 * s
        c = '0' if s == 0 else f'v[{ACC}:{ACC+15}]'
        P.I(f'v_mfma_f32_32x32x16_bf16 v[{ACC}:{ACC+15}], v[{w}:{w+3}], v[{x}:{x+3}], {c}')
    def mfma_cs(c):
        cc = '0' if c == 0 else f'v[{CSA}:{CSA+3}]'
        P.I(f'v_mfma_f32_16x16x32_bf16 v[{CSA}:{CSA+3}], v[{SEL}:{SEL+3}], v[{WCS}:{WCS+3}], {cc}')
    def m_phase(blk):
        AH = 3
        def rd(s):
            if s < 28: tr(WF + 4 * (s % NWF), vWa, wslot[(blk, s // 4)], s % 4, ('w', s))
        for s in range(AH): rd(s)
        for s in range(28):
            rd(s + AH)
            if s % 4 == 0: tr(WCS, vWc, wslot[(blk, s // 4)], 0, ('cs', s // 4))
            P.wait_lg(('w', s))
            mfma(s)
            if s % 4 == 2:
                P.wait_lg(('cs', s // 4)); mfma_cs(s // 4)
        P.D(f'ds_write_b32 v{vCSW}, v{CSA}', 'csw')
        P.lg0()
    def prep_consts(R, RI, M):
        t = vT
        P.I(f'''
        v_mul_f32 v{vK0}, {f32(GK0)}, v{R}
        v_mul_f32 v{t}, v{R}, v{R}
        v_mul_f32 v{t}, v{t}, v{R}
        v_mul_f32 v{vK1}, {f32(GK1)}, v{t}
        v_mov_b32 v{vRI}, v{RI}
        v_cmp_gt_u32 vcc, 32, v{vLANE}
        v_cndmask_b32 v{t}, 0, v{M}, vcc
        v_cndmask_b32 v{t+1}, 0, v{RI}, vcc
        v_sub_f32 v{t}, 0, v{t}
        v_cvt_pk_bf16_f32 v{BX+1}, v{t}, v{t+1}
        v_lshlrev_b32 v{t+2}, 16, v{BX+1}
        v_sub_f32 v{t+2}, v{t}, v{t+2}
        v_cvt_pk_bf16_f32 v{BX}, v{t}, v{t+2}
        v_and_b32 v{t+2}, 0xffff0000, v{BX+1}
        v_sub_f32 v{t+2}, v{t+1}, v{t+2}
        v_mov_b32 v{t}, 0
        v_cvt_pk_bf16_f32 v{BX+2}, v{t+2}, v{t}
        ''')
    def e_phase(tile, ev):
        P.D(f'ds_read_b128 v[{T4}:{T4+3}], v{vCSR}', 'csr')
        P.wait_vm('bias')
        P.I(f'v_lshlrev_b32 v{vT}, 16, v{BR+tile}\nv_mov_b32 v{AX+2}, v{BR+tile}')
        P.wait_lg('csr')
        P.I(f'''
        v_add_f32 v{T4}, v{T4}, v{T4+1}
        v_add_f32 v{T4+2}, v{T4+2}, v{T4+3}
        v_add_f32 v{T4}, v{T4}, v{T4+2}
        v_cvt_pk_bf16_f32 v{AX}, v{T4}, v{T4}
        v_lshlrev_b32 v{T4+1}, 16, v{AX}
        v_sub_f32 v{T4+1}, v{T4}, v{T4+1}
        v_cvt_pk_bf16_f32 v{AX+1}, v{T4+1}, v{vT}
        v_mfma_f32_32x32x16_bf16 v[{ACC}:{ACC+15}], v[{AX}:{AX+3}], v[{BX}:{BX+3}], v[{ACC}:{ACC+15}]
        ''')
        do_sched(ev)
        if tile < 3: P.I(f's_add_u32 s{sT1}, s{sHP}, {4096*tile}')
        else: P.I(f's_mov_b32 s{sT1}, s{sHSG}')
        for half in range(2):
            E = range(8 * half, 8 * half + 8)
            for e in E: P.I(f'v_mul_f32 v{U+e}, v{ACC+e}, v{ACC+e}')
            for e in E: P.I(f'v_fma_f32 v{U+e}, v{U+e}, v{vK1}, v{vK0}')
            for e in E: P.I(f'v_mul_f32 v{U+e}, v{ACC+e}, v{U+e}')
            for e in E: P.I(f'v_exp_f32 v{U+e}, v{U+e}')
            for e in E: P.I(f'v_fma_f32 v{U+e}, v{U+e}, v{vRI}, v{vRI}')
            for e in E: P.I(f'v_rcp_f32 v{U+e}, v{U+e}')
            for e in E: P.I(f'v_mul_f32 v{U+e}, v{ACC+e}, v{U+e}')
            for e in range(4): P.I(f'v_cvt_pk_bf16_f32 v{PK+4*half+e}, v{U+8*half+2*e}, v{U+8*half+2*e+1}')
            P.V(f'buffer_store_dwordx4 v[{PK+4*half}:{PK+4*half+3}], v{vHS}, s[{sWS}:{sWS+3}], s{sT1} offen offset:{1024*half}{cfg.sc}', 'st')

    st0 = P.state()
    for c in range(7):
        P.wait_vm(('c', c)); stamp(P, cfg, f'c{c}w'); P.I('s_barrier'); stamp(P, cfg, f'c{c}b')
        if c == 0: init_flag(P, cfg, vT, 'a')
        do_sched(('p0', c))
        xreads(c)
        for s in range(4): tr(WF + 4 * ((4 * c + s) % NWF), vWa, c, s, ('w', 4 * c + s))
        tr(WCS, vWc, c, 0, ('cs', c))
        for s in range(4):
            P.wait_lg(('x', 4 * c + s), ('w', 4 * c + s)); mfma(4 * c + s)
        P.wait_lg(('cs', c)); mfma_cs(c)
    P.D(f'ds_write_b32 v{vCSW}, v{CSA}', 'csw'); P.lg0()
    for p in range(1, 8):
        stamp(P, cfg, f'p{p}e')
        if p % 2 == 0: P.wait_vm(('w', p // 2))
        stamp(P, cfg, f'p{p}w')
        P.I('s_barrier')
        stamp(P, cfg, f'p{p}b')
        if p == 1:
            P.D(f'ds_read_b128 v[{ST}:{ST+3}], v{vSTA}', 'st'); P.wait_lg('st')
            prep_consts(ST, ST + 1, ST + 2)
        if p % 2: e_phase((p - 1) // 2, ('p', p))
        else:
            do_sched(('p', p)); m_phase(p // 2)
    stamp(P, cfg, 'end'); publish(P, cfg, 0, 'g0'); stamp(P, cfg, 'pub'); stamp_flush(P, cfg)
    P.I(f's_branch {after}')
    P.restore(st0)
    P.label('L_mlp_g1')
    for i in range(4): P.I(f'v_mov_b32 v{ST+i}, 0')
    for c in range(7):
        P.wait_vm(('c', c)); stamp(P, cfg, f'c{c}w'); P.I('s_barrier'); stamp(P, cfg, f'c{c}b')
        do_sched(('p0', c))
        xreads(c)
        for s in range(4):
            P.wait_lg(('x', 4 * c + s))
            for d in range(4):
                x = XF + 4 * (4 * c + s) + d
                P.I(f'v_dot2c_f32_bf16 v{ST+(d&1)}, v{x}, v{vONE}')
                P.I(f'v_dot2c_f32_bf16 v{ST+2+(d&1)}, v{x}, v{x}')
    t = vT
    P.I(f'''
    v_add_f32 v{ST}, v{ST}, v{ST+1}
    v_add_f32 v{ST+2}, v{ST+2}, v{ST+3}
    v_mov_b32 v{ST+1}, v{ST}
    v_mov_b32 v{ST+3}, v{ST+2}
    v_permlane32_swap_b32 v{ST}, v{ST+1}
    v_permlane32_swap_b32 v{ST+2}, v{ST+3}
    v_add_f32 v{ST}, v{ST}, v{ST+1}
    v_add_f32 v{ST+3}, v{ST+2}, v{ST+3}
    v_mul_f32 v{ST+2}, {f32(1.0/448)}, v{ST}
    v_mul_f32 v{ST+3}, {f32(1.0/448)}, v{ST+3}
    v_fma_f32 v{ST+3}, -v{ST+2}, v{ST+2}, v{ST+3}
    v_max_f32 v{ST+3}, 0, v{ST+3}
    v_add_f32 v{t}, {f32(EPS)}, v{ST+3}
    v_rsq_f32 v{t+1}, v{t}
    v_mul_f32 v{t+2}, v{t+1}, v{t+1}
    v_mul_f32 v{t+2}, v{t+2}, v{ST+3}
    v_add_f32 v{t+2}, {f32(EPS)}, v{t+2}
    v_rsq_f32 v{ST}, v{t+2}
    v_mul_f32 v{ST}, v{ST}, v{t+1}
    v_mul_f32 v{t}, v{t}, v{t+2}
    v_sqrt_f32 v{ST+1}, v{t}
    ''')
    P.D(f'ds_write_b128 v{vSTA}, v[{ST}:{ST+3}]', 'stw')
    prep_consts(ST, ST + 1, ST + 2)
    P.lg0()
    for p in range(1, 8):
        stamp(P, cfg, f'p{p}e')
        if p % 2 == 0: P.wait_vm(('w', p // 2))
        stamp(P, cfg, f'p{p}w')
        P.I('s_barrier')
        stamp(P, cfg, f'p{p}b')
        if p == 7: break
        if p % 2:
            do_sched(('p', p)); m_phase((p - 1) // 2)
        else: e_phase(p // 2 - 1, ('p', p))
    stamp(P, cfg, 'end'); publish(P, cfg, 0, 'g1'); stamp(P, cfg, 'pub'); stamp_flush(P, cfg)
    P.I(f's_branch {after}')

def att_path(P, cfg, after):
    sPP, sHH, sOB, sWC = 74, 75, 76, 77
    AREA = 40960; HALO = 3 * AREA
    AM = HALO + 14336
    HP_LDS = AM
    STR_LDS = AM + 1024
    CS_LDS = AM + 3072
    EX_LDS = AM + 4096
    vWD, vHD = 4, 5
    vXa = [6, 7]; vXs = [8, 9]; vWa = [10, 11]; vWh, vWq = 12, 13; vXh = [14, 15]
    ADV = vXa + vXs + vWa + [vWh, vWq]
    ACC = 16
    AH, CH, CQ, ONES = 64, 68, 72, 76
    FR = 80
    FSZ = 48
    ST = 176; vT = 180
    MKP, MKC, MKP0 = 192, 196, 200
    acc = lambda part, bb, t: ACC + 4 * (part * 4 + bb * 2 + t)
    xdma_addr(P, vT, vT + 1)
    P.I(f'''
    s_and_b32 s{sPP}, s{sWAVE}, 3
    s_lshr_b32 s{sHH}, s{sWAVE}, 2
    s_and_b32 s{sT2}, s{sWAVE}, 1
    s_lshl_b32 s{sT0}, s{sMT}, 7
    s_lshl_b32 s{sT1}, s{sT2}, 3
    s_add_u32 s{sT0}, s{sT0}, s{sT1}
    s_sub_u32 s{sT0}, s{sT0}, 16
    s_mul_i32 s{sT0}, s{sT0}, {XB}
    v_lshrrev_b32 v{vT}, 3, v{vLANE}
    v_mul_u32_u24 v{vT+2}, {XB}, v{vT}
    v_add_u32 v{vT+2}, s{sT0}, v{vT+2}
    v_lshrrev_b32 v{vT+1}, 4, v{vLANE}
    v_xor_b32 v{vT+1}, v{vT+1}, v{vLANE}
    s_lshl_b32 s{sT1}, s{sT2}, 2
    v_xor_b32 v{vT+1}, s{sT1}, v{vT+1}
    v_and_b32 v{vT+1}, 7, v{vT+1}
    v_lshl_add_u32 v{vHD}, v{vT+1}, 4, v{vT+2}
    s_lshl_b32 s{sT0}, s{sWAVE}, 3
    v_add_u32 v{vT}, s{sT0}, v{vT}
    v_mul_u32_u24 v{vT}, {WQS}, v{vT}
    v_lshrrev_b32 v{vT+1}, 3, v{vLANE}
    v_and_b32 v{vT+1}, 2, v{vT+1}
    v_xor_b32 v{vT+1}, s{sT1}, v{vT+1}
    v_xor_b32 v{vT+1}, v{vT+1}, v{vLANE}
    v_and_b32 v{vT+1}, 7, v{vT+1}
    v_min_u32 v{vT+1}, 6, v{vT+1}
    v_lshl_add_u32 v{vWD}, v{vT+1}, 4, v{vT}
    s_mul_i32 s{sWC}, s{sSUB}, 112
    s_waitcnt lgkmcnt(0)
    ''')
    srd(P, sX, 4, 2048 * XB)
    srd(P, sW, 6, 448 * WQS)
    P.I(f'''
    s_lshr_b32 s{sT0}, s{sWAVE}, 1
    s_lshl_b32 s{sT0}, s{sT0}, 7
    s_add_u32 m0, s{sWW}, {HALO}
    ''')
    P.V(f'buffer_load_dwordx4 v{vHD}, s[{sX}:{sX+3}], s{sT0} offen lds', 'halo')
    P.I(f'''
    s_cmp_lt_u32 s{sWAVE}, 6
    s_cselect_b32 s{sT1}, 512, 0
    s_cselect_b32 s{sT2}, 8192, 0
    s_add_u32 s{sT0}, s{sT0}, s{sT1}
    s_add_u32 s{sT2}, s{sT2}, s{sWW}
    s_add_u32 m0, s{sT2}, {HALO}
    ''')
    P.V(f'buffer_load_dwordx4 v{vHD}, s[{sX}:{sX+3}], s{sT0} offen lds', 'halo')
    def dma_chunk(c):
        a = (c % 3) * AREA
        for i in range(2):
            if a + 1024 * i - 128 * c >= 0:
                P.I(f's_add_u32 m0, s{sWX}, {a + 1024*i - 128*c}')
                P.V(f'buffer_load_dwordx4 v{vXD0+i}, s[{sX}:{sX+3}], 0 offen offset:{128*c} lds', ('c', c))
            else:
                P.I(f's_add_u32 m0, s{sWX}, {a + 1024*i}\ns_movk_i32 s{sT0}, {128*c}')
                P.V(f'buffer_load_dwordx4 v{vXD0+i}, s[{sX}:{sX+3}], s{sT0} offen lds', ('c', c))
        for p in range(3):
            P.I(f's_add_u32 m0, s{sWW}, {a + 16384 + p*8192}')
            P.I(f's_add_u32 s{sT0}, s{sWC}, {c*64*WQS + p*896}')
            P.V(f'buffer_load_dwordx4 v{vWD}, s[{sW}:{sW+3}], s{sT0} offen lds', ('c', c))
    for c in range(3): dma_chunk(c)
    stamp(P, cfg, 'issued')
    srd(P, sWS, 24, WS_SIZE); srd(P, sDBG, 22, 256)
    i15, g4 = vT + 4, vT + 5
    P.I(f'''
    v_and_b32 v{i15}, 15, v{vLANE}
    v_lshrrev_b32 v{g4}, 4, v{vLANE}
    v_lshrrev_b32 v{vT}, 1, v{i15}
    v_xor_b32 v{vT}, v{vT}, v{g4}
    v_lshlrev_b32 v{vT}, 4, v{vT}
    v_lshl_add_u32 v{vT}, v{i15}, 7, v{vT}
    v_add_u32 v{vXh[0]}, {HALO}, v{vT}
    v_xor_b32 v{vXh[1]}, 64, v{vXh[0]}
    s_lshl_b32 s{sT0}, s{sPP}, 12
    v_add_u32 v{vXa[0]}, s{sT0}, v{vT}
    v_xor_b32 v{vXa[1]}, 64, v{vXa[0]}
    s_lshl_b32 s{sT0}, s{sHH}, 11
    v_add_u32 v{vXs[0]}, s{sT0}, v{vXa[0]}
    v_add_u32 v{vXs[1]}, s{sT0}, v{vXa[1]}
    v_bfe_u32 v{vT}, v{vLANE}, 2, 2
    v_lshl_add_u32 v{vT+1}, v{g4}, 3, v{vT}
    v_lshlrev_b32 v{vT+1}, 7, v{vT+1}
    v_and_b32 v{vT}, 2, v{vT}
    v_and_b32 v{vT+2}, 1, v{g4}
    v_lshl_add_u32 v{vT}, v{vT+2}, 2, v{vT}
    v_lshlrev_b32 v{vT}, 4, v{vT}
    v_and_b32 v{vT+2}, 3, v{vLANE}
    v_lshlrev_b32 v{vT+2}, 3, v{vT+2}
    s_mul_i32 s{sT0}, s{sHH}, 56
    v_add_u32 v{vT+2}, s{sT0}, v{vT+2}
    v_xor_b32 v{vT+3}, v{vT+2}, v{vT}
    v_add_u32 v{vWa[0]}, v{vT+1}, v{vT+3}
    v_add_u32 v{vT+2}, 32, v{vT+2}
    v_xor_b32 v{vT+3}, v{vT+2}, v{vT}
    v_add_u32 v{vWa[1]}, v{vT+1}, v{vT+3}
    s_and_b32 s{sT0}, s{sPP}, 1
    s_cmp_eq_u32 s{sT0}, 0
    s_cselect_b64 vcc, -1, 0
    v_cndmask_b32 v{vT}, v{vWa[1]}, v{vWa[0]}, vcc
    s_lshr_b32 s{sT0}, s{sPP}, 1
    s_lshl_b32 s{sT1}, s{sT0}, 13
    s_lshl_b32 s{sT0}, s{sT0}, 12
    v_add_u32 v{vWh}, s{sT1}, v{vT}
    v_add_u32 v{vWq}, s{sT0}, v{vT}
    ''')
    for i in range(4): P.I(f'v_mov_b32 v{ONES+i}, 0x3f803f80\nv_mov_b32 v{ST+i}, 0')
    P.I(f'v_lshlrev_b32 v{vT}, 2, v{g4}\nv_sub_u32 v{vT}, v{i15}, v{vT}\nv_mov_b32 v{vT+3}, {f32(NEG)}')
    for v in range(4):
        P.I(f'''
        v_subrev_u32 v{vT+1}, {v}, v{vT}
        v_and_b32 v{vT+2}, 0xfffffff1, v{vT+1}
        v_cmp_eq_u32 vcc, 0, v{vT+2}
        v_cndmask_b32 v{MKC+v}, v{vT+3}, 0, vcc
        v_add_u32 v{vT+1}, 16, v{vT+1}
        v_and_b32 v{vT+2}, 0xfffffff1, v{vT+1}
        v_cmp_eq_u32 vcc, 0, v{vT+2}
        v_cndmask_b32 v{MKP+v}, v{vT+3}, 0, vcc
        ''')
    P.I(f'''
    s_or_b32 s{sT0}, s{sMT}, s{sPP}
    s_cmp_eq_u32 s{sT0}, 0
    s_cselect_b64 vcc, -1, 0
    ''')
    for v in range(4): P.I(f'v_cndmask_b32 v{MKP0+v}, v{MKP+v}, v{vT+3}, vcc')
    P.I(f'''
    s_lshl_b32 s{sT0}, s{sMT}, 2
    s_add_u32 s{sT0}, s{sT0}, s{sPP}
    s_lshl_b32 s{sT0}, s{sT0}, 15
    s_lshl_b32 s{sT1}, s{sSUB}, 1
    s_add_u32 s{sT1}, s{sT1}, s{sHH}
    s_lshl_b32 s{sT1}, s{sT1}, 11
    s_add_u32 s{sOB}, s{sT0}, s{sT1}
    s_add_u32 s{sOB}, s{sOB}, {O_OFF}
    ''')
    def reduce4(a, tmp):
        P.I(f'''
        v_mov_b32 v{tmp}, v{a}
        v_permlane16_swap_b32 v{a}, v{tmp}
        v_add_f32 v{a}, v{a}, v{tmp}
        v_mov_b32 v{tmp}, v{a}
        v_permlane32_swap_b32 v{a}, v{tmp}
        v_add_f32 v{a}, v{a}, v{tmp}
        ''')
    def finish_stats(sm, sq, r, mr, t):
        P.I(f'''
        v_mul_f32 v{sm}, {f32(1.0/448)}, v{sm}
        v_mul_f32 v{sq}, {f32(1.0/448)}, v{sq}
        v_fma_f32 v{sq}, -v{sm}, v{sm}, v{sq}
        v_max_f32 v{sq}, 0, v{sq}
        v_add_f32 v{t}, {f32(EPS)}, v{sq}
        v_rsq_f32 v{r}, v{t}
        v_mul_f32 v{mr}, v{sm}, v{r}
        ''')
    P.wait_vm('halo'); P.I('s_barrier')
    P.I(f'''
    s_and_b32 s{sT0}, s{sWAVE}, 1
    s_lshl_b32 s{sT0}, s{sT0}, 6
    s_lshr_b32 s{sT1}, s{sWAVE}, 1
    s_lshl_b32 s{sT1}, s{sT1}, 11
    v_xor_b32 v{vT}, s{sT0}, v{vXh[0]}
    v_add_u32 v{vT}, s{sT1}, v{vT}
    s_cmp_lt_u32 s{sWAVE}, 6
    s_cselect_b32 s{sT1}, 8192, 0
    s_cselect_b32 s{sT2}, 1.0, 0
    v_add_u32 v{vT+1}, s{sT1}, v{vT}
    ''')
    P.D(f'ds_read_b128 v[{FR}:{FR+3}], v{vT}', 'h0'); P.D(f'ds_read_b128 v[{FR+4}:{FR+7}], v{vT+1}', 'h1')
    P.lg0()
    for k in range(2):
        for d in range(4):
            P.I(f'v_dot2c_f32_bf16 v{ST+k}, v{FR+4*k+d}, v{ONES}\nv_dot2c_f32_bf16 v{ST+2+k}, v{FR+4*k+d}, v{FR+4*k+d}')
    P.I(f'v_fma_f32 v{ST}, v{ST+1}, s{sT2}, v{ST}\nv_fma_f32 v{ST+1}, v{ST+3}, s{sT2}, v{ST+2}')
    reduce4(ST, vT); reduce4(ST + 1, vT)
    P.I(f'''
    s_lshl_b32 s{sT0}, s{sWAVE}, 3
    s_add_u32 s{sT0}, s{sT0}, {HP_LDS}
    v_lshlrev_b32 v{vT}, 6, v{i15}
    v_add_u32 v{vT}, s{sT0}, v{vT}
    ''')
    P.D(f'ds_write_b64 v{vT}, v[{ST}:{ST+1}]', 'hw')
    for i in range(4): P.I(f'v_mov_b32 v{ST+i}, 0')
    P.I(f's_cmp_lt_u32 s{sPP}, 2\ns_cbranch_scc0 L_att_v')
    st0 = P.state()

    def fr(set_, k): return FR + FSZ * set_ + 4 * k
    def reads(n):
        c, s2 = divmod(n, 2); se = n % 2; L = []
        def b128(k, a, off): L.append(lambda: P.D(f'ds_read_b128 v[{fr(se,k)}:{fr(se,k)+3}], v{a} offset:{off}', ('r', n)))
        def trr(k, a, off):
            L.append(lambda: P.D(f'ds_read_b64_tr_b16 v[{fr(se,k)}:{fr(se,k)+1}], v{a} offset:{off}', ('r', n)))
            L.append(lambda: P.D(f'ds_read_b64_tr_b16 v[{fr(se,k)+2}:{fr(se,k)+3}], v{a} offset:{off+512}', ('r', n)))
        b128(0, vXa[s2], 0); b128(1, vXa[s2], 2048)
        for p in range(3):
            for t in range(2): trr(4 + 2 * p + t, vWa[t], 16384 + p * 8192 + s2 * 4096)
        b128(2, vXh[s2], c * 2048); trr(10, vWh, 16384 + 8192 + s2 * 4096)
        b128(3, vXs[s2], 0)
        if s2 == 0: trr(11, vWq, 16384)
        return L
    def mf(d, a, b, first):
        c = '0' if first else f'v[{d}:{d+3}]'
        return f'v_mfma_f32_16x16x32_bf16 v[{d}:{d+3}], v[{a}:{a+3}], v[{b}:{b+3}], {c}'
    def body(vvar):
        P.wait_vm(('c', 0)); P.lg0(); stamp(P, cfg, 'c0w'); P.I('s_barrier'); stamp(P, cfg, 'c0b')
        for f in reads(0): f()
        for n in range(14):
            c, s2 = divmod(n, 2); se = n % 2; first = n == 0
            P.lg0()
            if s2 == 1 and c < 6:
                stamp(P, cfg, f'c{c+1}e'); P.wait_vm(('c', c + 1)); stamp(P, cfg, f'c{c+1}w'); P.I('s_barrier'); stamp(P, cfg, f'c{c+1}b')
                if c + 3 < 7: dma_chunk(c + 3)
                if c == 4: flag_prefetch(P, cfg)
                if c == 3 and cfg.hook_early: cfg.hook_early(P)
                delta = AREA if (c + 1) % 3 else -2 * AREA
                for a in ADV: P.I(f'v_add_u32 v{a}, {delta & 0xffffffff:#x}, v{a}')
            if n == 1:
                P.I(f'v_lshlrev_b32 v{vT}, 6, v{i15}\nv_add_u32 v{vT}, {HP_LDS}, v{vT}')
                for k in range(4): P.D(f'ds_read_b128 v[{204+4*k}:{204+4*k+3}], v{vT} offset:{16*k}', 'hp')
                P.lg0()
                for k in (0, 1):
                    P.I(f'v_add_f32 v{204+k}, v{204+k}, v{206+k}\nv_add_f32 v{208+k}, v{208+k}, v{210+k}\nv_add_f32 v{212+k}, v{212+k}, v{214+k}\nv_add_f32 v{216+k}, v{216+k}, v{218+k}')
                    P.I(f'v_add_f32 v{204+k}, v{204+k}, v{208+k}\nv_add_f32 v{212+k}, v{212+k}, v{216+k}\nv_add_f32 v{204+k}, v{204+k}, v{212+k}')
                finish_stats(204, 205, 206, 207, vT + 1)
                P.I(f'v_lshlrev_b32 v{vT}, 2, v{i15}\nv_add_u32 v{vT}, {STR_LDS}, v{vT}')
                P.D(f'ds_write_b32 v{vT}, v206', 'x'); P.D(f'ds_write_b32 v{vT}, v207 offset:1024', 'x')
            nxt = reads(n + 1) if n < 13 else []
            M = []
            for p in range(3):
                for t in range(2):
                    for bb in range(2):
                        w = fr(se, 4 + 2 * p + t); x = fr(se, bb)
                        M.append(mf(acc(p, bb, t), w, x, first) if p < 2 else mf(acc(p, bb, t), x, w, first))
            M.append(mf(AH, fr(se, 2), fr(se, 10), first) if vvar else mf(AH, fr(se, 10), fr(se, 2), first))
            M.append(mf(CH, ONES, fr(se, 10), first))
            if s2 == 0: M.append(mf(CQ, ONES, fr(se, 11), first))
            for i, m in enumerate(M):
                P.I(m)
                for _ in range(2):
                    if nxt: nxt.pop(0)()
            assert not nxt
            for d in range(4):
                x = fr(se, 3) + d
                P.I(f'v_dot2c_f32_bf16 v{ST+(d&1)}, v{x}, v{ONES}\nv_dot2c_f32_bf16 v{ST+2+(d&1)}, v{x}, v{x}')
        stamp(P, cfg, 'loop')
        P.I(f'v_add_f32 v{ST}, v{ST}, v{ST+1}\nv_add_f32 v{ST+1}, v{ST+2}, v{ST+3}')
        reduce4(ST, vT); reduce4(ST + 1, vT)
        finish_stats(ST, ST + 1, ST + 2, ST + 3, vT)
        P.I(f'''
        s_lshl_b32 s{sT0}, s{sPP}, 1
        s_add_u32 s{sT0}, s{sT0}, s{sHH}
        s_lshl_b32 s{sT0}, s{sT0}, 6
        s_add_u32 s{sT0}, s{sT0}, {STR_LDS + 64}
        v_lshlrev_b32 v{vT+1}, 2, v{i15}
        v_add_u32 v{vT}, s{sT0}, v{vT+1}
        ''')
        P.D(f'ds_write_b32 v{vT}, v{ST+2}', 'x'); P.D(f'ds_write_b32 v{vT}, v{ST+3} offset:1024', 'x')
        P.I(f'''
        s_lshl_b32 s{sT0}, s{sHH}, 9
        s_lshl_b32 s{sT1}, s{sPP}, 6
        s_add_u32 s{sT0}, s{sT0}, {CS_LDS}
        s_add_u32 s{sT1}, s{sT1}, s{sT0}
        v_add_u32 v{vT}, s{sT1}, v{vT+1}
        ''')
        P.D(f'ds_write_b32 v{vT}, v{CQ}', 'x'); P.D(f'ds_write_b32 v{vT}, v{CH} offset:256', 'x')
        P.lg0(); P.I('s_barrier'); stamp(P, cfg, 'e1')
        F = FR
        rL, mL = F, F + 3
        rR, mR = F + 8, F + 20
        csR = F + 32
        csL = F + 56
        csH = F + 58
        P.I(f'''
        s_lshl_b32 s{sT1}, s{sPP}, 7
        s_add_u32 s{sT1}, s{sT1}, {STR_LDS + 64}
        v_add_u32 v{vT}, s{sT1}, v{vT+1}
        v_add_u32 v{vT+2}, {STR_LDS}, v{vT+1}
        v_lshlrev_b32 v{vT+3}, 4, v{g4}
        v_add_u32 v{vT+6}, s{sT1}, v{vT+3}
        v_add_u32 v{vT+7}, {STR_LDS}, v{vT+3}
        v_add_u32 v{vT+8}, s{sT0}, v{vT+3}
        v_add_u32 v{vT+9}, s{sT0}, v{vT+1}
        s_lshl_b32 s{sT1}, s{sPP}, 6
        v_add_u32 v{vT+10}, s{sT1}, v{vT+9 if vvar else vT+8}
        ''')
        for bb in range(2):
            P.D(f'ds_read_b32 v{rL+bb}, v{vT} offset:{64*bb}', 'a'); P.D(f'ds_read_b32 v{mL+bb}, v{vT} offset:{1024+64*bb}', 'a')
        for e in range(6): P.D(f'ds_read_b128 v[{csR+4*e}:{csR+4*e+3}], v{vT+8} offset:{64*e}', 'a')
        P.lg0()
        for bb in range(2):
            P.D(f'ds_read_b128 v[{rR+4*bb}:{rR+4*bb+3}], v{vT+6} offset:{64*bb}', 'b'); P.D(f'ds_read_b128 v[{mR+4*bb}:{mR+4*bb+3}], v{vT+6} offset:{1024+64*bb}', 'b')
        for t in range(2): P.D(f'ds_read_b32 v{csL+t}, v{vT+9} offset:{64*(6+t)}', 'b')
        if vvar:
            P.D(f'ds_read_b128 v[{rR+8}:{rR+11}], v{vT+7}', 'b'); P.D(f'ds_read_b128 v[{mR+8}:{mR+11}], v{vT+7} offset:1024', 'b')
            P.D(f'ds_read_b32 v{csH}, v{vT+10} offset:256', 'b')
        else:
            P.D(f'ds_read_b32 v{rL+2}, v{vT+2}', 'b'); P.D(f'ds_read_b32 v{mL+2}, v{vT+2} offset:1024', 'b')
            P.D(f'ds_read_b128 v[{csH}:{csH+3}], v{vT+10} offset:256', 'b')
        for e in range(8): P.I(f'v_add_f32 v{csR+e}, v{csR+e}, v{csR+8+e}')
        QOP = F + 64; KOP = F + 72
        VOP = F + 84
        qs = 28 ** -0.5 * LOG2E
        rq, mq = 204, 208
        P.I(f'v_cmp_gt_u32 vcc, 48, v{vLANE}')
        for bb in range(2):
            P.I(f'''
            v_mul_f32 v{rq+2*bb}, {f32(qs)}, v{rL+bb}
            v_mul_f32 v{mq+2*bb}, {f32(qs)}, v{mL+bb}
            v_cndmask_b32 v{rq+2*bb+1}, 0, v{rq+2*bb}, vcc
            v_cndmask_b32 v{mq+2*bb+1}, 0, v{mq+2*bb}, vcc
            ''')
        def fold_T(a, r, m, cs, dst):
            for v in range(4): P.I(f'v_mul_f32 v{vT+v}, v{m}, v{cs+v}')
            for v in range(4): P.I(f'v_fma_f32 v{a+v}, v{a+v}, v{r}, -v{vT+v}')
            P.I(f'v_cvt_pk_bf16_f32 v{dst}, v{a}, v{a+1}\nv_cvt_pk_bf16_f32 v{dst+1}, v{a+2}, v{a+3}')
        def fold_N(a, r, m, cs, dst):
            for v in range(4): P.I(f'v_mul_f32 v{vT+v}, v{m+v}, v{cs}')
            for v in range(4): P.I(f'v_fma_f32 v{a+v}, v{a+v}, v{r+v}, -v{vT+v}')
            P.I(f'v_cvt_pk_bf16_f32 v{dst}, v{a}, v{a+1}\nv_cvt_pk_bf16_f32 v{dst+1}, v{a+2}, v{a+3}')
        P.I(f'''
        s_mul_i32 s{sT0}, s{sHH}, 10240
        s_add_u32 s{sT0}, s{sT0}, {EX_LDS}
        s_lshl_b32 s{sT1}, s{sPP}, 11
        s_add_u32 s{sT1}, s{sT1}, s{sT0}
        v_lshlrev_b32 v{vT+6}, 4, v{vLANE}
        v_add_u32 v{vT+7}, s{sT1}, v{vT+6}
        s_and_b32 s{sT1}, s{sPP}, 1
        s_lshl_b32 s{sT1}, s{sT1}, 3
        s_add_u32 s{sT1}, s{sT1}, s{sT0}
        v_add_u32 v{vT+8}, s{sT1}, v{vT+6}
        ''')
        for t in range(2): fold_T(acc(1, 1, t), rL + 1, mL + 1, csR + 16 + 4 * t, KOP + 8 + 2 * t)
        P.D(f'ds_write_b128 v{vT+7}, v[{KOP+8}:{KOP+11}] offset:2048', 'x')
        P.wait_lg('b')
        for t in range(2): fold_N(acc(2, 1, t), rR + 4, mR + 4, csL + t, VOP + 6 * t + 4)
        for t in range(2): P.D(f'ds_write_b64 v{vT+7}, v[{VOP+6*t+4}:{VOP+6*t+5}] offset:{2048+1024+8*t}', 'x')
        if vvar:
            fold_N(AH, rR + 8, mR + 8, csH, vT + 10)
            P.D(f'ds_write_b64 v{vT+8}, v[{vT+10}:{vT+11}] offset:1024', 'x')
        else:
            fold_T(AH, rL + 2, mL + 2, csH, vT + 10)
            P.D(f'ds_write_b64 v{vT+8}, v[{vT+10}:{vT+11}]', 'x')
        for t in range(2): fold_T(acc(1, 0, t), rL, mL, csR + 16 + 4 * t, KOP + 4 + 2 * t)
        for t in range(2): fold_N(acc(2, 0, t), rR, mR, csL + t, VOP + 6 * t + 2)
        P.lg0(); P.I('s_barrier'); stamp(P, cfg, 'e2')
        P.D(f'ds_read_b128 v[{KOP}:{KOP+3}], v{vT+7}', 'e')
        for t in range(2): P.D(f'ds_read_b64 v[{VOP+6*t}:{VOP+6*t+1}], v{vT+7} offset:{1024+8*t}', 'e')
        for bb in range(2):
            for t in range(2): fold_T(acc(0, bb, t), rq + 2 * bb + t, mq + 2 * bb + t, csR + 4 * t, QOP + 4 * bb + 2 * t)
        vO = vT + 9
        P.I(f'''
        v_lshlrev_b32 v{vO}, 9, v{g4}
        v_lshl_add_u32 v{vO}, v{i15}, 4, v{vO}
        ''')
        P.lg0()
        S = ACC
        for bb in range(2):
            mp = MKP0 if bb == 0 else MKP
            P.I(f'v_mfma_f32_16x16x32_bf16 v[{S+8*bb}:{S+8*bb+3}], v[{KOP+4*bb}:{KOP+4*bb+3}], v[{QOP+4*bb}:{QOP+4*bb+3}], v[{mp}:{mp+3}]')
            P.I(f'v_mfma_f32_16x16x32_bf16 v[{S+8*bb+4}:{S+8*bb+7}], v[{KOP+4*bb+4}:{KOP+4*bb+7}], v[{QOP+4*bb}:{QOP+4*bb+3}], v[{MKC}:{MKC+3}]')
        PP = ACC + 16; OO = ACC + 24
        mx = [vT, vT + 2]
        for bb in range(2):
            s = S + 8 * bb; m = mx[bb]
            P.I(f'''
            v_max3_f32 v{m}, v{s}, v{s+1}, v{s+2}
            v_max3_f32 v{m+1}, v{s+3}, v{s+4}, v{s+5}
            v_max3_f32 v{m}, v{m}, v{s+6}, v{s+7}
            v_max_f32 v{m}, v{m}, v{m+1}
            v_mov_b32 v{m+1}, v{m}
            ''')
        for bb in range(2): P.I(f'v_permlane16_swap_b32 v{mx[bb]}, v{mx[bb]+1}')
        for bb in range(2): P.I(f'v_max_f32 v{mx[bb]}, v{mx[bb]}, v{mx[bb]+1}\nv_mov_b32 v{mx[bb]+1}, v{mx[bb]}')
        for bb in range(2): P.I(f'v_permlane32_swap_b32 v{mx[bb]}, v{mx[bb]+1}')
        for bb in range(2): P.I(f'v_max_f32 v{mx[bb]}, v{mx[bb]}, v{mx[bb]+1}')
        for bb in range(2):
            s = S + 8 * bb
            for v in range(8): P.I(f'v_sub_f32 v{s+v}, v{s+v}, v{mx[bb]}')
            for v in range(8): P.I(f'v_exp_f32 v{s+v}, v{s+v}')
            for v in range(4): P.I(f'v_cvt_pk_bf16_f32 v{PP+4*bb+v}, v{s+2*v}, v{s+2*v+1}')
        for bb in range(2):
            o = OO + 12 * bb; p = PP + 4 * bb
            P.I(f'v_mfma_f32_16x16x32_bf16 v[{o+8}:{o+11}], v[{ONES}:{ONES+3}], v[{p}:{p+3}], 0')
            for t in range(2):
                a = VOP + 6 * t + 2 * bb
                P.I(f'v_mfma_f32_16x16x32_bf16 v[{o+4*t}:{o+4*t+3}], v[{a}:{a+3}], v[{p}:{p+3}], 0')
        for bb in range(2):
            o = OO + 12 * bb
            P.I(f'v_rcp_f32 v{o+8}, v{o+8}')
            P.I(f'v_cndmask_b32 v{o+9}, 0, v{o+8}, vcc')
            for v in range(4): P.I(f'v_mul_f32 v{o+v}, v{o+v}, v{o+8}')
            for v in range(4): P.I(f'v_mul_f32 v{o+4+v}, v{o+4+v}, v{o+9}')
            for v in range(4): P.I(f'v_cvt_pk_bf16_f32 v{PP+4*bb+v}, v{o+2*v}, v{o+2*v+1}')
            P.V(f'buffer_store_dwordx4 v[{PP+4*bb}:{PP+4*bb+3}], v{vO}, s[{sWS}:{sWS+3}], s{sOB} offen offset:{256*bb}{cfg.sc}', 'st')
        stamp(P, cfg, 'end'); publish(P, cfg, 1, 'av' if vvar else 'ak'); stamp(P, cfg, 'pub'); stamp_flush(P, cfg)
        P.I(f's_branch {after}')
    body(False)
    P.restore(st0)
    P.label('L_att_v')
    body(True)

def stage2(P, cfg, endlabel):
    sM2, sN2, sKQ, sTT, sHB, sOB2, sLD, sRW = 74, 75, 76, 77, 78, 79, 27, 26
    vWD, vH = 2, 3; vA = [4, 5]; vT = 6
    WR = 16
    AM, AS = 144, 176
    HR = 208; NH = 8
    XR = 240; B2R = 244
    WL = 16
    NR = 16
    P.I(f'''
    s_cmp_ge_u32 s{sJ}, 28
    s_cbranch_scc1 {endlabel}
    s_mul_i32 s{sT0}, s{sJ}, 37
    s_lshr_b32 s{sT0}, s{sT0}, 8
    s_mul_i32 s{sT1}, s{sT0}, 7
    s_sub_u32 s{sN2}, s{sJ}, s{sT1}
    s_lshl_b32 s{sM2}, s{sXCD}, 2
    s_add_u32 s{sM2}, s{sM2}, s{sT0}
    s_lshr_b32 s{sKQ}, s{sWAVE}, 1
    s_and_b32 s{sTT}, s{sWAVE}, 1
    v_lshrrev_b32 v{vT}, 3, v{vLANE}
    s_lshl_b32 s{sT0}, s{sTT}, 3
    v_add_u32 v{vT}, s{sT0}, v{vT}
    v_mul_u32_u24 v{vT}, {XB}, v{vT}
    v_lshrrev_b32 v{vT+1}, 2, v{vLANE}
    v_and_b32 v{vT+1}, 4, v{vT+1}
    v_xor_b32 v{vT+1}, v{vT+1}, v{vLANE}
    v_and_b32 v{vT+1}, 7, v{vT+1}
    v_lshl_add_u32 v{vWD}, v{vT+1}, 4, v{vT}
    s_lshl_b32 s{sT0}, s{sN2}, 7
    v_add_u32 v{vWD}, s{sT0}, v{vWD}
    v_lshlrev_b32 v{vH}, 4, v{vLANE}
    ''')
    if not cfg.fused:
        P.I('s_waitcnt lgkmcnt(0)')
        srd(P, sX, 4, 2048 * XB); srd(P, sWS, 24, WS_SIZE)
    srd(P, sWO, 8, 448 * XB); srd(P, sW2, 16, 1792 * XB); srd(P, sOUT, 20, 2048 * XB); srd(P, sB2, 18, 896)
    P.I(f'''
    v_lshrrev_b32 v{vT}, 5, v{vLANE}
    v_lshlrev_b32 v{vT}, 2, v{vT}
    v_bfe_u32 v{vT+1}, v{vLANE}, 2, 2
    v_add_u32 v{vT}, v{vT}, v{vT+1}
    v_lshlrev_b32 v{vT}, 7, v{vT}
    v_and_b32 v{vT+1}, 16, v{vLANE}
    v_lshlrev_b32 v{vT+1}, 1, v{vT+1}
    v_and_b32 v{vT+2}, 3, v{vLANE}
    v_lshl_add_u32 v{vT+1}, v{vT+2}, 3, v{vT+1}
    v_and_b32 v{vT+2}, 8, v{vLANE}
    v_lshlrev_b32 v{vT+2}, 3, v{vT+2}
    v_xor_b32 v{vT+1}, v{vT+1}, v{vT+2}
    v_add_u32 v{vT}, v{vT}, v{vT+1}
    s_lshl_b32 s{sT0}, s{sKQ}, 15
    v_add_u32 v{vA[0]}, s{sT0}, v{vT}
    v_xor_b32 v{vA[1]}, 64, v{vA[0]}
    s_lshl_b32 s{sT1}, s{sTT}, 10
    s_add_u32 s{sLD}, s{sT0}, s{sT1}
    s_lshl_b32 s{sT0}, s{sM2}, 1
    s_add_u32 s{sT0}, s{sT0}, s{sTT}
    s_mul_i32 s{sHB}, s{sT0}, {112*1024}
    s_lshl_b32 s{sOB2}, s{sT0}, 15
    s_add_u32 s{sOB2}, s{sOB2}, {O_OFF}
    s_mul_i32 s{sT1}, s{sKQ}, {36*1024}
    s_sub_u32 s{sT1}, s{sT1}, {32*1024}
    s_mul_i32 s{sRW}, s{sKQ}, {576*XB}
    s_sub_u32 s{sRW}, s{sRW}, {512*XB}
    ''')
    vO = 248
    P.I(f'''
    v_and_b32 v{vT+1}, 31, v{vLANE}
    s_lshl_b32 s{sT0}, s{sT0}, 5
    v_add_u32 v{vT+1}, s{sT0}, v{vT+1}
    v_mul_u32_u24 v{vT+1}, {XB}, v{vT+1}
    v_lshrrev_b32 v{vT+2}, 5, v{vLANE}
    v_lshlrev_b32 v{vT+2}, 4, v{vT+2}
    s_lshl_b32 s{sT0}, s{sN2}, 7
    s_lshl_b32 s{sT2}, s{sKQ}, 5
    s_add_u32 s{sT0}, s{sT0}, s{sT2}
    v_add_u32 v{vT+2}, s{sT0}, v{vT+2}
    v_add_u32 v{vO}, v{vT+1}, v{vT+2}
    s_cmp_eq_u32 s{sKQ}, 0
    s_cbranch_scc1 L_s2_k0
    s_add_u32 s{sHB}, s{sHB}, s{sT1}
    ''')
    st0 = P.state()
    def dma(srdn, rowoff_expr_imm, rowreg, lds_imm, tag):
        P.I(f's_add_u32 m0, s{sLD}, {lds_imm}')
        if rowreg is None: P.I(f's_mov_b32 s{sT0}, {rowoff_expr_imm}')
        else: P.I(f's_add_u32 s{sT0}, s{rowreg}, {rowoff_expr_imm}')
        P.V(f'buffer_load_dwordx4 v{vWD}, s[{srdn}:{srdn+3}], s{sT0} offen lds', tag)
    def body(k0):
        lab = 'k0' if k0 else 'kn'
        steps = []
        if k0:
            for i in range(4): steps.append(('h', i * 1024, 176 + 16 * i, 1024))
            for e in range(32):
                row = 28 * (e >> 1) + 8 * (e & 1)
                steps.append(('o', e * 1024, row if e < 12 else row - 168, 2048))
            for ii in range(11): dma(sWO, 16 * ii * XB, None, 2048 * ii, 'R')
            for ii in range(4): dma(sW2, 16 * ii * XB, None, 2048 * (11 + ii), 'R')
        else:
            for i in range(36): steps.append(('h', i * 1024, 16 * i if i < NR else 16 * (i - NR), 1024))
            for ii in range(16): dma(sW2, 16 * ii * XB, sRW, 2048 * ii, 'R')
        P.V(f'buffer_load_dwordx4 v[{XR}:{XR+3}], v{vO}, s[{sX}:{sX+3}], 0 offen', 'xr')
        P.V(f'buffer_load_dwordx4 v[{B2R}:{B2R+3}], v{vT+2}, s[{sB2}:{sB2+3}], 0 offen', 'xr')
        def hload(i):
            if i >= 36: return
            kind, go, _, _ = steps[i]
            base = sHB if kind == 'h' else sOB2
            d = HR + 4 * (i % NH)
            P.I(f's_add_u32 s{sT1}, s{base}, {go & ~4095}')
            P.V(f'buffer_load_dwordx4 v[{d}:{d+3}], v{vH}, s[{sWS}:{sWS+3}], s{sT1} offen offset:{go & 4095}{cfg.sc}', ('h', i))
        if not cfg.fused:
            for i in range(NH): hload(i)
        stamp(P, cfg, 'Riss'); P.wait_vm('R'); stamp(P, cfg, 'Rw'); P.I('s_barrier'); stamp(P, cfg, 'Rb')
        def trr(dst, i, tag):
            _, _, row, dl = steps[i]
            for j in range(2):
                P.D(f'ds_read_b64_tr_b16 v[{dst+4*j}:{dst+4*j+1}], v{vA[j]} offset:{row*128}', tag)
                P.D(f'ds_read_b64_tr_b16 v[{dst+4*j+2}:{dst+4*j+3}], v{vA[j]} offset:{row*128+dl}', tag)
        for i in range(NR): trr(WR + 8 * i, i, 'wr')
        if not k0:
            P.I(f'''
            s_lshl_b32 s{sT0}, s{sKQ}, 13
            s_sub_u32 s{sT0}, s{sT0}, 4096
            s_add_u32 s{sLD}, s{sLD}, s{sT0}
            ''')
        P.lg0(); P.I('s_barrier'); stamp(P, cfg, 'trb')
        if not k0: P.I(f'v_add_u32 v{vA[0]}, s{sT0}, v{vA[0]}\nv_add_u32 v{vA[1]}, s{sT0}, v{vA[1]}')
        if k0:
            for ii in range(18): dma(sWO, (168 + 16 * ii) * XB, None, 2048 * ii, 'L')
        else:
            for ii in range(20): dma(sW2, (256 + 16 * ii) * XB, sRW, 2048 * ii, 'L')
        stamp(P, cfg, 'Liss')
        if cfg.fused:
            poll(P, 0, 'h', k0, True)
            n0 = 4 if k0 else NH
            for i in range(n0): hload(i)
            if k0:
                poll(P, 1, 'o', True, False)
                for i in range(4, NH): hload(i)
        stamp(P, cfg, 'go')
        seen = {'h': False, 'o': False}
        AHL = 2
        def wl(i): return WL + 8 * ((i - NR) % 4)
        for i in range(36):
            kind = steps[i][0]
            a = AM if kind == 'h' else AS
            if i == NR - AHL:
                stamp(P, cfg, 'Le'); P.wait_vm('L'); P.I('s_barrier'); stamp(P, cfg, 'Lb')
            if NR <= i + AHL < 36: trr(wl(i + AHL), i + AHL, ('wl', i + AHL))
            w = WR + 8 * i if i < NR else wl(i)
            if i >= NR: P.wait_lg(('wl', i))
            P.wait_vm(('h', i))
            b = HR + 4 * (i % NH)
            for j in range(2):
                c = f'v[{a+16*j}:{a+16*j+15}]' if seen[kind] else '0'
                P.I(f'v_mfma_f32_32x32x16_bf16 v[{a+16*j}:{a+16*j+15}], v[{w+4*j}:{w+4*j+3}], v[{b}:{b+3}], {c}')
            seen[kind] = True
            hload(i + NH)
        stamp(P, cfg, 'loop')
        P.I('s_barrier')
        stamp(P, cfg, 'endb')
        P.I(f'''
        s_mul_i32 s{sT0}, s{sTT}, 40960
        s_lshl_b32 s{sT1}, s{sKQ}, 11
        s_add_u32 s{sT1}, s{sT1}, s{sT0}
        v_add_u32 v{vT}, s{sT1}, v{vH}
        s_mul_i32 s{sT1}, s{sKQ}, 10240
        s_add_u32 s{sT1}, s{sT1}, s{sT0}
        v_add_u32 v{vT+1}, s{sT1}, v{vH}
        ''')
        for p in range(4):
            for q in range(2):
                r = AM + 8 * p + 4 * q
                P.D(f'ds_write_b128 v{vT}, v[{r}:{r+3}] offset:{10240*p + 1024*q}', 'rw')
        if k0:
            for p in range(4):
                for q in range(2):
                    r = AS + 8 * p + 4 * q
                    P.D(f'ds_write_b128 v{vT}, v[{r}:{r+3}] offset:{10240*p + 8192 + 1024*q}', 'rw')
        P.lg0(); stamp(P, cfg, 'rw'); P.I('s_barrier'); stamp(P, cfg, 'rb')
        P.I('s_branch L_s2_fin')
    body(False)
    P.restore(st0)
    P.label('L_s2_k0')
    body(True)
    P.label('L_s2_fin')
    RD = 16
    for src in range(5):
        for q in range(2):
            r = RD + 8 * src + 4 * q
            P.D(f'ds_read_b128 v[{r}:{r+3}], v{vT+1} offset:{2048*src + 1024*q}', 'rr')
    P.vm0()
    P.I(f'''
    v_permlane32_swap_b32 v{XR}, v{XR+2}
    v_permlane32_swap_b32 v{XR+1}, v{XR+3}
    v_permlane32_swap_b32 v{B2R}, v{B2R+2}
    v_permlane32_swap_b32 v{B2R+1}, v{B2R+3}
    ''')
    XF, BF, G = 64, 72, 80
    for d in range(4):
        P.I(f'v_lshlrev_b32 v{XF+2*d}, 16, v{XR+d}\nv_and_b32 v{XF+2*d+1}, 0xffff0000, v{XR+d}')
        P.I(f'v_lshlrev_b32 v{BF+2*d}, 16, v{B2R+d}\nv_and_b32 v{BF+2*d+1}, 0xffff0000, v{B2R+d}')
    P.lg0()
    for e in range(8): P.I(f'v_add_f32 v{RD+e}, v{RD+e}, v{RD+8+e}')
    for e in range(8): P.I(f'v_add_f32 v{RD+16+e}, v{RD+16+e}, v{RD+24+e}')
    for e in range(8): P.I(f'v_add_f32 v{BF+e}, v{BF+e}, v{RD+e}')
    for e in range(8): P.I(f'v_add_f32 v{BF+e}, v{BF+e}, v{RD+16+e}')
    for e in range(8): P.I(f'v_mul_f32 v{G+e}, {f32(-LOG2E)}, v{BF+e}')
    for e in range(8): P.I(f'v_exp_f32 v{G+e}, v{G+e}')
    for e in range(8): P.I(f'v_add_f32 v{G+e}, 1.0, v{G+e}')
    for e in range(8): P.I(f'v_rcp_f32 v{G+e}, v{G+e}')
    for e in range(8): P.I(f'v_mul_f32 v{G+e}, v{G+e}, v{BF+e}')
    for e in range(8): P.I(f'v_fma_f32 v{G+e}, v{G+e}, v{RD+32+e}, v{XF+e}')
    for d in range(4): P.I(f'v_cvt_pk_bf16_f32 v{XR+d}, v{G+2*d}, v{G+2*d+1}')
    P.I(f'v_permlane32_swap_b32 v{XR}, v{XR+2}\nv_permlane32_swap_b32 v{XR+1}, v{XR+3}')
    P.V(f'buffer_store_dwordx4 v[{XR}:{XR+3}], v{vO}, s[{sOUT}:{sOUT+3}], 0 offen', 'out')
    stamp(P, cfg, 'st'); P.vm0(); stamp(P, cfg, 'drain'); stamp_flush(P, cfg)

def poll(P, which, lab, do_poll, wg_barrier):
    sM2 = 74; t = 252
    if do_poll:
        P.I(f'''
        s_lshr_b32 s{sT0}, s{sM2}, 1
        s_lshl_b32 s{sT0}, s{sT0}, 7
        s_add_u32 s{sT0}, s{sT0}, {CNT_OFF + which * 2048}
        s_mov_b32 s{sT2}, {SPIN}
        L_poll{lab}:
        buffer_load_dword v{t}, off, s[{sWS}:{sWS+3}], s{sT0} sc1
        s_sub_u32 s{sT2}, s{sT2}, 1
        s_cbranch_scc1 L_pollx{lab}
        s_waitcnt vmcnt(0)
        v_readfirstlane_b32 s{sT1}, v{t}
        s_cmp_ge_u32 s{sT1}, 8
        s_cbranch_scc0 L_poll{lab}
        L_pollx{lab}:
        s_waitcnt vmcnt(0)
        ''')
        P.vm.q = []
    if wg_barrier: P.I('s_barrier')

def prof_dump(P, cfg, regs):
    if not cfg.prof: return
    P.I(f'''
    s_lshl_b32 s{sT0}, s2, 3
    s_add_u32 s{sT0}, s{sT0}, s{sWAVE}
    s_lshl_b32 s{sT0}, s{sT0}, 8
    s_mov_b32 s{sWS+2}, 0x2000000
    v_and_b32 v1, 63, v0
    v_lshlrev_b32 v1, 2, v1
    ''')
    for slot, r in regs:
        P.I(f's_add_u32 s{sT1}, s{sT0}, {0x1000000 + slot * 0x100000}')
        P.I(f'buffer_store_dword v{r}, v1, s[{sWS}:{sWS+3}], s{sT1} offen')

def kd(name, vg=256, sg=102):
    return f'''.p2align 6
.amdhsa_kernel {name}
  .amdhsa_next_free_vgpr {vg}
  .amdhsa_next_free_sgpr {sg}
  .amdhsa_accum_offset {vg}
  .amdhsa_group_segment_fixed_size 0
  .amdhsa_kernarg_size 88
  .amdhsa_user_sgpr_count 2
  .amdhsa_user_sgpr_kernarg_segment_ptr 1
  .amdhsa_system_sgpr_workgroup_id_x 1
  .amdhsa_float_denorm_mode_32 3
.end_amdhsa_kernel
'''

def build(cfg):
    hdr = open('cdna_kernels/' + NAME + '.s.ref').read().split('; Override launch')[0]
    out = [hdr]
    kernels = []
    if not cfg.fused:
        out.append('; @launch kernel=stage1_kernel grid=(256,1,1) block=(512,1,1) lds=163840\n')
        out.append('; @launch kernel=stage2_kernel grid=(256,1,1) block=(512,1,1) lds=163840\n')
        P = Prog(); P.pv = 255
        stamp(P, cfg, 'start')
        prologue(P, 256, 'L_end1')
        stage1_ids(P)
        P.I(f's_cmp_ge_u32 s{sJ}, 16\ns_cbranch_scc1 L_att')
        st = P.state()
        mlp_path(P, cfg, 'L_s1_done')
        P.restore(st)
        P.label('L_att')
        att_path(P, cfg, 'L_s1_done')
        P.label('L_s1_done')
        prof_dump(P, cfg, [(0, 255)])
        P.label('L_end1')
        P.I('s_endpgm')
        kernels.append(('stage1_kernel', P))
        P = Prog(); P.pv = 254
        stamp(P, cfg, 'start')
        prologue(P, 256, 'L_end2')
        stage2(P, cfg, 'L_end2')
        prof_dump(P, cfg, [(1, 254)])
        P.label('L_end2')
        P.I('s_endpgm')
        kernels.append(('stage2_kernel', P))
    else:
        out.append('; @launch grid=(256,1,1) block=(512,1,1) lds=163840\n')
        P = Prog(); P.pv = 255
        if cfg.dbgprof: P.I('s_memrealtime s[90:91]')
        stamp(P, cfg, 'start')
        prologue(P, 256, 'L_end')
        stage1_ids(P)
        P.I(f's_cmp_ge_u32 s{sJ}, 16\ns_cbranch_scc1 L_att')
        st = P.state()
        mlp_path(P, cfg, 'L_s1_done')
        P.restore(st)
        P.label('L_att')
        att_path(P, cfg, 'L_s1_done')
        P.label('L_s1_done')
        P.vm.q = []; P.lg.q = []; P.pv = 254
        stamp(P, cfg, 's2')
        stage2(P, cfg, 'L_s2_skip')
        P.label('L_s2_skip')
        prof_dump(P, cfg, [(0, 255), (1, 254)])
        if cfg.dbgprof:
            P.I(f'''
            s_memrealtime s[92:93]
            s_waitcnt lgkmcnt(0)
            s_not_b32 s94, s90
            v_mov_b32 v2, s94
            v_mov_b32 v3, s92
            v_mov_b32 v4, s90
            s_mov_b64 exec, 1
            buffer_atomic_umax v2, off, s[{sDBG}:{sDBG+3}], 0 offset:8
            buffer_atomic_umax v3, off, s[{sDBG}:{sDBG+3}], 0 offset:12
            buffer_atomic_umax v4, off, s[{sDBG}:{sDBG+3}], 0 offset:4
            s_mov_b64 exec, -1
            s_lshl_b32 s94, s2, 3
            s_add_u32 s94, s94, s{sWAVE}
            s_cmp_eq_u32 s94, {8*8+2}
            s_cbranch_scc0 L_end
            v_readlane_b32 s94, v255, 0
            s_mov_b64 exec, 1
            ''')
            sel = [(255, 3), (255, 15), (255, 24), (255, 38), (254, 3), (254, 4), (254, 6), (254, 8), (254, 9), (254, 14)]
            for i, (r, l) in enumerate(sel):
                P.I(f'v_readlane_b32 s95, v{r}, {l}\ns_sub_u32 s95, s95, s94\nv_mov_b32 v2, s95\nbuffer_store_dword v2, off, s[{sDBG}:{sDBG+3}], 0 offset:{16+4*i}')
            P.I(f's_sub_u32 s95, s92, s90\nv_mov_b32 v2, s95\nbuffer_store_dword v2, off, s[{sDBG}:{sDBG+3}], 0 offset:{16+4*len(sel)}')
        P.label('L_end')
        P.I('s_endpgm')
        kernels.append((NAME + '_kernel', P))
    out.append('.amdgcn_target "amdgcn-amd-amdhsa--gfx950"\n.text\n')
    for name, P in kernels:
        out.append(f'.globl {name}\n.p2align 8\n.type {name},@function\n{name}:\n')
        for l in fix_hazards(P.L):
            out.append(l + '\n' if l.endswith(':') else '    ' + l + '\n')
    out.append('.section .rodata,"a"\n')
    for name, _ in kernels: out.append(kd(name))
    return ''.join(out)

if __name__ == '__main__':
    ap = argparse.ArgumentParser()
    ap.add_argument('-o', default='cdna_kernels/' + NAME + '.s')
    ap.add_argument('--prof', action='store_true')
    ap.add_argument('--fused', action='store_true')
    ap.add_argument('--dbgprof', action='store_true')
    a = ap.parse_args()
    cfg = Cfg(); cfg.dbgprof = a.dbgprof; cfg.prof = a.prof or a.dbgprof; cfg.fused = a.fused
    open(a.o, 'w').write(build(cfg))
    if cfg.prof:
        import json; json.dump(cfg.paths, open(a.o + '.paths.json', 'w'))
```

```python
from gen import *
from s2v2 import *
import gen

vPF = 250

def s1_prefetch(P, cfg, role, t):
    if cfg.nopf or not cfg.s1pf: return
    u = P.uid()
    P.I(f'''
    s_and_b32 s{sT0}, s{sJ}, 15
    s_lshl_b32 s{sT0}, s{sT0}, 3
    s_add_u32 s{sT0}, s{sT0}, s{sWAVE}
    ''')
    if role == 0:
        P.I(f'''
        s_lshr_b32 s{sT1}, s{sXCD}, 2
        s_mul_i32 s{sT1}, s{sT1}, {1024*XB}
        s_lshl_b32 s{sT2}, s{sT0}, 13
        s_add_u32 s{sT1}, s{sT1}, s{sT2}
        v_lshlrev_b32 v{vPF}, 7, v{vLANE}
        s_cmp_lt_u32 s{sT0}, 112
        s_cbranch_scc0 L_pfc{u}
        buffer_load_dword v{vPF}, v{vPF}, s[{sX}:{sX+3}], s{sT1} offen
        s_branch L_pfd{u}
        L_pfc{u}:
        s_getpc_b64 s[94:95]
        L_pc{u}:
        s_sub_u32 s{sT2}, s{sT2}, {112*8192}
        s_sub_u32 s94, s94, L_pc{u}-{NAME}_kernel
        s_subb_u32 s95, s95, 0
        v_add_u32 v{vPF}, s{sT2}, v{vPF}
        v_min_u32 v{vPF}, L_code_end-{NAME}_kernel-4, v{vPF}
        global_load_dword v{vPF}, v{vPF}, s[94:95]
        L_pfd{u}:
        ''')
        P.vm.issue('pf')
    else:
        P.I(f'''
        s_and_b32 s{sT2}, s{sXCD}, 3
        s_mov_b32 s{sW2}, s12
        s_mov_b32 s{sW2+1}, s13
        s_mov_b32 s{sW2+2}, {448*W1S}
        s_mov_b32 s{sW2+3}, 0x20000
        s_cmp_lt_u32 s{sT0}, 49
        s_cbranch_scc0 L_pfc{u}
        s_lshl_b32 s{sT0}, s{sT0}, 6
        v_add_u32 v{t}, s{sT0}, v{vLANE}
        v_mul_u32_u24 v{t+1}, 9363, v{t}
        v_lshrrev_b32 v{t+1}, 16, v{t+1}
        v_mul_u32_u24 v{vPF}, {W1S - 7*128}, v{t+1}
        v_lshl_add_u32 v{vPF}, v{t}, 7, v{vPF}
        s_mul_i32 s{sT1}, s{sT2}, 896
        s_branch L_pfd{u}
        L_pfc{u}:
        s_mov_b32 s{sW2}, s6
        s_mov_b32 s{sW2+1}, s7
        s_mov_b32 s{sW2+2}, {448*WQS}
        s_sub_u32 s{sT0}, s{sT0}, 49
        s_lshl_b32 s{sT0}, s{sT0}, 6
        v_add_u32 v{t}, s{sT0}, v{vLANE}
        v_mul_u32_u24 v{t+1}, 21846, v{t}
        v_lshrrev_b32 v{t+1}, 16, v{t+1}
        v_mul_u32_u24 v{vPF}, {896 - 3*128}, v{t+1}
        v_lshl_add_u32 v{vPF}, v{t}, 7, v{vPF}
        s_mul_i32 s{sT1}, s{sT2}, 224
        s_and_b32 s{sT1}, s{sT1}, 0xffffff80
        L_pfd{u}:
        ''')
        P.V(f'buffer_load_dword v{vPF}, v{vPF}, s[{sW2}:{sW2+3}], s{sT1} offen', 'pf')

sKX = [4, 5, 6, 7, 10, 11, 12]
def rot_first(P, cfg, role):
    dst = 3 if role is None else sKX[0]
    if cfg.fastx and role is not None: return
    if cfg.norot:
        P.I(f's_mov_b32 s{dst}, 0'); return
    P.I(f'''
    s_bfe_u32 s{sT0}, s{sJ}, 0x30001
    s_and_b32 s{sT1}, s{sJ}, 1
    s_lshl_b32 s{sT1}, s{sT1}, 1
    s_add_u32 s{sT0}, s{sT0}, s{sT1}
    ''')
    if role is None: P.I(f's_lshl_b32 s{sT1}, s{sT2}, 2\ns_add_u32 s{sT0}, s{sT0}, s{sT1}')
    else: P.I(f's_add_u32 s{sT0}, s{sT0}, {4*role}')
    P.I(f'''
    s_sub_u32 s{sT1}, s{sT0}, 7
    s_cmp_ge_u32 s{sT0}, 7
    s_cselect_b32 s{sT0}, s{sT1}, s{sT0}
    s_lshl_b32 s{dst}, s{sT0}, 7
    ''')
def rot_rest(P, lo, hi):
    for c in range(lo, hi):
        P.I(f'''
        s_add_u32 s{sKX[c]}, s{sKX[c-1]}, 128
        s_cmp_eq_u32 s{sKX[c]}, 896
        s_cselect_b32 s{sKX[c]}, 0, s{sKX[c]}
        ''')
XNT = ''
def dmax(P, c, base, i, tag):
    P.I(f's_add_u32 m0, s{sWX}, {base + 1024*i}')
    P.V(f'buffer_load_dwordx4 v{vXD0+i}, s[{sX}:{sX+3}], s{sKX[c]} offen{XNT} lds', tag)

def w2pf_mlp(P, k, t):
    u = P.uid()
    P.I(f'''
    s_lshl_b32 s{sT0}, s{sJ}, 4
    s_lshl_b32 s{sT1}, s{sWAVE}, 1
    s_add_u32 s{sT0}, s{sT0}, s{sT1}
    s_add_u32 s{sT0}, s{sT0}, {k}
    s_lshl_b32 s{sT1}, s{sT0}, 13
    s_mov_b32 s{sW2}, s16
    s_mov_b32 s{sW2+1}, s17
    s_mov_b32 s{sW2+2}, {1792*XB}
    s_mov_b32 s{sW2+3}, 0x20000
    s_cmp_lt_u32 s{sT0}, 196
    s_cbranch_scc1 L_pf{u}
    s_mov_b32 s{sW2}, s8
    s_mov_b32 s{sW2+1}, s9
    s_mov_b32 s{sW2+2}, {448*XB}
    s_sub_u32 s{sT1}, s{sT1}, {196*8192}
    L_pf{u}:
    v_lshlrev_b32 v{t}, 7, v{vLANE}
    ''')
    P.V(f'buffer_load_dword v{vPF}, v{t}, s[{sW2}:{sW2+3}], s{sT1} offen', 'pf')

def mall_pf(P, t):
    u = P.uid()
    P.I(f'''
    s_lshl_b32 s{sT0}, s2, 3
    s_add_u32 s{sT0}, s{sT0}, s{sWAVE}
    s_lshl_b32 s{sT1}, s{sT0}, 10
    s_mov_b32 s{sW2}, s16
    s_mov_b32 s{sW2+1}, s17
    s_mov_b32 s{sW2+2}, {1792*XB}
    s_mov_b32 s{sW2+3}, 0x20000
    s_cmp_lt_u32 s{sT0}, 1568
    s_cbranch_scc1 L_pf{u}
    s_mov_b32 s{sW2}, s8
    s_mov_b32 s{sW2+1}, s9
    s_mov_b32 s{sW2+2}, {448*XB}
    s_sub_u32 s{sT1}, s{sT1}, {1568*1024}
    L_pf{u}:
    s_mov_b64 exec, 0xff
    ''')
    P.V(f'buffer_load_dword v{vPF}, v{t}, s[{sW2}:{sW2+3}], s{sT1} offen', 'pf')
    P.I('s_mov_b64 exec, -1')

def wdma_addr(P, dst, stride, t, clamp6=False):
    P.I(f'''
    v_lshrrev_b32 v{t}, 3, v{vLANE}
    s_lshl_b32 s{sT0}, s{sWAVE}, 3
    v_add_u32 v{t}, s{sT0}, v{t}
    v_mul_u32_u24 v{t}, {stride}, v{t}
    v_lshrrev_b32 v{t+1}, 2, v{vLANE}
    v_and_b32 v{t+1}, 4, v{t+1}
    v_xor_b32 v{t+1}, v{t+1}, v{vLANE}
    v_and_b32 v{t+1}, 7, v{t+1}
    ''')
    if clamp6 == 'zero':
        P.I(f'v_add_u32 v{dst}, 1, v{t+1}\nv_lshlrev_b32 v{dst}, 27, v{dst}\nv_and_b32 v{dst}, 0x40000000, v{dst}\nv_add_u32 v{t}, v{t}, v{dst}')
    elif clamp6: P.I(f'v_min_u32 v{t+1}, 6, v{t+1}')
    P.I(f'v_lshl_add_u32 v{dst}, v{t+1}, 4, v{t}')

def frag_addrs(P, sLO, sHI, colstep, vXa, vW0, t, zpad=False):
    sR = sT2
    P.I(f'''
    s_xor_b32 s{sR}, s{sHI}, s{sLO}
    v_and_b32 v{t}, 31, v{vLANE}
    s_lshl_b32 s{sT0}, s{sLO}, 5
    v_add_u32 v{t}, s{sT0}, v{t}
    v_bfe_u32 v{t+1}, v{vLANE}, 1, 3
    v_lshrrev_b32 v{t+2}, 5, v{vLANE}
    v_xor_b32 v{t+1}, v{t+1}, v{t+2}
    v_lshlrev_b32 v{t+1}, 4, v{t+1}
    v_lshl_add_u32 v{t+1}, v{t}, 7, v{t+1}
    s_lshl_b32 s{sT0}, s{sR}, 5
    v_xor_b32 v{vXa[0]}, s{sT0}, v{t+1}
    v_xor_b32 v{vXa[1]}, 32, v{vXa[0]}
    v_xor_b32 v{vXa[2]}, 64, v{vXa[0]}
    v_xor_b32 v{vXa[3]}, 0x60, v{vXa[0]}
    v_lshlrev_b32 v{t+2}, 3, v{t+2}
    v_bfe_u32 v{t+1}, v{vLANE}, 2, 2
    v_add_u32 v{t+2}, v{t+2}, v{t+1}
    v_lshlrev_b32 v{t+2}, 7, v{t+2}
    v_and_b32 v{t+1}, 16, v{vLANE}
    v_lshlrev_b32 v{t+1}, 1, v{t+1}
    v_and_b32 v{t+3}, 3, v{vLANE}
    v_lshl_add_u32 v{t+1}, v{t+3}, 3, v{t+1}
    s_mul_i32 s{sT0}, s{sHI}, {colstep}
    v_add_u32 v{t+1}, s{sT0}, v{t+1}
    ''')
    if zpad:
        P.I(f'v_and_b32 v{t+3}, 19, v{vLANE}\nv_cmp_eq_u32 vcc, 19, v{t+3}\ns_lshl_b32 s{sT0}, s{sHI}, 3\ns_sub_u32 s{sT0}, 120, s{sT0}\nv_mov_b32 v{t+3}, s{sT0}\nv_cndmask_b32 v{t+1}, v{t+1}, v{t+3}, vcc')
    P.I(f'''
    v_and_b32 v{t+3}, 8, v{vLANE}
    v_lshlrev_b32 v{t+3}, 3, v{t+3}
    v_xor_b32 v{t+1}, v{t+1}, v{t+3}
    v_add_u32 v{t+2}, v{t+2}, v{t+1}
    s_lshl_b32 s{sT0}, s{sR}, 11
    v_xor_b32 v{vW0[0]}, s{sT0}, v{t+2}
    v_xor_b32 v{vW0[1]}, 0x800, v{vW0[0]}
    v_xor_b32 v{vW0[2]}, 0x1000, v{vW0[0]}
    v_xor_b32 v{vW0[3]}, 0x1800, v{vW0[0]}
    ''')

def make_sel(P, SEL, t):
    P.I(f'''
    v_lshrrev_b32 v{t}, 2, v{vLANE}
    v_lshrrev_b32 v{t+1}, 4, v{vLANE}
    v_xor_b32 v{t}, v{t}, v{t+1}
    v_and_b32 v{t}, 1, v{t}
    v_add_u32 v{t}, -1, v{t}
    v_and_b32 v{SEL}, 0x3f803f80, v{t}
    v_mov_b32 v{SEL+1}, v{SEL}
    v_mov_b32 v{SEL+2}, v{SEL}
    v_mov_b32 v{SEL+3}, v{SEL}
    ''')

def sq_ops(x, t, sq, sm=None):
    L = []
    for d in range(4):
        a, b = t + 2 * (d & 1), t + 2 * (d & 1) + 1
        L += [f'v_lshlrev_b32 v{a}, 16, v{x+d}', f'v_and_b32 v{b}, 0xffff0000, v{x+d}',
              f'v_fmac_f32 v{sq}, v{a}, v{a}', f'v_fmac_f32 v{sq+1}, v{b}, v{b}']
        if sm is not None: L += [f'v_add_f32 v{sm}, v{sm}, v{a}', f'v_add_f32 v{sm+1}, v{sm+1}, v{b}']
    return L

def cost(ins):
    if callable(ins): return 4
    mn = ins.split()[0]
    if mn in TRANS or mn.startswith('v_permlane'): return 8
    return 4

class Filler:
    def __init__(self, P): self.P = P; self.q = []
    def add(self, xs): self.q += list(xs)
    def total(self): return sum(cost(x) for x in self.q)
    def emit(self, budget):
        while self.q and budget > 0:
            x = self.q.pop(0); budget -= cost(x)
            if callable(x): x()
            else: self.P.I(x)
    def flush(self): self.emit(1 << 30)

def site(P, sreg, val, fns, register):
    if not fns: return
    u = P.uid()
    P.I(f's_cmp_eq_u32 s{sreg}, {val}\ns_cbranch_scc0 L_site{u}')
    q = list(P.vm.q)
    for f in fns: f()
    if not register: P.vm.q = q
    P.label(f'L_site{u}')

def m32(d, a, b, first):
    c = '0' if first else f'v[{d}:{d+15}]'
    return f'v_mfma_f32_32x32x16_bf16 v[{d}:{d+15}], v[{a}:{a+3}], v[{b}:{b+3}], {c}'
NOM16 = False
def m16(d, a, b, first):
    if NOM16: return 's_nop 0'
    c = '0' if first else f'v[{d}:{d+3}]'
    return f'v_mfma_f32_16x16x32_bf16 v[{d}:{d+3}], v[{a}:{a+3}], v[{b}:{b+3}], {c}'

def atomic_inc(P, soff):
    P.I(f'''
    v_mov_b32 v{vFLAG}, 1
    s_mov_b64 exec, 1
    buffer_atomic_add v{vFLAG}, off, s[{sWS}:{sWS+3}], s{soff} sc1
    s_mov_b64 exec, -1
    ''')
def publish2(P, cfg, which, lab, wave, barrier=True, tags=('st',)):
    if tags: P.wait_vm(*tags)
    if barrier: P.I('s_barrier')
    u = svc_begin(P)
    P.I(f's_lshl_b32 s{sT0}, s{sMT}, 7\ns_add_u32 s{sT0}, s{sT0}, {CNT_OFF + 2048*which}')
    atomic_inc(P, sT0)
    svc_end(P, u)
def flag_check(P, lab, wrap=True):
    if wrap: u = svc_begin(P)
    spin(P, vFLAG, sDBG, '0', 1)
    if wrap: svc_end(P, u)

def mlp_v2(P, cfg, after):
    sCOLP, sCOLS, sHP, sHSG, sBP, sBS, sG, sTT = 74, 75, 76, 77, 78, 79, 27, 26
    vWD, vWDs = 4, 5
    vWa = [[6 + 4 * w + s for s in range(4)] for w in range(3)]
    vXa = [18, 19, 20, 21]
    vHS, vCSW = 22, 23
    XF = 24; ACC = [136, 152]; WF = 168; NWF = 8
    CSA, SEL, BX, AX = 200, 204, 208, 212
    vK0, vK1, vRI = 216, 217, 218; BR = 219; vCSR, vSTW, vSTR = 223, 224, 225
    SQ = 226; SUMA = 228; T = 232; U = 236; PK = 244
    CS_LDS = MISC; ST_LDS = MISC + 2048
    xdma_addr(P, T, T + 1)
    wdma_addr(P, vWD, W1S, T)
    P.I(f'''
    s_lshr_b32 s{sG}, s{sWAVE}, 2
    s_and_b32 s{sTT}, s{sWAVE}, 3
    s_and_b32 s{sT2}, s{sSUB}, 1
    s_mul_i32 s{sT0}, s{sSUB}, 448
    s_lshl_b32 s{sT1}, s{sT2}, 6
    s_add_u32 s{sCOLP}, s{sT0}, s{sT1}
    s_add_u32 s{sCOLS}, s{sT0}, 384
    s_sub_u32 s{sBS}, s{sT0}, 64
    s_cmp_eq_u32 s{sT2}, 0
    s_cselect_b32 s{sCOLS}, s{sCOLS}, s{sBS}
    s_add_u32 s{sBS}, s{sCOLS}, s{sT1}
    v_xor_b32 v{vWDs}, s{sT1}, v{vWD}
    s_waitcnt lgkmcnt(0)
    ''')
    srd(P, sX, 4, 2048 * XB)
    srd(P, sW, 12, 448 * W1S)
    def dma_w(blk, c, slot, tag):
        P.I(f's_add_u32 m0, s{sWW}, {slot*SLOT}')
        P.L[-1] = f's_add_u32 m0, s{sWW}, {slot*SLOT - (128*blk if blk < 3 else 0)}' if slot * SLOT >= 128 * blk else P.L[-1]
        P.I(f's_mul_i32 s{sT0}, s{sKX[c]}, {64*W1S//128}')
        if blk < 3:
            P.I(f's_add_u32 s{sT0}, s{sT0}, s{sCOLP}')
            P.V(f'buffer_load_dwordx4 v{vWD}, s[{sW}:{sW+3}], s{sT0} offen offset:{128*blk}{cfg.wnt} lds', tag)
        else:
            P.I(f's_add_u32 s{sT0}, s{sT0}, s{sCOLS}')
            P.V(f'buffer_load_dwordx4 v{vWDs}, s[{sW}:{sW+3}], s{sT0} offen{cfg.wnt} lds', tag)
    def dma_x1(c, i): dmax(P, c, xbase[c], i, ('c', c))
    def dma_x(P, c, base, tag):
        for i in range(2): dmax(P, c, base, i, tag)
    wslot = {(0, c): c for c in range(7)}
    xbase = {c: (7 + 2 * c) * SLOT for c in range(6)}; xbase[6] = xbase[0]
    NI = cfg.ni
    rot_first(P, cfg, 0)
    dma_x(P, 0, xbase[0], ('c', 0)); dma_w(0, 0, 0, ('c', 0))
    rot_rest(P, 1, 7)
    P.I('s_barrier')
    dma_x(P, 1, xbase[1], ('c', 1)); dma_w(0, 1, 1, ('c', 1))
    init_zero(P, cfg, T)
    s1_prefetch(P, cfg, 0, T)
    stamp(P, cfg, 'issued')
    srd(P, sB1, 14, 1792 * 2)
    P.I(f'''
    s_lshl_b32 s{sT0}, s{sMT}, 2
    s_add_u32 s{sT0}, s{sT0}, s{sTT}
    s_mul_i32 s{sT0}, s{sT0}, {112*1024}
    s_lshl_b32 s{sT2}, s{sBS}, 5
    s_add_u32 s{sHSG}, s{sT0}, s{sT2}
    s_lshl_b32 s{sT2}, s{sG}, 6
    s_add_u32 s{sBP}, s{sCOLP}, s{sT2}
    s_lshl_b32 s{sT2}, s{sBP}, 5
    s_add_u32 s{sHP}, s{sT0}, s{sT2}
    v_and_b32 v{U}, 31, v{vLANE}
    v_lshlrev_b32 v{U+1}, 1, v{U}
    ''')
    for t in range(3):
        P.V(f'buffer_load_ushort v{BR+t}, v{U+1}, s[{sB1}:{sB1+3}], s{sBP} offen offset:{128*t}', 'bias')
    P.V(f'buffer_load_ushort v{BR+3}, v{U+1}, s[{sB1}:{sB1+3}], s{sBS} offen', 'bias')
    frag_addrs(P, sTT, sG, 64, vXa, vWa[0], T)
    for s in range(4): P.I(f'v_add_u32 v{vXa[s]}, {xbase[0]}, v{vXa[s]}')
    for w in (1, 2):
        for s in range(4): P.I(f'v_add_u32 v{vWa[w][s]}, {65536*w}, v{vWa[0][s]}')
    P.I(f'''
    v_lshlrev_b32 v{vHS}, 4, v{vLANE}
    s_lshl_b32 s{sT2}, s{sG}, 9
    s_add_u32 s{sT2}, s{sT2}, {CS_LDS}
    v_lshlrev_b32 v{vCSR}, 4, v{U}
    v_add_u32 v{vCSR}, s{sT2}, v{vCSR}
    s_lshl_b32 s{sT2}, s{sTT}, 2
    v_add_u32 v{vCSW}, s{sT2}, v{vCSR}
    v_lshlrev_b32 v{T}, 3, v{T}
    s_lshl_b32 s{sT2}, s{sG}, 10
    s_add_u32 s{sT2}, s{sT2}, {ST_LDS}
    v_add_u32 v{vSTW}, s{sT2}, v{T}
    v_xor_b32 v{vSTR}, 0x400, v{vSTW}
    v_mov_b32 v{AX+3}, 0
    v_mov_b32 v{BX+3}, 0
    v_mov_b32 v{SQ}, 0
    v_mov_b32 v{SQ+1}, 0
    ''')
    make_sel(P, SEL, T)
    s2_early_setup(P, T)
    for c in range(2, NI):
        dma_x(P, c, xbase[c], ('c', c)); dma_w(0, c, c, ('c', c))
    free = []; sched = {}
    def place(items):
        r = []
        for bc in items:
            s = free.pop(0); wslot[bc] = s; r.append((bc, s))
        return r
    head = lambda b: [(b, 0)]
    tail = lambda b: [(b, c) for c in range(1, 7)]
    q = head(2) + head(1) + tail(1)
    q = [q[1], q[0]] + q[2:]
    avail = []
    plan = {(2, 0): 9, (1, 0): 10}
    for k, c in enumerate(range(1, 7)): plan[(1, c)] = 11 + k
    for k, c in enumerate(range(1, 7)): plan[(2, c)] = [7, 8, 6, 5, 4, 3][k]
    plan[(3, 0)] = 17
    for k, c in enumerate(range(1, 7)): plan[(3, c)] = [18, 12, 13, 14, 15, 16][k]
    def place(items):
        for bc in items: wslot[bc] = plan[bc]
        return [(bc, plan[bc]) for bc in items]
    for c in range(3, 7):
        sl = xbase[c - 2] // SLOT; avail += [sl, sl + 1]
        n = 0
        if c >= 7 - NI:
            while n < 3 and n < len(q) and plan[q[n]] in avail: n += 1
        sched[('c', c)] = place(q[:n]); q = q[n:]
    assert not q, q
    sched[('B', 1)] = place(tail(2) + head(3))
    sched[('B', 2)] = place(tail(3))
    wtag = lambda b, c: ('h' if c < 1 else 't', b)
    def dmas(ev): return [(lambda b=b, c=c, s=s: dma_w(b, c, s, wtag(b, c))) for (b, c), s in sched.get(ev, [])]
    def rd(gs):
        blk, s = divmod(gs, 28)
        if blk > 3: return
        slot = wslot[(blk, s // 4)]; dst = WF + 4 * (gs % NWF)
        off = (slot % 8) * SLOT; a = vWa[slot // 8][s % 4]
        P.D(f'ds_read_b64_tr_b16 v[{dst}:{dst+1}], v{a} offset:{off}', ('w', gs))
        P.D(f'ds_read_b64_tr_b16 v[{dst+2}:{dst+3}], v{a} offset:{off+512}', ('w', gs))
    def xread(c, s):
        d = XF + 4 * (4 * c + s)
        P.D(f'ds_read_b128 v[{d}:{d+3}], v{vXa[s]} offset:{(xbase[c] - xbase[0]) & 0xffff}', ('x', 4 * c + s))
    F = Filler(P)
    def mstep(gs, budget):
        blk, s = divmod(gs, 28)
        w = WF + 4 * (gs % NWF); x = XF + 4 * s
        P.wait_lg(('w', gs), ('x', gs))
        P.I(m32(ACC[blk % 2], w, x, s == 0))
        F.emit(budget)
        if s % 4 == 0:
            P.I(m16(CSA, SEL, w, s == 0))
            F.emit(budget // 2)
    def cs_write(blk): P.D(f'ds_write_b32 v{vCSW}, v{CSA} offset:{1024*(blk%2)}', 'csw')
    for c in range(8):
        DQ = []
        if c < 7:
            P.wait_vm(('c', c))
            if c == 6: P.wait_vm(('h', 1))
            stamp(P, cfg, f'c{c}w')
            if c == 0 or 't0nobar' not in cfg.exp: P.I('s_barrier')
            stamp(P, cfg, f'c{c}b')
            if c == 2: init_flag(P, cfg, PK, 'a')
            if c in (4, 6):
                for s in range(4): P.I(f'v_add_u32 v{vXa[s]}, {(65536 if c == 4 else -65536) & 0xffffffff:#x}, v{vXa[s]}')
            if c + NI < 7:
                cc = c + NI
                DQ = [lambda cc=cc: dma_x1(cc, 0), lambda cc=cc: dma_x1(cc, 1), lambda cc=cc: dma_w(0, cc, cc, ('c', cc))]
            DQ += dmas(('c', c))
            if 't0nodma' in cfg.exp: DQ = []
        def rds(s):
            if c < 7:
                if 't0nox' not in cfg.exp: xread(c, s)
                rd(4 * c + s)
            elif s < 3: rd(28 + s)
        if c == 0:
            for s in range(4): rds(s)
            for f in DQ: f()
            continue
        cc = c - 1
        for s in range(4):
            gs = 4 * cc + s
            w = WF + 4 * (gs % NWF); x = XF + 4 * gs
            P.wait_lg(('w', gs), ('x', gs))
            if s in (0, 2) and 'nosq' not in cfg.exp: F.add(sq_ops(x, T, SQ))
            P.I(m32(ACC[0], w, x, gs == 0))
            if s == 0: site(P, sG, 0, DQ, False)
            rds(s)
            F.emit(20)
            if 't0nom16' not in cfg.exp:
                if s == 0: P.I(m16(CSA, SEL, w, gs == 0))
                if s in (1, 3): P.I(m16(SUMA, SEL, x - 4, gs == 1))
            F.emit(12)
            if s == 3: site(P, sG, 1, DQ, True)
        F.flush()
    P.I(f'''
    v_add_f32 v{SQ}, v{SQ}, v{SQ+1}
    v_mov_b32 v{SQ+1}, v{SQ}
    v_permlane32_swap_b32 v{SQ}, v{SQ+1}
    v_add_f32 v{SQ+1}, v{SQ}, v{SQ+1}
    v_mov_b32 v{SQ}, v{SUMA}
    ''')
    P.D(f'ds_write_b64 v{vSTW}, v[{SQ}:{SQ+1}]', 'csw')
    cs_write(0)
    stamp(P, cfg, 'T0e')

    def stats_ops():
        t = T; R, RI, M, V = U, U + 1, U + 2, U + 3
        L = [lambda: P.wait_lg('str')]
        L += f'''v_add_f32 v{M}, v{SQ}, v{U+4}
        v_add_f32 v{V}, v{SQ+1}, v{U+5}
        v_mul_f32 v{M}, {f32(1.0/448)}, v{M}
        v_mul_f32 v{V}, {f32(1.0/448)}, v{V}
        v_fma_f32 v{V}, -v{M}, v{M}, v{V}
        v_max_f32 v{V}, 0, v{V}
        v_add_f32 v{t}, {f32(EPS)}, v{V}
        v_rsq_f32 v{t+1}, v{t}
        v_cmp_gt_u32 vcc, 32, v{vLANE}
        v_mul_f32 v{t+2}, v{t+1}, v{t+1}
        v_mul_f32 v{t+2}, v{t+2}, v{V}
        v_add_f32 v{t+2}, {f32(EPS)}, v{t+2}
        v_rsq_f32 v{R}, v{t+2}
        v_mul_f32 v{t}, v{t}, v{t+2}
        v_sqrt_f32 v{vRI}, v{t}
        v_mul_f32 v{R}, v{R}, v{t+1}
        v_mul_f32 v{vK0}, {f32(GK0)}, v{R}
        v_mul_f32 v{t}, v{R}, v{R}
        v_mul_f32 v{t}, v{t}, v{R}
        v_mul_f32 v{vK1}, {f32(GK1)}, v{t}
        v_cndmask_b32 v{t}, 0, v{M}, vcc
        v_cndmask_b32 v{t+1}, 0, v{vRI}, vcc
        v_sub_f32 v{t}, 0, v{t}
        v_cvt_pk_bf16_f32 v{BX+1}, v{t}, v{t+1}
        v_lshlrev_b32 v{t+2}, 16, v{BX+1}
        v_sub_f32 v{t+2}, v{t}, v{t+2}
        v_cvt_pk_bf16_f32 v{BX}, v{t}, v{t+2}
        v_and_b32 v{t+2}, 0xffff0000, v{BX+1}
        v_sub_f32 v{t+2}, v{t+1}, v{t+2}
        v_cvt_pk_bf16_f32 v{BX+2}, v{t+2}, v{BX+3}'''.split('\n        ')
        k = [i for i, x in enumerate(L) if isinstance(x, str) and x.startswith('v_cmp_gt_u32')][0]
        L.insert(k + 1, f'v_mov_b32 v{SUMA}, v{t+1}')
        L.append(stat_store)
        return L
    def stat_store():
        u = P.uid()
        P.I(f'''
        s_cmp_eq_u32 s{sG}, 0
        s_cbranch_scc0 L_ss{u}
        s_lshl_b32 s{sT0}, s{sSUB}, 14
        s_lshl_b32 s{sT2}, s{sMT}, 9
        s_add_u32 s{sT0}, s{sT0}, s{sT2}
        s_add_u32 s{sT0}, s{sT0}, {STAT_OFF}
        v_subrev_u32 v{SUMA+1}, {ST_LDS}, v{vSTW}
        v_lshrrev_b32 v{SUMA+1}, 1, v{SUMA+1}
        s_add_u32 s{sT2}, s{sT0}, 8192
        s_mov_b64 exec, 0xffffffff
        buffer_store_dword v{SUMA}, v{SUMA+1}, s[{sWS}:{sWS+3}], s{sT0} offen sc1
        buffer_store_dword v{U+2}, v{SUMA+1}, s[{sWS}:{sWS+3}], s{sT2} offen sc1
        s_mov_b64 exec, -1
        L_ss{u}:
        ''')
    def stat_signal(nD):
        u = P.uid()
        n = len(P.vm.q) - 1 - P.vm.q.index('flag') + nD
        P.I(f's_cmp_eq_u32 s{sG}, 0\ns_cbranch_scc0 L_sg{u}\ns_waitcnt vmcnt({n})')
        q = list(P.vm.q); P.vm.q = []
        flag_check(P, 'ms')
        P.vm.q = q
        P.I(f'''
        s_lshl_b32 s{sT0}, s{sSUB}, 11
        s_lshl_b32 s{sT2}, s{sMT}, 7
        s_add_u32 s{sT0}, s{sT0}, s{sT2}
        s_add_u32 s{sT0}, s{sT0}, {CNT_OFF + 8192}
        v_mov_b32 v{vPF}, 1
        s_mov_b64 exec, 1
        buffer_atomic_add v{vPF}, off, s[{sWS}:{sWS+3}], s{sT0} sc1
        s_mov_b64 exec, -1
        L_sg{u}:
        ''')
    def e_ops(tile, stag):
        A = ACC[tile % 2]
        P.D(f'ds_read_b128 v[{PK}:{PK+3}], v{vCSR} offset:{1024*(tile%2)}', 'csr')
        L = [lambda: P.wait_vm('bias'),
             f'v_lshlrev_b32 v{U}, 16, v{BR+tile}', f'v_mov_b32 v{AX+2}, v{BR+tile}',
             lambda: P.wait_lg('csr'),
             f'v_add_f32 v{T}, v{PK}, v{PK+1}', f'v_add_f32 v{T+2}, v{PK+2}, v{PK+3}', f'v_add_f32 v{T}, v{T}, v{T+2}',
             f'v_cvt_pk_bf16_f32 v{AX}, v{T}, v{T}', f'v_lshlrev_b32 v{T+1}, 16, v{AX}', f'v_sub_f32 v{T+1}, v{T}, v{T+1}',
             f'v_cvt_pk_bf16_f32 v{AX+1}, v{T+1}, v{U}',
             (f's_add_u32 s88, s{sHP}, {4096*tile}' if tile < 3 else f's_mov_b32 s88, s{sHSG}'),
             f's_nop 0',
             m32(A, AX, BX, False)]
        M = []
        for half in range(2):
            E = range(8)
            a = A + 8 * half
            M += [f'v_mul_f32 v{U+e}, v{a+e}, v{a+e}' for e in E]
            M += [f'v_fma_f32 v{U+e}, v{U+e}, v{vK1}, v{vK0}' for e in E]
            M += [f'v_mul_f32 v{U+e}, v{a+e}, v{U+e}' for e in E]
            M += [f'v_exp_f32 v{U+e}, v{U+e}' for e in E]
            M += [f'v_fma_f32 v{U+e}, v{U+e}, v{vRI}, v{vRI}' for e in E]
            M += [f'v_rcp_f32 v{U+e}, v{U+e}' for e in E]
            M += [f'v_mul_f32 v{U+e}, v{a+e}, v{U+e}' for e in E]
            M += [f'v_cvt_pk_bf16_f32 v{PK+e}, v{U+2*e}, v{U+2*e+1}' for e in range(4)]
            if 'nost' not in cfg.exp: M.append(lambda half=half: P.V(f'buffer_store_dwordx4 v[{PK}:{PK+3}], v{vHS}, s[{sWS}:{sWS+3}], s88 offen offset:{1024*half}{cfg.sc}', stag))
        return L, M
    AH = 3
    def barrier_B(j):
        P.wait_vm(('t', j), ('h', j + 1))
        P.wait_lg('csw')
        stamp(P, cfg, f'B{j}w'); P.I('s_barrier'); stamp(P, cfg, f'B{j}b')
    def period(j):
        D = []
        for s in range(28):
            gs = 28 * j + s
            if s == 1:
                barrier_B(j)
                if j == 1: P.D(f'ds_read_b64 v[{U+4}:{U+5}], v{vSTR}', 'str')
                pre, main = e_ops(j - 1, 'stA' if j <= 2 else 'st')
                if j == 1: F.add(stats_ops() + [lambda: flag_prefetch(P, cfg)])
                F.add(pre)
                D = dmas(('B', j))
                if 'nodma' in cfg.exp: D = []
                if j == 3 and cfg.early_w: D = [lambda: s2_srd(P, cfg)] + s2_xy(P, 'X')
                h = len(main) // 2
                if j == 1: main.insert(cfg.sigpos, lambda D=D: stat_signal(len(D))); h += 1
                if j < 3: F.add([lambda D=D: site(P, sG, 0, D, False)] + main[:h] + [lambda D=D: site(P, sG, 1, D, True)] + main[h:])
                else:
                    k = len(main) // (len(D) + 1); mix = []
                    for i, m in enumerate(main):
                        if D and i % k == 0: mix.append(D.pop(0))
                        mix.append(m)
                    F.add(mix + D)
            rd(gs + AH)
            left = 28 - s
            budget = 0 if s < 3 else max(8, int(F.total() / (left + 0.5 * ((27 - s) // 4 + 1)) + 3))
            mstep(gs, budget)
        F.flush()
        cs_write(j)
        stamp(P, cfg, f'T{j}e')
    period(1)
    period(2)
    flag_check(P, 'm')
    P.I(f's_cmp_eq_u32 s{sG}, 0\ns_cbranch_scc0 L_mlp_g1')
    st0 = P.state()
    period(3)
    P.wait_vm('stA'); P.wait_lg('csw'); P.I('s_barrier'); stamp(P, cfg, 'B4b')
    pre, main = e_ops(3, 'st')
    F.add(pre + main); F.flush()
    stamp(P, cfg, 'end')
    if cfg.hook_late: cfg.hook_late(P)
    YQ = s2_xy(P, 'Y') if cfg.early_w else []
    for f in YQ[:cfg.ypre]: f()
    publish2(P, cfg, 1, 'g0', 4, tags=('st',))
    for f in YQ[cfg.ypre:]: f()
    stamp(P, cfg, 'pub'); stamp_flush(P, cfg)
    P.I(f's_branch {after}')
    P.restore(st0)
    P.label('L_mlp_g1')
    barrier_B(3)
    pre, main = e_ops(2, 'st')
    F.add(pre + main); F.flush()
    stamp(P, cfg, 'T3e')
    if cfg.early_w:
        s2_srd(P, cfg)
        for f in s2_xy(P, 'X'): f()
    P.wait_vm('stA'); P.lg0(); P.I('s_barrier'); stamp(P, cfg, 'B4b')
    publish2(P, cfg, 0, 'gA', 4, barrier=False, tags=())
    stamp(P, cfg, 'end')
    if cfg.early_w:
        for f in s2_xy(P, 'Y'): f()
    if cfg.hook_late: cfg.hook_late(P)
    publish2(P, cfg, 1, 'g1', 4, tags=('st',))
    stamp(P, cfg, 'pub'); stamp_flush(P, cfg)
    P.I(f's_branch {after}')

def att_v2(P, cfg, after):
    if 'noatt' in cfg.exp:
        P.L.append('; SETUP_END'); P.I('s_endpgm'); return
    sPP, sHH, sOB, sWC, sPFI = 74, 75, 76, 77, 78
    AREA = 40960; HALO = 3 * AREA
    AM = HALO + 14336
    ST_LDS = AM
    HS_LDS = AM + 2048
    CS_LDS = HALO
    R_LDS = AM + 6144
    EX_LDS = 131072
    HP_LDS = 131072
    vWD, vHD = 4, 5
    vXa = [6, 7, 8, 9]; vWa = [10, 11, 12, 13]; vXh = 14; vT = 15
    AQ, AK, AV = 24, 40, 56
    KH, VH = 72, 80
    CSA = 88
    SEL, ONES = 100, 104
    MKP, MKC, MKP0 = 108, 112, 116
    SQ, SM, HQ, HM = 120, 122, 124, 126
    ME, MO = 128, 129; T = 130
    XH, XE, XO = 136, 140, 144
    FR = 148; NS = 4
    fr = lambda n, k: FR + 16 * (n % NS) + 4 * k
    if not cfg.fastx: xdma_addr(P, vT, vT + 1)
    wdma_addr(P, vWD, WQS, vT, 'zero' if cfg.zpad else True)
    P.I(f'''
    s_and_b32 s{sPP}, s{sWAVE}, 3
    s_lshr_b32 s{sHH}, s{sWAVE}, 2
    s_and_b32 s{sT2}, s{sWAVE}, 1
    s_lshl_b32 s{sT0}, s{sMT}, 7
    s_lshl_b32 s{sT1}, s{sT2}, 3
    s_add_u32 s{sT0}, s{sT0}, s{sT1}
    s_sub_u32 s{sT0}, s{sT0}, 16
    s_mul_i32 s{sT0}, s{sT0}, {XB}
    v_lshrrev_b32 v{vT}, 3, v{vLANE}
    v_mul_u32_u24 v{vT+2}, {XB}, v{vT}
    v_add_u32 v{vT+2}, s{sT0}, v{vT+2}
    v_lshrrev_b32 v{vT+1}, 4, v{vLANE}
    v_xor_b32 v{vT+1}, v{vT+1}, v{vLANE}
    s_lshl_b32 s{sT1}, s{sT2}, 2
    v_xor_b32 v{vT+1}, s{sT1}, v{vT+1}
    v_and_b32 v{vT+1}, 7, v{vT+1}
    v_lshl_add_u32 v{vHD}, v{vT+1}, 4, v{vT+2}
    s_mul_i32 s{sWC}, s{sSUB}, 112
    s_nop 0
    ''')
    if not cfg.fastx: srd(P, sX, 4, 2048 * XB)
    srd(P, sW, 6, 448 * WQS)
    def chunk_dmas(c):
        a = ((c + 2) % 3) * AREA; L = []
        def fx(i): dmax(P, c, a, i, ('c', c))
        def fw(p):
            P.I(f's_add_u32 m0, s{sWW}, {a + 16384 + p*8192 - p*896}')
            if p == 0: P.I(f's_mul_i32 s89, s{sKX[c]}, {64*WQS//128}\ns_add_u32 s89, s89, s{sWC}')
            P.V(f'buffer_load_dwordx4 v{vWD}, s[{sW}:{sW+3}], s89 offen offset:{p*896}{cfg.wnt} lds', ('c', c))
        if 'attidle' in cfg.exp: return []
        return [lambda: fx(0), lambda: fx(1), lambda: fw(0), lambda: fw(1), lambda: fw(2)]
    rot_first(P, cfg, 1)
    C0 = chunk_dmas(0)[2:]
    for _ in range(min(3, cfg.a0e)): C0.pop(0)()
    def halo_dma():
        P.I(f'''
    s_lshr_b32 s{sT0}, s{sWAVE}, 1
    s_lshl_b32 s{sT0}, s{sT0}, 7
    s_add_u32 s{sT0}, s{sT0}, s{sKX[0]}
    s_sub_u32 s{sT1}, s{sT0}, 896
    s_cmp_ge_u32 s{sT0}, 896
    s_cselect_b32 s{sT0}, s{sT1}, s{sT0}
    s_add_u32 m0, s{sWW}, {HALO}
    ''')
        P.V(f'buffer_load_dwordx4 v{vHD}, s[{sX}:{sX+3}], s{sT0} offen lds', ('c', 0))
        P.I(f'''
    s_cmp_lt_u32 s{sWAVE}, 6
    s_cselect_b32 s{sT1}, 512, 0
    s_cselect_b32 s{sT2}, 8192, 0
    s_add_u32 s{sT0}, s{sT0}, s{sT1}
    s_sub_u32 s{sT1}, s{sT0}, 896
    s_cmp_ge_u32 s{sT0}, 896
    s_cselect_b32 s{sT0}, s{sT1}, s{sT0}
    s_add_u32 s{sT2}, s{sT2}, s{sWW}
    s_add_u32 m0, s{sT2}, {HALO}
    ''')
        P.V(f'buffer_load_dwordx4 v{vHD}, s[{sX}:{sX+3}], s{sT0} offen lds', ('c', 0))
    if cfg.a0e >= 5: halo_dma()
    stamp(P, cfg, 'w0')
    rot_rest(P, 1, 7)
    if not cfg.noob: P.I('s_barrier')
    s1_prefetch(P, cfg, 1, vT)
    stamp(P, cfg, 'issued')
    srd(P, sWS, 24, WS_SIZE); srd(P, sDBG, 22, 256)
    frag_addrs(P, sPP, sHH, 56, vXa, vWa, vT, cfg.zpad)
    vROW = 240; i15, g4 = 241, 242
    P.I(f'''
    v_mov_b32 v{vROW}, v{vT}
    v_and_b32 v{i15}, 15, v{vLANE}
    v_lshrrev_b32 v{g4}, 4, v{vLANE}
    v_lshrrev_b32 v{vT}, 1, v{i15}
    v_lshrrev_b32 v{vT+1}, 5, v{vLANE}
    v_xor_b32 v{vT}, v{vT}, v{vT+1}
    s_xor_b32 s{sT0}, s{sT2}, 1
    s_lshl_b32 s{sT0}, s{sT0}, 1
    v_xor_b32 v{vT}, s{sT0}, v{vT}
    v_lshlrev_b32 v{vT}, 4, v{vT}
    v_lshl_add_u32 v{vT}, v{i15}, 7, v{vT}
    v_add_u32 v{vXh}, {HALO}, v{vT}
    v_and_b32 v{MO}, 1, v{g4}
    v_add_u32 v{ME}, -1, v{MO}
    v_not_b32 v{MO}, v{ME}
    ''')
    for s in range(4): P.I(f'v_add_u32 v{vWa[s]}, {16384 + 2*AREA}, v{vWa[s]}\nv_add_u32 v{vXa[s]}, {2*AREA}, v{vXa[s]}')
    make_sel(P, SEL, vT)
    for i in range(4): P.I(f'v_mov_b32 v{ONES+i}, 0x3f803f80')
    P.I(f'v_lshlrev_b32 v{vT}, 2, v{g4}\nv_sub_u32 v{vT}, v{i15}, v{vT}\nv_mov_b32 v{vT+3}, {f32(NEG)}')
    for v in range(4):
        P.I(f'''
        v_subrev_u32 v{vT+1}, {v}, v{vT}
        v_and_b32 v{vT+2}, 0xfffffff1, v{vT+1}
        v_cmp_eq_u32 vcc, 0, v{vT+2}
        v_cndmask_b32 v{MKC+v}, v{vT+3}, 0, vcc
        v_add_u32 v{vT+1}, 16, v{vT+1}
        v_and_b32 v{vT+2}, 0xfffffff1, v{vT+1}
        v_cmp_eq_u32 vcc, 0, v{vT+2}
        v_cndmask_b32 v{MKP+v}, v{vT+3}, 0, vcc
        ''')
    P.I(f's_or_b32 s{sT0}, s{sMT}, s{sPP}\ns_cmp_eq_u32 s{sT0}, 0\ns_cselect_b64 vcc, -1, 0')
    for v in range(4): P.I(f'v_cndmask_b32 v{MKP0+v}, v{MKP+v}, v{vT+3}, vcc')
    P.I(f'''
    s_lshl_b32 s{sT0}, s{sMT}, 2
    s_add_u32 s{sT0}, s{sT0}, s{sPP}
    s_lshl_b32 s{sT0}, s{sT0}, 15
    s_lshl_b32 s{sT1}, s{sSUB}, 1
    s_add_u32 s{sT1}, s{sT1}, s{sHH}
    s_lshl_b32 s{sT1}, s{sT1}, 11
    s_add_u32 s{sOB}, s{sT0}, s{sT1}
    s_add_u32 s{sOB}, s{sOB}, {O_OFF}
    s_and_b32 s{sPFI}, s{sJ}, 15
    s_lshl_b32 s{sPFI}, s{sPFI}, 3
    s_add_u32 s{sPFI}, s{sPFI}, s{sWAVE}
    s_mul_i32 s{sPFI}, s{sPFI}, {cfg.pfn}
    v_lshlrev_b32 v{vT+8}, 7, v{vLANE}
    ''')
    aST, aHSW, aHSR, aCSW, aCSR, aHPW, aHPR, aRW = 236, 237, 238, 239, 243, 244, 245, 246
    aRR, aRHW, aRHR, aEXW, aEXR, aEXH, vO = 247, 248, 134, 135, 16, 17, 18
    aEXR, aEXH, vO, mLO, mS, m48 = 19, 20, 21, 22, 251, 5
    P.I(f'''
    s_mul_i32 s{sT0}, s{sHH}, 1536
    s_add_u32 s{sT0}, s{sT0}, {CS_LDS}
    v_and_b32 v{vT}, 31, v{vLANE}
    v_lshlrev_b32 v{aCSR}, 4, v{vT}
    v_add_u32 v{aCSR}, s{sT0}, v{aCSR}
    s_lshl_b32 s{sT1}, s{sPP}, 2
    v_add_u32 v{aCSW}, s{sT1}, v{aCSR}
    v_lshlrev_b32 v{vT+1}, 4, v{vLANE}
    s_lshl_b32 s{sT0}, s{sHH}, 14
    s_add_u32 s{sT0}, s{sT0}, {HP_LDS}
    s_lshl_b32 s{sT1}, s{sPP}, 10
    s_add_u32 s{sT1}, s{sT1}, s{sT0}
    v_add_u32 v{aHPW}, s{sT1}, v{vT+1}
    s_lshl_b32 s{sT1}, s{sPP}, 12
    s_add_u32 s{sT1}, s{sT1}, s{sT0}
    v_add_u32 v{aHPR}, s{sT1}, v{vT+1}
    s_lshl_b32 s{sT0}, s{sPP}, 7
    v_lshrrev_b32 v{aRR}, 5, v{vLANE}
    v_add_u32 v{mLO}, -1, v{aRR}
    v_lshlrev_b32 v{aRR}, 4, v{aRR}
    v_add_u32 v{aRR}, s{sT0}, v{aRR}
    s_lshl_b32 s{sT0}, s{sHH}, 13
    s_add_u32 s{sT0}, s{sT0}, {EX_LDS}
    s_lshr_b32 s{sT1}, s{sPP}, 1
    s_lshl_b32 s{sT1}, s{sT1}, 10
    s_and_b32 s{sT2}, s{sPP}, 1
    s_lshl_b32 s{sT2}, s{sT2}, 3
    s_add_u32 s{sT1}, s{sT1}, s{sT2}
    s_add_u32 s{sT1}, s{sT1}, s{sT0}
    v_add_u32 v{aEXH}, s{sT1}, v{vT+1}
    s_lshl_b32 s{sT1}, s{sPP}, 11
    s_add_u32 s{sT0}, s{sT0}, s{sT1}
    v_add_u32 v{aEXR}, s{sT0}, v{vT+1}
    s_add_u32 s{sT0}, s{sT0}, 2048
    s_cmp_eq_u32 s{sPP}, 3
    s_cselect_b32 s{sT0}, {EX_LDS + 16384}, s{sT0}
    v_add_u32 v{aEXW}, s{sT0}, v{vT+1}
    v_lshlrev_b32 v{vO}, 9, v{g4}
    v_lshl_add_u32 v{vO}, v{i15}, 4, v{vO}
    s_and_b32 s{sT0}, s{sPP}, 1
    s_sub_u32 s{sT0}, 0, s{sT0}
    v_xor_b32 v{mS}, s{sT0}, v{ME}
    v_and_b32 v{mS}, v{mS}, v{mLO}
    ''')
    def w2pf(c):
        u = P.uid()
        P.I(f'''
        s_add_u32 s{sT0}, s{sPFI}, {c}
        s_mul_i32 s{sT1}, s{sT0}, {cfg.pfl*128}
        s_mov_b32 s{sW2}, s16
        s_mov_b32 s{sW2+1}, s17
        s_mov_b32 s{sW2+2}, {1792*XB}
        s_mov_b32 s{sW2+3}, 0x20000
        s_cmp_lt_u32 s{sT0}, {-(-12544//cfg.pfl)}
        s_cbranch_scc1 L_pf{u}
        s_mov_b32 s{sW2}, s8
        s_mov_b32 s{sW2+1}, s9
        s_mov_b32 s{sW2+2}, {448*XB}
        s_sub_u32 s{sT1}, s{sT1}, {-(-12544//cfg.pfl)*cfg.pfl*128}
        L_pf{u}:
        s_mov_b64 exec, {(1 << cfg.pfl) - 1:#x}
        ''')
        P.V(f'buffer_load_dword v{vPF}, v{vT+8}, s[{sW2}:{sW2+3}], s{sT1} offen', 'pf')
        P.I('s_mov_b64 exec, -1')
    sSC, sSB = 79, 26
    R, M, RH, MH = 120, 121, 122, 123
    RR, SC = 212, 228
    RR, SC = 180, 124
    def st_poll():
        flag_check(P, 'a')
        P.I(f'''
        s_lshl_b32 s{sT0}, s{sSUB}, 11
        s_lshl_b32 s{sT1}, s{sMT}, 7
        s_add_u32 s{sSC}, s{sT0}, s{sT1}
        s_add_u32 s{sSC}, s{sSC}, {CNT_OFF + 8192}
        s_cmp_eq_u32 s{sMT}, 0
        s_cselect_b32 s{sT1}, 0, 128
        v_mov_b32 v{T}, s{sT1}
        v_and_b32 v{T}, v{mLO}, v{T}
        v_sub_u32 v{T}, s{sSC}, v{T}
        ''')
        svc_load(P, T + 1, sWS, '0', T)
    def st_check():
        if 'nomlp' in cfg.exp: return
        u = svc_begin(P)
        spin(P, T + 1, sWS, '0', cfg.stat_expect, T)
        svc_end(P, u)
    def st_loads():
        P.I(f'''
        s_lshl_b32 s{sT0}, s{sSUB}, 14
        s_lshl_b32 s{sT1}, s{sMT}, 9
        s_add_u32 s{sSB}, s{sT0}, s{sT1}
        s_add_u32 s{sSB}, s{sSB}, {STAT_OFF}
        s_add_u32 s{sT1}, s{sSB}, 8192
        v_lshlrev_b32 v{T}, 2, v{vROW}
        s_cmp_eq_u32 s{sMT}, 0
        s_cselect_b32 s{sT2}, 0x40000000, -64
        v_lshlrev_b32 v{T+1}, 2, v{i15}
        v_add_u32 v{T+1}, s{sT2}, v{T+1}
        v_lshlrev_b32 v{T+2}, 4, v{g4}
        v_add_u32 v{T+2}, s{sT2}, v{T+2}
        v_add_u32 v{T+1}, s{sSB}, v{T+1}
        v_add_u32 v{T+2}, s{sSB}, v{T+2}
        ''')
        ws = f's[{sWS}:{sWS+3}]'
        P.V(f'buffer_load_dword v{R}, v{T}, {ws}, s{sSB} offen sc1', 'sl')
        P.V(f'buffer_load_dword v{M}, v{T}, {ws}, s{sT1} offen sc1', 'sl')
        P.V(f'buffer_load_dword v{RH}, v{T+1}, {ws}, 0 offen sc1', 'sl')
        P.I(f'v_add_u32 v{T+3}, 8192, v{T+1}')
        P.V(f'buffer_load_dword v{MH}, v{T+3}, {ws}, 0 offen sc1', 'sl')
        P.V(f'buffer_load_dwordx4 v[{SC}:{SC+3}], v{T+2}, {ws}, 0 offen sc1', 'sl')
        for q in range(4): P.V(f'buffer_load_dwordx4 v[{RRG+4*q}:{RRG+4*q+3}], v{aRR}, {ws}, s{sSB} offen offset:{32*q} sc1', 'sl')
    RRG = 212
    def reads(n):
        c, s = divmod(n, 4); L = []
        L.append(lambda: P.D(f'ds_read_b128 v[{fr(n,0)}:{fr(n,0)+3}], v{vXa[s]}', ('r', n)))
        for p in range(3):
            d = fr(n, 1 + p)
            L.append(lambda d=d, p=p: P.D(f'ds_read_b64_tr_b16 v[{d}:{d+1}], v{vWa[s]} offset:{p*8192}', ('r', n)))
            L.append(lambda d=d, p=p: P.D(f'ds_read_b64_tr_b16 v[{d+2}:{d+3}], v{vWa[s]} offset:{p*8192+512}', ('r', n)))
        if s == 1: L.append(lambda: P.D(f'ds_read_b128 v[{XH}:{XH+3}], v{vXh} offset:{c*2048}', ('r', n)))
        delta = AREA if c % 3 else -2 * AREA
        if c < 6:
            L.append(f'v_add_u32 v{vXa[s]}, {delta & 0xffffffff:#x}, v{vXa[s]}')
            L.append(f'v_add_u32 v{vWa[s]}, {delta & 0xffffffff:#x}, v{vWa[s]}')
        return L
    def run(L, k):
        for _ in range(k):
            if L:
                x = L.pop(0)
                if callable(x): x()
                else: P.I(x)
    F = Filler(P)
    s2_early_setup(P, vT)
    if not cfg.prof: s2_tables(P, cfg)
    if cfg.dpf: dpf_setup(P); P.I(f'v_lshlrev_b32 v236, 4, v{vLANE}')
    stamp(P, cfg, 'setup')
    for f in C0: f()
    if cfg.a0e < 5: halo_dma()
    P.I(f'v_subrev_u32 v{m48}, 48, v{vLANE}\nv_ashrrev_i32 v{m48}, 31, v{m48}')
    for f in chunk_dmas(1): f()
    P.L.append('; SETUP_END')
    P.wait_vm(('c', 0)); P.I('s_barrier'); stamp(P, cfg, 'c0b')
    for n in (0, 1): run(reads(n), 99)
    for f in chunk_dmas(2): f()
    DQ = []
    global NOM16
    NOM16 = 'a_nom16' in cfg.exp
    for n in range(28):
        c, s = divmod(n, 4); first = n == 0
        if s == 2 and c < 6:
            P.wait_vm(('c', c + 1)); P.wait_lg(('r', n + 1))
            P.I('s_barrier'); stamp(P, cfg, f'c{c+1}b')
            DQ = chunk_dmas(c + 3) if c + 3 < 7 else []
            if 'a_nodma' in cfg.exp: DQ = []
            if cfg.attpf and cfg.pf0 <= c < cfg.pf0 + cfg.pfn: DQ = DQ + [lambda c=c: w2pf(c - cfg.pf0)]
            if c == 5:
                s2_srd(P, cfg); DQ = DQ + s2_xy(P, 'X')
            if cfg.dpf and 1 <= c <= 5: DQ = DQ + [lambda c=c: dpf(P, c - 1, 232, 236)]
            if c == 2: flag_prefetch(P, cfg)
            if c == cfg.mallc: DQ = DQ + [lambda: mall_pf(P, vT + 8)]
        nxt = reads(n + 2) if n + 2 < 28 else []
        P.wait_lg(('r', n))
        x, wq, wk, wv = fr(n, 0), fr(n, 1), fr(n, 2), fr(n, 3)
        f1 = n == 1; f3 = n == 3
        if s == 1:
            F.flush()
            F.add([f'v_and_b32 v{XE+d}, v{ME}, v{XH+d}' for d in range(4)] + [f'v_and_b32 v{XO+d}, v{MO}, v{XH+d}' for d in range(4)])
        B = 32
        if n == cfg.st_poll: st_poll()
        if n == cfg.st_poll + 2:
            stamp(P, cfg, 'sc0'); st_check(); P.I('s_barrier'); stamp(P, cfg, 'sc1'); st_loads()
        P.I(m32(AQ, wq, x, first))
        if s == 2: site(P, sHH, 0, DQ, False)
        run(nxt, 3); F.emit(B)
        if s == 3: P.I(m16(CSA, SEL, wq, f3))
        P.I(m32(AK, wk, x, first))
        run(nxt, 3); F.emit(B)
        if s == 1: P.I(m16(KH, wk, XE, f1)); P.I(m16(KH + 4, wk, XO, f1)); F.emit(16)
        if s == 3: P.I(m16(CSA + 4, SEL, wk, f3))
        P.I(m32(AV, x, wv, first))
        run(nxt, 99); F.emit(B)
        if s == 1: P.I(m16(VH, XE, wv, f1)); P.I(m16(VH + 4, XO, wv, f1)); F.emit(16)
        if s == 3:
            P.I(m16(CSA + 8, SEL, wv, f3)); F.flush()
            site(P, sHH, 1, DQ, True); DQ = []
    NOM16 = False
    stamp(P, cfg, 'loop')
    t = vT
    for k in range(4): P.D(f'ds_write_b128 v{aHPW}, v[{KH+4*k}:{KH+4*k+3}] offset:{4096*k}', 'w')
    for p in range(3): P.D(f'ds_write_b32 v{aCSW}, v{CSA+4*p} offset:{512*p}', 'w')
    Fq = FR
    CP = Fq; AX = Fq + 16; BX = Fq + 28
    HA = KH
    QOP, KOP, VOP = 204, 212, 224
    BS = XE; RR = RRG
    RQ, RZ = T, T + 2
    qs = 28 ** -0.5 * LOG2E
    def negm_split(m, mask, d0, d1, tmp, zero):
        P.I(f'''
        v_and_b32 v{m}, v{mask}, v{m}
        v_sub_f32 v{m}, 0, v{m}
        v_cvt_pk_bf16_f32 v{d1}, v{m}, v{zero}
        v_lshlrev_b32 v{tmp}, 16, v{d1}
        v_sub_f32 v{tmp}, v{m}, v{tmp}
        v_cvt_pk_bf16_f32 v{d0}, v{m}, v{tmp}
        ''')
    for p in range(3): P.I(f'v_mov_b32 v{AX+4*p+2}, 0\nv_mov_b32 v{AX+4*p+3}, 0')
    P.I(f'v_mov_b32 v{BX+2}, 0\nv_mov_b32 v{BX+3}, 0\nv_mov_b32 v{BS+2}, 0\nv_mov_b32 v{BS+3}, 0')
    P.wait_vm('sl', 'X')
    negm_split(M, mLO, BX, BX + 1, t, BX + 3)
    negm_split(MH, mS, BS, BS + 1, t, BX + 3)
    P.I(f'v_mul_f32 v{RQ}, {f32(qs)}, v{R}\nv_and_b32 v{RZ}, v{mLO}, v{RQ}')
    P.lg0(); P.I('s_barrier'); stamp(P, cfg, 'e1')
    for p in (2, 1, 0): P.D(f'ds_read_b128 v[{CP+4*p}:{CP+4*p+3}], v{aCSR} offset:{512*p}', ('b', p))
    for k in range(4): P.D(f'ds_read_b128 v[{HA+4*k}:{HA+4*k+3}], v{aHPR} offset:{1024*k}', 'hp')
    P.lg0(); P.I('s_barrier')
    P.I(f'v_mov_b32 v{t}, {GO_LDS}')
    P.D(f'ds_write_b32 v{t}, v{BX+3}', 'z')
    XQ = s2_xy(P, 'Y')
    run(XQ, 2)
    for p in (2, 1, 0):
        P.wait_lg(('b', p))
        c = CP + 4 * p; a = AX + 4 * p
        P.I(f'''
        v_add_f32 v{c}, v{c}, v{c+1}
        v_add_f32 v{c+2}, v{c+2}, v{c+3}
        v_add_f32 v{c}, v{c}, v{c+2}
        v_cvt_pk_bf16_f32 v{a}, v{c}, v{c}
        v_lshlrev_b32 v{c+1}, 16, v{a}
        v_sub_f32 v{c+1}, v{c}, v{c+1}
        v_cvt_pk_bf16_f32 v{a+1}, v{c+1}, v{BX+3}
        ''')
        run(XQ, 1)
        P.I(m32(AV, BX, AX + 8, False) if p == 2 else m32(AK, AX + 4, BX, False) if p == 1 else m32(AQ, AX, BX, False))
    P.wait_lg('hp')
    pr = lambda r: f'v[{r}:{r+1}]'
    for e in (0, 2): P.I(f'v_pk_add_f32 {pr(HA+e)}, {pr(HA+e)}, {pr(HA+4+e)}')
    for e in (0, 2): P.I(f'v_pk_add_f32 {pr(HA+8+e)}, {pr(HA+8+e)}, {pr(HA+12+e)}')
    for e in (0, 2): P.I(f'v_pk_add_f32 {pr(HA+e)}, {pr(HA+e)}, {pr(HA+8+e)}')
    run(XQ, 3)
    P.I(f's_cmp_lt_u32 s{sPP}, 2\ns_cbranch_scc0 L_hv')
    P.I(m16(HA, AX + 4, BS, False))
    P.I('s_branch L_hd')
    P.label('L_hv')
    P.I(m16(HA, BS, AX + 8, False))
    P.label('L_hd')
    pmap = [0, 1, 4, 5, 2, 3, 6, 7]
    pr = lambda r: f'v[{r}:{r+1}]'
    def pack_T(acc, dst, r, rz):
        if 'a_nopack' in cfg.exp: return
        for v in range(0, 16, 2): P.I(f'v_pk_mul_f32 {pr(acc+v)}, {pr(acc+v)}, {pr(rz if v >= 12 else r)} op_sel_hi:[1,0]')
        for i in range(8): P.I(f'v_cvt_pk_bf16_f32 v{dst+pmap[i]}, v{acc+2*i}, v{acc+2*i+1}')
        for i in range(4): P.I(f'v_permlane32_swap_b32 v{dst+i}, v{dst+4+i}')
        for i in range(4): P.I(f'v_permlane16_swap_b32 v{dst+i}, v{dst+4+i}')
    for v in range(0, 16, 2): P.I(f'v_pk_mul_f32 {pr(AV+v)}, {pr(AV+v)}, {pr(RR+v)}')
    vmap = [VOP + 2, VOP + 3, VOP + 8, VOP + 9, VOP + 4, VOP + 5, VOP + 10, VOP + 11]
    for i in range(8): P.I(f'v_cvt_pk_bf16_f32 v{vmap[i]}, v{AV+2*i}, v{AV+2*i+1}')
    for i in range(2, 6): P.I(f'v_permlane32_swap_b32 v{VOP+i}, v{VOP+6+i}')
    for i in range(2, 6): P.I(f'v_permlane16_swap_b32 v{VOP+i}, v{VOP+6+i}')
    for tt in range(2): P.D(f'ds_write_b64 v{aEXW}, v[{VOP+6*tt+4}:{VOP+6*tt+5}] offset:{1024+8*tt}', 'x')
    pack_T(AK, KOP + 4, R, R)
    P.D(f'ds_write_b128 v{aEXW}, v[{KOP+8}:{KOP+11}]', 'x')
    P.I(f's_cmp_lt_u32 s{sPP}, 2\ns_cbranch_scc0 L_hv2')
    for v in (0, 2): P.I(f'v_pk_mul_f32 {pr(HA+v)}, {pr(HA+v)}, {pr(RH)} op_sel_hi:[1,0]')
    P.I('s_branch L_hd2')
    P.label('L_hv2')
    for v in (0, 2): P.I(f'v_pk_mul_f32 {pr(HA+v)}, {pr(HA+v)}, {pr(SC+v)}')
    P.label('L_hd2')
    P.I(f'v_cvt_pk_bf16_f32 v{HA+4}, v{HA}, v{HA+1}\nv_cvt_pk_bf16_f32 v{HA+5}, v{HA+2}, v{HA+3}')
    P.D(f'ds_write_b64 v{aEXH}, v[{HA+4}:{HA+5}]', 'x')
    P.lg0(); P.I('s_barrier'); stamp(P, cfg, 'e2')
    P.D(f'ds_read_b128 v[{KOP}:{KOP+3}], v{aEXR}', 'e')
    for tt in range(2): P.D(f'ds_read_b64 v[{VOP+6*tt}:{VOP+6*tt+1}], v{aEXR} offset:{1024+8*tt}', 'e')
    if cfg.hook_late: cfg.hook_late(P)
    pack_T(AQ, QOP, RQ, RZ)
    S = AK; PP = AK + 16; OO = AQ
    OB = [AQ, CSA]
    mfS = lambda d, a, b, c: f'v_mfma_f32_16x16x32_bf16 v[{d}:{d+3}], v[{a}:{a+3}], v[{b}:{b+3}], v[{c}:{c+3}]'
    P.lg0()
    P.I(mfS(S + 8, KOP + 4, QOP + 4, MKP)); P.I(mfS(S + 12, KOP + 8, QOP + 4, MKC)); P.I(mfS(S + 4, KOP + 4, QOP, MKC)); P.I(mfS(S, KOP, QOP, MKP0))
    mx = [t + 1, t + 3]
    order = (1, 0)
    for bb in order:
        s = S + 8 * bb; m = mx[bb]
        P.I(f'''
        v_max3_f32 v{m}, v{s}, v{s+1}, v{s+2}
        v_max3_f32 v{m+1}, v{s+3}, v{s+4}, v{s+5}
        v_max3_f32 v{m}, v{m}, v{s+6}, v{s+7}
        v_max_f32 v{m}, v{m}, v{m+1}
        v_mov_b32 v{m+1}, v{m}
        ''')
    for bb in order: P.I(f'v_permlane16_swap_b32 v{mx[bb]}, v{mx[bb]+1}')
    for bb in order: P.I(f'v_max_f32 v{mx[bb]}, v{mx[bb]}, v{mx[bb]+1}\nv_mov_b32 v{mx[bb]+1}, v{mx[bb]}')
    for bb in order: P.I(f'v_permlane32_swap_b32 v{mx[bb]}, v{mx[bb]+1}')
    for bb in order: P.I(f'v_max_f32 v{mx[bb]}, v{mx[bb]}, v{mx[bb]+1}')
    for bb in order:
        s = S + 8 * bb; o = OB[bb]; p = PP + 4 * bb
        for v in range(0, 8, 2): P.I(f'v_pk_add_f32 {pr(s+v)}, {pr(s+v)}, {pr(mx[bb])} op_sel_hi:[1,0] neg_lo:[0,1] neg_hi:[0,1]')
        for v in range(8): P.I(f'v_exp_f32 v{s+v}, v{s+v}')
        for v in range(4): P.I(f'v_cvt_pk_bf16_f32 v{p+v}, v{s+2*v}, v{s+2*v+1}')
        P.I(m16(o + 8, ONES, p, True))
        for tt in range(2): P.I(m16(o + 4 * tt, VOP + 6 * tt + 2 * bb, p, True))
    for bb in order:
        o = OB[bb]
        P.I(f'v_rcp_f32 v{o+8}, v{o+8}')
        P.I(f'v_and_b32 v{o+10}, v{m48}, v{o+8}')
        for v in (0, 2): P.I(f'v_pk_mul_f32 {pr(o+v)}, {pr(o+v)}, {pr(o+8)} op_sel_hi:[1,0]')
        for v in (4, 6): P.I(f'v_pk_mul_f32 {pr(o+v)}, {pr(o+v)}, {pr(o+10)} op_sel_hi:[1,0]')
        for v in range(4): P.I(f'v_cvt_pk_bf16_f32 v{PP+4*bb+v}, v{o+2*v}, v{o+2*v+1}')
        P.V(f'buffer_store_dwordx4 v[{PP+4*bb}:{PP+4*bb+3}], v{vO}, s[{sWS}:{sWS+3}], s{sOB} offen offset:{256*bb}{cfg.sc}', 'st')
    stamp(P, cfg, 'end')
    assert not XQ
    stamp_flush(P, cfg)
    P.I(f's_branch {after}')
```

```python
from gen import *
from s2v2 import *
from s1v2 import (vPF, sKX, rot_first, rot_rest, dmax, wdma_addr, frag_addrs, make_sel, sq_ops, cost, Filler, site,
                  m32, m16, publish2, flag_check, atomic_inc, mall_pf)

pr = lambda r: f'v[{r}:{r+1}]'
AH = 3
def set_ah(n):
    global AH
    AH = n

class Eng:
    def __init__(self, P, cfg, XF, WF, NWF, vWa, vXa, wslot, xslot):
        self.__dict__.update(locals()); del self.__dict__['self']
        self.F = Filler(P); self.xq = list(range(28)); self.xwin = 0
    def rd(self, gs, nblk):
        blk, s = divmod(gs, 28)
        if blk >= nblk: return
        slot = self.wslot[(blk, s // 4)]; dst = self.WF + 4 * (gs % self.NWF)
        off = (slot % 8) * SLOT; a = self.vWa[slot // 8][s % 4]
        self.P.D(f'ds_read_b64_tr_b16 v[{dst}:{dst+1}], v{a} offset:{off}', ('w', gs))
        self.P.D(f'ds_read_b64_tr_b16 v[{dst+2}:{dst+3}], v{a} offset:{off+512}', ('w', gs))
    def xreads(self, n, maxchunk):
        for _ in range(n):
            if not self.xq or self.xq[0] // 4 > maxchunk: return
            g = self.xq.pop(0); c, s = divmod(g, 4)
            base = self.xslot[c] * SLOT; win = base // 65536
            if win != self.xwin:
                assert s == 0
                d = (win - self.xwin) * 65536
                for k in range(4): self.P.I(f'v_add_u32 v{self.vXa[k]}, {d & 0xffffffff:#x}, v{self.vXa[k]}')
                self.xwin = win
            d = self.XF + 4 * g
            self.P.D(f'ds_read_b128 v[{d}:{d+3}], v{self.vXa[s]} offset:{base % 65536}', ('x', g))
    def budget(self, s, extra):
        left = 28 - s
        return max(8, int(self.F.total() / (left + extra) + 3))

def stat_addr(P, d, t):
    P.I(f'''
    s_lshl_b32 s{d}, s{sSUB}, 14
    s_lshl_b32 s{t}, s{sMT}, 9
    s_add_u32 s{d}, s{d}, s{t}
    s_add_u32 s{d}, s{d}, {STAT_OFF}
    ''')
def statc_addr(P, d, t):
    P.I(f'''
    s_lshl_b32 s{d}, s{sSUB}, 11
    s_lshl_b32 s{t}, s{sMT}, 7
    s_add_u32 s{d}, s{d}, s{t}
    s_add_u32 s{d}, s{d}, {CNT_OFF + 8192}
    ''')

def w2pf_m(P, k, n, lanes, t):
    u = P.uid(); nw2 = -(-12544 // lanes)
    P.I(f'''
    s_lshl_b32 s{sT0}, s{sJ}, 3
    s_add_u32 s{sT0}, s{sT0}, s{sWAVE}
    s_mul_i32 s{sT0}, s{sT0}, {n}
    s_add_u32 s{sT0}, s{sT0}, {k}
    s_mul_i32 s{sT1}, s{sT0}, {lanes*128}
    s_mov_b32 s{sW2}, s16
    s_mov_b32 s{sW2+1}, s17
    s_mov_b32 s{sW2+2}, {1792*XB}
    s_mov_b32 s{sW2+3}, 0x20000
    s_cmp_lt_u32 s{sT0}, {nw2}
    s_cbranch_scc1 L_pf{u}
    s_mov_b32 s{sW2}, s8
    s_mov_b32 s{sW2+1}, s9
    s_mov_b32 s{sW2+2}, {448*XB}
    s_sub_u32 s{sT1}, s{sT1}, {nw2*lanes*128}
    L_pf{u}:
    s_mov_b64 exec, {-1 if lanes == 64 else (1 << lanes) - 1}
    ''')
    P.V(f'buffer_load_dword v{vPF}, v{t}, s[{sW2}:{sW2+3}], s{sT1} offen', 'pf')
    P.I('s_mov_b64 exec, -1')

def mlp_v3(P, cfg, after):
    if 'nomlp' in cfg.exp:
        init_zero(P, cfg, 224); P.L.append('; SETUP_END'); P.I('s_waitcnt vmcnt(0)'); init_flag(P, cfg, 224, 'a'); P.I('s_endpgm'); return
    sCOLP, sCOLS, sHP, sHSG, sBP, sBS, sG, sTT = 74, 75, 76, 77, 78, 79, 27, 26
    vWD, vWDs = 4, 5
    vWa = [[6 + 4 * w + s for s in range(4)] for w in range(3)]
    vXa = [18, 19, 20, 21]
    vHS, vCSW = 22, 23
    XF = 24; ACC = [136, 152]; WF = 168; NWF = 6
    CSA, SEL, BX, AX = 192, 196, 200, 204
    vK0, vK1, vRI = 208, 209, 210; BR = 211; vCSR, vSTW, vSTR = 215, 216, 217
    SQ = 218; SUMA = 220; T = 224; U = 228; PK = 236
    B3_LDS = 16 * SLOT; CS_LDS = B3_LDS + 28672; ST_LDS = CS_LDS + 2048; CNT_LDS = ST_LDS
    if not cfg.fastx: xdma_addr(P, T, T + 1)
    wdma_addr(P, vWD, W1S, T)
    P.I(f'''
    s_lshr_b32 s{sG}, s{sWAVE}, 2
    s_and_b32 s{sTT}, s{sWAVE}, 3
    s_and_b32 s{sT2}, s{sSUB}, 1
    s_mul_i32 s{sT0}, s{sSUB}, 448
    s_lshl_b32 s{sT1}, s{sT2}, 6
    s_add_u32 s{sCOLP}, s{sT0}, s{sT1}
    s_add_u32 s{sCOLS}, s{sT0}, 384
    s_sub_u32 s{sBS}, s{sT0}, 64
    s_cmp_eq_u32 s{sT2}, 0
    s_cselect_b32 s{sCOLS}, s{sCOLS}, s{sBS}
    s_add_u32 s{sBS}, s{sCOLS}, s{sT1}
    s_mov_b32 s{sCOLS}, s{sT0}
    v_add_u32 v{vWD}, s{sT1}, v{vWD}
    s_nop 0
    ''')
    if not cfg.fastx: srd(P, sX, 4, 2048 * XB)
    srd(P, sW, 12, 448 * W1S)
    xslot = {c: 2 * c for c in range(7)}
    wslot = {}
    for c, s in zip(range(7), [14, 15, 16, 17, 18, 0, 1]): wslot[(0, c)] = s
    for c, s in zip(range(7), [2, 3, 4, 5, 6, 7, 8]): wslot[(1, c)] = s
    for c, s in zip(range(7), [9, 10, 11, 12, 13, 14, 15]): wslot[(2, c)] = s
    for c, s in zip(range(7), [14, 15, 16, 17, 18, 8, 9]): wslot[(3, c)] = s
    kw_ready = [False]
    def dw(blk, c, tag):
        def f3():
            if c == 0: P.I('s_lshr_b64 exec, -1, 32')
            P.I(f's_add_u32 m0, s59, {B3_LDS + 4096*c}')
            P.V(f'buffer_load_dwordx4 v{vWDs}, s[{sW}:{sW+3}], s{52+c} offen{cfg.wnt} lds', tag)
            if c == 6: P.I('s_mov_b64 exec, -1')
        if blk == 3: return f3
        def f():
            slot = wslot[(blk, c)]
            off = 128 * blk if blk < 3 else 0
            if slot * SLOT < off:
                P.I(f's_add_u32 m0, s{sWW}, {slot*SLOT}\ns_mul_i32 s{sT0}, s{sKX[c]}, {64*W1S//128}\ns_add_u32 s{sT0}, s{sT0}, s{sCOLS}\ns_add_u32 s{sT0}, s{sT0}, {off}')
                off = 0
            else:
                if kw_ready[0]:
                    P.I(f's_add_u32 m0, s{sWW}, {slot*SLOT - off}')
                    P.V(f'buffer_load_dwordx4 v{vWD}, s[{sW}:{sW+3}], s{52+c} offen offset:{off}{cfg.wnt} lds', tag); return
                P.I(f's_add_u32 m0, s{sWW}, {slot*SLOT - off}\ns_mul_i32 s{sT0}, s{sKX[c]}, {64*W1S//128}\ns_add_u32 s{sT0}, s{sT0}, s{sCOLS}')
            P.V(f'buffer_load_dwordx4 v{vWD if blk < 3 else vWDs}, s[{sW}:{sW+3}], s{sT0} offen offset:{off}{cfg.wnt} lds', tag)
        return f
    def dx(c, tag): return [lambda: dmax(P, c, xslot[c] * SLOT, 0, tag), lambda: dmax(P, c, xslot[c] * SLOT, 1, tag)]
    rot_first(P, cfg, 0)
    if not cfg.fastx:
        for f in dx(0, 'a'): f()
    rot_rest(P, 1, 7)
    dw(0, 0, 'a')()
    stamp(P, cfg, 'w0')
    if not cfg.noob: P.I('s_barrier')
    stamp(P, cfg, 'ob')
    init_zero(P, cfg, T)
    C1 = dx(1, 'a1') + [dw(0, 1, 'a1')]
    for _ in range(cfg.c1e): C1.pop(0)()
    srd(P, sB1, 14, 1792 * 2)
    P.I(f'''
    s_lshl_b32 s{sT0}, s{sMT}, 2
    s_add_u32 s{sT0}, s{sT0}, s{sTT}
    s_mul_i32 s{sT0}, s{sT0}, {112*1024}
    s_lshl_b32 s{sT2}, s{sBS}, 5
    s_add_u32 s{sHSG}, s{sT0}, s{sT2}
    s_lshl_b32 s{sT2}, s{sG}, 6
    s_add_u32 s{sBP}, s{sCOLP}, s{sT2}
    s_lshl_b32 s{sT2}, s{sBP}, 5
    s_add_u32 s{sHP}, s{sT0}, s{sT2}
    v_and_b32 v{U}, 31, v{vLANE}
    v_lshlrev_b32 v{U+1}, 1, v{U}
    ''')
    frag_addrs(P, sTT, sG, 64, vXa, vWa[0], T)
    for w in (1, 2):
        for s in range(4): P.I(f'v_add_u32 v{vWa[w][s]}, {65536*w}, v{vWa[0][s]}')
    Q0 = dx(2, 'a2') + [dw(0, 2, 'a2')] + dx(3, 'b') + [dw(0, 3, 'b')] + dx(4, 'b') + [dw(0, 4, 'b')] + dx(5, 'c') + dx(6, 'c')
    for _ in range(cfg.ni0): Q0.pop(0)()
    P.I(f'''
    v_lshlrev_b32 v{vHS}, 4, v{vLANE}
    s_lshl_b32 s{sT2}, s{sG}, 9
    s_add_u32 s{sT2}, s{sT2}, {CS_LDS}
    v_lshlrev_b32 v{vCSR}, 4, v{U}
    v_add_u32 v{vCSR}, s{sT2}, v{vCSR}
    s_lshl_b32 s{sT2}, s{sTT}, 2
    v_add_u32 v{vCSW}, s{sT2}, v{vCSR}
    v_lshlrev_b32 v{T}, 3, v{T}
    s_lshl_b32 s{sT2}, s{sG}, 10
    s_add_u32 s{sT2}, s{sT2}, {ST_LDS}
    v_add_u32 v{vSTW}, s{sT2}, v{T}
    v_xor_b32 v{vSTR}, 0x400, v{vSTW}
    v_mov_b32 v{AX+3}, 0
    v_mov_b32 v{BX+3}, 0
    v_mov_b32 v{SQ}, 0
    v_mov_b32 v{SQ+1}, 0
    ''')
    make_sel(P, SEL, T)
    s2_early_setup(P, T)
    P.I(f'''
    v_lshrrev_b32 v{T}, 2, v{vLANE}
    s_lshl_b32 s{sT0}, s{sWAVE}, 3
    v_add_u32 v{T}, s{sT0}, v{T}
    v_mul_u32_u24 v{T}, {W1S}, v{T}
    v_and_b32 v{T+1}, 3, v{vLANE}
    v_lshl_add_u32 v{vWDs}, v{T+1}, 4, v{T}
    s_sub_u32 s{sT0}, s{sBS}, s{sCOLS}
    v_add_u32 v{vWDs}, s{sT0}, v{vWDs}
    s_lshr_b32 s59, s{sWW}, 1
    ''')
    for c in range(7): P.I(f's_mul_i32 s{52+c}, s{sKX[c]}, {64*W1S//128}\ns_add_u32 s{52+c}, s{52+c}, s{sCOLS}')
    kw_ready[0] = True
    P.I(f'v_lshlrev_b32 v244, 7, v{vLANE}')
    stamp(P, cfg, 'setup')
    for f in C1: f()
    stamp(P, cfg, 'issued')
    for t in range(3):
        P.V(f'buffer_load_ushort v{BR+t}, v{U+1}, s[{sB1}:{sB1+3}], s{sBP} offen offset:{128*t}', 'bias')
    P.V(f'buffer_load_ushort v{BR+3}, v{U+1}, s[{sB1}:{sB1+3}], s{sBS} offen', 'bias')
    E = Eng(P, cfg, XF, WF, NWF, vWa, vXa, wslot, xslot); F = E.F
    rd_std = E.rd
    def rd(gs, nblk):
        blk, s = divmod(gs, 28)
        if blk != 3: return rd_std(gs, nblk)
        dst = WF + 4 * (gs % NWF); off = 4096 * (s // 4)
        P.D(f'ds_read_b64_tr_b16 v[{dst}:{dst+1}], v{vXa[s%4]} offset:{off}', ('w', gs))
        P.D(f'ds_read_b64_tr_b16 v[{dst+2}:{dst+3}], v{vXa[s%4]} offset:{off+256}', ('w', gs))
    E.rd = rd
    b3_addr = f'''v_lshrrev_b32 v{T}, 5, v{vLANE}
        v_lshlrev_b32 v{T}, 3, v{T}
        v_bfe_u32 v{T+1}, v{vLANE}, 2, 2
        v_add_u32 v{T}, v{T}, v{T+1}
        v_lshlrev_b32 v{T}, 6, v{T}
        v_and_b32 v{T+1}, 16, v{vLANE}
        v_lshl_add_u32 v{T}, v{T+1}, 1, v{T}
        v_and_b32 v{T+1}, 3, v{vLANE}
        v_lshl_add_u32 v{T}, v{T+1}, 3, v{T}
        s_xor_b32 s{sT0}, s{sG}, s{sTT}
        s_lshl_b32 s{sT0}, s{sT0}, 10
        s_add_u32 s{sT0}, s{sT0}, {B3_LDS}
        v_add_u32 v{vXa[0]}, s{sT0}, v{T}
        v_xor_b32 v{vXa[1]}, 0x400, v{vXa[0]}
        v_xor_b32 v{vXa[2]}, 0x800, v{vXa[0]}
        v_xor_b32 v{vXa[3]}, 0xc00, v{vXa[0]}
        v_mov_b32 v{T}, {CNT_LDS}
        v_mov_b32 v{T+2}, 0
        v_mov_b32 v{T+3}, 0
        ds_write_b64 v{T}, v[{T+2}:{T+3}]
        ds_write_b32 v{T}, v{T+2} offset:8
        ds_write_b32 v{T}, v{T+2} offset:{GO_LDS - CNT_LDS}'''
    def arrive(tag='stA', w=0):
        P.wait_vm(tag)
        P.I(f'v_mov_b32 v{SQ}, {CNT_LDS + w}\nv_mov_b32 v{SQ+1}, 1\ns_mov_b64 exec, 1')
        P.D(f'ds_add_rtn_u32 v{SQ+1}, v{SQ}, v{SQ+1}', 'arr')
        P.I('s_mov_b64 exec, -1')
    def arrive_check(off=4096):
        u = P.uid()
        P.wait_lg('arr')
        P.I(f'v_readfirstlane_b32 s{sT0}, v{SQ+1}\ns_cmp_eq_u32 s{sT0}, 7\ns_cbranch_scc0 L_ar{u}')
        P.I(f's_lshl_b32 s{sT0}, s{sMT}, 7\ns_add_u32 s{sT0}, s{sT0}, {CNT_OFF + off}')
        atomic_inc(P, sT0)
        P.label(f'L_ar{u}')
    def bar(name, vm=(), lg=()):
        if vm: P.wait_vm(*vm)
        if lg: P.wait_lg(*lg)
        stamp(P, cfg, name + 'w'); P.I('s_barrier'); stamp(P, cfg, name + 'b')
    def cs_write(blk): P.D(f'ds_write_b32 v{vCSW}, v{CSA} offset:{1024*(blk%2)}', 'csw')
    def sites(D): return (lambda: site(P, sG, 0, D, False)), (lambda: site(P, sG, 1, D, True))
    P.L.append('; SETUP_END')
    bar('c0', vm=('a',))
    E.xreads(2, 0)
    for g in range(AH): E.rd(g, 4)
    E.xreads(2, 0)
    at = {}
    vis = 0
    for s in range(28):
        if s == 1:
            bar('a1', vm=('a1',)); vis = 1
            init_flag(P, cfg, PK, 'a')
        if s == 5: bar('a2', vm=('a2',)); vis = 2
        if s == 9:
            assert not Q0
            bar('Bb', vm=('b',), lg=(('x', 11),)); vis = 4
            for f in [dw(0, 5, 'c'), dw(0, 6, 'c'), dw(1, 0, 'c')]: f()
            flag_prefetch(P, cfg)
            at[10], at[13] = sites([dw(1, c, ('t', 1)) for c in range(1, 4)])
        if s == 17:
            bar('Bc', vm=('c',), lg=(('x', 19),)); vis = 6
            at[17], at[20] = sites([dw(1, c, ('t', 1)) for c in range(4, 7)] + [dw(2, 0, ('h', 2))])
        if s in at: at[s]()
        if s == cfg.malls and cfg.mallc >= 0: mall_pf(P, 244)
        E.rd(s + AH, 4)
        w = WF + 4 * (s % NWF); x = XF + 4 * s
        P.wait_lg(('w', s), ('x', s))
        if s % 2 == 0 and 'nosq' not in cfg.exp: F.add(sq_ops(x, T, SQ))
        P.I(m32(ACC[0], w, x, s == 0))
        E.xreads(2, vis)
        for _ in range(2):
            if Q0: Q0.pop(0)()
        F.emit(20)
        if s % 4 == 0: P.I(m16(CSA, SEL, w, s == 0))
        if s % 2 == 1: P.I(m16(SUMA, SEL, x - 4, s == 1))
        F.emit(12)
    F.flush()
    P.I(f'''
    v_add_f32 v{SQ}, v{SQ}, v{SQ+1}
    v_mov_b32 v{SQ+1}, v{SQ}
    v_permlane32_swap_b32 v{SQ}, v{SQ+1}
    v_add_f32 v{SQ+1}, v{SQ}, v{SQ+1}
    v_mov_b32 v{SQ}, v{SUMA}
    ''')
    P.D(f'ds_write_b64 v{vSTW}, v[{SQ}:{SQ+1}]', 'csw')
    cs_write(0)
    stamp(P, cfg, 'T0e')

    mark = [0]
    def stat_store():
        P.wait_vm('bias'); assert True
        mark[0] = P.vm.n
        u = P.uid()
        P.I(f's_cmp_eq_u32 s{sG}, 0\ns_cbranch_scc0 L_ss{u}')
        stat_addr(P, sT0, sT2)
        P.I(f'''
        v_subrev_u32 v{SUMA+1}, {ST_LDS}, v{vSTW}
        v_lshrrev_b32 v{SUMA+1}, 1, v{SUMA+1}
        s_add_u32 s{sT2}, s{sT0}, 8192
        buffer_store_dword v{SUMA}, v{SUMA+1}, s[{sWS}:{sWS+3}], s{sT0} offen sc1
        buffer_store_dword v{U+2}, v{SUMA+1}, s[{sWS}:{sWS+3}], s{sT2} offen sc1
        L_ss{u}:
        ''')
    def stats_ops():
        t = T; R, M, V = U, U + 2, U + 3
        L = [lambda: P.wait_lg('str')]
        L += f'''v_add_f32 v{M}, v{SQ}, v{U+4}
        v_add_f32 v{V}, v{SQ+1}, v{U+5}
        v_mul_f32 v{M}, {f32(1.0/448)}, v{M}
        v_mul_f32 v{V}, {f32(1.0/448)}, v{V}
        v_fma_f32 v{V}, -v{M}, v{M}, v{V}
        v_max_f32 v{V}, 0, v{V}
        v_add_f32 v{t}, {f32(EPS)}, v{V}
        v_rsq_f32 v{SUMA}, v{t}'''.split('\n        ')
        L += [stat_store]
        L += f'''v_cmp_gt_u32 vcc, 32, v{vLANE}
        v_mul_f32 v{t+2}, v{SUMA}, v{SUMA}
        v_mul_f32 v{t+2}, v{t+2}, v{V}
        v_add_f32 v{t+2}, {f32(EPS)}, v{t+2}
        v_rsq_f32 v{R}, v{t+2}
        v_mul_f32 v{t}, v{t}, v{t+2}
        v_sqrt_f32 v{vRI}, v{t}
        v_mul_f32 v{R}, v{R}, v{SUMA}
        v_mul_f32 v{vK0}, {f32(GK0)}, v{R}
        v_mul_f32 v{t}, v{R}, v{R}
        v_mul_f32 v{t}, v{t}, v{R}
        v_mul_f32 v{vK1}, {f32(GK1)}, v{t}
        v_cndmask_b32 v{t}, 0, v{M}, vcc
        v_cndmask_b32 v{t+1}, 0, v{vRI}, vcc
        v_sub_f32 v{t}, 0, v{t}
        v_cvt_pk_bf16_f32 v{BX+1}, v{t}, v{t+1}
        v_lshlrev_b32 v{t+2}, 16, v{BX+1}
        v_sub_f32 v{t+2}, v{t}, v{t+2}
        v_cvt_pk_bf16_f32 v{BX}, v{t}, v{t+2}
        v_and_b32 v{t+2}, 0xffff0000, v{BX+1}
        v_sub_f32 v{t+2}, v{t+1}, v{t+2}
        v_cvt_pk_bf16_f32 v{BX+2}, v{t+2}, v{BX+3}'''.split('\n        ')
        return L
    def e_ops(tile, stag):
        A = ACC[tile % 2]
        P.D(f'ds_read_b128 v[{PK}:{PK+3}], v{vCSR} offset:{1024*(tile%2)}', 'csr')
        L = [lambda: P.wait_vm('bias'),
             f'v_lshlrev_b32 v{U}, 16, v{BR+tile}', f'v_mov_b32 v{AX+2}, v{BR+tile}',
             lambda: P.wait_lg('csr'),
             f'v_add_f32 v{T}, v{PK}, v{PK+1}', f'v_add_f32 v{T+2}, v{PK+2}, v{PK+3}', f'v_add_f32 v{T}, v{T}, v{T+2}',
             f'v_cvt_pk_bf16_f32 v{AX}, v{T}, v{T}', f'v_lshlrev_b32 v{T+1}, 16, v{AX}', f'v_sub_f32 v{T+1}, v{T}, v{T+1}',
             f'v_cvt_pk_bf16_f32 v{AX+1}, v{T+1}, v{U}',
             (f's_add_u32 s88, s{sHP}, {4096*tile}' if tile < 3 else f's_mov_b32 s88, s{sHSG}'),
             f's_nop 0',
             m32(A, AX, BX, False)]
        M = []
        for half in (range(2) if (tile == 3 and cfg.pk3) else ()):
            a = A + 8 * half; pk = PK + 4 * half; R4 = range(0, 8, 2)
            M += [f'v_pk_mul_f32 {pr(U+e)}, {pr(a+e)}, {pr(a+e)}' for e in R4]
            M += [f'v_pk_fma_f32 {pr(U+e)}, {pr(U+e)}, {pr(vK0)}, {pr(vK0)} op_sel:[0,1,0] op_sel_hi:[1,1,0]' for e in R4]
            M += [f'v_pk_mul_f32 {pr(U+e)}, {pr(a+e)}, {pr(U+e)}' for e in R4]
            M += [f'v_exp_f32 v{U+e}, v{U+e}' for e in range(8)]
            M += [f'v_pk_fma_f32 {pr(U+e)}, {pr(U+e)}, {pr(vRI)}, {pr(vRI)} op_sel_hi:[1,0,0]' for e in R4]
            M += [f'v_rcp_f32 v{U+e}, v{U+e}' for e in range(8)]
            M += [f'v_pk_mul_f32 {pr(U+e)}, {pr(a+e)}, {pr(U+e)}' for e in R4]
            M += [f'v_cvt_pk_bf16_f32 v{pk+e}, v{U+2*e}, v{U+2*e+1}' for e in range(4)]
            M.append(lambda half=half, pk=pk: P.V(f'buffer_store_dwordx4 v[{pk}:{pk+3}], v{vHS}, s[{sWS}:{sWS+3}], s88 offen offset:{1024*half}{cfg.sc}', stag))
        for half in (() if (tile == 3 and cfg.pk3) else range(2)):
            R8 = range(8); a = A + 8 * half; pk = PK + 4 * half
            M += [f'v_mul_f32 v{U+e}, v{a+e}, v{a+e}' for e in R8]
            M += [f'v_fma_f32 v{U+e}, v{U+e}, v{vK1}, v{vK0}' for e in R8]
            M += [f'v_mul_f32 v{U+e}, v{a+e}, v{U+e}' for e in R8]
            M += [f'v_exp_f32 v{U+e}, v{U+e}' for e in R8]
            M += [f'v_fma_f32 v{U+e}, v{U+e}, v{vRI}, v{vRI}' for e in R8]
            M += [f'v_rcp_f32 v{U+e}, v{U+e}' for e in R8]
            M += [f'v_mul_f32 v{U+e}, v{a+e}, v{U+e}' for e in R8]
            M += [f'v_cvt_pk_bf16_f32 v{pk+e}, v{U+2*e}, v{U+2*e+1}' for e in range(4)]
            if 'nost' in cfg.exp: M.append('s_nop 0')
            else: M.append(lambda half=half, pk=pk: P.V(f'buffer_store_dwordx4 v[{pk}:{pk+3}], v{vHS}, s[{sWS}:{sWS+3}], s88 offen offset:{1024*half}{cfg.sc}', stag))
        if 'nogelu' in cfg.exp: M = [x for x in M if callable(x) or 'cvt' in x or 'exp' in x]
        return L, M
    def barrier_B(j):
        if j == 1: flag_check(P, 'm')
        bar(f'B{j}', vm=(('t', j), ('h', j + 1)) + (('stA0', 'X') if j == 3 else ()), lg=('csw',))
        if j == 3: publish2(P, cfg, 0, 'a0', 4, barrier=False, tags=())
    def stat_signal(nD):
        n = P.vm.n - mark[0]
        u = P.uid()
        P.I(f's_cmp_eq_u32 s{sG}, 0\ns_cbranch_scc0 L_sw{u}\ns_waitcnt vmcnt({n + nD})')
        statc_addr(P, sT0, sT2)
        atomic_inc(P, sT0)
        P.label(f'L_sw{u}')
    def period(j):
        for s in range(28):
            gs = 28 * j + s
            if s == 1:
                barrier_B(j)
                if j == 1: P.D(f'ds_read_b64 v[{U+4}:{U+5}], v{vSTR}', 'str')
                pre, main = e_ops(j - 1, 'stA0' if j == 1 else 'stA' if j == 2 else 'stA2')
                if j == 1: F.add(stats_ops())
                F.add(pre)
                if j == 1: D = [dw(2, c, ('t', 2)) for c in range(1, 7)] + [dw(3, 0, ('h', 3))] + [dw(3, c, ('t', 3)) for c in range(1, 7)]
                if j == 2:
                    s2_srd(P, cfg); D = s2_xy(P, 'X')
                    def b3f():
                        P.I(b3_addr); P.lg.issue('z'); P.lg.issue('z'); P.lg.issue('z')
                    F.q.insert(0, b3f)
                if j == 3: D = []
                h = len(main) // 2
                if j == 1: main.insert(min(cfg.sigpos, len(main) // 2 - 2), lambda D=D: stat_signal(0 if cfg.uni else len(D))); h += 1
                if j < 3 and not cfg.uni:
                    sa, sb = sites(D)
                    rest = main[h:]
                    if j == 1 and cfg.mallc >= 0 and cfg.malls < 0: rest.insert(2, lambda: mall_pf(P, 244))
                    if cfg.mlppf == j:
                        rest += [lambda: w2pf_m(P, 0, 2, 64, 244), lambda: w2pf_m(P, 1, 2, 64, 244)]
                    F.add([sa] + main[:h] + [sb] + rest)
                else:
                    k = max(1, int(len(main) * cfg.unif) // (len(D) + 1)); mix = []
                    for i, m in enumerate(main):
                        if D and i % k == 0: mix.append(D.pop(0))
                        mix.append(m)
                    F.add(mix + D)
            if j == 3 and s == cfg.apos: arrive()
            if j == 3 and s == cfg.apos + 3: arrive_check()
            E.rd(gs + AH, 4)
            b = 0 if s < 3 else E.budget(s, 0.5 * ((27 - s) // 4 + 1))
            w = WF + 4 * (gs % NWF); x = XF + 4 * s
            P.wait_lg(('w', gs))
            if cfg.alt and j < 3 and s % cfg.alt == 0:
                u = P.uid(); odd = (s // cfg.alt) % 2
                P.I(f's_setprio 0\ns_cmp_eq_u32 s{sG}, {odd}\ns_cbranch_scc0 L_pr{u}\ns_setprio 1\nL_pr{u}:')
            P.I(m32(ACC[j % 2], w, x, s == 0))
            F.emit(b)
            if s % 4 == 0:
                P.I(m16(CSA, SEL, w, s == 0)); F.emit(b // 2)
        F.flush()
        cs_write(j)
        stamp(P, cfg, f'T{j}e')
    period(1)
    period(2)
    if cfg.alt: P.I('s_setprio 0')
    P.I(f's_cmp_eq_u32 s{sG}, 0\ns_cbranch_scc0 L_mlp_g1')
    st0 = P.state()
    period(3)
    P.lg0()
    P.I(f'''
    v_mov_b32 v{SQ}, {CNT_LDS + 4}
    v_mov_b32 v{SQ+1}, 1
    s_mov_b64 exec, 1
    ds_add_u32 v{SQ}, v{SQ+1}
    s_mov_b64 exec, -1
    s_mov_b32 s{sT2}, {SPIN}
    L_g0s:
    ds_read_b32 v{SQ+1}, v{SQ}
    s_sub_u32 s{sT2}, s{sT2}, 1
    s_cbranch_scc1 L_g0x
    s_waitcnt lgkmcnt(0)
    v_readfirstlane_b32 s{sT0}, v{SQ+1}
    s_cmp_ge_u32 s{sT0}, 4
    s_cbranch_scc0 L_g0s
    L_g0x:
    ''')
    stamp(P, cfg, 'B4b')
    pre, main = e_ops(3, 'st')
    h = len(main) // 2
    if not cfg.noa2:
        main.insert(len(main) - 6, lambda: arrive_check(6144)); main.insert(h + cfg.a2off, lambda: arrive('stA2', 8))
    F.add(pre + main); F.flush()
    stamp(P, cfg, 'end')
    stamp_flush(P, cfg)
    P.I(f's_branch {after}')
    P.restore(st0)
    P.label('L_mlp_g1')
    barrier_B(3)
    pre, main = e_ops(2, 'stA2')
    XY = [f for pair in zip(s2_xy(P, 'Y', 2), s2_xy(P, 'Y')) for f in pair]
    k = len(main) // 9; mix = []
    for i, x in enumerate(main):
        if i and i % k == 0 and len(XY) > 8: mix.append(XY.pop(0))
        if i == len(main) * 7 // 12: mix.append(arrive)
        if i == len(main) * 8 // 12: mix.append(arrive_check)
        mix.append(x)
    F.add(pre + mix); F.flush()
    stamp(P, cfg, 'T3e')
    for f in XY: f()
    if not cfg.noa2: arrive('stA2', 8); arrive_check(6144)
    P.lg0()
    stamp(P, cfg, 'end')
    if cfg.hook_late: cfg.hook_late(P)
    stamp_flush(P, cfg)
    P.I(f's_branch {after}')

def att_v3(P, cfg, after):
    sPP, sHH, sOB, sWC, sSC, sSB = 74, 75, 76, 77, 79, 26
    vWD, vHD = 4, 5
    vWa = [[6 + 4 * w + s for s in range(4)] for w in range(3)]
    vXa = [18, 19, 20, 21]; vXh = 22; vL7 = 23
    XF = 24; AK, AV, AQ = 136, 152, 168; ACC = [AK, AV, AQ]
    WF = 184; NWF = 5
    KH, VH = 204, 212; CSA, SEL, XH, XE, XO = 220, 224, 228, 232, 236
    i15, g4, ME, mLO = 240, 241, 242, 243; T = 244; aCSW = 248; vROW = 251
    HALO = 12 * SLOT; CS_LDS = MISC; HP_LDS = 0; EX_LDS = 8 * SLOT; DUMMY = MISC + 4096
    part = [1, 2, 0]
    xdma_addr(P, T, T + 1)
    wdma_addr(P, vWD, WQS, T, True)
    P.I(f'''
    s_and_b32 s{sPP}, s{sWAVE}, 3
    s_lshr_b32 s{sHH}, s{sWAVE}, 2
    s_and_b32 s{sT2}, s{sWAVE}, 1
    s_lshl_b32 s{sT0}, s{sMT}, 7
    s_lshl_b32 s{sT1}, s{sT2}, 3
    s_add_u32 s{sT0}, s{sT0}, s{sT1}
    s_sub_u32 s{sT0}, s{sT0}, 16
    s_mul_i32 s{sT0}, s{sT0}, {XB}
    v_lshrrev_b32 v{T}, 3, v{vLANE}
    v_mul_u32_u24 v{T+2}, {XB}, v{T}
    v_add_u32 v{T+2}, s{sT0}, v{T+2}
    v_lshrrev_b32 v{T+1}, 4, v{vLANE}
    v_xor_b32 v{T+1}, v{T+1}, v{vLANE}
    s_lshl_b32 s{sT1}, s{sT2}, 2
    v_xor_b32 v{T+1}, s{sT1}, v{T+1}
    v_and_b32 v{T+1}, 7, v{T+1}
    v_lshl_add_u32 v{vHD}, v{T+1}, 4, v{T+2}
    s_mul_i32 s{sWC}, s{sSUB}, 112
    s_waitcnt lgkmcnt(0)
    ''')
    srd(P, sX, 4, 2048 * XB)
    srd(P, sW, 6, 448 * WQS)
    xslot = {c: 2 * c for c in range(6)}; xslot[6] = 0
    wslot = {}
    for c, s in zip(range(7), [14, 15, 16, 17, 18, 2, 3]): wslot[(0, c)] = s
    for c, s in zip(range(7), [4, 5, 6, 7, 8, 9, 10]): wslot[(1, c)] = s
    for c, s in zip(range(7), [11, 14, 15, 16, 17, 18, 12]): wslot[(2, c)] = s
    def dw(blk, c, tag):
        def f():
            off = 896 * part[blk]
            P.I(f's_add_u32 m0, s{sWW}, {wslot[(blk, c)]*SLOT - off}\ns_mul_i32 s{sT0}, s{sKX[c]}, {64*WQS//128}\ns_add_u32 s{sT0}, s{sT0}, s{sWC}')
            P.V(f'buffer_load_dwordx4 v{vWD}, s[{sW}:{sW+3}], s{sT0} offen offset:{off}{cfg.wnt} lds', tag)
        return f
    def dx(c, tag): return [lambda: dmax(P, c, xslot[c] * SLOT, 0, tag), lambda: dmax(P, c, xslot[c] * SLOT, 1, tag)]
    rot_first(P, cfg, 1)
    for f in dx(0, 'a'): f()
    dw(0, 0, 'a')()
    P.I(f'''
    s_lshr_b32 s{sT0}, s{sWAVE}, 1
    s_lshl_b32 s{sT0}, s{sT0}, 7
    s_add_u32 s{sT0}, s{sT0}, s{sKX[0]}
    s_sub_u32 s{sT1}, s{sT0}, 896
    s_cmp_ge_u32 s{sT0}, 896
    s_cselect_b32 s{sT0}, s{sT1}, s{sT0}
    s_add_u32 m0, s{sWW}, {HALO}
    ''')
    P.V(f'buffer_load_dwordx4 v{vHD}, s[{sX}:{sX+3}], s{sT0} offen lds', 'a')
    P.I(f'''
    s_cmp_lt_u32 s{sWAVE}, 6
    s_cselect_b32 s{sT1}, 512, 0
    s_cselect_b32 s{sT2}, 8192, 0
    s_add_u32 s{sT0}, s{sT0}, s{sT1}
    s_sub_u32 s{sT1}, s{sT0}, 896
    s_cmp_ge_u32 s{sT0}, 896
    s_cselect_b32 s{sT0}, s{sT1}, s{sT0}
    s_add_u32 s{sT2}, s{sT2}, s{sWW}
    s_add_u32 m0, s{sT2}, {HALO}
    ''')
    P.V(f'buffer_load_dwordx4 v{vHD}, s[{sX}:{sX+3}], s{sT0} offen lds', 'a')
    rot_rest(P, 1, 7)
    P.I('s_barrier')
    for f in dx(1, 'a1') + [dw(0, 1, 'a1')]: f()
    stamp(P, cfg, 'issued')
    srd(P, sWS, 24, WS_SIZE); srd(P, sDBG, 22, 256)
    frag_addrs(P, sPP, sHH, 56, vXa, vWa[0], T)
    for w in (1, 2):
        for s in range(4): P.I(f'v_add_u32 v{vWa[w][s]}, {65536*w}, v{vWa[0][s]}')
    P.I(f'''
    v_mov_b32 v{vROW}, v{T}
    v_and_b32 v{i15}, 15, v{vLANE}
    v_lshrrev_b32 v{g4}, 4, v{vLANE}
    v_lshrrev_b32 v{T}, 1, v{i15}
    v_lshrrev_b32 v{T+1}, 5, v{vLANE}
    v_add_u32 v{mLO}, -1, v{T+1}
    v_xor_b32 v{T}, v{T}, v{T+1}
    s_xor_b32 s{sT0}, s{sT2}, 1
    s_lshl_b32 s{sT0}, s{sT0}, 1
    v_xor_b32 v{T}, s{sT0}, v{T}
    v_lshlrev_b32 v{T}, 4, v{T}
    v_lshl_add_u32 v{T}, v{i15}, 7, v{T}
    v_add_u32 v{vXh}, {HALO}, v{T}
    v_and_b32 v{ME}, 1, v{g4}
    v_add_u32 v{ME}, -1, v{ME}
    s_mul_i32 s{sT0}, s{sHH}, 1536
    s_lshl_b32 s{sT1}, s{sPP}, 2
    s_add_u32 s{sT0}, s{sT0}, s{sT1}
    s_add_u32 s{sT0}, s{sT0}, {CS_LDS}
    v_and_b32 v{T}, 31, v{vLANE}
    v_lshlrev_b32 v{aCSW}, 4, v{T}
    v_add_u32 v{aCSW}, s{sT0}, v{aCSW}
    v_lshlrev_b32 v{vL7}, 7, v{vLANE}
    s_lshl_b32 s{sT0}, s{sMT}, 2
    s_add_u32 s{sT0}, s{sT0}, s{sPP}
    s_lshl_b32 s{sT0}, s{sT0}, 15
    s_lshl_b32 s{sT1}, s{sSUB}, 1
    s_add_u32 s{sT1}, s{sT1}, s{sHH}
    s_lshl_b32 s{sT1}, s{sT1}, 11
    s_add_u32 s{sOB}, s{sT0}, s{sT1}
    s_add_u32 s{sOB}, s{sOB}, {O_OFF}
    ''')
    make_sel(P, SEL, T)
    s2_early_setup(P, T)
    Q0 = dx(2, 'a2') + [dw(0, 2, 'a2')] + dx(3, 'b') + [dw(0, 3, 'b')] + dx(4, 'b') + [dw(0, 4, 'b')] + dx(5, 'c')
    E = Eng(P, cfg, XF, WF, NWF, vWa, vXa, wslot, xslot); F = E.F
    def bar(name, vm=(), lg=()):
        if vm: P.wait_vm(*vm)
        if lg: P.wait_lg(*lg)
        stamp(P, cfg, name + 'w'); P.I('s_barrier'); stamp(P, cfg, name + 'b')
    def sites(D): return (lambda: site(P, sHH, 0, D, False)), (lambda: site(P, sHH, 1, D, True))
    def xh_read(c): P.D(f'ds_read_b128 v[{XH}:{XH+3}], v{vXh} offset:{c*2048}', ('xh', c))
    def slot(j, s, hooks):
        gs = 28 * j + s
        for f in hooks.get(s, []): f()
        E.rd(gs + AH, 3)
        w = WF + 4 * (gs % NWF); x = XF + 4 * s
        P.wait_lg(('w', gs), ('x', gs))
        if j < 2 and s % 4 == 0:
            P.wait_lg(('xh', s // 4))
            F.q = [f'v_and_b32 v{XE+d}, v{ME}, v{XH+d}' for d in range(4)] + [f'v_xor_b32 v{XO+d}, v{XE+d}, v{XH+d}' for d in range(4)] + F.q
        P.I(m32(ACC[j], x, w, s == 0) if j == 1 else m32(ACC[j], w, x, s == 0))
        if j == 0:
            E.xreads(2, vis[0])
            for _ in range(2):
                if Q0: Q0.pop(0)()
        b = 32 if j < 2 else (0 if s < 2 else E.budget(s, 0.5 * ((27 - s) // 4 + 1)))
        F.emit(b)
        if j < 2 and s % 4 == 1:
            H = KH if j == 0 else VH
            if j == 0: P.I(m16(H, w, XE, s == 1)); P.I(m16(H + 4, w, XO, s == 1))
            else: P.I(m16(H, XE, w, s == 1)); P.I(m16(H + 4, XO, w, s == 1))
        if j < 2 and s % 4 == 2:
            if s < 24: xh_read(s // 4 + 1)
            elif j == 0: xh_read(0)
        if s % 4 == 3:
            P.I(m16(CSA, SEL, w, s == 3)); F.emit(b // 2)
    def cs_write(j): P.D(f'ds_write_b32 v{aCSW}, v{CSA} offset:{512*j}', 'csw')
    vis = [0]
    def setvis(v): vis[0] = v
    bar('c0', vm=('a',))
    E.xreads(2, 0); xh_read(0)
    for g in range(AH): E.rd(g, 3)
    E.xreads(2, 0)
    H = {1: [lambda: bar('a1', vm=('a1',)), lambda: setvis(1)],
         5: [lambda: bar('a2', vm=('a2',)), lambda: setvis(2)],
         9: [lambda: bar('Bb', vm=('b',), lg=(('x', 11),)), lambda: setvis(4)] + dx(6, 'c') + [dw(0, 5, 'c'), dw(0, 6, 'c'), dw(1, 0, 'c'), lambda: flag_prefetch(P, cfg)],
         13: [dw(1, 1, ('t', 1))],
         17: [lambda: bar('Bc', vm=('c',), lg=(('x', 19),)), lambda: setvis(6)]}
    sa, sb = sites([dw(1, c, ('t', 1)) for c in range(2, 6)])
    H[17].append(sa); H[20] = [sb]
    if cfg.mallc >= 0: H[23] = [lambda: mall_pf(P, vL7)]
    for s in range(28): slot(0, s, H)
    F.flush()
    stamp(P, cfg, 'T0e')
    R, M, RH, MH = 18, 19, 20, 21
    def st_poll():
        flag_check(P, 'a')
        statc_addr(P, sSC, sT1)
        P.I(f'''
        s_cmp_eq_u32 s{sMT}, 0
        s_cselect_b32 s{sT1}, 0, 128
        v_mov_b32 v2, s{sT1}
        v_and_b32 v2, v{mLO}, v2
        v_sub_u32 v2, s{sSC}, v2
        ''')
        svc_load(P, 3, sWS, '0', 2)
    def st_check():
        u = svc_begin(P); spin(P, 3, sWS, '0', cfg.stat_expect, 2); svc_end(P, u)
    sa, sb = sites([dw(1, 6, 'd'), dw(2, 0, 'd')] + [dw(2, c, ('t', 2)) for c in range(1, 6)])
    H = {0: [lambda: cs_write(0)],
         1: [lambda: bar('B1', vm=(('t', 1),), lg=(('x', 27),)), sa], 6: [sb],
         17: [lambda: bar('B1x', vm=('d',))],
         cfg.st_poll: [st_poll]}
    for s in range(28): slot(1, s, H)
    F.flush()
    aHPW, aHPR, aCSR = 5, 22, 23
    P.I(f'''
    v_lshlrev_b32 v{T}, 4, v{vLANE}
    s_lshl_b32 s{sT0}, s{sHH}, 14
    s_lshl_b32 s{sT1}, s{sPP}, 10
    s_add_u32 s{sT1}, s{sT1}, s{sT0}
    v_add_u32 v{aHPW}, s{sT1}, v{T}
    s_lshl_b32 s{sT1}, s{sPP}, 12
    s_add_u32 s{sT1}, s{sT1}, s{sT0}
    v_add_u32 v{aHPR}, s{sT1}, v{T}
    s_lshl_b32 s{sT1}, s{sPP}, 2
    v_subrev_u32 v{aCSR}, s{sT1}, v{aCSW}
    ''')
    cs_write(1)
    for k in range(4): P.D(f'ds_write_b128 v{aHPW}, v[{KH+4*k}:{KH+4*k+3}] offset:{HP_LDS + 4096*k}', 'csw')
    stamp(P, cfg, 'T1e')
    SC, BX, BS = XH, XE, XO; AXK, AXV = T, 6; HA = KH
    RR = XF; KOP = XF + 16; VOP = XF + 28; MKP, MKC, MKP0, ONES = XF + 40, XF + 44, XF + 48, XF + 52
    aEXW, aEXH, aEXR, vO, m48, RQ, RZ, TT = XF + 56, XF + 57, XF + 58, XF + 59, XF + 60, XF + 62, XF + 64, XF + 66
    ws = f's[{sWS}:{sWS+3}]'
    qs = 28 ** -0.5 * LOG2E
    def st_loads():
        stat_addr(P, sSB, sT1)
        P.I(f'''
        s_add_u32 s{sT1}, s{sSB}, 8192
        v_lshlrev_b32 v{vROW}, 2, v{vROW}
        s_cmp_eq_u32 s{sMT}, 0
        s_cselect_b32 s{sT2}, 0x40000000, -64
        s_add_u32 s{sT2}, s{sT2}, s{sSB}
        v_lshlrev_b32 v2, 2, v{i15}
        v_add_u32 v2, s{sT2}, v2
        v_lshlrev_b32 v3, 4, v{g4}
        v_add_u32 v3, s{sT2}, v3
        ''')
        P.V(f'buffer_load_dword v{M}, v{vROW}, {ws}, s{sT1} offen sc1', 'sl')
        P.V(f'buffer_load_dword v{R}, v{vROW}, {ws}, s{sSB} offen sc1', 'sl')
        P.V(f'buffer_load_dword v{RH}, v2, {ws}, 0 offen sc1', 'sl')
        P.I(f's_movk_i32 s{sT1}, 0x2000')
        P.V(f'buffer_load_dword v{MH}, v2, {ws}, s{sT1} offen sc1', 'sl')
        P.V(f'buffer_load_dwordx4 v[{SC}:{SC+3}], v3, {ws}, 0 offen sc1', 'sl')
    def rr_loads():
        P.I(f'v_lshrrev_b32 v2, 5, v{vLANE}\nv_lshlrev_b32 v2, 4, v2\ns_lshl_b32 s{sT0}, s{sPP}, 7\nv_add_u32 v2, s{sT0}, v2')
        for q in range(4): P.V(f'buffer_load_dwordx4 v[{RR+4*q}:{RR+4*q+3}], v2, {ws}, s{sSB} offen offset:{32*q} sc1', 'rr')
    def lds_reads():
        P.D(f'ds_read_b128 v[{AXK}:{AXK+3}], v{aCSR}', 'cs')
        P.D(f'ds_read_b128 v[{AXV}:{AXV+3}], v{aCSR} offset:512', 'cs')
        for k in range(4): P.D(f'ds_read_b128 v[{HA+4*k}:{HA+4*k+3}], v{aHPR} offset:{HP_LDS + 1024*k}', 'hp')
    def ax_ops(a):
        return [f'v_add_f32 v{a}, v{a}, v{a+1}', f'v_add_f32 v{a+2}, v{a+2}, v{a+3}', f'v_mov_b32 v{a+3}, 0', f'v_add_f32 v{a+2}, v{a}, v{a+2}',
                f'v_cvt_pk_bf16_f32 v{a}, v{a+2}, v{a+2}', f'v_lshlrev_b32 v{a+1}, 16, v{a}', f'v_sub_f32 v{a+1}, v{a+2}, v{a+1}',
                f'v_cvt_pk_bf16_f32 v{a+1}, v{a+1}, v{a+3}', f'v_mov_b32 v{a+2}, 0']
    def negm_ops(m, mask, d):
        return [f'v_and_b32 v{m}, v{mask}, v{m}', f'v_mov_b32 v{d+3}, 0', f'v_sub_f32 v{m}, 0, v{m}', f'v_cvt_pk_bf16_f32 v{d+1}, v{m}, v{d+3}',
                f'v_lshlrev_b32 v{d+2}, 16, v{d+1}', f'v_sub_f32 v{d+2}, v{m}, v{d+2}', f'v_cvt_pk_bf16_f32 v{d}, v{m}, v{d+2}', f'v_mov_b32 v{d+2}, 0']
    pmap = [0, 1, 4, 5, 2, 3, 6, 7]
    def swaps(a, b, n): return [f'v_permlane32_swap_b32 v{a+i}, v{b+i}' for i in range(n)] + [f'v_permlane16_swap_b32 v{a+i}, v{b+i}' for i in range(n)]
    def branch2(k_code, v_code):
        def f():
            u = P.uid()
            P.I(f's_cmp_lt_u32 s{sPP}, 2\ns_cbranch_scc0 L_b{u}v')
            for x in k_code: P.I(x)
            P.I(f's_branch L_b{u}e'); P.label(f'L_b{u}v')
            for x in v_code: P.I(x)
            P.label(f'L_b{u}e')
        return f
    ex_addr = f'''s_lshl_b32 s{sT0}, s{sHH}, 13
        s_add_u32 s{sT0}, s{sT0}, {EX_LDS}
        s_lshr_b32 s{sT1}, s{sPP}, 1
        s_lshl_b32 s{sT1}, s{sT1}, 10
        s_and_b32 s{sT2}, s{sPP}, 1
        s_lshl_b32 s{sT2}, s{sT2}, 3
        s_add_u32 s{sT1}, s{sT1}, s{sT2}
        s_add_u32 s{sT1}, s{sT1}, s{sT0}
        v_lshlrev_b32 v{TT}, 4, v{vLANE}
        v_add_u32 v{aEXH}, s{sT1}, v{TT}
        s_lshl_b32 s{sT1}, s{sPP}, 11
        s_add_u32 s{sT0}, s{sT0}, s{sT1}
        v_add_u32 v{aEXR}, s{sT0}, v{TT}
        s_add_u32 s{sT0}, s{sT0}, 2048
        s_cmp_eq_u32 s{sPP}, 3
        s_cselect_b32 s{sT0}, {DUMMY}, s{sT0}
        v_add_u32 v{aEXW}, s{sT0}, v{TT}'''
    A1 = [lambda: P.wait_lg('cs')] + ax_ops(AXK) + ax_ops(AXV) + [lambda: P.wait_lg('hp')]
    A1 += [f'v_add_f32 v{HA+e}, v{HA+e}, v{HA+4+e}' for e in range(4)] + [f'v_add_f32 v{HA+8+e}, v{HA+8+e}, v{HA+12+e}' for e in range(4)]
    A1 += [f'v_add_f32 v{HA+e}, v{HA+e}, v{HA+8+e}' for e in range(4)]
    A1 += [lambda: P.I(f's_and_b32 s{sT0}, s{sPP}, 1\ns_sub_u32 s{sT0}, 0, s{sT0}\nv_xor_b32 v{ME}, s{sT0}, v{ME}\nv_and_b32 v{ME}, v{ME}, v{mLO}')]
    A2 = [lambda: P.wait_vm('sl')] + negm_ops(M, mLO, BX) + negm_ops(MH, ME, BS)
    A2 += ['s_nop 0', m32(AK, AXK, BX, False), m32(AV, BX, AXV, False), branch2([m16(HA, AXK, BS, False)], [m16(HA, BS, AXV, False)])]
    EK = [f'v_mul_f32 v{AK+v}, v{AK+v}, v{R}' for v in range(16)] + [f'v_cvt_pk_bf16_f32 v{KOP+4+pmap[i]}, v{AK+2*i}, v{AK+2*i+1}' for i in range(8)] + swaps(KOP + 4, KOP + 8, 4)
    vmap = [VOP + 2, VOP + 3, VOP + 8, VOP + 9, VOP + 4, VOP + 5, VOP + 10, VOP + 11]
    EV = [lambda: P.wait_vm('rr')] + [f'v_mul_f32 v{AV+v}, v{AV+v}, v{RR+v}' for v in range(16)] + [f'v_cvt_pk_bf16_f32 v{vmap[i]}, v{AV+2*i}, v{AV+2*i+1}' for i in range(8)] + swaps(VOP + 2, VOP + 8, 4)
    EH = [branch2([f'v_mul_f32 v{HA+v}, v{HA+v}, v{RH}' for v in range(4)], [f'v_mul_f32 v{HA+v}, v{HA+v}, v{SC+v}' for v in range(4)]),
          f'v_cvt_pk_bf16_f32 v{HA+4}, v{HA}, v{HA+1}', f'v_cvt_pk_bf16_f32 v{HA+5}, v{HA+2}, v{HA+3}']
    WR = [lambda: P.I(ex_addr),
          lambda: P.D(f'ds_write_b128 v{aEXW}, v[{KOP+8}:{KOP+11}]', 'x'),
          lambda: P.D(f'ds_write_b64 v{aEXW}, v[{VOP+4}:{VOP+5}] offset:1024', 'x'),
          lambda: P.D(f'ds_write_b64 v{aEXW}, v[{VOP+10}:{VOP+11}] offset:1032', 'x'),
          lambda: P.D(f'ds_write_b64 v{aEXH}, v[{HA+4}:{HA+5}]', 'x')]
    MK = [f'v_lshlrev_b32 v{TT}, 2, v{g4}', f'v_sub_u32 v{TT}, v{i15}, v{TT}']
    for v in range(4):
        for base, dst in ((0, MKC), (16, MKP)):
            MK += [f'v_add_u32 v{dst+v}, {base - v}, v{TT}', f'v_and_b32 v{dst+v}, 0xfffffff1, v{dst+v}', f'v_min_u32 v{dst+v}, 1, v{dst+v}',
                   f'v_sub_u32 v{dst+v}, 0, v{dst+v}', f'v_and_b32 v{dst+v}, {f32(NEG)}, v{dst+v}']
    MK += [lambda: P.I(f's_or_b32 s{sT0}, s{sMT}, s{sPP}\ns_cmp_eq_u32 s{sT0}, 0\ns_cselect_b32 s{sT0}, {f32(NEG)}, 0\n' + '\n'.join(f'v_or_b32 v{MKP0+v}, s{sT0}, v{MKP+v}' for v in range(4)))]
    MK += [f'v_mov_b32 v{ONES+i}, 0x3f803f80' for i in range(4)]
    MK += [f'v_lshlrev_b32 v{vO}, 9, v{g4}', f'v_lshl_add_u32 v{vO}, v{i15}, 4, v{vO}', f'v_subrev_u32 v{m48}, 48, v{vLANE}', f'v_ashrrev_i32 v{m48}, 31, v{m48}',
           f'v_mul_f32 v{RQ}, {f32(qs)}, v{R}', f'v_and_b32 v{RZ}, v{mLO}, v{RQ}']
    XQ = ([lambda: s2_srd(P, cfg)] + s2_xy(P, 'X')) if cfg.early_w else []
    def late():
        mix = []; X = list(XQ); L = EV + EH + WR + MK
        k = max(1, len(L) // (len(X) + 1))
        for i, m in enumerate(L):
            if X and i % k == 0: mix.append(X.pop(0))
            mix.append(m)
        F.add(mix + X)
    H = {1: [st_check, lambda: bar('B2', vm=(('t', 2),), lg=('csw',)), st_loads, lds_reads, dw(2, 6, 'e'), lambda: F.add(A1)],
         4: [rr_loads], cfg.a2pos: [lambda: F.flush(), lambda: F.add(A2 + EK)],
         17: [lambda: F.flush(), lambda: bar('Bx', vm=('e',)), late]}
    for s in range(28):
        gs = 56 + s
        for f in H.get(s, []): f()
        E.rd(gs + AH, 3)
        w = WF + 4 * (gs % NWF); x = XF + 4 * s
        P.wait_lg(('w', gs))
        P.I(m32(AQ, w, x, s == 0))
        end = cfg.a2pos if s < cfg.a2pos else 17 if s < 17 else 28
        b = 0 if s < 2 else max(8, int(F.total() / (end - s) + 3))
        F.emit(b)
        if s % 4 == 3: P.I(m16(CSA, SEL, w, s == 3))
    F.flush()
    cs_write(2)
    stamp(P, cfg, 'loop')
    if cfg.hook_late: cfg.hook_late(P)
    P.lg0(); P.I('s_barrier'); stamp(P, cfg, 'e2')
    P.D(f'ds_read_b128 v[{AXK}:{AXK+3}], v{aCSR} offset:1024', 'cs')
    P.D(f'ds_read_b128 v[{KOP}:{KOP+3}], v{aEXR}', 'e')
    for tt in range(2): P.D(f'ds_read_b64 v[{VOP+6*tt}:{VOP+6*tt+1}], v{aEXR} offset:{1024+8*tt}', 'e')
    P.wait_lg('cs')
    for x in ax_ops(AXK): P.I(x)
    P.I(m32(AQ, AXK, BX, False))
    QOP = XF + 68
    for v in range(0, 16, 2): P.I(f'v_pk_mul_f32 {pr(AQ+v)}, {pr(AQ+v)}, {pr(RZ if v >= 12 else RQ)} op_sel_hi:[1,0]')
    for i in range(8): P.I(f'v_cvt_pk_bf16_f32 v{QOP+pmap[i]}, v{AQ+2*i}, v{AQ+2*i+1}')
    for x in swaps(QOP, QOP + 4, 4): P.I(x)
    S = AK; PP = AV; OB = [AQ, KH]
    mfS = lambda d, a, b, c: f'v_mfma_f32_16x16x32_bf16 v[{d}:{d+3}], v[{a}:{a+3}], v[{b}:{b+3}], v[{c}:{c+3}]'
    P.lg0()
    P.I(mfS(S + 8, KOP + 4, QOP + 4, MKP)); P.I(mfS(S + 12, KOP + 8, QOP + 4, MKC)); P.I(mfS(S + 4, KOP + 4, QOP, MKC)); P.I(mfS(S, KOP, QOP, MKP0))
    mx = [XF + 76, XF + 78]
    order = (1, 0)
    for bb in order:
        s = S + 8 * bb; m = mx[bb]
        P.I(f'''
        v_max3_f32 v{m}, v{s}, v{s+1}, v{s+2}
        v_max3_f32 v{m+1}, v{s+3}, v{s+4}, v{s+5}
        v_max3_f32 v{m}, v{m}, v{s+6}, v{s+7}
        v_max_f32 v{m}, v{m}, v{m+1}
        v_mov_b32 v{m+1}, v{m}
        ''')
    for bb in order: P.I(f'v_permlane16_swap_b32 v{mx[bb]}, v{mx[bb]+1}')
    for bb in order: P.I(f'v_max_f32 v{mx[bb]}, v{mx[bb]}, v{mx[bb]+1}\nv_mov_b32 v{mx[bb]+1}, v{mx[bb]}')
    for bb in order: P.I(f'v_permlane32_swap_b32 v{mx[bb]}, v{mx[bb]+1}')
    for bb in order: P.I(f'v_max_f32 v{mx[bb]}, v{mx[bb]}, v{mx[bb]+1}')
    for bb in order:
        s = S + 8 * bb; o = OB[bb]; p = PP + 4 * bb
        for v in range(0, 8, 2): P.I(f'v_pk_add_f32 {pr(s+v)}, {pr(s+v)}, {pr(mx[bb])} op_sel_hi:[1,0] neg_lo:[0,1] neg_hi:[0,1]')
        for v in range(8): P.I(f'v_exp_f32 v{s+v}, v{s+v}')
        for v in range(4): P.I(f'v_cvt_pk_bf16_f32 v{p+v}, v{s+2*v}, v{s+2*v+1}')
        P.I(m16(o + 8, ONES, p, True))
        for tt in range(2): P.I(m16(o + 4 * tt, VOP + 6 * tt + 2 * bb, p, True))
    for bb in order:
        o = OB[bb]
        P.I(f'v_rcp_f32 v{o+8}, v{o+8}')
        P.I(f'v_and_b32 v{o+10}, v{m48}, v{o+8}')
        for v in (0, 2): P.I(f'v_pk_mul_f32 {pr(o+v)}, {pr(o+v)}, {pr(o+8)} op_sel_hi:[1,0]')
        for v in (4, 6): P.I(f'v_pk_mul_f32 {pr(o+v)}, {pr(o+v)}, {pr(o+10)} op_sel_hi:[1,0]')
        for v in range(4): P.I(f'v_cvt_pk_bf16_f32 v{PP+8+4*bb+v}, v{o+2*v}, v{o+2*v+1}')
        P.V(f'buffer_store_dwordx4 v[{PP+8+4*bb}:{PP+8+4*bb+3}], v{vO}, s[{sWS}:{sWS+3}], s{sOB} offen offset:{256*bb}{cfg.sc}', 'st')
    stamp(P, cfg, 'end')
    stamp_flush(P, cfg)
    P.I(f's_branch {after}')
```

```python
from gen import *
from s2v2 import *
from s1v2 import (vPF, sKX, rot_first, rot_rest, dmax, wdma_addr, frag_addrs, make_sel, sq_ops, cost, Filler, site,
                  m32, m16, publish2, flag_check, atomic_inc, mall_pf)

pr = lambda r: f'v[{r}:{r+1}]'
AH = 3

class Eng:
    def __init__(self, P, cfg, XF, WF, NWF, vWa, vXa, wslot, xslot):
        self.__dict__.update(locals()); del self.__dict__['self']
        self.F = Filler(P); self.xq = list(range(28)); self.xwin = 0; self.skip = 0
    def rd(self, gs, nblk):
        blk, s = divmod(gs, 28)
        if blk >= nblk: return
        slot = self.wslot[(blk, s // 4)]; dst = self.wreg(gs)
        off = (slot % 8) * SLOT; a = self.vWa[slot // 8][s % 4]
        self.P.D(f'ds_read_b64_tr_b16 v[{dst}:{dst+1}], v{a} offset:{off}', ('w', gs))
        self.P.D(f'ds_read_b64_tr_b16 v[{dst+2}:{dst+3}], v{a} offset:{off+512}', ('w', gs))
    def wreg(self, gs): return self.WF + 4 * ((gs - self.skip if gs >= 28 else gs) % self.NWF)
    def xreads(self, n, maxchunk):
        for _ in range(n):
            if not self.xq or self.xq[0] // 4 > maxchunk: return
            g = self.xq.pop(0); c, s = divmod(g, 4)
            base = self.xslot[c] * SLOT; win = base // 65536
            if win != self.xwin:
                assert s == 0
                d = (win - self.xwin) * 65536
                for k in range(4): self.P.I(f'v_add_u32 v{self.vXa[k]}, {d & 0xffffffff:#x}, v{self.vXa[k]}')
                self.xwin = win
            d = self.XF + 4 * g
            self.P.D(f'ds_read_b128 v[{d}:{d+3}], v{self.vXa[s]} offset:{base % 65536}', ('x', g))
    def budget(self, s, extra):
        left = 28 - s
        return max(8, int(self.F.total() / (left + extra) + 3))

def stat_addr(P, d, t):
    P.I(f'''
    s_lshl_b32 s{d}, s{sSUB}, 14
    s_lshl_b32 s{t}, s{sMT}, 9
    s_add_u32 s{d}, s{d}, s{t}
    s_add_u32 s{d}, s{d}, {STAT_OFF}
    ''')
def statc_addr(P, d, t):
    P.I(f'''
    s_lshl_b32 s{d}, s{sSUB}, 11
    s_lshl_b32 s{t}, s{sMT}, 7
    s_add_u32 s{d}, s{d}, s{t}
    s_add_u32 s{d}, s{d}, {CNT_OFF + 8192}
    ''')

def w2pf_m(P, k, n, lanes, t):
    u = P.uid(); nw2 = -(-12544 // lanes)
    P.I(f'''
    s_lshl_b32 s{sT0}, s{sJ}, 3
    s_add_u32 s{sT0}, s{sT0}, s{sWAVE}
    s_mul_i32 s{sT0}, s{sT0}, {n}
    s_add_u32 s{sT0}, s{sT0}, {k}
    s_mul_i32 s{sT1}, s{sT0}, {lanes*128}
    s_mov_b32 s{sW2}, s16
    s_mov_b32 s{sW2+1}, s17
    s_mov_b32 s{sW2+2}, {1792*XB}
    s_mov_b32 s{sW2+3}, 0x20000
    s_cmp_lt_u32 s{sT0}, {nw2}
    s_cbranch_scc1 L_pf{u}
    s_mov_b32 s{sW2}, s8
    s_mov_b32 s{sW2+1}, s9
    s_mov_b32 s{sW2+2}, {448*XB}
    s_sub_u32 s{sT1}, s{sT1}, {nw2*lanes*128}
    L_pf{u}:
    s_mov_b64 exec, {-1 if lanes == 64 else (1 << lanes) - 1}
    ''')
    P.V(f'buffer_load_dword v{vPF}, v{t}, s[{sW2}:{sW2+3}], s{sT1} offen', 'pf')
    P.I('s_mov_b64 exec, -1')

def mlp_v4(P, cfg, after):
    sCOLP, sCOLS, sHP, sHSG, sBP, sBS, sG, sTT = 74, 75, 76, 77, 78, 79, 27, 26
    vWD, vWDs = 4, 5
    vWa = [[6 + 4 * w + s for s in range(4)] for w in range(3)]
    vXa = [18, 19, 20, 21]
    vHS, vCSW = 22, 23
    XF = 24; ACC = [136, 152, 168, 136]; WF = 184; NWF = 5
    WF1 = [168, 172, 176, 180, 232]
    CSA, SEL, BX = 204, 208, 212
    vK0, vK1, vRI = 216, 217, 218; vCSR, vSTW, vSTR = 219, 220, 221
    SQ = 222; T = 224; U = 236; PK = 228; AX = 232; SUMA = PK; CSB = U
    BRL = [246, 247, 248, 251]
    B3_LDS = 16 * SLOT; CS_LDS = B3_LDS + 28672; ST_LDS = CS_LDS + 2048; CNT_LDS = ST_LDS
    if not cfg.fastx: xdma_addr(P, T, T + 1)
    wdma_addr(P, vWD, W1S, T)
    P.I(f'''
    s_lshr_b32 s{sG}, s{sWAVE}, 2
    s_and_b32 s{sTT}, s{sWAVE}, 3
    s_and_b32 s{sT2}, s{sSUB}, 1
    s_mul_i32 s{sT0}, s{sSUB}, 448
    s_lshl_b32 s{sT1}, s{sT2}, 6
    s_add_u32 s{sCOLP}, s{sT0}, s{sT1}
    s_add_u32 s{sCOLS}, s{sT0}, 384
    s_sub_u32 s{sBS}, s{sT0}, 64
    s_cmp_eq_u32 s{sT2}, 0
    s_cselect_b32 s{sCOLS}, s{sCOLS}, s{sBS}
    s_add_u32 s{sBS}, s{sCOLS}, s{sT1}
    s_waitcnt lgkmcnt(0)
    ''')
    if not cfg.fastx: srd(P, sX, 4, 2048 * XB)
    srd(P, sW, 12, 448 * W1S)
    grp = lambda c: 4 * (c % 4)
    xslot = {c: grp(c) for c in range(7)}
    wslot = {}
    for c in range(7): wslot[(0, c)] = grp(c) + 2; wslot[(1, c)] = grp(c) + 3
    for c, s in zip(range(7), [12, 13, 14, 15, 8, 9, 10]): wslot[(2, c)] = s
    def dw(blk, c, tag):
        def f3():
            P.I(f's_lshr_b32 s{sT2}, s{sWW}, 1\ns_add_u32 m0, s{sT2}, {B3_LDS + 4096*c}\ns_mul_i32 s{sT0}, s{sKX[c]}, {64*W1S//128}\ns_add_u32 s{sT0}, s{sT0}, s{sBS}')
            P.I('s_lshr_b64 exec, -1, 32')
            P.V(f'buffer_load_dwordx4 v{vWDs}, s[{sW}:{sW+3}], s{sT0} offen{cfg.wnt} lds', tag)
            P.I('s_mov_b64 exec, -1')
        if blk == 3: return f3
        def f():
            slot = wslot[(blk, c)]
            off = 128 * blk if blk < 3 else 0
            if slot * SLOT < off:
                P.I(f's_add_u32 m0, s{sWW}, {slot*SLOT}\ns_mul_i32 s{sT0}, s{sKX[c]}, {64*W1S//128}\ns_add_u32 s{sT0}, s{sT0}, s{sCOLP}\ns_add_u32 s{sT0}, s{sT0}, {off}')
                off = 0
            else:
                P.I(f's_add_u32 m0, s{sWW}, {slot*SLOT - off}\ns_mul_i32 s{sT0}, s{sKX[c]}, {64*W1S//128}\ns_add_u32 s{sT0}, s{sT0}, s{sCOLP if blk < 3 else sCOLS}')
            P.V(f'buffer_load_dwordx4 v{vWD if blk < 3 else vWDs}, s[{sW}:{sW+3}], s{sT0} offen offset:{off}{cfg.wnt} lds', tag)
        return f
    def dx(c, tag): return [lambda: dmax(P, c, xslot[c] * SLOT, 0, tag), lambda: dmax(P, c, xslot[c] * SLOT, 1, tag)]
    ch = lambda c: dx(c, ('c', c)) + [dw(0, c, ('c', c)), dw(1, c, ('c', c))]
    rot_first(P, cfg, 0)
    for f in ch(0)[2 if cfg.fastx else 0:]: f()
    rot_rest(P, 1, 7)
    P.I('s_barrier')
    init_zero(P, cfg, T)
    for f in ch(1): f()
    stamp(P, cfg, 'issued')
    srd(P, sB1, 14, 1792 * 2)
    P.I(f'''
    s_lshl_b32 s{sT0}, s{sMT}, 2
    s_add_u32 s{sT0}, s{sT0}, s{sTT}
    s_mul_i32 s{sT0}, s{sT0}, {112*1024}
    s_lshl_b32 s{sT2}, s{sBS}, 5
    s_add_u32 s{sHSG}, s{sT0}, s{sT2}
    s_lshl_b32 s{sT2}, s{sG}, 6
    s_add_u32 s{sBP}, s{sCOLP}, s{sT2}
    s_lshl_b32 s{sT2}, s{sBP}, 5
    s_add_u32 s{sHP}, s{sT0}, s{sT2}
    v_and_b32 v{U}, 31, v{vLANE}
    v_lshlrev_b32 v{U+1}, 1, v{U}
    ''')
    frag_addrs(P, sTT, sG, 64, vXa, vWa[0], T)
    for w in (1, 2):
        for s in range(4): P.I(f'v_add_u32 v{vWa[w][s]}, {65536*w}, v{vWa[0][s]}')
    P.I(f'''
    v_lshlrev_b32 v{vHS}, 4, v{vLANE}
    s_lshl_b32 s{sT2}, s{sG}, 9
    s_add_u32 s{sT2}, s{sT2}, {CS_LDS}
    v_lshlrev_b32 v{vCSR}, 4, v{U}
    v_add_u32 v{vCSR}, s{sT2}, v{vCSR}
    s_lshl_b32 s{sT2}, s{sTT}, 2
    v_add_u32 v{vCSW}, s{sT2}, v{vCSR}
    v_lshlrev_b32 v{T}, 3, v{T}
    s_lshl_b32 s{sT2}, s{sG}, 10
    s_add_u32 s{sT2}, s{sT2}, {ST_LDS}
    v_add_u32 v{vSTW}, s{sT2}, v{T}
    v_xor_b32 v{vSTR}, 0x400, v{vSTW}
    v_mov_b32 v{BX+3}, 0
    v_mov_b32 v245, v{U+1}
    v_mov_b32 v{SQ}, 0
    v_mov_b32 v{SQ+1}, 0
    ''')
    make_sel(P, SEL, T)
    s2_early_setup(P, T)
    P.I(f'''
    v_lshrrev_b32 v{T}, 2, v{vLANE}
    s_lshl_b32 s{sT0}, s{sWAVE}, 3
    v_add_u32 v{T}, s{sT0}, v{T}
    v_mul_u32_u24 v{T}, {W1S}, v{T}
    v_and_b32 v{T+1}, 3, v{vLANE}
    v_lshl_add_u32 v{vWDs}, v{T+1}, 4, v{T}
    ''')
    P.I(f'v_lshlrev_b32 v244, 7, v{vLANE}')
    def bias_loads():
        for t in range(3):
            P.V(f'buffer_load_ushort v{BRL[t]}, v245, s[{sB1}:{sB1+3}], s{sBP} offen offset:{128*t}', 'bias')
        P.V(f'buffer_load_ushort v{BRL[3]}, v245, s[{sB1}:{sB1+3}], s{sBS} offen', 'bias')
    E = Eng(P, cfg, XF, WF, NWF, vWa, vXa, wslot, xslot); F = E.F; E.skip = 28
    rd_std = E.rd
    def rd(gs, nblk):
        blk, s = divmod(gs, 28)
        if blk != 3: return rd_std(gs, nblk)
        dst = E.wreg(gs); off = 4096 * (s // 4)
        P.D(f'ds_read_b64_tr_b16 v[{dst}:{dst+1}], v{vXa[s%4]} offset:{off}', ('w', gs))
        P.D(f'ds_read_b64_tr_b16 v[{dst+2}:{dst+3}], v{vXa[s%4]} offset:{off+256}', ('w', gs))
    E.rd = rd
    b3_addr = f'''v_lshrrev_b32 v{T}, 5, v{vLANE}
        v_lshlrev_b32 v{T}, 3, v{T}
        v_bfe_u32 v{T+1}, v{vLANE}, 2, 2
        v_add_u32 v{T}, v{T}, v{T+1}
        v_lshlrev_b32 v{T}, 6, v{T}
        v_and_b32 v{T+1}, 16, v{vLANE}
        v_lshl_add_u32 v{T}, v{T+1}, 1, v{T}
        v_and_b32 v{T+1}, 3, v{vLANE}
        v_lshl_add_u32 v{T}, v{T+1}, 3, v{T}
        s_xor_b32 s{sT0}, s{sG}, s{sTT}
        s_lshl_b32 s{sT0}, s{sT0}, 10
        s_add_u32 s{sT0}, s{sT0}, {B3_LDS}
        v_add_u32 v{vXa[0]}, s{sT0}, v{T}
        v_xor_b32 v{vXa[1]}, 0x400, v{vXa[0]}
        v_xor_b32 v{vXa[2]}, 0x800, v{vXa[0]}
        v_xor_b32 v{vXa[3]}, 0xc00, v{vXa[0]}
        v_mov_b32 v{T}, {CNT_LDS}
        v_mov_b32 v{T+2}, 0
        v_mov_b32 v{T+3}, 0
        ds_write_b64 v{T}, v[{T+2}:{T+3}]'''
    def arrive():
        P.wait_vm('stA')
        P.I(f'v_mov_b32 v{SQ}, {CNT_LDS}\nv_mov_b32 v{SQ+1}, 1\ns_mov_b64 exec, 1')
        P.D(f'ds_add_rtn_u32 v{SQ+1}, v{SQ}, v{SQ+1}', 'arr')
        P.I('s_mov_b64 exec, -1')
    def arrive_check():
        u = P.uid()
        P.wait_lg('arr')
        P.I(f'v_readfirstlane_b32 s{sT0}, v{SQ+1}\ns_cmp_eq_u32 s{sT0}, 7\ns_cbranch_scc0 L_ar{u}')
        P.I(f's_lshl_b32 s{sT0}, s{sMT}, 7\ns_add_u32 s{sT0}, s{sT0}, {CNT_OFF + 4096}')
        atomic_inc(P, sT0)
        P.label(f'L_ar{u}')
    def bar(name, vm=(), lg=()):
        if vm: P.wait_vm(*vm)
        if lg: P.wait_lg(*lg)
        stamp(P, cfg, name + 'w'); P.I('s_barrier'); stamp(P, cfg, name + 'b')
    def cs_write(blk, r=CSA): P.D(f'ds_write_b32 v{vCSW}, v{r} offset:{1024*(blk%2)}', 'csw')
    def sites(D): return (lambda: site(P, sG, 0, D, False)), (lambda: site(P, sG, 1, D, True))
    def rd1(s):
        if s >= 28: return
        slot = wslot[(1, s // 4)]; dst = WF1[s % 5]; off = (slot % 8) * SLOT; a = vWa[slot // 8][s % 4]
        P.D(f'ds_read_b64_tr_b16 v[{dst}:{dst+1}], v{a} offset:{off}', ('w1', s))
        P.D(f'ds_read_b64_tr_b16 v[{dst+2}:{dst+3}], v{a} offset:{off+512}', ('w1', s))
    def rd0(s):
        if s < 28: E.rd(s, 4)
        else: E.rd(s + 28, 4)
    AT = 2
    Q = ch(2) + ch(3)
    bar('c0', vm=(('c', 0), 'x0'))
    E.xreads(2, 0)
    for g in range(AT): rd0(g); rd1(g)
    E.xreads(2, 0)
    vis = 0
    for s in range(28):
        c, r = divmod(s + AT, 4)
        if r == 0 and c < 7:
            while sum(1 for t in P.vm.q if t == ('c', c)) < 4: Q.pop(0)()
            bar(f'c{c}', vm=(('c', c),)); vis = c
            if c == 1: init_flag(P, cfg, T, 'a')
            if c == 3: flag_prefetch(P, cfg)
            if 2 <= c <= 4: Q += ch(c + 2)
            if c == 4: Q.append(bias_loads)
            if c == 5: Q += [dw(2, 0, 'h2'), dw(2, 1, ('t', 2)), dw(2, 2, ('t', 2))]
        if s == 26: bar('c7', vm=('h2',))
        if s == cfg.malls and cfg.mallc >= 0: Q.append(lambda: mall_pf(P, 244))
        rd0(s + AT); rd1(s + AT)
        if s == 27: rd0(s + AT + 1)
        w = WF + 4 * (s % NWF); w1 = WF1[s % 5]; x = XF + 4 * s
        P.wait_lg(('w', s), ('x', s))
        if s % 2 == 0 and 'nosq' not in cfg.exp: F.add(sq_ops(x, T, SQ))
        P.I(m32(ACC[0], w, x, s == 0))
        E.xreads(1 if s > 2 else 2, vis)
        if Q: Q.pop(0)()
        F.emit(16)
        P.wait_lg(('w1', s))
        P.I(m32(ACC[1], w1, x, s == 0))
        if Q: Q.pop(0)()
        F.emit(16)
        if s % 4 == 0: P.I(m16(CSA, SEL, w, s == 0))
        if s % 4 == 2: P.I(m16(CSB, SEL, WF1[(s - 2) % 5], s == 2))
        if s % 2 == 1: P.I(m16(SUMA, SEL, x - 4, s == 1))
    while Q: Q.pop(0)()
    F.flush()
    P.I(f'''
    v_add_f32 v{SQ}, v{SQ}, v{SQ+1}
    v_mov_b32 v{SQ+1}, v{SQ}
    v_permlane32_swap_b32 v{SQ}, v{SQ+1}
    v_add_f32 v{SQ+1}, v{SQ}, v{SQ+1}
    v_mov_b32 v{SQ}, v{SUMA}
    ''')
    P.D(f'ds_write_b64 v{vSTW}, v[{SQ}:{SQ+1}]', 'csw')
    cs_write(0); cs_write(1, CSB)
    stamp(P, cfg, 'T0e')

    mark = [0]
    def stat_store():
        P.wait_vm('bias'); assert True
        mark[0] = P.vm.n
        u = P.uid()
        P.I(f's_cmp_eq_u32 s{sG}, 0\ns_cbranch_scc0 L_ss{u}')
        stat_addr(P, sT0, sT2)
        P.I(f'''
        v_subrev_u32 v{U+6}, {ST_LDS}, v{vSTW}
        v_lshrrev_b32 v{U+6}, 1, v{U+6}
        s_add_u32 s{sT2}, s{sT0}, 8192
        buffer_store_dword v{T+3}, v{U+6}, s[{sWS}:{sWS+3}], s{sT0} offen sc1
        buffer_store_dword v{U+2}, v{U+6}, s[{sWS}:{sWS+3}], s{sT2} offen sc1
        L_ss{u}:
        ''')
    def stats_ops():
        t = T; R, M, V = U, U + 2, U + 3
        L = [lambda: P.wait_lg('str')]
        L += f'''v_add_f32 v{M}, v{SQ}, v{U+4}
        v_add_f32 v{V}, v{SQ+1}, v{U+5}
        v_mul_f32 v{M}, {f32(1.0/448)}, v{M}
        v_mul_f32 v{V}, {f32(1.0/448)}, v{V}
        v_fma_f32 v{V}, -v{M}, v{M}, v{V}
        v_max_f32 v{V}, 0, v{V}
        v_add_f32 v{t}, {f32(EPS)}, v{V}
        v_rsq_f32 v{t+3}, v{t}'''.split('\n        ')
        if cfg.stat_pub: L += [stat_store]
        L += f'''v_cmp_gt_u32 vcc, 32, v{vLANE}
        v_mul_f32 v{t+2}, v{t+3}, v{t+3}
        v_mul_f32 v{t+2}, v{t+2}, v{V}
        v_add_f32 v{t+2}, {f32(EPS)}, v{t+2}
        v_rsq_f32 v{R}, v{t+2}
        v_mul_f32 v{t}, v{t}, v{t+2}
        v_sqrt_f32 v{vRI}, v{t}
        v_mul_f32 v{R}, v{R}, v{t+3}
        v_mul_f32 v{vK0}, {f32(GK0)}, v{R}
        v_mul_f32 v{t}, v{R}, v{R}
        v_mul_f32 v{t}, v{t}, v{R}
        v_mul_f32 v{vK1}, {f32(GK1)}, v{t}
        v_cndmask_b32 v{t}, 0, v{M}, vcc
        v_cndmask_b32 v{t+1}, 0, v{vRI}, vcc
        v_sub_f32 v{t}, 0, v{t}
        v_cvt_pk_bf16_f32 v{BX+1}, v{t}, v{t+1}
        v_lshlrev_b32 v{t+2}, 16, v{BX+1}
        v_sub_f32 v{t+2}, v{t}, v{t+2}
        v_cvt_pk_bf16_f32 v{BX}, v{t}, v{t+2}
        v_and_b32 v{t+2}, 0xffff0000, v{BX+1}
        v_sub_f32 v{t+2}, v{t+1}, v{t+2}
        v_cvt_pk_bf16_f32 v{BX+2}, v{t+2}, v{BX+3}'''.split('\n        ')
        return L
    def e_ops(tile, stag, cr=None):
        A = ACC[tile]; CR = PK if cr is None else cr
        P.D(f'ds_read_b128 v[{CR}:{CR+3}], v{vCSR} offset:{1024*(tile%2)}', 'csr')
        L = [lambda: P.wait_vm('bias'), f'v_mov_b32 v{AX+3}, 0',
             f'v_lshlrev_b32 v{U}, 16, v{BRL[tile]}', f'v_mov_b32 v{AX+2}, v{BRL[tile]}',
             lambda: P.wait_lg('csr'),
             f'v_add_f32 v{T}, v{CR}, v{CR+1}', f'v_add_f32 v{T+2}, v{CR+2}, v{CR+3}', f'v_add_f32 v{T}, v{T}, v{T+2}',
             f'v_cvt_pk_bf16_f32 v{AX}, v{T}, v{T}', f'v_lshlrev_b32 v{T+1}, 16, v{AX}', f'v_sub_f32 v{T+1}, v{T}, v{T+1}',
             f'v_cvt_pk_bf16_f32 v{AX+1}, v{T+1}, v{U}',
             (f's_add_u32 s88, s{sHP}, {4096*tile}' if tile < 3 else f's_mov_b32 s88, s{sHSG}'),
             f's_nop 0',
             m32(A, AX, BX, False)]
        M = []
        for half in range(2):
            R8 = range(8); a = A + 8 * half; pk = PK
            M += [f'v_mul_f32 v{U+e}, v{a+e}, v{a+e}' for e in R8]
            M += [f'v_fma_f32 v{U+e}, v{U+e}, v{vK1}, v{vK0}' for e in R8]
            M += [f'v_mul_f32 v{U+e}, v{a+e}, v{U+e}' for e in R8]
            M += [f'v_exp_f32 v{U+e}, v{U+e}' for e in R8]
            M += [f'v_fma_f32 v{U+e}, v{U+e}, v{vRI}, v{vRI}' for e in R8]
            M += [f'v_rcp_f32 v{U+e}, v{U+e}' for e in R8]
            M += [f'v_mul_f32 v{U+e}, v{a+e}, v{U+e}' for e in R8]
            M += [f'v_cvt_pk_bf16_f32 v{pk+e}, v{U+2*e}, v{U+2*e+1}' for e in range(4)]
            if 'nost' in cfg.exp: M.append('s_nop 0')
            else: M.append(lambda half=half, pk=pk: P.V(f'buffer_store_dwordx4 v[{pk}:{pk+3}], v{vHS}, s[{sWS}:{sWS+3}], s88 offen offset:{1024*half}{cfg.sc}', stag))
        if 'nogelu' in cfg.exp: M = [x for x in M if callable(x) or 'cvt' in x or 'exp' in x]
        return L, M
    def barrier_B(j):
        if j == 1: flag_check(P, 'm')
        bar(f'B{j}', vm=(('t', j), ('h', j + 1)) + (('stA0',) if j == 3 else ()), lg=('csw',))
        if j == 3: publish2(P, cfg, 0, 'a0', 4, barrier=False, tags=())
    def stat_signal(nD):
        n = P.vm.n - mark[0]
        u = P.uid()
        P.I(f's_cmp_eq_u32 s{sG}, 0\ns_cbranch_scc0 L_sw{u}\ns_waitcnt vmcnt({n + nD})')
        statc_addr(P, sT0, sT2)
        atomic_inc(P, sT0)
        P.label(f'L_sw{u}')
    def interleave(main, D, frac=1.0):
        k = max(1, int(len(main) * frac) // (len(D) + 1)); mix = []; D = list(D)
        for i, x in enumerate(main):
            if D and i % k == 0: mix.append(D.pop(0))
            mix.append(x)
        return mix + D
    def B3():
        bar('B3', vm=(('t', 3), 'stA0'), lg=('csw',))
        publish2(P, cfg, 0, 'a0', 4, barrier=False, tags=())
    def period(j):
        for s in range(28):
            gs = 28 * j + s
            if s == 1:
                if j == 2:
                    flag_check(P, 'm')
                    bar('B2', vm=(('t', 2),), lg=('csw',))
                    for c in range(3, 7): dw(2, c, 'u2')()
                    P.D(f'ds_read_b64 v[{U+4}:{U+5}], v{vSTR}', 'str')
                    pre, main = e_ops(0, 'stA0'); pre1, main1 = e_ops(1, 'stA', 18)
                    D = [dw(3, 0, 'h3')] + [dw(3, c, ('t', 3)) for c in range(1, 7)]
                    if cfg.stat_pub: main.insert(cfg.sigpos, lambda: stat_signal(0))
                    def b3f():
                        P.I(b3_addr); P.lg.issue('z')
                    F.add(stats_ops() + pre + interleave(main, D) + pre1 + [b3f, lambda: s2_srd(P, cfg)] + interleave(main1, s2_xy(P, 'X'), 0.8))
                else:
                    B3()
                    pre, main = e_ops(2, 'st')
                    F.add(pre + main)
            if j == 2 and s == 9: bar('B2u', vm=('u2',), lg=('csr',))
            if j == 2 and s == 22: bar('B2x', vm=('h3',))
            if j == 3 and s == cfg.apos: arrive()
            if j == 3 and s == cfg.apos + 3: arrive_check()
            E.rd(gs + AH, 4)
            b = 0 if s < 3 else E.budget(s, 0.5 * ((27 - s) // 4 + 1))
            w = E.wreg(gs); x = XF + 4 * s
            P.wait_lg(('w', gs))
            P.I(m32(ACC[j], w, x, s == 0))
            F.emit(b)
            if s % 4 == 0:
                P.I(m16(CSA, SEL, w, s == 0)); F.emit(b // 2)
        F.flush()
        cs_write(j)
        stamp(P, cfg, f'T{j}e')
    period(2)
    P.I(f's_cmp_eq_u32 s{sG}, 0\ns_cbranch_scc0 L_mlp_g1')
    st0 = P.state()
    period(3)
    P.lg0()
    P.I(f'''
    v_mov_b32 v{SQ}, {CNT_LDS + 4}
    v_mov_b32 v{SQ+1}, 1
    s_mov_b64 exec, 1
    ds_add_u32 v{SQ}, v{SQ+1}
    s_mov_b64 exec, -1
    s_mov_b32 s{sT2}, {SPIN}
    L_g0s:
    ds_read_b32 v{SQ+1}, v{SQ}
    s_sub_u32 s{sT2}, s{sT2}, 1
    s_cbranch_scc1 L_g0x
    s_waitcnt lgkmcnt(0)
    v_readfirstlane_b32 s{sT0}, v{SQ+1}
    s_cmp_ge_u32 s{sT0}, 4
    s_cbranch_scc0 L_g0s
    L_g0x:
    ''')
    stamp(P, cfg, 'B4b')
    pre, main = e_ops(3, 'st')
    F.add(pre + main); F.flush()
    stamp(P, cfg, 'end')
    stamp_flush(P, cfg)
    P.I(f's_branch {after}')
    P.restore(st0)
    P.label('L_mlp_g1')
    B3()
    pre, main = e_ops(2, 'st')
    XY = [f for pair in zip(s2_xy(P, 'Y', 2), s2_xy(P, 'Y')) for f in pair]
    k = len(main) // 9; mix = []
    for i, x in enumerate(main):
        if i and i % k == 0 and len(XY) > 8: mix.append(XY.pop(0))
        if i == len(main) * 7 // 12: mix.append(arrive)
        if i == len(main) * 8 // 12: mix.append(arrive_check)
        mix.append(x)
    F.add(pre + mix); F.flush()
    stamp(P, cfg, 'T3e')
    for f in XY: f()
    P.lg0()
    stamp(P, cfg, 'end')
    if cfg.hook_late: cfg.hook_late(P)
    stamp_flush(P, cfg)
    P.I(f's_branch {after}')

def att_v3(P, cfg, after):
    sPP, sHH, sOB, sWC, sSC, sSB = 74, 75, 76, 77, 79, 26
    vWD, vHD = 4, 5
    vWa = [[6 + 4 * w + s for s in range(4)] for w in range(3)]
    vXa = [18, 19, 20, 21]; vXh = 22; vL7 = 23
    XF = 24; AK, AV, AQ = 136, 152, 168; ACC = [AK, AV, AQ]
    WF = 184; NWF = 5
    KH, VH = 204, 212; CSA, SEL, XH, XE, XO = 220, 224, 228, 232, 236
    i15, g4, ME, mLO = 240, 241, 242, 243; T = 244; aCSW = 248; vROW = 251
    HALO = 12 * SLOT; CS_LDS = MISC; HP_LDS = 0; EX_LDS = 8 * SLOT; DUMMY = MISC + 4096
    part = [1, 2, 0]
    xdma_addr(P, T, T + 1)
    wdma_addr(P, vWD, WQS, T, True)
    P.I(f'''
    s_and_b32 s{sPP}, s{sWAVE}, 3
    s_lshr_b32 s{sHH}, s{sWAVE}, 2
    s_and_b32 s{sT2}, s{sWAVE}, 1
    s_lshl_b32 s{sT0}, s{sMT}, 7
    s_lshl_b32 s{sT1}, s{sT2}, 3
    s_add_u32 s{sT0}, s{sT0}, s{sT1}
    s_sub_u32 s{sT0}, s{sT0}, 16
    s_mul_i32 s{sT0}, s{sT0}, {XB}
    v_lshrrev_b32 v{T}, 3, v{vLANE}
    v_mul_u32_u24 v{T+2}, {XB}, v{T}
    v_add_u32 v{T+2}, s{sT0}, v{T+2}
    v_lshrrev_b32 v{T+1}, 4, v{vLANE}
    v_xor_b32 v{T+1}, v{T+1}, v{vLANE}
    s_lshl_b32 s{sT1}, s{sT2}, 2
    v_xor_b32 v{T+1}, s{sT1}, v{T+1}
    v_and_b32 v{T+1}, 7, v{T+1}
    v_lshl_add_u32 v{vHD}, v{T+1}, 4, v{T+2}
    s_mul_i32 s{sWC}, s{sSUB}, 112
    s_waitcnt lgkmcnt(0)
    ''')
    srd(P, sX, 4, 2048 * XB)
    srd(P, sW, 6, 448 * WQS)
    xslot = {c: 2 * c for c in range(6)}; xslot[6] = 0
    wslot = {}
    for c, s in zip(range(7), [14, 15, 16, 17, 18, 2, 3]): wslot[(0, c)] = s
    for c, s in zip(range(7), [4, 5, 6, 7, 8, 9, 10]): wslot[(1, c)] = s
    for c, s in zip(range(7), [11, 14, 15, 16, 17, 18, 12]): wslot[(2, c)] = s
    def dw(blk, c, tag):
        def f():
            off = 896 * part[blk]
            P.I(f's_add_u32 m0, s{sWW}, {wslot[(blk, c)]*SLOT - off}\ns_mul_i32 s{sT0}, s{sKX[c]}, {64*WQS//128}\ns_add_u32 s{sT0}, s{sT0}, s{sWC}')
            P.V(f'buffer_load_dwordx4 v{vWD}, s[{sW}:{sW+3}], s{sT0} offen offset:{off}{cfg.wnt} lds', tag)
        return f
    def dx(c, tag): return [lambda: dmax(P, c, xslot[c] * SLOT, 0, tag), lambda: dmax(P, c, xslot[c] * SLOT, 1, tag)]
    rot_first(P, cfg, 1)
    for f in dx(0, 'a'): f()
    dw(0, 0, 'a')()
    P.I(f'''
    s_lshr_b32 s{sT0}, s{sWAVE}, 1
    s_lshl_b32 s{sT0}, s{sT0}, 7
    s_add_u32 s{sT0}, s{sT0}, s{sKX[0]}
    s_sub_u32 s{sT1}, s{sT0}, 896
    s_cmp_ge_u32 s{sT0}, 896
    s_cselect_b32 s{sT0}, s{sT1}, s{sT0}
    s_add_u32 m0, s{sWW}, {HALO}
    ''')
    P.V(f'buffer_load_dwordx4 v{vHD}, s[{sX}:{sX+3}], s{sT0} offen lds', 'a')
    P.I(f'''
    s_cmp_lt_u32 s{sWAVE}, 6
    s_cselect_b32 s{sT1}, 512, 0
    s_cselect_b32 s{sT2}, 8192, 0
    s_add_u32 s{sT0}, s{sT0}, s{sT1}
    s_sub_u32 s{sT1}, s{sT0}, 896
    s_cmp_ge_u32 s{sT0}, 896
    s_cselect_b32 s{sT0}, s{sT1}, s{sT0}
    s_add_u32 s{sT2}, s{sT2}, s{sWW}
    s_add_u32 m0, s{sT2}, {HALO}
    ''')
    P.V(f'buffer_load_dwordx4 v{vHD}, s[{sX}:{sX+3}], s{sT0} offen lds', 'a')
    rot_rest(P, 1, 7)
    P.I('s_barrier')
    for f in dx(1, 'a1') + [dw(0, 1, 'a1')]: f()
    stamp(P, cfg, 'issued')
    srd(P, sWS, 24, WS_SIZE); srd(P, sDBG, 22, 256)
    frag_addrs(P, sPP, sHH, 56, vXa, vWa[0], T)
    for w in (1, 2):
        for s in range(4): P.I(f'v_add_u32 v{vWa[w][s]}, {65536*w}, v{vWa[0][s]}')
    P.I(f'''
    v_mov_b32 v{vROW}, v{T}
    v_and_b32 v{i15}, 15, v{vLANE}
    v_lshrrev_b32 v{g4}, 4, v{vLANE}
    v_lshrrev_b32 v{T}, 1, v{i15}
    v_lshrrev_b32 v{T+1}, 5, v{vLANE}
    v_add_u32 v{mLO}, -1, v{T+1}
    v_xor_b32 v{T}, v{T}, v{T+1}
    s_xor_b32 s{sT0}, s{sT2}, 1
    s_lshl_b32 s{sT0}, s{sT0}, 1
    v_xor_b32 v{T}, s{sT0}, v{T}
    v_lshlrev_b32 v{T}, 4, v{T}
    v_lshl_add_u32 v{T}, v{i15}, 7, v{T}
    v_add_u32 v{vXh}, {HALO}, v{T}
    v_and_b32 v{ME}, 1, v{g4}
    v_add_u32 v{ME}, -1, v{ME}
    s_mul_i32 s{sT0}, s{sHH}, 1536
    s_lshl_b32 s{sT1}, s{sPP}, 2
    s_add_u32 s{sT0}, s{sT0}, s{sT1}
    s_add_u32 s{sT0}, s{sT0}, {CS_LDS}
    v_and_b32 v{T}, 31, v{vLANE}
    v_lshlrev_b32 v{aCSW}, 4, v{T}
    v_add_u32 v{aCSW}, s{sT0}, v{aCSW}
    v_lshlrev_b32 v{vL7}, 7, v{vLANE}
    s_lshl_b32 s{sT0}, s{sMT}, 2
    s_add_u32 s{sT0}, s{sT0}, s{sPP}
    s_lshl_b32 s{sT0}, s{sT0}, 15
    s_lshl_b32 s{sT1}, s{sSUB}, 1
    s_add_u32 s{sT1}, s{sT1}, s{sHH}
    s_lshl_b32 s{sT1}, s{sT1}, 11
    s_add_u32 s{sOB}, s{sT0}, s{sT1}
    s_add_u32 s{sOB}, s{sOB}, {O_OFF}
    ''')
    make_sel(P, SEL, T)
    s2_early_setup(P, T)
    Q0 = dx(2, 'a2') + [dw(0, 2, 'a2')] + dx(3, 'b') + [dw(0, 3, 'b')] + dx(4, 'b') + [dw(0, 4, 'b')] + dx(5, 'c')
    E = Eng(P, cfg, XF, WF, NWF, vWa, vXa, wslot, xslot); F = E.F
    def bar(name, vm=(), lg=()):
        if vm: P.wait_vm(*vm)
        if lg: P.wait_lg(*lg)
        stamp(P, cfg, name + 'w'); P.I('s_barrier'); stamp(P, cfg, name + 'b')
    def sites(D): return (lambda: site(P, sHH, 0, D, False)), (lambda: site(P, sHH, 1, D, True))
    def xh_read(c): P.D(f'ds_read_b128 v[{XH}:{XH+3}], v{vXh} offset:{c*2048}', ('xh', c))
    def slot(j, s, hooks):
        gs = 28 * j + s
        for f in hooks.get(s, []): f()
        E.rd(gs + AH, 3)
        w = WF + 4 * (gs % NWF); x = XF + 4 * s
        P.wait_lg(('w', gs), ('x', gs))
        if j < 2 and s % 4 == 0:
            P.wait_lg(('xh', s // 4))
            F.q = [f'v_and_b32 v{XE+d}, v{ME}, v{XH+d}' for d in range(4)] + [f'v_xor_b32 v{XO+d}, v{XE+d}, v{XH+d}' for d in range(4)] + F.q
        P.I(m32(ACC[j], x, w, s == 0) if j == 1 else m32(ACC[j], w, x, s == 0))
        if j == 0:
            E.xreads(2, vis[0])
            for _ in range(2):
                if Q0: Q0.pop(0)()
        b = 32 if j < 2 else (0 if s < 2 else E.budget(s, 0.5 * ((27 - s) // 4 + 1)))
        F.emit(b)
        if j < 2 and s % 4 == 1:
            H = KH if j == 0 else VH
            if j == 0: P.I(m16(H, w, XE, s == 1)); P.I(m16(H + 4, w, XO, s == 1))
            else: P.I(m16(H, XE, w, s == 1)); P.I(m16(H + 4, XO, w, s == 1))
        if j < 2 and s % 4 == 2:
            if s < 24: xh_read(s // 4 + 1)
            elif j == 0: xh_read(0)
        if s % 4 == 3:
            P.I(m16(CSA, SEL, w, s == 3)); F.emit(b // 2)
    def cs_write(j): P.D(f'ds_write_b32 v{aCSW}, v{CSA} offset:{512*j}', 'csw')
    vis = [0]
    def setvis(v): vis[0] = v
    bar('c0', vm=('a',))
    E.xreads(2, 0); xh_read(0)
    for g in range(AH): E.rd(g, 3)
    E.xreads(2, 0)
    H = {1: [lambda: bar('a1', vm=('a1',)), lambda: setvis(1)],
         5: [lambda: bar('a2', vm=('a2',)), lambda: setvis(2)],
         9: [lambda: bar('Bb', vm=('b',), lg=(('x', 11),)), lambda: setvis(4)] + dx(6, 'c') + [dw(0, 5, 'c'), dw(0, 6, 'c'), dw(1, 0, 'c'), lambda: flag_prefetch(P, cfg)],
         13: [dw(1, 1, ('t', 1))],
         17: [lambda: bar('Bc', vm=('c',), lg=(('x', 19),)), lambda: setvis(6)]}
    sa, sb = sites([dw(1, c, ('t', 1)) for c in range(2, 6)])
    H[17].append(sa); H[20] = [sb]
    if cfg.mallc >= 0: H[23] = [lambda: mall_pf(P, vL7)]
    for s in range(28): slot(0, s, H)
    F.flush()
    stamp(P, cfg, 'T0e')
    R, M, RH, MH = 18, 19, 20, 21
    def st_poll():
        flag_check(P, 'a')
        statc_addr(P, sSC, sT1)
        P.I(f'''
        s_cmp_eq_u32 s{sMT}, 0
        s_cselect_b32 s{sT1}, 0, 128
        v_mov_b32 v2, s{sT1}
        v_and_b32 v2, v{mLO}, v2
        v_sub_u32 v2, s{sSC}, v2
        ''')
        svc_load(P, 3, sWS, '0', 2)
    def st_check():
        u = svc_begin(P); spin(P, 3, sWS, '0', cfg.stat_expect, 2); svc_end(P, u)
    sa, sb = sites([dw(1, 6, 'd'), dw(2, 0, 'd')] + [dw(2, c, ('t', 2)) for c in range(1, 6)])
    H = {0: [lambda: cs_write(0)],
         1: [lambda: bar('B1', vm=(('t', 1),), lg=(('x', 27),)), sa], 6: [sb],
         17: [lambda: bar('B1x', vm=('d',))],
         cfg.st_poll: [st_poll]}
    for s in range(28): slot(1, s, H)
    F.flush()
    aHPW, aHPR, aCSR = 5, 22, 23
    P.I(f'''
    v_lshlrev_b32 v{T}, 4, v{vLANE}
    s_lshl_b32 s{sT0}, s{sHH}, 14
    s_lshl_b32 s{sT1}, s{sPP}, 10
    s_add_u32 s{sT1}, s{sT1}, s{sT0}
    v_add_u32 v{aHPW}, s{sT1}, v{T}
    s_lshl_b32 s{sT1}, s{sPP}, 12
    s_add_u32 s{sT1}, s{sT1}, s{sT0}
    v_add_u32 v{aHPR}, s{sT1}, v{T}
    s_lshl_b32 s{sT1}, s{sPP}, 2
    v_subrev_u32 v{aCSR}, s{sT1}, v{aCSW}
    ''')
    cs_write(1)
    for k in range(4): P.D(f'ds_write_b128 v{aHPW}, v[{KH+4*k}:{KH+4*k+3}] offset:{HP_LDS + 4096*k}', 'csw')
    stamp(P, cfg, 'T1e')
    SC, BX, BS = XH, XE, XO; AXK, AXV = T, 6; HA = KH
    RR = XF; KOP = XF + 16; VOP = XF + 28; MKP, MKC, MKP0, ONES = XF + 40, XF + 44, XF + 48, XF + 52
    aEXW, aEXH, aEXR, vO, m48, RQ, RZ, TT = XF + 56, XF + 57, XF + 58, XF + 59, XF + 60, XF + 62, XF + 64, XF + 66
    ws = f's[{sWS}:{sWS+3}]'
    qs = 28 ** -0.5 * LOG2E
    def st_loads():
        stat_addr(P, sSB, sT1)
        P.I(f'''
        s_add_u32 s{sT1}, s{sSB}, 8192
        v_lshlrev_b32 v{vROW}, 2, v{vROW}
        s_cmp_eq_u32 s{sMT}, 0
        s_cselect_b32 s{sT2}, 0x40000000, -64
        s_add_u32 s{sT2}, s{sT2}, s{sSB}
        v_lshlrev_b32 v2, 2, v{i15}
        v_add_u32 v2, s{sT2}, v2
        v_lshlrev_b32 v3, 4, v{g4}
        v_add_u32 v3, s{sT2}, v3
        ''')
        P.V(f'buffer_load_dword v{M}, v{vROW}, {ws}, s{sT1} offen sc1', 'sl')
        P.V(f'buffer_load_dword v{R}, v{vROW}, {ws}, s{sSB} offen sc1', 'sl')
        P.V(f'buffer_load_dword v{RH}, v2, {ws}, 0 offen sc1', 'sl')
        P.I(f's_movk_i32 s{sT1}, 0x2000')
        P.V(f'buffer_load_dword v{MH}, v2, {ws}, s{sT1} offen sc1', 'sl')
        P.V(f'buffer_load_dwordx4 v[{SC}:{SC+3}], v3, {ws}, 0 offen sc1', 'sl')
    def rr_loads():
        P.I(f'v_lshrrev_b32 v2, 5, v{vLANE}\nv_lshlrev_b32 v2, 4, v2\ns_lshl_b32 s{sT0}, s{sPP}, 7\nv_add_u32 v2, s{sT0}, v2')
        for q in range(4): P.V(f'buffer_load_dwordx4 v[{RR+4*q}:{RR+4*q+3}], v2, {ws}, s{sSB} offen offset:{32*q} sc1', 'rr')
    def lds_reads():
        P.D(f'ds_read_b128 v[{AXK}:{AXK+3}], v{aCSR}', 'cs')
        P.D(f'ds_read_b128 v[{AXV}:{AXV+3}], v{aCSR} offset:512', 'cs')
        for k in range(4): P.D(f'ds_read_b128 v[{HA+4*k}:{HA+4*k+3}], v{aHPR} offset:{HP_LDS + 1024*k}', 'hp')
    def ax_ops(a):
        return [f'v_add_f32 v{a}, v{a}, v{a+1}', f'v_add_f32 v{a+2}, v{a+2}, v{a+3}', f'v_mov_b32 v{a+3}, 0', f'v_add_f32 v{a+2}, v{a}, v{a+2}',
                f'v_cvt_pk_bf16_f32 v{a}, v{a+2}, v{a+2}', f'v_lshlrev_b32 v{a+1}, 16, v{a}', f'v_sub_f32 v{a+1}, v{a+2}, v{a+1}',
                f'v_cvt_pk_bf16_f32 v{a+1}, v{a+1}, v{a+3}', f'v_mov_b32 v{a+2}, 0']
    def negm_ops(m, mask, d):
        return [f'v_and_b32 v{m}, v{mask}, v{m}', f'v_mov_b32 v{d+3}, 0', f'v_sub_f32 v{m}, 0, v{m}', f'v_cvt_pk_bf16_f32 v{d+1}, v{m}, v{d+3}',
                f'v_lshlrev_b32 v{d+2}, 16, v{d+1}', f'v_sub_f32 v{d+2}, v{m}, v{d+2}', f'v_cvt_pk_bf16_f32 v{d}, v{m}, v{d+2}', f'v_mov_b32 v{d+2}, 0']
    pmap = [0, 1, 4, 5, 2, 3, 6, 7]
    def swaps(a, b, n): return [f'v_permlane32_swap_b32 v{a+i}, v{b+i}' for i in range(n)] + [f'v_permlane16_swap_b32 v{a+i}, v{b+i}' for i in range(n)]
    def branch2(k_code, v_code):
        def f():
            u = P.uid()
            P.I(f's_cmp_lt_u32 s{sPP}, 2\ns_cbranch_scc0 L_b{u}v')
            for x in k_code: P.I(x)
            P.I(f's_branch L_b{u}e'); P.label(f'L_b{u}v')
            for x in v_code: P.I(x)
            P.label(f'L_b{u}e')
        return f
    ex_addr = f'''s_lshl_b32 s{sT0}, s{sHH}, 13
        s_add_u32 s{sT0}, s{sT0}, {EX_LDS}
        s_lshr_b32 s{sT1}, s{sPP}, 1
        s_lshl_b32 s{sT1}, s{sT1}, 10
        s_and_b32 s{sT2}, s{sPP}, 1
        s_lshl_b32 s{sT2}, s{sT2}, 3
        s_add_u32 s{sT1}, s{sT1}, s{sT2}
        s_add_u32 s{sT1}, s{sT1}, s{sT0}
        v_lshlrev_b32 v{TT}, 4, v{vLANE}
        v_add_u32 v{aEXH}, s{sT1}, v{TT}
        s_lshl_b32 s{sT1}, s{sPP}, 11
        s_add_u32 s{sT0}, s{sT0}, s{sT1}
        v_add_u32 v{aEXR}, s{sT0}, v{TT}
        s_add_u32 s{sT0}, s{sT0}, 2048
        s_cmp_eq_u32 s{sPP}, 3
        s_cselect_b32 s{sT0}, {DUMMY}, s{sT0}
        v_add_u32 v{aEXW}, s{sT0}, v{TT}'''
    A1 = [lambda: P.wait_lg('cs')] + ax_ops(AXK) + ax_ops(AXV) + [lambda: P.wait_lg('hp')]
    A1 += [f'v_add_f32 v{HA+e}, v{HA+e}, v{HA+4+e}' for e in range(4)] + [f'v_add_f32 v{HA+8+e}, v{HA+8+e}, v{HA+12+e}' for e in range(4)]
    A1 += [f'v_add_f32 v{HA+e}, v{HA+e}, v{HA+8+e}' for e in range(4)]
    A1 += [lambda: P.I(f's_and_b32 s{sT0}, s{sPP}, 1\ns_sub_u32 s{sT0}, 0, s{sT0}\nv_xor_b32 v{ME}, s{sT0}, v{ME}\nv_and_b32 v{ME}, v{ME}, v{mLO}')]
    A2 = [lambda: P.wait_vm('sl')] + negm_ops(M, mLO, BX) + negm_ops(MH, ME, BS)
    A2 += ['s_nop 0', m32(AK, AXK, BX, False), m32(AV, BX, AXV, False), branch2([m16(HA, AXK, BS, False)], [m16(HA, BS, AXV, False)])]
    EK = [f'v_mul_f32 v{AK+v}, v{AK+v}, v{R}' for v in range(16)] + [f'v_cvt_pk_bf16_f32 v{KOP+4+pmap[i]}, v{AK+2*i}, v{AK+2*i+1}' for i in range(8)] + swaps(KOP + 4, KOP + 8, 4)
    vmap = [VOP + 2, VOP + 3, VOP + 8, VOP + 9, VOP + 4, VOP + 5, VOP + 10, VOP + 11]
    EV = [lambda: P.wait_vm('rr')] + [f'v_mul_f32 v{AV+v}, v{AV+v}, v{RR+v}' for v in range(16)] + [f'v_cvt_pk_bf16_f32 v{vmap[i]}, v{AV+2*i}, v{AV+2*i+1}' for i in range(8)] + swaps(VOP + 2, VOP + 8, 4)
    EH = [branch2([f'v_mul_f32 v{HA+v}, v{HA+v}, v{RH}' for v in range(4)], [f'v_mul_f32 v{HA+v}, v{HA+v}, v{SC+v}' for v in range(4)]),
          f'v_cvt_pk_bf16_f32 v{HA+4}, v{HA}, v{HA+1}', f'v_cvt_pk_bf16_f32 v{HA+5}, v{HA+2}, v{HA+3}']
    WR = [lambda: P.I(ex_addr),
          lambda: P.D(f'ds_write_b128 v{aEXW}, v[{KOP+8}:{KOP+11}]', 'x'),
          lambda: P.D(f'ds_write_b64 v{aEXW}, v[{VOP+4}:{VOP+5}] offset:1024', 'x'),
          lambda: P.D(f'ds_write_b64 v{aEXW}, v[{VOP+10}:{VOP+11}] offset:1032', 'x'),
          lambda: P.D(f'ds_write_b64 v{aEXH}, v[{HA+4}:{HA+5}]', 'x')]
    MK = [f'v_lshlrev_b32 v{TT}, 2, v{g4}', f'v_sub_u32 v{TT}, v{i15}, v{TT}']
    for v in range(4):
        for base, dst in ((0, MKC), (16, MKP)):
            MK += [f'v_add_u32 v{dst+v}, {base - v}, v{TT}', f'v_and_b32 v{dst+v}, 0xfffffff1, v{dst+v}', f'v_min_u32 v{dst+v}, 1, v{dst+v}',
                   f'v_sub_u32 v{dst+v}, 0, v{dst+v}', f'v_and_b32 v{dst+v}, {f32(NEG)}, v{dst+v}']
    MK += [lambda: P.I(f's_or_b32 s{sT0}, s{sMT}, s{sPP}\ns_cmp_eq_u32 s{sT0}, 0\ns_cselect_b32 s{sT0}, {f32(NEG)}, 0\n' + '\n'.join(f'v_or_b32 v{MKP0+v}, s{sT0}, v{MKP+v}' for v in range(4)))]
    MK += [f'v_mov_b32 v{ONES+i}, 0x3f803f80' for i in range(4)]
    MK += [f'v_lshlrev_b32 v{vO}, 9, v{g4}', f'v_lshl_add_u32 v{vO}, v{i15}, 4, v{vO}', f'v_subrev_u32 v{m48}, 48, v{vLANE}', f'v_ashrrev_i32 v{m48}, 31, v{m48}',
           f'v_mul_f32 v{RQ}, {f32(qs)}, v{R}', f'v_and_b32 v{RZ}, v{mLO}, v{RQ}']
    XQ = ([lambda: s2_srd(P, cfg)] + s2_xy(P, 'X')) if cfg.early_w else []
    def late():
        mix = []; X = list(XQ); L = EV + EH + WR + MK
        k = max(1, len(L) // (len(X) + 1))
        for i, m in enumerate(L):
            if X and i % k == 0: mix.append(X.pop(0))
            mix.append(m)
        F.add(mix + X)
    H = {1: [st_check, lambda: bar('B2', vm=(('t', 2),), lg=('csw',)), st_loads, lds_reads, dw(2, 6, 'e'), lambda: F.add(A1)],
         4: [rr_loads], cfg.a2pos: [lambda: F.flush(), lambda: F.add(A2 + EK)],
         17: [lambda: F.flush(), lambda: bar('Bx', vm=('e',)), late]}
    for s in range(28):
        gs = 56 + s
        for f in H.get(s, []): f()
        E.rd(gs + AH, 3)
        w = WF + 4 * (gs % NWF); x = XF + 4 * s
        P.wait_lg(('w', gs))
        P.I(m32(AQ, w, x, s == 0))
        end = cfg.a2pos if s < cfg.a2pos else 17 if s < 17 else 28
        b = 0 if s < 2 else max(8, int(F.total() / (end - s) + 3))
        F.emit(b)
        if s % 4 == 3: P.I(m16(CSA, SEL, w, s == 3))
    F.flush()
    cs_write(2)
    stamp(P, cfg, 'loop')
    if cfg.hook_late: cfg.hook_late(P)
    P.lg0(); P.I('s_barrier'); stamp(P, cfg, 'e2')
    P.D(f'ds_read_b128 v[{AXK}:{AXK+3}], v{aCSR} offset:1024', 'cs')
    P.D(f'ds_read_b128 v[{KOP}:{KOP+3}], v{aEXR}', 'e')
    for tt in range(2): P.D(f'ds_read_b64 v[{VOP+6*tt}:{VOP+6*tt+1}], v{aEXR} offset:{1024+8*tt}', 'e')
    P.wait_lg('cs')
    for x in ax_ops(AXK): P.I(x)
    P.I(m32(AQ, AXK, BX, False))
    QOP = XF + 68
    for v in range(0, 16, 2): P.I(f'v_pk_mul_f32 {pr(AQ+v)}, {pr(AQ+v)}, {pr(RZ if v >= 12 else RQ)} op_sel_hi:[1,0]')
    for i in range(8): P.I(f'v_cvt_pk_bf16_f32 v{QOP+pmap[i]}, v{AQ+2*i}, v{AQ+2*i+1}')
    for x in swaps(QOP, QOP + 4, 4): P.I(x)
    S = AK; PP = AV; OB = [AQ, KH]
    mfS = lambda d, a, b, c: f'v_mfma_f32_16x16x32_bf16 v[{d}:{d+3}], v[{a}:{a+3}], v[{b}:{b+3}], v[{c}:{c+3}]'
    P.lg0()
    P.I(mfS(S + 8, KOP + 4, QOP + 4, MKP)); P.I(mfS(S + 12, KOP + 8, QOP + 4, MKC)); P.I(mfS(S + 4, KOP + 4, QOP, MKC)); P.I(mfS(S, KOP, QOP, MKP0))
    mx = [XF + 76, XF + 78]
    order = (1, 0)
    for bb in order:
        s = S + 8 * bb; m = mx[bb]
        P.I(f'''
        v_max3_f32 v{m}, v{s}, v{s+1}, v{s+2}
        v_max3_f32 v{m+1}, v{s+3}, v{s+4}, v{s+5}
        v_max3_f32 v{m}, v{m}, v{s+6}, v{s+7}
        v_max_f32 v{m}, v{m}, v{m+1}
        v_mov_b32 v{m+1}, v{m}
        ''')
    for bb in order: P.I(f'v_permlane16_swap_b32 v{mx[bb]}, v{mx[bb]+1}')
    for bb in order: P.I(f'v_max_f32 v{mx[bb]}, v{mx[bb]}, v{mx[bb]+1}\nv_mov_b32 v{mx[bb]+1}, v{mx[bb]}')
    for bb in order: P.I(f'v_permlane32_swap_b32 v{mx[bb]}, v{mx[bb]+1}')
    for bb in order: P.I(f'v_max_f32 v{mx[bb]}, v{mx[bb]}, v{mx[bb]+1}')
    for bb in order:
        s = S + 8 * bb; o = OB[bb]; p = PP + 4 * bb
        for v in range(0, 8, 2): P.I(f'v_pk_add_f32 {pr(s+v)}, {pr(s+v)}, {pr(mx[bb])} op_sel_hi:[1,0] neg_lo:[0,1] neg_hi:[0,1]')
        for v in range(8): P.I(f'v_exp_f32 v{s+v}, v{s+v}')
        for v in range(4): P.I(f'v_cvt_pk_bf16_f32 v{p+v}, v{s+2*v}, v{s+2*v+1}')
        P.I(m16(o + 8, ONES, p, True))
        for tt in range(2): P.I(m16(o + 4 * tt, VOP + 6 * tt + 2 * bb, p, True))
    for bb in order:
        o = OB[bb]
        P.I(f'v_rcp_f32 v{o+8}, v{o+8}')
        P.I(f'v_and_b32 v{o+10}, v{m48}, v{o+8}')
        for v in (0, 2): P.I(f'v_pk_mul_f32 {pr(o+v)}, {pr(o+v)}, {pr(o+8)} op_sel_hi:[1,0]')
        for v in (4, 6): P.I(f'v_pk_mul_f32 {pr(o+v)}, {pr(o+v)}, {pr(o+10)} op_sel_hi:[1,0]')
        for v in range(4): P.I(f'v_cvt_pk_bf16_f32 v{PP+8+4*bb+v}, v{o+2*v}, v{o+2*v+1}')
        P.V(f'buffer_store_dwordx4 v[{PP+8+4*bb}:{PP+8+4*bb+3}], v{vO}, s[{sWS}:{sWS+3}], s{sOB} offen offset:{256*bb}{cfg.sc}', 'st')
    stamp(P, cfg, 'end')
    stamp_flush(P, cfg)
    P.I(f's_branch {after}')
```

```python
from gen import *

def check_flag(P, vreg, soff, expect, lab):
    P.I(f'''
    v_readfirstlane_b32 s{sT1}, v{vreg}
    s_cmp_ge_u32 s{sT1}, {expect}
    s_cbranch_scc1 L_ok{lab}
    s_mov_b32 s{sT2}, {SPIN}
    L_sp{lab}:
    buffer_load_dword v{vreg}, off, s[{sWS}:{sWS+3}], s{soff} sc1
    s_sub_u32 s{sT2}, s{sT2}, 1
    s_cbranch_scc1 L_ok{lab}
    s_waitcnt vmcnt(0)
    v_readfirstlane_b32 s{sT1}, v{vreg}
    s_cmp_ge_u32 s{sT1}, {expect}
    s_cbranch_scc0 L_sp{lab}
    L_ok{lab}:
    ''')

sM2, sN2 = 90, 91
sCA, sCB = 92, 93
vPA = 252

def stage2_ids(P):
    P.I(f'''
    s_mul_i32 s{sT0}, s{sJ}, 37
    s_lshr_b32 s{sT0}, s{sT0}, 8
    s_mul_i32 s{sT1}, s{sT0}, 7
    s_sub_u32 s{sN2}, s{sJ}, s{sT1}
    s_lshl_b32 s{sM2}, s{sXCD}, 2
    s_add_u32 s{sM2}, s{sM2}, s{sT0}
    s_lshr_b32 s{sT0}, s{sM2}, 1
    s_and_b32 s{sT0}, s{sT0}, 15
    s_lshl_b32 s{sT0}, s{sT0}, 7
    s_add_u32 s{sCA}, s{sT0}, {CNT_OFF}
    s_add_u32 s{sCB}, s{sT0}, {CNT_OFF + 2048}
    ''')

NOB0 = [False]
def pollA_prefetch(P):
    svc_load(P, vPA, sWS, f's{sCA}')
    if NOB0[0]:
        P.I(f's_add_u32 s95, s{sCA}, 4096'); svc_load(P, vFLAG, sWS, 's95')

XA, YA, ZA = 0, 65536, 131072
GO_LDS = 163824
vWD2 = 249; sLD2, sRW2 = 98, 99
sROT = [0, 1, 3, 13, 14, 15, 22, 23]
def s2_early_setup(P, t):
    P.I(f'''
    s_lshr_b32 s{sT2}, s{sWAVE}, 1
    s_and_b32 s{sT1}, s{sWAVE}, 1
    v_lshrrev_b32 v{t}, 3, v{vLANE}
    s_lshl_b32 s{sT0}, s{sT1}, 3
    v_add_u32 v{t}, s{sT0}, v{t}
    v_mul_u32_u24 v{t}, {XB}, v{t}
    v_lshrrev_b32 v{t+1}, 2, v{vLANE}
    v_and_b32 v{t+1}, 4, v{t+1}
    v_xor_b32 v{t+1}, v{t+1}, v{vLANE}
    v_and_b32 v{t+1}, 7, v{t+1}
    v_lshl_add_u32 v{vWD2}, v{t+1}, 4, v{t}
    s_lshl_b32 s{sT0}, s{sN2}, 7
    v_add_u32 v{vWD2}, s{sT0}, v{vWD2}
    s_lshl_b32 s{sT0}, s{sT2}, 14
    s_lshl_b32 s{sT1}, s{sT1}, 10
    s_add_u32 s{sLD2}, s{sT0}, s{sT1}
    s_mul_i32 s{sRW2}, s{sT2}, {448*XB}
    ''')
HROT = [False]
sN2R = 25
def s2_srd(P, cfg):
    HROT[0] = cfg.hrot
    P.I(f's_lshl_b32 s{sN2R}, s{sN2}, 11')
    srd(P, sW2, 16, 1792 * XB)
    if cfg.norot2: P.I(f's_mov_b32 s{sT0}, 0')
    else: P.I(f's_and_b32 s{sT0}, s{sM2}, 3\ns_lshl_b32 s{sT0}, s{sT0}, 1\ns_and_b32 s{sT1}, s{sXCD}, 1\ns_add_u32 s{sT0}, s{sT0}, s{sT1}\ns_lshl_b32 s{sT0}, s{sT0}, 11')
    for i in range(8):
        P.I(f's_add_u32 s{sROT[i]}, s{sT0}, {2048*i}\ns_and_b32 s{sROT[i]}, s{sROT[i]}, 0x3fff')
def s2_dma_rot(P, srdn, rowreg, row0, area_reg_off, i, tag, split=0, dk=0):
    src = sROT[i]
    if HROT[0] and split:
        P.I(f's_add_u32 s{sT1}, s{sROT[i]}, s{sN2R}\ns_and_b32 s{sT1}, s{sT1}, 0x3fff'); src = sT1
    P.I(f's_add_u32 m0, s{sROT[i]}, s{area_reg_off}\ns_mul_i32 s{sT0}, s{src}, 7')
    if dk: P.I(f's_sub_u32 m0, m0, {dk*16384}'); row0 -= dk * 448
    if split:
        P.I(f's_and_b32 s{sT2}, s{src}, 0x2000\ns_mul_i32 s{sT2}, s{sT2}, {split*XB//0x2000}\ns_add_u32 s{sT0}, s{sT0}, s{sT2}')
    P.I(f's_add_u32 s{sT0}, s{sT0}, s{rowreg}')
    o = row0 * XB
    if o > 4095 or True:
        P.I(f's_add_u32 s{sT0}, s{sT0}, {o & 0xffffffff:#x}')
    P.V(f'buffer_load_dwordx4 v{vWD2}, s[{srdn}:{srdn+3}], s{sT0} offen lds', tag)
sLDY = 89
def s2_xy(P, which, dk=0):
    if which == 'X': return [lambda i=i: s2_dma_rot(P, sW2, sRW2, 0, sLD2, i, 'X', split=192, dk=dk) for i in range(8)]
    def f(i):
        if i == 0: P.I(f's_add_u32 s{sLDY}, s{sLD2}, {YA}')
        s2_dma_rot(P, sW2, sRW2, 64, sLDY, i, 'Y', split=192, dk=dk)
    return [lambda i=i: f(i) for i in range(8)]
EA = [0, 16, 4, 20]; EB = [8, 12, 24]

def helper(P, cfg):
    sI, sQ, sA, sBk = 74, 75, 76, 77
    vL = 3; vD = 4
    srd(P, sWO, 8, 448 * XB)
    P.I(f'''
    s_sub_u32 s{sI}, s{sJ}, 28
    s_lshl_b32 s{sI}, s{sI}, 3
    s_add_u32 s{sI}, s{sI}, s{sWAVE}
    v_lshlrev_b32 v{vL}, 7, v{vLANE}
    ''')
    nd = [0]
    def ld(srdn, so, fl=''):
        P.I(f'buffer_load_dword v{vD + nd[0]}, v{vL}, s[{srdn}:{srdn+3}], s{so} offen{fl}'); nd[0] += 1
    def wblk(k):
        u = P.uid()
        P.I(f's_add_u32 s{sQ}, s{sI}, {32*k}')
        lo, hi = 32 * k, 32 * k + 31
        def seg(base, per, boff):
            P.I(f'''
            s_sub_u32 s{sA}, s{sQ}, {base}
            s_mul_i32 s{sBk}, s{sA}, {-(-65536 // per)}
            s_lshr_b32 s{sBk}, s{sBk}, 16
            s_mul_i32 s{sT0}, s{sBk}, {per}
            s_sub_u32 s{sA}, s{sA}, s{sT0}
            s_lshl_b32 s{sA}, s{sA}, 13
            s_mul_i32 s{sBk}, s{sBk}, {448*XB}
            s_add_u32 s{sA}, s{sA}, s{sBk}
            s_add_u32 s{sA}, s{sA}, {128*XB + boff*8192}
            ''')
        segs = [(0, 56, 14, 14), (56, 112, 14, 0), (112, 140, 7, 28)]
        act = [x for x in segs if x[0] <= hi and x[1] > lo]
        for n, (a, b, per, boff) in enumerate(act):
            if b <= hi: P.I(f's_cmp_lt_u32 s{sQ}, {b}\ns_cbranch_scc0 L_h{u}_{n}')
            seg(a, per, boff)
            P.I(f'buffer_load_dword v{vD + nd[0]}, v{vL}, s[{sW2}:{sW2+3}], s{sA} offen')
            P.I(f's_branch L_h{u}_e')
            if b <= hi: P.label(f'L_h{u}_{n}')
        if hi >= 140:
            P.I(f's_sub_u32 s{sA}, s{sQ}, 140\ns_lshl_b32 s{sA}, s{sA}, 13')
            P.I(f'buffer_load_dword v{vD + nd[0]}, v{vL}, s[{sWO}:{sWO+3}], s{sA} offen')
        P.label(f'L_h{u}_e'); nd[0] += 1
    def waitflag(off, expect):
        P.I(f'''
        v_lshrrev_b32 v2, 5, v{vLANE}
        v_lshlrev_b32 v2, 7, v2
        s_lshl_b32 s{sT0}, s{sXCD}, 8
        s_add_u32 s{sT0}, s{sT0}, {off}
        v_add_u32 v2, s{sT0}, v2
        v_mov_b32 v{vPA}, 0
        ''')
        u = svc_begin(P); spin(P, vPA, sWS, '0', expect, 2); svc_end(P, u)
        P.I('s_barrier')
    for k in range(2): wblk(k)
    tb = 78
    P.I(f's_mul_i32 s{tb}, s{sXCD}, {8*112*1024}')
    waitflag(CNT_OFF, 8)
    for k in range(2):
        P.I(f'''
        s_add_u32 s{sQ}, s{sI}, {32*k}
        s_lshr_b32 s{sA}, s{sQ}, 3
        s_mul_i32 s{sA}, s{sA}, {112*1024}
        s_bfe_u32 s{sBk}, s{sQ}, 0x20001
        s_mul_i32 s{sBk}, s{sBk}, {28*1024}
        s_add_u32 s{sA}, s{sA}, s{sBk}
        s_and_b32 s{sBk}, s{sQ}, 1
        s_lshl_b32 s{sBk}, s{sBk}, 14
        s_add_u32 s{sA}, s{sA}, s{sBk}
        s_add_u32 s{sA}, s{sA}, s{tb}
        ''')
        ld(sWS, sA, ' sc1')
    for k in range(2, 6): wblk(k)
    waitflag(CNT_OFF + 2048, 16)
    P.I(f'''
    s_lshr_b32 s{sQ}, s{sI}, 2
    s_and_b32 s{sBk}, s{sI}, 3
    s_mul_i32 s{sA}, s{sQ}, {112*1024}
    s_mul_i32 s{sT0}, s{sBk}, {28*1024}
    s_add_u32 s{sA}, s{sA}, s{sT0}
    s_add_u32 s{sA}, s{sA}, s{tb}
    s_add_u32 s{sA}, s{sA}, {8*1024}
    ''')
    ld(sWS, sA, ' sc1')
    P.I(f's_add_u32 s{sA}, s{sA}, {16*1024}\ns_mov_b64 exec, 0xffffffff')
    P.I('s_lshr_b64 exec, -1, 32')
    ld(sWS, sA, ' sc1')
    P.I(f'''
    s_mov_b64 exec, -1
    s_lshl_b32 s{sA}, s{sXCD}, 3
    s_add_u32 s{sA}, s{sA}, s{sQ}
    s_lshl_b32 s{sA}, s{sA}, 15
    s_lshl_b32 s{sT0}, s{sBk}, 13
    s_add_u32 s{sA}, s{sA}, s{sT0}
    s_add_u32 s{sA}, s{sA}, {O_OFF}
    ''')
    ld(sWS, sA, ' sc1')

def stage2_v2(P, cfg, endlabel):
    global spin
    if 's2only' in cfg.exp: spin = lambda *a, **k: None
    sKQ, sTT, sHB, sOB2, sLD, sRW, sRO = 76, 77, 78, 79, sLD2, sRW2, 74
    vWD, vH = vWD2, 3; vA = {XA: [4, 5], YA: [6, 7], ZA: [8, 9]}; vO = 10; vRW, vRR, vSW, vSR = 11, 12, 13, 14; vT = 15
    XR, B2R = 20, 24
    WL = 28
    AM, AS = 52, 84
    HR = 116
    NH = 33
    vP = 251
    P.I(f'''
    s_cmp_ge_u32 s{sJ}, {0 if 's1only' in cfg.exp else 28}
    s_cbranch_scc1 L_nos2
    s_lshr_b32 s{sKQ}, s{sWAVE}, 1
    s_and_b32 s{sTT}, s{sWAVE}, 1
    s_lshl_b32 s{sT1}, s{sTT}, 10
    s_mul_i32 s{sRO}, s{sKQ}, {112*XB}
    ''')
    if not cfg.early_w:
        s2_early_setup(P, vT); s2_srd(P, cfg)
        P.I(f's_lshl_b32 s{sT1}, s{sTT}, 10')
    srd(P, sWO, 8, 448 * XB)
    def pubB():
        u = svc_begin(P)
        P.I(f'''
        s_lshl_b32 s{sT0}, s{sMT}, 7
        s_add_u32 s{sT0}, s{sT0}, {CNT_OFF + 2048}
        v_mov_b32 v{vFLAG}, 1
        s_mov_b64 exec, 1
        buffer_atomic_add v{vFLAG}, off, s[{sWS}:{sWS+3}], s{sT0} sc1
        s_mov_b64 exec, -1
        ''')
        svc_end(P, u)
    def dma(srdn, rowreg, rowoff, lds_imm, tag):
        if 'now' in cfg.exp: return
        P.I(f's_add_u32 m0, s{sLD}, {lds_imm}')
        P.I(f's_add_u32 s{sT0}, s{rowreg}, {rowoff}')
        P.V(f'buffer_load_dwordx4 v{vWD}, s[{srdn}:{srdn+3}], s{sT0} offen lds', tag)
    steps = []
    for r in range(4):
        for u in range(4): steps.append(('h', EA[r] + u, XA if r < 2 else YA, 16 * (4 * (r % 2) + u), 1024))
    for r, k0 in enumerate((8, 24)):
        for u in range(4): steps.append(('h', k0 + u, XA, 16 * (4 * r + u), 1024))
    for u in range(4): steps.append(('h', 12 + u, ZA, 16 * u, 1024))
    for e in range(8): steps.append(('o', e, YA, 28 * (e >> 1) + 8 * (e & 1), 2048))
    def dma_group(lo, hi, tag):
        if 'now' in cfg.exp: return []
        if tag in ('X', 'Y'): return s2_xy(P, tag)
        if tag == 'X2': return [lambda i=i: s2_dma_rot(P, sW2, sRW, 16 * 8, sLD, i, tag, split=192) for i in range(8)]
        def y2(i):
            if not cfg.xlds: return s2_dma_rot(P, sWO, sRO, 0, sLDY, i, tag)
            u = P.uid()
            P.I(f's_cmp_eq_u32 s{sROT[i]}, 0x3800\ns_cbranch_scc1 L_xd{u}')
            s2_dma_rot(P, sWO, sRO, 0, sLDY, i, tag)
            P.I(f's_branch L_xe{u}\nL_xd{u}:\ns_add_u32 m0, s{sLDY}, 0x3800\ns_lshl_b32 s{sT0}, s{sM2}, 2\ns_add_u32 s{sT0}, s{sT0}, s{sKQ}\ns_mul_i32 s{sT0}, s{sT0}, {16*XB}')
            P.I(f'buffer_load_dwordx4 v{vWD2}, s[{sX}:{sX+3}], s{sT0} offen lds\nL_xe{u}:')
        return [lambda i=i: y2(i) for i in range(8)]
    sLZ = 75
    P.I(f's_lshl_b32 s{sT0}, s{sKQ}, 13\ns_add_u32 s{sLZ}, s{sT0}, s{sT1}')
    def dma_z1(i):
        kind, ks, area, row, _ = steps[i]
        P.I(f's_add_u32 m0, s{sLZ}, {area + row*128}')
        P.I(f's_add_u32 s{sT0}, s{sRW}, {16*ks*XB}')
        P.V(f'buffer_load_dwordx4 v{vWD}, s[{sW2}:{sW2+3}], s{sT0} offen lds', 'Z')
    if not cfg.early_w:
        for f in dma_group(0, 8, 'X'): f()
    stamp(P, cfg, 'Xiss')
    P.I(f'''
    v_lshlrev_b32 v{vH}, 4, v{vLANE}
    s_lshl_b32 s{sT0}, s{sM2}, 1
    s_add_u32 s{sT0}, s{sT0}, s{sTT}
    s_mul_i32 s{sHB}, s{sT0}, {112*1024}
    s_mul_i32 s{sT1}, s{sKQ}, {28*1024}
    s_add_u32 s{sHB}, s{sHB}, s{sT1}
    s_lshl_b32 s{sOB2}, s{sT0}, 15
    s_lshl_b32 s{sT1}, s{sKQ}, 13
    s_add_u32 s{sOB2}, s{sOB2}, s{sT1}
    s_add_u32 s{sOB2}, s{sOB2}, {O_OFF}
    s_lshl_b32 s{sTT+17}, s{sT0}, 5
    ''')
    sROW = sTT + 17
    def hload(i):
        kind, ks, _, _, _ = steps[i]
        base = sHB if kind == 'h' else sOB2
        go = ks * 1024
        d = HR + 4 * (i % NH)
        if cfg.hrot and i < 24:
            k0 = steps[i & ~7][1]
            P.I(f'''
            s_add_u32 s{sT1}, s{sN2R}, {(i & 7) * 2048}
            s_and_b32 s{sT1}, s{sT1}, 0x3fff
            s_and_b32 s{sT2}, s{sT1}, 0x2000
            s_mul_i32 s{sT2}, s{sT2}, 3
            s_add_u32 s{sT1}, s{sT1}, s{sT2}
            s_lshr_b32 s{sT1}, s{sT1}, 1
            s_add_u32 s{sT1}, s{sT1}, s{base}
            ''')
            if k0 * 1024 > 4095: P.I(f's_add_u32 s{sT1}, s{sT1}, {k0*1024}'); k0 = 0
            P.V(f'buffer_load_dwordx4 v[{d}:{d+3}], v{vH}, s[{sWS}:{sWS+3}], s{sT1} offen offset:{k0*1024}{cfg.scl}', ('h', i)); return
        if 'noh' in cfg.exp: return
        if 'hhot' in cfg.exp:
            P.V(f'buffer_load_dwordx4 v[{d}:{d+3}], v{vH}, s[{sW2}:{sW2+3}], 0 offen offset:{go & 4095}{cfg.scl}', ('h', i)); return
        if 'hplain' in cfg.exp:
            P.I(f's_add_u32 s{sT1}, s{base}, {go & ~4095}')
            P.V(f'buffer_load_dwordx4 v[{d}:{d+3}], v{vH}, s[{sWS}:{sWS+3}], s{sT1} offen offset:{go & 4095}', ('h', i)); return
        if go & ~4095:
            P.I(f's_add_u32 s{sT1}, s{base}, {go & ~4095}')
            P.V(f'buffer_load_dwordx4 v[{d}:{d+3}], v{vH}, s[{sWS}:{sWS+3}], s{sT1} offen offset:{go & 4095}{cfg.scl}', ('h', i))
        else:
            P.V(f'buffer_load_dwordx4 v[{d}:{d+3}], v{vH}, s[{sWS}:{sWS+3}], s{base} offen offset:{go}{cfg.scl}', ('h', i))
    def share_pf(part):
        if cfg.nopf2: return
        ks = [st for st in steps[(0 if part == 'A' else 16):(16 if part == 'A' else 36)]]
        nb = len(ks)
        P.I(f'''
        v_lshrrev_b32 v{vT+3}, 3, v{vLANE}
        v_mul_u32_u24 v{vT+3}, 7, v{vT+3}
        v_add_u32 v{vT+3}, s{sN2}, v{vT+3}
        ''')
        if part == 'A':
            P.I(f'''
            v_and_b32 v{vT+4}, 8, v{vT+3}
            v_add_u32 v{vT+4}, v{vT+4}, v{vT+3}
            v_lshlrev_b32 v{vT+4}, 10, v{vT+4}
            v_add_u32 v{vT+4}, s{sHB}, v{vT+4}
            ''')
        else:
            P.I(f'''
            v_and_b32 v{vT+4}, 8, v{vT+3}
            v_add_u32 v{vT+4}, v{vT+4}, v{vT+3}
            v_add_u32 v{vT+4}, 8, v{vT+4}
            v_lshlrev_b32 v{vT+4}, 10, v{vT+4}
            v_add_u32 v{vT+4}, s{sHB}, v{vT+4}
            s_sub_u32 s{sT1}, s{sOB2}, {12*1024}
            v_lshlrev_b32 v{vP}, 10, v{vT+3}
            v_add_u32 v{vP}, s{sT1}, v{vP}
            v_cmp_gt_u32 vcc, 12, v{vT+3}
            v_cndmask_b32 v{vT+4}, v{vP}, v{vT+4}, vcc
            ''')
        P.I(f'''
        v_and_b32 v{vP}, 7, v{vLANE}
        v_lshl_add_u32 v{vT+4}, v{vP}, 7, v{vT+4}
        v_cmp_gt_u32 vcc, {nb}, v{vT+3}
        s_and_saveexec_b64 s[96:97], vcc
        ''')
        P.V(f'buffer_load_dword v{vP}, v{vT+4}, s[{sWS}:{sWS+3}], 0 offen sc1', 'pf')
        P.I('s_mov_b64 exec, s[96:97]')
    if cfg.ldsword:
        P.I(f'v_mov_b32 v{vT}, {GO_LDS}\nv_mov_b32 v{vT+1}, 1')
        u = svc_begin(P); spin(P, vPA, sWS, f's{sCA}', 8)
        P.I(f'ds_write_b32 v{vT}, v{vT+1}')
        svc_end(P, u)
        P.I(f'''
        s_mov_b32 s{sT2}, {SPIN * 8}
        L_gow:
        ds_read_b32 v{vT+1}, v{vT}
        s_sub_u32 s{sT2}, s{sT2}, 1
        s_cbranch_scc1 L_gox
        s_waitcnt lgkmcnt(0)
        v_readfirstlane_b32 s{sT1}, v{vT+1}
        s_cmp_eq_u32 s{sT1}, 1
        s_cbranch_scc0 L_gow
        L_gox:
        ''')
    else:
        u = svc_begin(P); spin(P, vPA, sWS, f's{sCA}', 8)
        if cfg.nob0:
            P.I(f's_add_u32 s95, s{sCA}, 4096'); spin(P, vFLAG, sWS, 's95', 8)
        svc_end(P, u)
        P.I('s_barrier')
    stamp(P, cfg, 'Aok')
    share_pf('A')
    Yq = [] if cfg.early_y else dma_group(8, 16, 'Y')
    if cfg.early_y: P.I(f's_add_u32 s{sLDY}, s{sLD2}, {YA}')
    hq = list(range(36))
    P.vm.issue('old')
    P.vm.q.remove('old'); P.vm.q.insert(0, 'old')
    for i in range(cfg.lh): hload(hq.pop(0))
    if not cfg.nob0:
        assert cfg.lh <= 8
        P.I(f's_add_u32 s95, s{sCA}, 4096')
        svc_load(P, vP, sWS, 's95')
    stamp(P, cfg, 'iss')
    srd(P, sOUT, 20, 2048 * XB); srd(P, sB2, 18, 896)
    P.I(f'''
    v_lshrrev_b32 v{vT}, 5, v{vLANE}
    v_lshlrev_b32 v{vT}, 2, v{vT}
    v_bfe_u32 v{vT+1}, v{vLANE}, 2, 2
    v_add_u32 v{vT}, v{vT}, v{vT+1}
    v_lshlrev_b32 v{vT}, 7, v{vT}
    v_and_b32 v{vT+1}, 16, v{vLANE}
    v_lshlrev_b32 v{vT+1}, 1, v{vT+1}
    v_and_b32 v{vT+2}, 3, v{vLANE}
    v_lshl_add_u32 v{vT+1}, v{vT+2}, 3, v{vT+1}
    v_and_b32 v{vT+2}, 8, v{vLANE}
    v_lshlrev_b32 v{vT+2}, 3, v{vT+2}
    v_xor_b32 v{vT+1}, v{vT+1}, v{vT+2}
    v_add_u32 v{vT}, v{vT}, v{vT+1}
    s_lshl_b32 s{sT0}, s{sKQ}, 5
    v_xor_b32 v{vT}, s{sT0}, v{vT}
    s_lshl_b32 s{sT0}, s{sKQ}, 14
    v_add_u32 v{vA[XA][0]}, s{sT0}, v{vT}
    v_xor_b32 v{vA[XA][1]}, 64, v{vA[XA][0]}
    v_add_u32 v{vA[YA][0]}, {YA}, v{vA[XA][0]}
    v_add_u32 v{vA[YA][1]}, {YA}, v{vA[XA][1]}
    s_lshl_b32 s{sT1}, s{sKQ}, 13
    s_add_u32 s{sT1}, s{sT1}, {ZA}
    v_add_u32 v{vA[ZA][0]}, s{sT1}, v{vT}
    v_xor_b32 v{vA[ZA][1]}, 64, v{vA[ZA][0]}
    v_and_b32 v{vT+1}, 31, v{vLANE}
    v_add_u32 v{vT+1}, s{sROW}, v{vT+1}
    v_mul_u32_u24 v{vT+1}, {XB}, v{vT+1}
    v_lshrrev_b32 v{vT+2}, 5, v{vLANE}
    v_lshlrev_b32 v{vT+2}, 4, v{vT+2}
    s_lshl_b32 s{sT1}, s{sN2}, 7
    s_lshl_b32 s{sT2}, s{sKQ}, 5
    s_add_u32 s{sT1}, s{sT1}, s{sT2}
    v_add_u32 v{vT+2}, s{sT1}, v{vT+2}
    v_add_u32 v{vO}, v{vT+1}, v{vT+2}
    ''')
    vMW = [None, 11, 12, 13]; vRR = 14; vSW = [None, 248, 250, 2]; vSR, vSR2 = 18, 19
    P.I(f's_mul_i32 s{sT1}, s{sTT}, 6144\nv_add_u32 v{vT}, s{sT1}, v{vH}\nv_add_u32 v{vRR}, s{sT0}, v{vT}')
    for l in (1, 2, 3):
        P.I(f's_xor_b32 s{sT2}, s{sKQ}, {l}\ns_lshl_b32 s{sT2}, s{sT2}, 14\ns_add_u32 s{sT2}, s{sT2}, {2048*(l-1)}\nv_add_u32 v{vMW[l]}, s{sT2}, v{vT}')
    def s_addr():
        P.I(f's_lshl_b32 s{sT1}, s{sTT}, 12\ns_add_u32 s{sT1}, s{sT1}, {ZA}\nv_add_u32 v{vT}, s{sT1}, v{vH}')
        for l in (1, 2):
            P.I(f's_xor_b32 s{sT2}, s{sKQ}, {l}\ns_lshl_b32 s{sT2}, s{sT2}, 13\ns_add_u32 s{sT2}, s{sT2}, {2048*(l-1)}\nv_add_u32 v{vSW[l]}, s{sT2}, v{vT}')
        P.I(f's_lshl_b32 s{sT2}, s{sKQ}, 13\nv_add_u32 v{vSR}, s{sT2}, v{vT}')
        P.I(f's_lshl_b32 s{sT1}, s{sTT}, 11\ns_add_u32 s{sT1}, s{sT1}, 12288\nv_add_u32 v{vT}, s{sT1}, v{vH}')
        P.I(f's_xor_b32 s{sT2}, s{sKQ}, 3\ns_lshl_b32 s{sT2}, s{sT2}, 14\nv_add_u32 v{vSW[3]}, s{sT2}, v{vT}')
        P.I(f's_lshl_b32 s{sT2}, s{sKQ}, 14\nv_add_u32 v{vSR2}, s{sT2}, v{vT}')
    def pairs(v):
        if cfg.jsplit and v >= 28:
            g0 = 20 if v < 28 else 28; r = v - g0
            return [(g0 + 2 * (r % 4), 1 if r < 4 else 0), (g0 + 2 * (r % 4) + 1, 1 if r < 4 else 0)]
        return [(v, 0), (v, 1)]
    def trr(i):
        dst = WL + 8 * (i % 3)
        for n, (k, j) in enumerate(pairs(i)):
            _, _, area, row, dl = steps[k]
            P.D(f'ds_read_b64_tr_b16 v[{dst+4*n}:{dst+4*n+1}], v{vA[area][j]} offset:{row*128}', ('wl', i))
            P.D(f'ds_read_b64_tr_b16 v[{dst+4*n+2}:{dst+4*n+3}], v{vA[area][j]} offset:{row*128+dl}', ('wl', i))
    if cfg.nob0:
        P.vm.q.remove('old')
    else:
        u = svc_begin(P); spin(P, vP, sWS, 's95', 8); svc_end(P, u)
        n = len(P.vm.q) - 1
        P.vm.q.remove('old')
        P.I(f's_waitcnt vmcnt({n})')
        P.I('s_barrier'); stamp(P, cfg, 'b0')
        pubB()
    trr(0); trr(1)
    seen = set()
    pbc = cfg.pb_check
    H = lambda k: (cfg.pb2 if (k >= 24 and not cfg.noa2) else pbc if k >= 16 else 0, 'h', lambda: hload(k), k)
    order = []
    for k in range(36):
        if k == cfg.ypos: order += [(0, 'Y', f) for f in Yq]
        if k == 16:
            order += [(0, 'Z', lambda k=k2: dma_z1(k)) for k2 in range(24, 28)]
            order += [(6, 'X2', f) for f in dma_group(16, 24, 'X2')]
        if k == (28 if cfg.noa2 else 24): order += [(14, 'Y2', f) for f in dma_group(28, 36, 'Y2')]
        if k in hq: order.append(H(k))
    ptr = [0]
    ops = order
    def issue_next(i):
        order[ptr[0]][2](); ptr[0] += 1
    def wr(acc, regs, l):
        for hf in range(2):
            r = acc + 8 * l + 4 * hf
            P.D(f'ds_write_b128 v{regs[l]}, v[{r}:{r+3}] offset:{1024*hf}', 'rw')
    RD = HR + 12
    XF, BF, G = HR + 36, HR + 44, HR + 52
    pr = lambda r: f'v[{r}:{r+1}]'
    for i in range(36):
        kind = steps[i][0]
        a = AM if kind == 'h' else AS
        if i in (6, 14, 26):
            P.lg0()
            need = {6: ('Y',), 14: ('Z', 'X2'), 26: ('Y2',)}[i]
            while any(o[1] in need for o in order[ptr[0]:]): issue_next(i)
            stamp(P, cfg, f'p@{i}')
            P.wait_vm(*need)
            stamp(P, cfg, f'w@{i}')
            P.I('s_barrier'); stamp(P, cfg, f'b@{i}')
            if i == 6 and cfg.nob0: pubB()
        if i == cfg.pb_check - 3:
            P.I(f's_add_u32 s95, s{sCA}, {2048 if cfg.noa2 else 6144}'); svc_load(P, vP, sWS, 's95')
        if i == cfg.pb_check:
            u = svc_begin(P); spin(P, vP, sWS, 's95', 16 if cfg.noa2 else 8); svc_end(P, u)
            P.I('s_barrier')
            stamp(P, cfg, 'Bpre')
            if not cfg.xlds: P.V(f'buffer_load_dwordx4 v[{XR}:{XR+3}], v{vO}, s[{sX}:{sX+3}], 0 offen', 'xr')
            P.V(f'buffer_load_dwordx4 v[{B2R}:{B2R+3}], v{vT+2}, s[{sB2}:{sB2+3}], 0 offen', 'xr')
        if i == cfg.pb2 - 3 and not cfg.noa2: svc_load(P, vP, sWS, f's{sCB}')
        if i == cfg.pb2 and not cfg.noa2:
            u = svc_begin(P); spin(P, vP, sWS, f's{sCB}', 16); svc_end(P, u)
            P.I('s_barrier')
            stamp(P, cfg, 'Bok')
        if i == cfg.bmpos:
            P.wait_lg('rw'); P.I('s_barrier'); stamp(P, cfg, 'bm')
            for k in range(6):
                P.D(f'ds_read_b128 v[{RD+4*k}:{RD+4*k+3}], v{vRR} offset:{1024*k}', 'rr')
        cnt = 0
        while cnt < cfg.quota(i) and ptr[0] + cnt < len(order) and order[ptr[0] + cnt][0] <= i: cnt += 1
        quota = [(cnt + 1) // 2, cnt // 2]
        if i + 2 < 36: trr(i + 2)
        P.wait_lg(('wl', i))
        w = WL + 8 * (i % 3)
        for n, (k, jj) in enumerate(pairs(i)):
            while any(o[1] == 'h' and o[3] == k for o in order[ptr[0]:]): issue_next(i)
            P.wait_vm(('h', k))
            b = HR + 4 * (k % NH); j = n
            c = f'v[{a+16*jj}:{a+16*jj+15}]' if (kind, jj) in seen else '0'
            seen.add((kind, jj))
            P.I(f'v_mfma_f32_32x32x16_bf16 v[{a+16*jj}:{a+16*jj+15}], v[{w+4*n}:{w+4*n+3}], v[{b}:{b+3}], {c}')
            for _ in range(quota[j]):
                issue_next(i)
        if i == 21:
            P.wait_vm('xr')
            if not cfg.xlds: P.I(f'v_permlane32_swap_b32 v{XR}, v{XR+2}\nv_permlane32_swap_b32 v{XR+1}, v{XR+3}')
            P.I(f'v_permlane32_swap_b32 v{B2R}, v{B2R+2}\nv_permlane32_swap_b32 v{B2R+1}, v{B2R+3}')
        if i == 22 and cfg.xlds:
            P.I(f'''
            v_bfe_u32 v{XF}, v{vLANE}, 4, 1
            v_lshlrev_b32 v{XF}, 14, v{XF}
            v_and_b32 v{XF+1}, 15, v{vLANE}
            v_lshl_add_u32 v{XF}, v{XF+1}, 7, v{XF}
            v_lshrrev_b32 v{XF+1}, 5, v{vLANE}
            v_lshlrev_b32 v{XF+1}, 3, v{XF+1}
            s_lshl_b32 s{sT1}, s{sKQ}, 5
            v_add_u32 v{XF+1}, s{sT1}, v{XF+1}
            v_and_b32 v{XF+2}, 2, v{vLANE}
            v_lshlrev_b32 v{XF+2}, 5, v{XF+2}
            v_xor_b32 v{XF+1}, v{XF+1}, v{XF+2}
            s_lshl_b32 s{sT1}, s{sTT}, 15
            s_add_u32 s{sT1}, s{sT1}, {YA + 0x3800}
            v_add3_u32 v{XF+7}, v{XF}, v{XF+1}, s{sT1}
            ''')
        if i == 26 and cfg.xlds:
            P.D(f'ds_read_b64 v[{XR}:{XR+1}], v{XF+7}', 'xl'); P.D(f'ds_read_b64 v[{XR+2}:{XR+3}], v{XF+7} offset:16', 'xl')
        if i == (27 if cfg.xlds else 22):
            P.wait_lg('xl')
            for d in range(4): P.I(f'v_lshlrev_b32 v{XF+2*d}, 16, v{XR+d}\nv_and_b32 v{XF+2*d+1}, 0xffff0000, v{XR+d}')
        if i == 23:
            for d in range(4): P.I(f'v_lshlrev_b32 v{BF+2*d}, 16, v{B2R+d}\nv_and_b32 v{BF+2*d+1}, 0xffff0000, v{B2R+d}')
        if i == 24: s_addr()
        if cfg.jsplit and i == 33: wr(AS, vSW, 3)
        if cfg.jsplit and i == 34: wr(AS, vSW, 2)
        if i == 28: wr(AM, vMW, 3); wr(AM, vMW, 2)
        if i == 29:
            wr(AM, vMW, 1)
            for e in range(8): P.I(f'v_add_f32 v{BF+e}, v{BF+e}, v{AM+e}')
        if i == cfg.bmpos + 1:
            P.wait_lg('rr')
            for e in range(8): P.I(f'v_add_f32 v{BF+e}, v{BF+e}, v{RD+e}')
            for e in range(8): P.I(f'v_add_f32 v{G+e}, v{RD+8+e}, v{RD+16+e}')
            for e in range(8): P.I(f'v_add_f32 v{BF+e}, v{BF+e}, v{G+e}')
        if i == cfg.bmpos + 2:
            for e in range(8): P.I(f'v_mul_f32 v{G+e}, {f32(-LOG2E)}, v{BF+e}')
            for e in range(8): P.I(f'v_exp_f32 v{G+e}, v{G+e}')
        if i == cfg.bmpos + 3:
            for e in range(8): P.I(f'v_add_f32 v{G+e}, 1.0, v{G+e}')
            for e in range(8): P.I(f'v_rcp_f32 v{G+e}, v{G+e}')
    stamp(P, cfg, 'loop')
    for e in range(8): P.I(f'v_mul_f32 v{G+e}, v{G+e}, v{BF+e}')
    for l in ((1,) if cfg.jsplit else (3, 2, 1)): wr(AS, vSW, l)
    for e in range(0, 8, 2): P.I(f'v_pk_fma_f32 {pr(XF+e)}, {pr(G+e)}, {pr(AS+e)}, {pr(XF+e)}')
    P.lg0(); stamp(P, cfg, 'sw'); P.I('s_barrier'); stamp(P, cfg, 'bs')
    for k in range(4): P.D(f'ds_read_b128 v[{RD+4*k}:{RD+4*k+3}], v{vSR} offset:{1024*k}', 'a')
    for k in range(2): P.D(f'ds_read_b128 v[{RD+16+4*k}:{RD+16+4*k+3}], v{vSR2} offset:{1024*k}', 'b')
    P.wait_lg('a')
    for e in range(0, 8, 2): P.I(f'v_pk_add_f32 {pr(RD+e)}, {pr(RD+e)}, {pr(RD+8+e)}')
    P.lg0()
    for e in range(0, 8, 2): P.I(f'v_pk_add_f32 {pr(RD+e)}, {pr(RD+e)}, {pr(RD+16+e)}')
    for e in range(0, 8, 2): P.I(f'v_pk_fma_f32 {pr(XF+e)}, {pr(G+e)}, {pr(RD+e)}, {pr(XF+e)}')
    for d in range(4): P.I(f'v_cvt_pk_bf16_f32 v{XR+d}, v{XF+2*d}, v{XF+2*d+1}')
    P.I(f'v_permlane32_swap_b32 v{XR}, v{XR+2}\nv_permlane32_swap_b32 v{XR+1}, v{XR+3}')
    P.V(f'buffer_store_dwordx4 v[{XR}:{XR+3}], v{vO}, s[{sOUT}:{sOUT+3}], 0 offen{cfg.outsc}', 'out')
    stamp(P, cfg, 'st')
    if cfg.prof: P.vm0()
    stamp(P, cfg, 'drain'); stamp_flush(P, cfg)
    P.I(f's_branch {endlabel}')
    P.label('L_nos2')
    P.I('s_waitcnt vmcnt(0)\ns_barrier')
    pubB()
    if cfg.helper: helper(P, cfg)
```

```python
import sys, argparse, json
from gen import *
import gen
from s2v2 import *

vPF = 250
def w2_prefetch(P):
    P.I(f'''
    s_lshl_b32 s{sT0}, s{sJ}, 3
    s_add_u32 s{sT0}, s{sT0}, s{sWAVE}
    s_lshl_b32 s{sT1}, s{sT0}, 13
    s_mov_b32 s{sW2}, s16
    s_mov_b32 s{sW2+1}, s17
    s_mov_b32 s{sW2+2}, {1792*XB}
    s_mov_b32 s{sW2+3}, 0x20000
    s_cmp_lt_u32 s{sT0}, 196
    s_cbranch_scc1 L_pf{P.uid()}
    s_mov_b32 s{sW2}, s8
    s_mov_b32 s{sW2+1}, s9
    s_mov_b32 s{sW2+2}, {448*XB}
    s_sub_u32 s{sT1}, s{sT1}, {196*8192}
    L_pf{P.uid(False)}:
    v_lshlrev_b32 v{vPF}, 7, v{vLANE}
    ''')
    P.V(f'buffer_load_dword v{vPF}, v{vPF}, s[{sW2}:{sW2+3}], s{sT1} offen', 'pf')

def build2(cfg):
    hdr = open('cdna_kernels/' + NAME + '.s.ref').read().split('; Override launch')[0]
    out = [hdr, '; @launch grid=(256,1,1) block=(512,1,1) lds=163840\n']
    P = Prog(); P.pv = 255
    if cfg.prof or 'padabs' in cfg.exp: P.I('s_memrealtime s[100:101]')
    stamp(P, cfg, 'start')
    P.I('s_load_dwordx16 s[4:19], s[0:1], 0\ns_load_dwordx4 s[20:23], s[0:1], 64\ns_load_dwordx2 s[24:25], s[0:1], 80')
    prologue(P, 256, 'L_end')
    P.L = [l for i, l in enumerate(P.L) if not (l.startswith('s_load_dword') and i > 6)]
    stage1_ids(P)
    if cfg.fastx:
        import s1v2
        xdma_addr(P, 244, 245)
        P.I(f's_lshr_b32 s{sT2}, s{sJ}, 4')
        s1v2.rot_first(P, cfg, None)
        P.I(f's_mul_i32 s{sT2}, s{sT2}, {cfg.att_x0}\ns_add_u32 s{sT2}, s{sT2}, s{sWX}')
        stamp(P, cfg, 'prew')
        P.I('s_waitcnt lgkmcnt(0)')
        stamp(P, cfg, 'karg')
        if cfg.tlb:
            P.I(f's_cmp_eq_u32 s{sWAVE}, {cfg.tlbw}\ns_cbranch_scc0 L_notlb')
            P.I('v_mov_b32 v246, s4\nv_mov_b32 v247, s5')
            ptrs = [6, 8, 12, 14, 16, 18, 20, 22]
            for i, r in enumerate(ptrs): P.I(f'v_writelane_b32 v246, s{r}, {i}\nv_writelane_b32 v247, s{r+1}, {i}')
            for k in range(5):
                P.I(f's_add_u32 s{sT0}, s24, {k << 21}\ns_addc_u32 s{sT1}, s25, 0\nv_writelane_b32 v246, s{sT0}, {8+k}\nv_writelane_b32 v247, s{sT1}, {8+k}')
            P.I('s_mov_b64 exec, 0x1fff\nglobal_load_dword v250, v[246:247], off\ns_mov_b64 exec, -1\nL_notlb:')
        srd(P, sX, 4, 2048 * XB)
        P.I(f's_mov_b32 s4, s3\ns_mov_b32 m0, s{sT2}')
        P.V(f'buffer_load_dwordx4 v{vXD0}, s[{sX}:{sX+3}], s4 offen lds', cfg.x0tag)
        P.I(f's_add_u32 m0, s{sT2}, 1024')
        P.V(f'buffer_load_dwordx4 v{vXD1}, s[{sX}:{sX+3}], s4 offen lds', cfg.x0tag)
    if cfg.codepf:
        P.I(f'''
        s_cmp_lt_u32 s{sJ}, 5
        s_cbranch_scc0 L_nocpf
        s_cmp_eq_u32 s{sWAVE}, 7
        s_cbranch_scc0 L_nocpf
        s_getpc_b64 s[94:95]
        L_pc0:
        s_sub_u32 s94, s94, L_pc0-{NAME}_kernel
        s_subb_u32 s95, s95, 0
        s_lshl_b32 s{sT0}, s{sJ}, 13
        v_lshlrev_b32 v250, 7, v1
        v_add_u32 v250, s{sT0}, v250
        v_min_u32 v250, L_code_end-{NAME}_kernel-4, v250
        global_load_dword v250, v250, s[94:95]
        L_nocpf:
        ''')
    stamp(P, cfg, 'x0')
    stage2_ids(P)
    if cfg.prio: P.I(f's_cmp_ge_u32 s{sWAVE}, 4\ns_cbranch_scc{2 - cfg.prio} L_prio\ns_setprio 1\nL_prio:')
    if 's2only' in cfg.exp:
        P.I('s_waitcnt lgkmcnt(0)')
        srd(P, sWS, 24, WS_SIZE); srd(P, sDBG, 22, 256)
        P.I('v_mov_b32 v252, 99')
        s2_early_setup(P, 20); s2_srd(P, cfg)
        for f in s2_xy(P, 'X') + s2_xy(P, 'Y'): f()
        P.I('s_waitcnt vmcnt(0)')
        stamp_flush(P, cfg)
        P.I('s_branch L_s1_done')
    P.I(f's_cmp_ge_u32 s{sJ}, 16\ns_cbranch_scc1 L_att')
    st = P.state()
    i0 = len(P.L)
    cfg.mlp(P, cfg, 'L_s1_done')
    P.restore(st)
    i1 = len(P.L)
    P.label('L_att')
    cfg.att(P, cfg, 'L_s1_done')
    if cfg.relayout:
        M = P.L[i0:i1]; A = P.L[i1:]
        km = M.index('; SETUP_END'); ka = A.index('; SETUP_END')
        P.L = P.L[:i0] + M[:km] + ['s_branch L_mlp_body'] + A[:ka] + ['s_branch L_att_body', 'L_mlp_body:'] + M[km + 1:] + ['L_att_body:'] + A[ka + 1:]
    P.label('L_s1_done')
    P.vm.q = []; P.lg.q = []; P.pv = 254
    stamp(P, cfg, 's2')
    stage2_v2(P, cfg, 'L_s2_skip')
    P.label('L_s2_skip')
    if cfg.prof: P.I('v_writelane_b32 v255, s100, 62\ns_memrealtime s[100:101]\ns_waitcnt lgkmcnt(0)\nv_writelane_b32 v255, s100, 61')
    prof_dump(P, cfg, [(0, 255), (1, 254)])
    if 'pad' in cfg.exp:
        P.I('s_mov_b32 s70, 500\nL_pad:\n' + 's_nop 15\n' * 4 + 's_sub_u32 s70, s70, 1\ns_cmp_lg_u32 s70, 0\ns_cbranch_scc1 L_pad')
    if 'padabs' in cfg.exp:
        for e in cfg.exp:
            if e.startswith('only'): P.I(f's_cmp_eq_u32 s2, {int(e[4:])}\ns_cbranch_scc0 L_end')
        P.I('s_waitcnt lgkmcnt(0)')
        P.I('s_add_u32 s72, s100, 4000\nL_padr:\ns_memrealtime s[70:71]\ns_waitcnt lgkmcnt(0)\ns_sub_u32 s73, s70, s72\ns_cmp_lt_i32 s73, 0\ns_cbranch_scc1 L_padr')
    if 'padrt' in cfg.exp:
        P.I('s_memrealtime s[70:71]\ns_waitcnt lgkmcnt(0)\ns_add_u32 s72, s70, 2000\nL_padr:\ns_memrealtime s[70:71]\ns_waitcnt lgkmcnt(0)\ns_sub_u32 s73, s70, s72\ns_cmp_lt_i32 s73, 0\ns_cbranch_scc1 L_padr')
    P.label('L_end')
    P.I('s_endpgm')
    P.label('L_code_end')
    name = NAME + '_kernel'
    out.append('.amdgcn_target "amdgcn-amd-amdhsa--gfx950"\n.text\n')
    out.append(f'.globl {name}\n.p2align 8\n.type {name},@function\n{name}:\n')
    for l in fix_hazards(P.L):
        out.append(l + '\n' if l.endswith(':') else '    ' + l + '\n')
    out.append('.section .rodata,"a"\n')
    out.append(kd(name))
    return ''.join(out)

if __name__ == '__main__':
    ap = argparse.ArgumentParser()
    ap.add_argument('-o', default='cdna_kernels/' + NAME + '.s')
    ap.add_argument('--prof', action='store_true')
    ap.add_argument('--nopf', action='store_true')
    ap.add_argument('--exp', default='')
    ap.add_argument('--noxlds', action='store_true')
    ap.add_argument('--c1e', type=int, default=3)
    ap.add_argument('--a0e', type=int, default=5)
    ap.add_argument('--a2', action='store_true')
    ap.add_argument('--nob0', action='store_true')
    ap.add_argument('--noob', action='store_true')
    ap.add_argument('--zpad', action='store_true')
    ap.add_argument('--rt', action='store_true')
    ap.add_argument('--hrot', action='store_true')
    ap.add_argument('--tlb', type=int, default=-1)
    ap.add_argument('--norelayout', action='store_true')
    ap.add_argument('--pb2', type=int, default=18)
    ap.add_argument('--a2off', type=int, default=10)
    ap.add_argument('--q4', type=int, default=1)
    ap.add_argument('--ldsword', action='store_true')
    ap.add_argument('--nojsplit', action='store_true')
    ap.add_argument('--nopk3', action='store_true')
    ap.add_argument('--alt', type=int, default=0)
    ap.add_argument('--nofastx', action='store_true')
    ap.add_argument('--uni', type=float, default=0)
    ap.add_argument('--y2pos', type=int, default=28)
    ap.add_argument('--q14', type=int, default=0)
    ap.add_argument('--xy1', type=int, default=8)
    ap.add_argument('--nocodepf', action='store_true')
    ap.add_argument('--a2pos', type=int, default=9)
    ap.add_argument('--padat', default=None)
    ap.add_argument('--outsc', default='')
    ap.add_argument('--prio', type=int, default=0)
    ap.add_argument('--xnt', action='store_true')
    ap.add_argument('--bmpos', type=int, default=31)
    ap.add_argument('--helper', action='store_true')
    ap.add_argument('--mallc', type=int, default=1)
    ap.add_argument('--malls', type=int, default=22)
    ap.add_argument('--apos', type=int, default=8)
    ap.add_argument('--ypos', type=int, default=6)
    ap.add_argument('--sc', default='_sc1')
    ap.add_argument('--scl', default='_sc1')
    ap.add_argument('--mlppf', type=int, default=0)
    ap.add_argument('--norot2', action='store_true')
    ap.add_argument('--attpf', action='store_true')
    ap.add_argument('--pf0', type=int, default=1)
    ap.add_argument('--pfn', type=int, default=4)
    ap.add_argument('--ni0', type=int, default=0)
    ap.add_argument('--v3', default='m')
    ap.add_argument('--sigpos', type=int, default=50)
    ap.add_argument('--stpoll', type=int, default=24)
    ap.add_argument('--ypre', type=int, default=2)
    ap.add_argument('--norot', action='store_true')
    ap.add_argument('--s1pf', action='store_true')
    ap.add_argument('--pf2', action='store_true')
    ap.add_argument('--lh', type=int, default=6)
    ap.add_argument('--q1', type=int, default=3)
    ap.add_argument('--q2', type=int, default=4)
    ap.add_argument('--q3', type=int, default=1)
    ap.add_argument('--q3at', type=int, default=14)
    ap.add_argument('--x2pos', type=int, default=16)
    ap.add_argument('--wnt', action='store_true')
    ap.add_argument('--pbc', type=int, default=9)
    ap.add_argument('--noearlyw', action='store_true')
    ap.add_argument('--fine', action='store_true')
    ap.add_argument('--ni', type=int, default=3)
    ap.add_argument('--oldmlp', action='store_true')
    ap.add_argument('--oldatt', action='store_true')
    a = ap.parse_args()
    cfg = Cfg(); cfg.prof = a.prof; cfg.fused = True
    cfg.hook_late = pollA_prefetch
    cfg.hook_early = None if a.nopf else w2_prefetch
    cfg.nopf = a.nopf
    cfg.xlds = not a.noxlds
    cfg.c1e = a.c1e; cfg.a0e = a.a0e
    cfg.noa2 = not a.a2
    cfg.nob0 = a.nob0; cfg.noob = a.noob
    import s2v2; s2v2.NOB0[0] = a.nob0
    cfg.zpad = a.zpad
    cfg.rt = a.rt
    if a.rt: cfg.keep = {'start', 'c0b', 'T0e', 'B2b', 'B3b', 'end', 'c3b', 'loop', 'e1', 'e2', 's2', 'b0', 'b@14', 'b@26', 'drain'}
    cfg.hrot = a.hrot
    cfg.tlb = a.tlb >= 0; cfg.tlbw = a.tlb
    cfg.relayout = not a.norelayout
    cfg.codepf2 = a.prof
    cfg.pb2 = a.pb2; cfg.a2off = a.a2off
    cfg.ldsword = a.ldsword; cfg.jsplit = not a.nojsplit
    cfg.pk3 = not a.nopk3; cfg.alt = a.alt
    cfg.fastx = True; cfg.att_x0 = 81920; cfg.x0tag = 'x0'
    cfg.uni = a.uni > 0; cfg.unif = a.uni if a.uni > 0 else 1.0
    cfg.y2pos = a.y2pos
    cfg.early_y = True; cfg.xy1 = a.xy1
    cfg.codepf = not a.nocodepf
    cfg.stat_pub = True
    cfg.a2pos = a.a2pos
    cfg.padat = a.padat
    cfg.prio = a.prio
    cfg.outsc = a.outsc.replace('_', ' ')
    import s1v2 as _s; _s.XNT = ' nt' if a.xnt else ''
    cfg.bmpos = a.bmpos
    cfg.helper = a.helper
    cfg.mallc = a.mallc; cfg.malls = a.malls
    cfg.apos = a.apos; cfg.ypos = a.ypos
    cfg.sc = a.sc.replace('_', ' '); cfg.scl = a.scl.replace('_', ' ')
    cfg.pf0 = a.pf0; cfg.pfn = a.pfn; cfg.pfl = {3: 42, 4: 31, 5: 25, 6: 21}[a.pfn]
    assert -(-12544//cfg.pfl) + -(-3136//cfg.pfl) <= 128 * cfg.pfn
    cfg.ni0 = a.ni0
    cfg.stat_expect = 4
    cfg.sigpos = a.sigpos; cfg.st_poll = a.stpoll
    cfg.ypre = a.ypre
    cfg.norot = a.norot; cfg.attpf = a.attpf; cfg.mlppf = a.mlppf; cfg.norot2 = a.norot2; cfg.wnt = ' nt' if a.wnt else ''
    cfg.s1pf = a.s1pf
    cfg.nopf2 = not a.pf2; cfg.lh = a.lh; cfg.quota = lambda i: (a.q14 if (i == 14 and a.q14) else a.q1 if i < a.pbc else a.q2 if i < a.q3at else a.q3 if i < a.pb2 else a.q4); cfg.x2pos = a.x2pos; cfg.pb_check = a.pbc; cfg.pb_issue = a.pbc - 3; cfg.early_w = not a.noearlyw
    cfg.coarse = not a.fine
    cfg.ni = a.ni
    cfg.exp = a.exp.split(',')
    cfg.pubmap = {0: [0, 1], 1: [1]}
    cfg.mlp = mlp_path; cfg.att = att_path
    if not a.oldmlp or not a.oldatt:
        import s1v2
        if not a.oldmlp: cfg.mlp = s1v2.mlp_v2
        if not a.oldatt: cfg.att = s1v2.att_v2
        import s1v3
        if 'm' in a.v3: cfg.mlp = s1v3.mlp_v3
        if 'a' in a.v3: cfg.att = s1v3.att_v3
        import s1v4
        if 'M' in a.v3: cfg.mlp = s1v4.mlp_v4
        if 'A' in a.v3: cfg.att = s1v4.att_v4; cfg.stat_pub = False
    open(a.o, 'w').write(build2(cfg))
    if cfg.prof: json.dump(cfg.paths, open(a.o + '.paths.json', 'w'))
```

```python
from gen import *
from s2v2 import *
from s1v2 import (vPF, sKX, rot_first, rot_rest, dmax, wdma_addr, frag_addrs, make_sel, sq_ops, cost, Filler, site,
                  m32, m16, publish2, flag_check, atomic_inc, mall_pf)

pr = lambda r: f'v[{r}:{r+1}]'
AH = 3
def set_ah(n):
    global AH
    AH = n

class Eng:
    def __init__(self, P, cfg, XF, WF, NWF, vWa, vXa, wslot, xslot):
        self.__dict__.update(locals()); del self.__dict__['self']
        self.F = Filler(P); self.xq = list(range(28)); self.xwin = 0
    def rd(self, gs, nblk):
        blk, s = divmod(gs, 28)
        if blk >= nblk: return
        slot = self.wslot[(blk, s // 4)]; dst = self.WF + 4 * (gs % self.NWF)
        off = (slot % 8) * SLOT; a = self.vWa[slot // 8][s % 4]
        self.P.D(f'ds_read_b64_tr_b16 v[{dst}:{dst+1}], v{a} offset:{off}', ('w', gs))
        self.P.D(f'ds_read_b64_tr_b16 v[{dst+2}:{dst+3}], v{a} offset:{off+512}', ('w', gs))
    def xreads(self, n, maxchunk):
        for _ in range(n):
            if not self.xq or self.xq[0] // 4 > maxchunk: return
            g = self.xq.pop(0); c, s = divmod(g, 4)
            base = self.xslot[c] * SLOT; win = base // 65536
            if win != self.xwin:
                assert s == 0
                d = (win - self.xwin) * 65536
                for k in range(4): self.P.I(f'v_add_u32 v{self.vXa[k]}, {d & 0xffffffff:#x}, v{self.vXa[k]}')
                self.xwin = win
            d = self.XF + 4 * g
            self.P.D(f'ds_read_b128 v[{d}:{d+3}], v{self.vXa[s]} offset:{base % 65536}', ('x', g))
    def budget(self, s, extra):
        left = 28 - s
        return max(8, int(self.F.total() / (left + extra) + 3))

def stat_addr(P, d, t):
    P.I(f'''
    s_lshl_b32 s{d}, s{sSUB}, 14
    s_lshl_b32 s{t}, s{sMT}, 9
    s_add_u32 s{d}, s{d}, s{t}
    s_add_u32 s{d}, s{d}, {STAT_OFF}
    ''')
def statc_addr(P, d, t):
    P.I(f'''
    s_lshl_b32 s{d}, s{sSUB}, 11
    s_lshl_b32 s{t}, s{sMT}, 7
    s_add_u32 s{d}, s{d}, s{t}
    s_add_u32 s{d}, s{d}, {CNT_OFF + 8192}
    ''')

def w2pf_m(P, k, n, lanes, t):
    u = P.uid(); nw2 = -(-12544 // lanes)
    P.I(f'''
    s_lshl_b32 s{sT0}, s{sJ}, 3
    s_add_u32 s{sT0}, s{sT0}, s{sWAVE}
    s_mul_i32 s{sT0}, s{sT0}, {n}
    s_add_u32 s{sT0}, s{sT0}, {k}
    s_mul_i32 s{sT1}, s{sT0}, {lanes*128}
    s_mov_b32 s{sW2}, s16
    s_mov_b32 s{sW2+1}, s17
    s_mov_b32 s{sW2+2}, {1792*XB}
    s_mov_b32 s{sW2+3}, 0x20000
    s_cmp_lt_u32 s{sT0}, {nw2}
    s_cbranch_scc1 L_pf{u}
    s_mov_b32 s{sW2}, s8
    s_mov_b32 s{sW2+1}, s9
    s_mov_b32 s{sW2+2}, {448*XB}
    s_sub_u32 s{sT1}, s{sT1}, {nw2*lanes*128}
    L_pf{u}:
    s_mov_b64 exec, {-1 if lanes == 64 else (1 << lanes) - 1}
    ''')
    P.V(f'buffer_load_dword v{vPF}, v{t}, s[{sW2}:{sW2+3}], s{sT1} offen', 'pf')
    P.I('s_mov_b64 exec, -1')

def l2pf_late(P, t):
    srd(P, sWO, 8, 448 * XB)
    P.I(f's_lshl_b32 s{sT1}, s{sJ}, 2\ns_and_b32 s{sT0}, s{sWAVE}, 3\ns_add_u32 s{sT1}, s{sT1}, s{sT0}')
    u = P.uid()
    P.I(f'''
    s_mul_i32 s{sT0}, s{sT1}, 4682
    s_lshr_b32 s{sT0}, s{sT0}, 16
    s_mul_i32 s{sT2}, s{sT0}, {448*XB - 14*8192}
    s_lshl_b32 s{sT0}, s{sT1}, 13
    s_add_u32 s{sT0}, s{sT0}, s{sT2}
    s_add_u32 s{sT0}, s{sT0}, {128*XB}
    s_cmp_lt_u32 s{sT1}, 56
    s_cbranch_scc1 L_lp{u}
    s_sub_u32 s{sT0}, s{sT1}, 56
    s_lshl_b32 s{sT0}, s{sT0}, 13
    L_lp{u}:
    s_cselect_b32 s{sT2}, 0, 1
    ''')
    u2 = P.uid()
    P.I(f's_cbranch_scc0 L_lq{u2}\nbuffer_load_dword v{vPF}, v{t}, s[{sW2}:{sW2+3}], s{sT0} offen\ns_branch L_lr{u2}\nL_lq{u2}:\nbuffer_load_dword v{vPF}, v{t}, s[{sWO}:{sWO+3}], s{sT0} offen\nL_lr{u2}:')
    P.vm.issue('pf')
    u = P.uid()
    P.I(f'''
    s_mul_i32 s{sT0}, s{sT1}, 9363
    s_lshr_b32 s{sT0}, s{sT0}, 16
    s_mul_i32 s{sT2}, s{sT0}, {448*XB - 7*8192}
    s_lshl_b32 s{sT0}, s{sT1}, 13
    s_add_u32 s{sT0}, s{sT0}, s{sT2}
    s_add_u32 s{sT0}, s{sT0}, {384*XB}
    s_cmp_lt_u32 s{sT1}, 28
    s_cbranch_scc0 L_lq{u}
    buffer_load_dword v{vPF}, v{t}, s[{sW2}:{sW2+3}], s{sT0} offen
    s_branch L_lr{u}
    L_lq{u}:
    s_sub_u32 s{sT0}, s{sT1}, 20
    s_lshl_b32 s{sT0}, s{sT0}, 13
    buffer_load_dword v{vPF}, v{t}, s[{sWO}:{sWO+3}], s{sT0} offen
    L_lr{u}:
    ''')
    P.vm.issue('pf')

def mlp_v3(P, cfg, after):
    if 'nomlp' in cfg.exp:
        init_zero(P, cfg, 224); P.L.append('; SETUP_END'); P.I('s_waitcnt vmcnt(0)'); init_flag(P, cfg, 224, 'a'); P.I('s_endpgm'); return
    sCOLP, sCOLS, sHP, sHSG, sBP, sBS, sG, sTT = 74, 75, 76, 77, 78, 79, 27, 26
    vWD, vWDs = 4, 5
    vWa = [[6 + 4 * w + s for s in range(4)] for w in range(3)]
    vXa = [18, 19, 20, 21]
    vHS, vCSW = 22, 23
    XF = 24; ACC = [136, 152]; WF = 168; NWF = 6
    CSA, SEL, BX, AX = 192, 196, 200, 204
    vK0, vK1, vRI = 208, 209, 210; BR = 211; vCSR, vSTW, vSTR = 215, 216, 217
    SQ = 218; SUMA = 220; T = 224; U = 228; PK = 236
    B3_LDS = 16 * SLOT; CS_LDS = B3_LDS + 28672; ST_LDS = CS_LDS + 2048; CNT_LDS = ST_LDS
    if not cfg.fastx: xdma_addr(P, T, T + 1)
    wdma_addr(P, vWD, W1S, T)
    P.I(f'''
    s_lshr_b32 s{sG}, s{sWAVE}, 2
    s_and_b32 s{sTT}, s{sWAVE}, 3
    s_and_b32 s{sT2}, s{sSUB}, 1
    s_mul_i32 s{sT0}, s{sSUB}, 448
    s_lshl_b32 s{sT1}, s{sT2}, 6
    s_add_u32 s{sCOLP}, s{sT0}, s{sT1}
    s_add_u32 s{sCOLS}, s{sT0}, 384
    s_sub_u32 s{sBS}, s{sT0}, 64
    s_cmp_eq_u32 s{sT2}, 0
    s_cselect_b32 s{sCOLS}, s{sCOLS}, s{sBS}
    s_add_u32 s{sBS}, s{sCOLS}, s{sT1}
    s_mov_b32 s{sCOLS}, s{sT0}
    v_add_u32 v{vWD}, s{sT1}, v{vWD}
    s_nop 0
    ''')
    if not cfg.fastx: srd(P, sX, 4, 2048 * XB)
    srd(P, sW, 12, 448 * W1S)
    xslot = {c: 2 * c for c in range(7)}
    wslot = {}
    for c, s in zip(range(7), [14, 15, 16, 17, 18, 0, 1]): wslot[(0, c)] = s
    for c, s in zip(range(7), [2, 3, 4, 5, 6, 7, 8]): wslot[(1, c)] = s
    for c, s in zip(range(7), [9, 10, 11, 12, 13, 14, 15]): wslot[(2, c)] = s
    for c, s in zip(range(7), [14, 15, 16, 17, 18, 8, 9]): wslot[(3, c)] = s
    kw_ready = [False]
    def dw(blk, c, tag):
        def f3():
            if c == 0: P.I('s_lshr_b64 exec, -1, 32')
            P.I(f's_add_u32 m0, s59, {B3_LDS + 4096*c}')
            P.V(f'buffer_load_dwordx4 v{vWDs}, s[{sW}:{sW+3}], s{52+c} offen{cfg.wnt} lds', tag)
            if c == 6: P.I('s_mov_b64 exec, -1')
        if blk == 3: return f3
        def f():
            slot = wslot[(blk, c)]
            off = 128 * blk if blk < 3 else 0
            if slot * SLOT < off:
                P.I(f's_add_u32 m0, s{sWW}, {slot*SLOT}\ns_mul_i32 s{sT0}, s{sKX[c]}, {64*W1S//128}\ns_add_u32 s{sT0}, s{sT0}, s{sCOLS}\ns_add_u32 s{sT0}, s{sT0}, {off}')
                off = 0
            else:
                if kw_ready[0]:
                    P.I(f's_add_u32 m0, s{sWW}, {slot*SLOT - off}')
                    P.V(f'buffer_load_dwordx4 v{vWD}, s[{sW}:{sW+3}], s{52+c} offen offset:{off}{cfg.wnt} lds', tag); return
                P.I(f's_add_u32 m0, s{sWW}, {slot*SLOT - off}\ns_mul_i32 s{sT0}, s{sKX[c]}, {64*W1S//128}\ns_add_u32 s{sT0}, s{sT0}, s{sCOLS}')
            P.V(f'buffer_load_dwordx4 v{vWD if blk < 3 else vWDs}, s[{sW}:{sW+3}], s{sT0} offen offset:{off}{cfg.wnt} lds', tag)
        return f
    def dx(c, tag): return [lambda: dmax(P, c, xslot[c] * SLOT, 0, tag), lambda: dmax(P, c, xslot[c] * SLOT, 1, tag)]
    rot_first(P, cfg, 0)
    if not cfg.fastx:
        for f in dx(0, 'a'): f()
    rot_rest(P, 1, 7)
    dw(0, 0, 'a')()
    stamp(P, cfg, 'w0')
    if not cfg.noob: P.I('s_barrier')
    stamp(P, cfg, 'ob')
    init_zero(P, cfg, T)
    C1 = dx(1, 'a1') + [dw(0, 1, 'a1')]
    for _ in range(cfg.c1e): C1.pop(0)()
    srd(P, sB1, 14, 1792 * 2)
    P.I(f'''
    s_lshl_b32 s{sT0}, s{sMT}, 2
    s_add_u32 s{sT0}, s{sT0}, s{sTT}
    s_mul_i32 s{sT0}, s{sT0}, {112*1024}
    s_lshl_b32 s{sT2}, s{sBS}, 5
    s_add_u32 s{sHSG}, s{sT0}, s{sT2}
    s_lshl_b32 s{sT2}, s{sG}, 6
    s_add_u32 s{sBP}, s{sCOLP}, s{sT2}
    s_lshl_b32 s{sT2}, s{sBP}, 5
    s_add_u32 s{sHP}, s{sT0}, s{sT2}
    v_and_b32 v{U}, 31, v{vLANE}
    v_lshlrev_b32 v{U+1}, 1, v{U}
    ''')
    frag_addrs(P, sTT, sG, 64, vXa, vWa[0], T)
    for w in (1, 2):
        for s in range(4): P.I(f'v_add_u32 v{vWa[w][s]}, {65536*w}, v{vWa[0][s]}')
    Q0 = dx(2, 'a2') + [dw(0, 2, 'a2')] + dx(3, 'b') + [dw(0, 3, 'b')] + dx(4, 'b') + [dw(0, 4, 'b')] + dx(5, 'c') + dx(6, 'c')
    for _ in range(cfg.ni0): Q0.pop(0)()
    P.I(f'''
    v_lshlrev_b32 v{vHS}, 4, v{vLANE}
    s_lshl_b32 s{sT2}, s{sG}, 9
    s_add_u32 s{sT2}, s{sT2}, {CS_LDS}
    v_lshlrev_b32 v{vCSR}, 4, v{U}
    v_add_u32 v{vCSR}, s{sT2}, v{vCSR}
    s_lshl_b32 s{sT2}, s{sTT}, 2
    v_add_u32 v{vCSW}, s{sT2}, v{vCSR}
    v_lshlrev_b32 v{T}, 3, v{T}
    s_lshl_b32 s{sT2}, s{sG}, 10
    s_add_u32 s{sT2}, s{sT2}, {ST_LDS}
    v_add_u32 v{vSTW}, s{sT2}, v{T}
    v_xor_b32 v{vSTR}, 0x400, v{vSTW}
    v_mov_b32 v{AX+3}, 0
    v_mov_b32 v{BX+3}, 0
    v_mov_b32 v{SQ}, 0
    v_mov_b32 v{SQ+1}, 0
    ''')
    make_sel(P, SEL, T)
    s2_early_setup(P, T)
    if not cfg.prof: s2_tables(P, cfg)
    if cfg.dpf: dpf_setup(P)
    P.I(f'''
    v_lshrrev_b32 v{T}, 2, v{vLANE}
    s_lshl_b32 s{sT0}, s{sWAVE}, 3
    v_add_u32 v{T}, s{sT0}, v{T}
    v_mul_u32_u24 v{T}, {W1S}, v{T}
    v_and_b32 v{T+1}, 3, v{vLANE}
    v_lshl_add_u32 v{vWDs}, v{T+1}, 4, v{T}
    s_sub_u32 s{sT0}, s{sBS}, s{sCOLS}
    v_add_u32 v{vWDs}, s{sT0}, v{vWDs}
    s_lshr_b32 s59, s{sWW}, 1
    ''')
    for c in range(7): P.I(f's_mul_i32 s{52+c}, s{sKX[c]}, {64*W1S//128}\ns_add_u32 s{52+c}, s{52+c}, s{sCOLS}')
    kw_ready[0] = True
    P.I(f'v_lshlrev_b32 v244, 7, v{vLANE}')
    stamp(P, cfg, 'setup')
    for f in C1: f()
    stamp(P, cfg, 'issued')
    for t in range(3):
        P.V(f'buffer_load_ushort v{BR+t}, v{U+1}, s[{sB1}:{sB1+3}], s{sBP} offen offset:{128*t}', 'bias')
    P.V(f'buffer_load_ushort v{BR+3}, v{U+1}, s[{sB1}:{sB1+3}], s{sBS} offen', 'bias')
    E = Eng(P, cfg, XF, WF, NWF, vWa, vXa, wslot, xslot); F = E.F
    rd_std = E.rd
    def rd(gs, nblk):
        blk, s = divmod(gs, 28)
        if blk != 3: return rd_std(gs, nblk)
        dst = WF + 4 * (gs % NWF); off = 4096 * (s // 4)
        P.D(f'ds_read_b64_tr_b16 v[{dst}:{dst+1}], v{vXa[s%4]} offset:{off}', ('w', gs))
        P.D(f'ds_read_b64_tr_b16 v[{dst+2}:{dst+3}], v{vXa[s%4]} offset:{off+256}', ('w', gs))
    E.rd = rd
    b3_addr = f'''v_lshrrev_b32 v{T}, 5, v{vLANE}
        v_lshlrev_b32 v{T}, 3, v{T}
        v_bfe_u32 v{T+1}, v{vLANE}, 2, 2
        v_add_u32 v{T}, v{T}, v{T+1}
        v_lshlrev_b32 v{T}, 6, v{T}
        v_and_b32 v{T+1}, 16, v{vLANE}
        v_lshl_add_u32 v{T}, v{T+1}, 1, v{T}
        v_and_b32 v{T+1}, 3, v{vLANE}
        v_lshl_add_u32 v{T}, v{T+1}, 3, v{T}
        s_xor_b32 s{sT0}, s{sG}, s{sTT}
        s_lshl_b32 s{sT0}, s{sT0}, 10
        s_add_u32 s{sT0}, s{sT0}, {B3_LDS}
        v_add_u32 v{vXa[0]}, s{sT0}, v{T}
        v_xor_b32 v{vXa[1]}, 0x400, v{vXa[0]}
        v_xor_b32 v{vXa[2]}, 0x800, v{vXa[0]}
        v_xor_b32 v{vXa[3]}, 0xc00, v{vXa[0]}
        v_mov_b32 v{T}, {CNT_LDS}
        v_mov_b32 v{T+2}, 0
        v_mov_b32 v{T+3}, 0
        ds_write_b64 v{T}, v[{T+2}:{T+3}]
        ds_write_b32 v{T}, v{T+2} offset:8
        ds_write_b32 v{T}, v{T+2} offset:{GO_LDS - CNT_LDS}'''
    def arrive(tag='stA', w=0):
        P.wait_vm(tag)
        P.I(f'v_mov_b32 v{SQ}, {CNT_LDS + w}\nv_mov_b32 v{SQ+1}, 1\ns_mov_b64 exec, 1')
        P.D(f'ds_add_rtn_u32 v{SQ+1}, v{SQ}, v{SQ+1}', 'arr')
        P.I('s_mov_b64 exec, -1')
    def arrive_check(off=4096):
        u = P.uid()
        P.wait_lg('arr')
        P.I(f'v_readfirstlane_b32 s{sT0}, v{SQ+1}\ns_cmp_eq_u32 s{sT0}, 7\ns_cbranch_scc0 L_ar{u}')
        P.I(f's_lshl_b32 s{sT0}, s{sMT}, 7\ns_add_u32 s{sT0}, s{sT0}, {CNT_OFF + off}')
        atomic_inc(P, sT0)
        P.label(f'L_ar{u}')
    def bar(name, vm=(), lg=()):
        if vm: P.wait_vm(*vm)
        if lg: P.wait_lg(*lg)
        stamp(P, cfg, name + 'w'); P.I('s_barrier'); stamp(P, cfg, name + 'b')
    def cs_write(blk): P.D(f'ds_write_b32 v{vCSW}, v{CSA} offset:{1024*(blk%2)}', 'csw')
    def sites(D): return (lambda: site(P, sG, 0, D, False)), (lambda: site(P, sG, 1, D, True))
    P.L.append('; SETUP_END')
    bar('c0', vm=('a',))
    E.xreads(2, 0)
    for g in range(AH): E.rd(g, 4)
    E.xreads(2, 0)
    at = {}
    vis = 0
    for s in range(28):
        if s == 1:
            bar('a1', vm=('a1',)); vis = 1
            init_flag(P, cfg, PK, 'a')
        if s == 5: bar('a2', vm=('a2',)); vis = 2
        if s == 9:
            assert not Q0
            bar('Bb', vm=('b',), lg=(('x', 11),)); vis = 4
            for f in [dw(0, 5, 'c'), dw(0, 6, 'c'), dw(1, 0, 'c')]: f()
            flag_prefetch(P, cfg)
            at[10], at[13] = sites([dw(1, c, ('t', 1)) for c in range(1, 4)])
        if s == 17:
            bar('Bc', vm=('c',), lg=(('x', 19),)); vis = 6
            at[17], at[20] = sites([dw(1, c, ('t', 1)) for c in range(4, 7)] + [dw(2, 0, ('h', 2))])
        if s in at: at[s]()
        if s == cfg.malls and cfg.mallc >= 0: mall_pf(P, 244)
        E.rd(s + AH, 4)
        w = WF + 4 * (s % NWF); x = XF + 4 * s
        P.wait_lg(('w', s), ('x', s))
        if s % 2 == 0 and 'nosq' not in cfg.exp and not cfg.dot2: F.add(sq_ops(x, T, SQ))
        if cfg.dot2 == 1 and s % 2 == 0:
            for d in range(4): P.I(f'v_dot2c_f32_bf16 v{SQ + (d & 1)}, v{x+d}, v{x+d}')
        if cfg.dot2 == 2 and s % 4 == 3:
            for xx in (x - 12, x - 4):
                for d in range(4): P.I(f'v_dot2c_f32_bf16 v{SQ + (d & 1)}, v{xx+d}, v{xx+d}')
        P.I(m32(ACC[0], w, x, s == 0))
        E.xreads(2, vis)
        for _ in range(2):
            if Q0: Q0.pop(0)()
        F.emit(20)
        if s % 4 == 0: P.I(m16(CSA, SEL, w, s == 0))
        if s % 2 == 1: P.I(m16(SUMA, SEL, x - 4, s == 1))
        F.emit(12)
    F.flush()
    P.I(f'''
    v_add_f32 v{SQ}, v{SQ}, v{SQ+1}
    v_mov_b32 v{SQ+1}, v{SQ}
    v_permlane32_swap_b32 v{SQ}, v{SQ+1}
    v_add_f32 v{SQ+1}, v{SQ}, v{SQ+1}
    v_mov_b32 v{SQ}, v{SUMA}
    ''')
    P.D(f'ds_write_b64 v{vSTW}, v[{SQ}:{SQ+1}]', 'csw')
    cs_write(0)
    stamp(P, cfg, 'T0e')

    mark = [0]
    def stat_store():
        P.wait_vm('bias'); assert True
        mark[0] = P.vm.n
        u = P.uid()
        P.I(f's_cmp_eq_u32 s{sG}, 0\ns_cbranch_scc0 L_ss{u}')
        stat_addr(P, sT0, sT2)
        P.I(f'''
        v_subrev_u32 v{SUMA+1}, {ST_LDS}, v{vSTW}
        v_lshrrev_b32 v{SUMA+1}, 1, v{SUMA+1}
        s_add_u32 s{sT2}, s{sT0}, 8192
        buffer_store_dword v{SUMA}, v{SUMA+1}, s[{sWS}:{sWS+3}], s{sT0} offen sc1
        buffer_store_dword v{U+2}, v{SUMA+1}, s[{sWS}:{sWS+3}], s{sT2} offen sc1
        L_ss{u}:
        ''')
    def stats_ops():
        t = T; R, M, V = U, U + 2, U + 3
        L = [lambda: P.wait_lg('str')]
        L += f'''v_add_f32 v{M}, v{SQ}, v{U+4}
        v_add_f32 v{V}, v{SQ+1}, v{U+5}
        v_mul_f32 v{M}, {f32(1.0/448)}, v{M}
        v_mul_f32 v{V}, {f32(1.0/448)}, v{V}
        v_fma_f32 v{V}, -v{M}, v{M}, v{V}
        v_max_f32 v{V}, 0, v{V}
        v_add_f32 v{t}, {f32(EPS)}, v{V}
        v_rsq_f32 v{SUMA}, v{t}'''.split('\n        ')
        L += [stat_store]
        L += f'''v_cmp_gt_u32 vcc, 32, v{vLANE}
        v_mul_f32 v{t+2}, v{SUMA}, v{SUMA}
        v_mul_f32 v{t+2}, v{t+2}, v{V}
        v_add_f32 v{t+2}, {f32(EPS)}, v{t+2}
        v_rsq_f32 v{R}, v{t+2}
        v_mul_f32 v{t}, v{t}, v{t+2}
        v_sqrt_f32 v{vRI}, v{t}
        v_mul_f32 v{R}, v{R}, v{SUMA}
        v_mul_f32 v{vK0}, {f32(GK0)}, v{R}
        v_mul_f32 v{t}, v{R}, v{R}
        v_mul_f32 v{t}, v{t}, v{R}
        v_mul_f32 v{vK1}, {f32(GK1)}, v{t}
        v_cndmask_b32 v{t}, 0, v{M}, vcc
        v_cndmask_b32 v{t+1}, 0, v{vRI}, vcc
        v_sub_f32 v{t}, 0, v{t}
        v_cvt_pk_bf16_f32 v{BX+1}, v{t}, v{t+1}
        v_lshlrev_b32 v{t+2}, 16, v{BX+1}
        v_sub_f32 v{t+2}, v{t}, v{t+2}
        v_cvt_pk_bf16_f32 v{BX}, v{t}, v{t+2}
        v_and_b32 v{t+2}, 0xffff0000, v{BX+1}
        v_sub_f32 v{t+2}, v{t+1}, v{t+2}
        v_cvt_pk_bf16_f32 v{BX+2}, v{t+2}, v{BX+3}'''.split('\n        ')
        return L
    def e_ops(tile, stag):
        A = ACC[tile % 2]
        P.D(f'ds_read_b128 v[{PK}:{PK+3}], v{vCSR} offset:{1024*(tile%2)}', 'csr')
        L = [lambda: P.wait_vm('bias'),
             f'v_lshlrev_b32 v{U}, 16, v{BR+tile}', f'v_mov_b32 v{AX+2}, v{BR+tile}',
             lambda: P.wait_lg('csr'),
             f'v_add_f32 v{T}, v{PK}, v{PK+1}', f'v_add_f32 v{T+2}, v{PK+2}, v{PK+3}', f'v_add_f32 v{T}, v{T}, v{T+2}',
             f'v_cvt_pk_bf16_f32 v{AX}, v{T}, v{T}', f'v_lshlrev_b32 v{T+1}, 16, v{AX}', f'v_sub_f32 v{T+1}, v{T}, v{T+1}',
             f'v_cvt_pk_bf16_f32 v{AX+1}, v{T+1}, v{U}',
             (f's_add_u32 s88, s{sHP}, {4096*tile}' if tile < 3 else f's_mov_b32 s88, s{sHSG}'),
             f's_nop 0',
             m32(A, AX, BX, False)]
        M = []
        for half in (range(2) if (tile == 3 and cfg.pk3) else ()):
            a = A + 8 * half; pk = PK + 4 * half; R4 = range(0, 8, 2)
            M += [f'v_pk_mul_f32 {pr(U+e)}, {pr(a+e)}, {pr(a+e)}' for e in R4]
            M += [f'v_pk_fma_f32 {pr(U+e)}, {pr(U+e)}, {pr(vK0)}, {pr(vK0)} op_sel:[0,1,0] op_sel_hi:[1,1,0]' for e in R4]
            M += [f'v_pk_mul_f32 {pr(U+e)}, {pr(a+e)}, {pr(U+e)}' for e in R4]
            M += [f'v_exp_f32 v{U+e}, v{U+e}' for e in range(8)]
            M += [f'v_pk_fma_f32 {pr(U+e)}, {pr(U+e)}, {pr(vRI)}, {pr(vRI)} op_sel_hi:[1,0,0]' for e in R4]
            M += [f'v_rcp_f32 v{U+e}, v{U+e}' for e in range(8)]
            M += [f'v_pk_mul_f32 {pr(U+e)}, {pr(a+e)}, {pr(U+e)}' for e in R4]
            M += [f'v_cvt_pk_bf16_f32 v{pk+e}, v{U+2*e}, v{U+2*e+1}' for e in range(4)]
            M.append(lambda half=half, pk=pk: P.V(f'buffer_store_dwordx4 v[{pk}:{pk+3}], v{vHS}, s[{sWS}:{sWS+3}], s88 offen offset:{1024*half}{cfg.sc}', stag))
        for half in (() if (tile == 3 and cfg.pk3) else range(2)):
            R8 = range(8); a = A + 8 * half; pk = PK + 4 * half
            M += [f'v_mul_f32 v{U+e}, v{a+e}, v{a+e}' for e in R8]
            M += [f'v_fma_f32 v{U+e}, v{U+e}, v{vK1}, v{vK0}' for e in R8]
            M += [f'v_mul_f32 v{U+e}, v{a+e}, v{U+e}' for e in R8]
            M += [f'v_exp_f32 v{U+e}, v{U+e}' for e in R8]
            M += [f'v_fma_f32 v{U+e}, v{U+e}, v{vRI}, v{vRI}' for e in R8]
            M += [f'v_rcp_f32 v{U+e}, v{U+e}' for e in R8]
            M += [f'v_mul_f32 v{U+e}, v{a+e}, v{U+e}' for e in R8]
            M += [f'v_cvt_pk_bf16_f32 v{pk+e}, v{U+2*e}, v{U+2*e+1}' for e in range(4)]
            if 'nost' in cfg.exp: M.append('s_nop 0')
            else: M.append(lambda half=half, pk=pk: P.V(f'buffer_store_dwordx4 v[{pk}:{pk+3}], v{vHS}, s[{sWS}:{sWS+3}], s88 offen offset:{1024*half}{cfg.sc}', stag))
        if 'nogelu' in cfg.exp: M = [x for x in M if callable(x) or 'cvt' in x or 'exp' in x]
        return L, M
    def barrier_B(j):
        if j == 1: flag_check(P, 'm')
        bar(f'B{j}', vm=(('t', j), ('h', j + 1)) + (('stA0', 'X') if j == 3 else ()), lg=('csw',))
        if j == 3: publish2(P, cfg, 0, 'a0', 4, barrier=False, tags=())
    def stat_signal(nD):
        n = P.vm.n - mark[0]
        u = P.uid()
        P.I(f's_cmp_eq_u32 s{sG}, 0\ns_cbranch_scc0 L_sw{u}\ns_waitcnt vmcnt({n + nD})')
        statc_addr(P, sT0, sT2)
        atomic_inc(P, sT0)
        P.label(f'L_sw{u}')
    def period(j):
        for s in range(28):
            gs = 28 * j + s
            if s == 1:
                barrier_B(j)
                if j == 1: P.D(f'ds_read_b64 v[{U+4}:{U+5}], v{vSTR}', 'str')
                pre, main = e_ops(j - 1, 'stA0' if j == 1 else 'stA' if j == 2 else 'stA2')
                if j == 1: F.add(stats_ops())
                F.add(pre)
                if j == 1: D = [dw(2, c, ('t', 2)) for c in range(1, 7)] + [dw(3, 0, ('h', 3))] + [dw(3, c, ('t', 3)) for c in range(1, 7)]
                if j == 2:
                    s2_srd(P, cfg); D = s2_xy(P, 'X')
                    def b3f():
                        P.I(b3_addr); P.lg.issue('z'); P.lg.issue('z'); P.lg.issue('z')
                    F.q.insert(0, b3f)
                if j == 3: D = []
                h = len(main) // 2
                if j == 1: main.insert(min(cfg.sigpos, len(main) // 2 - 2), lambda D=D: stat_signal(0 if cfg.uni else len(D))); h += 1
                if j < 3 and not cfg.uni:
                    sa, sb = sites(D)
                    rest = main[h:]
                    if cfg.dpf:
                        ks = ([0, 1, 2] if j == 1 else [3, 4]) if cfg.dpf == 1 else ([0, 1, 2, 3, 4] if j == cfg.dpf - 1 else [])
                        for n, k in enumerate(ks): rest.insert(4 + 12 * n, lambda k=k: dpf(P, k, 244, vHS))
                    if j == 1 and cfg.mallc >= 0 and cfg.malls < 0: rest.insert(2, lambda: mall_pf(P, 244))
                    if cfg.mlppf == j:
                        rest += [lambda: w2pf_m(P, 0, 2, 64, 244), lambda: w2pf_m(P, 1, 2, 64, 244)]
                    F.add([sa] + main[:h] + [sb] + rest)
                else:
                    k = max(1, int(len(main) * cfg.unif) // (len(D) + 1)); mix = []
                    for i, m in enumerate(main):
                        if D and i % k == 0: mix.append(D.pop(0))
                        mix.append(m)
                    F.add(mix + D)
            if j == 3 and s == cfg.apos: arrive()
            if j == 3 and s == cfg.apos + 3: arrive_check()
            E.rd(gs + AH, 4)
            b = 0 if s < 3 else E.budget(s, 0.5 * ((27 - s) // 4 + 1))
            w = WF + 4 * (gs % NWF); x = XF + 4 * s
            P.wait_lg(('w', gs))
            if cfg.alt and j < 3 and s % cfg.alt == 0:
                u = P.uid(); odd = (s // cfg.alt) % 2
                P.I(f's_setprio 0\ns_cmp_eq_u32 s{sG}, {odd}\ns_cbranch_scc0 L_pr{u}\ns_setprio 1\nL_pr{u}:')
            P.I(m32(ACC[j % 2], w, x, s == 0))
            F.emit(b)
            if s % 4 == 0:
                P.I(m16(CSA, SEL, w, s == 0)); F.emit(b // 2)
        F.flush()
        cs_write(j)
        stamp(P, cfg, f'T{j}e')
    period(1)
    period(2)
    if cfg.alt: P.I('s_setprio 0')
    P.I(f's_cmp_eq_u32 s{sG}, 0\ns_cbranch_scc0 L_mlp_g1')
    st0 = P.state()
    period(3)
    P.lg0()
    P.I(f'''
    v_mov_b32 v{SQ}, {CNT_LDS + 4}
    v_mov_b32 v{SQ+1}, 1
    s_mov_b64 exec, 1
    ds_add_u32 v{SQ}, v{SQ+1}
    s_mov_b64 exec, -1
    s_mov_b32 s{sT2}, {SPIN}
    L_g0s:
    ds_read_b32 v{SQ+1}, v{SQ}
    s_sub_u32 s{sT2}, s{sT2}, 1
    s_cbranch_scc1 L_g0x
    s_waitcnt lgkmcnt(0)
    v_readfirstlane_b32 s{sT0}, v{SQ+1}
    s_cmp_ge_u32 s{sT0}, 4
    s_cbranch_scc0 L_g0s
    L_g0x:
    ''')
    stamp(P, cfg, 'B4b')
    pre, main = e_ops(3, 'st')
    h = len(main) // 2
    if not cfg.noa2:
        main.insert(len(main) - 6, lambda: arrive_check(6144)); main.insert(h + cfg.a2off, lambda: arrive('stA2', 8))
    F.add(pre + main); F.flush()
    stamp(P, cfg, 'end')
    stamp_flush(P, cfg)
    P.I(f's_branch {after}')
    P.restore(st0)
    P.label('L_mlp_g1')
    barrier_B(3)
    pre, main = e_ops(2, 'stA2')
    XY = [f for pair in zip(s2_xy(P, 'Y', 2), s2_xy(P, 'Y')) for f in pair]
    k = len(main) // 9; mix = []
    for i, x in enumerate(main):
        if i and i % k == 0 and len(XY) > 8: mix.append(XY.pop(0))
        if i == len(main) * 7 // 12: mix.append(arrive)
        if i == len(main) * 8 // 12: mix.append(arrive_check)
        mix.append(x)
    F.add(pre + mix); F.flush()
    stamp(P, cfg, 'T3e')
    if cfg.l2pf == 1: l2pf_late(P, 244)
    for f in XY: f()
    if cfg.l2pf == 2: l2pf_late(P, 244)
    if not cfg.noa2: arrive('stA2', 8); arrive_check(6144)
    P.lg0()
    stamp(P, cfg, 'end')
    if cfg.hook_late: cfg.hook_late(P)
    stamp_flush(P, cfg)
    P.I(f's_branch {after}')

def att_v3(P, cfg, after):
    sPP, sHH, sOB, sWC, sSC, sSB = 74, 75, 76, 77, 79, 26
    vWD, vHD = 4, 5
    vWa = [[6 + 4 * w + s for s in range(4)] for w in range(3)]
    vXa = [18, 19, 20, 21]; vXh = 22; vL7 = 23
    XF = 24; AK, AV, AQ = 136, 152, 168; ACC = [AK, AV, AQ]
    WF = 184; NWF = 5
    KH, VH = 204, 212; CSA, SEL, XH, XE, XO = 220, 224, 228, 232, 236
    i15, g4, ME, mLO = 240, 241, 242, 243; T = 244; aCSW = 248; vROW = 251
    HALO = 12 * SLOT; CS_LDS = MISC; HP_LDS = 0; EX_LDS = 8 * SLOT; DUMMY = MISC + 4096
    part = [1, 2, 0]
    xdma_addr(P, T, T + 1)
    wdma_addr(P, vWD, WQS, T, True)
    P.I(f'''
    s_and_b32 s{sPP}, s{sWAVE}, 3
    s_lshr_b32 s{sHH}, s{sWAVE}, 2
    s_and_b32 s{sT2}, s{sWAVE}, 1
    s_lshl_b32 s{sT0}, s{sMT}, 7
    s_lshl_b32 s{sT1}, s{sT2}, 3
    s_add_u32 s{sT0}, s{sT0}, s{sT1}
    s_sub_u32 s{sT0}, s{sT0}, 16
    s_mul_i32 s{sT0}, s{sT0}, {XB}
    v_lshrrev_b32 v{T}, 3, v{vLANE}
    v_mul_u32_u24 v{T+2}, {XB}, v{T}
    v_add_u32 v{T+2}, s{sT0}, v{T+2}
    v_lshrrev_b32 v{T+1}, 4, v{vLANE}
    v_xor_b32 v{T+1}, v{T+1}, v{vLANE}
    s_lshl_b32 s{sT1}, s{sT2}, 2
    v_xor_b32 v{T+1}, s{sT1}, v{T+1}
    v_and_b32 v{T+1}, 7, v{T+1}
    v_lshl_add_u32 v{vHD}, v{T+1}, 4, v{T+2}
    s_mul_i32 s{sWC}, s{sSUB}, 112
    s_waitcnt lgkmcnt(0)
    ''')
    srd(P, sX, 4, 2048 * XB)
    srd(P, sW, 6, 448 * WQS)
    xslot = {c: 2 * c for c in range(6)}; xslot[6] = 0
    wslot = {}
    for c, s in zip(range(7), [14, 15, 16, 17, 18, 2, 3]): wslot[(0, c)] = s
    for c, s in zip(range(7), [4, 5, 6, 7, 8, 9, 10]): wslot[(1, c)] = s
    for c, s in zip(range(7), [11, 14, 15, 16, 17, 18, 12]): wslot[(2, c)] = s
    def dw(blk, c, tag):
        def f():
            off = 896 * part[blk]
            P.I(f's_add_u32 m0, s{sWW}, {wslot[(blk, c)]*SLOT - off}\ns_mul_i32 s{sT0}, s{sKX[c]}, {64*WQS//128}\ns_add_u32 s{sT0}, s{sT0}, s{sWC}')
            P.V(f'buffer_load_dwordx4 v{vWD}, s[{sW}:{sW+3}], s{sT0} offen offset:{off}{cfg.wnt} lds', tag)
        return f
    def dx(c, tag): return [lambda: dmax(P, c, xslot[c] * SLOT, 0, tag), lambda: dmax(P, c, xslot[c] * SLOT, 1, tag)]
    rot_first(P, cfg, 1)
    for f in dx(0, 'a'): f()
    dw(0, 0, 'a')()
    P.I(f'''
    s_lshr_b32 s{sT0}, s{sWAVE}, 1
    s_lshl_b32 s{sT0}, s{sT0}, 7
    s_add_u32 s{sT0}, s{sT0}, s{sKX[0]}
    s_sub_u32 s{sT1}, s{sT0}, 896
    s_cmp_ge_u32 s{sT0}, 896
    s_cselect_b32 s{sT0}, s{sT1}, s{sT0}
    s_add_u32 m0, s{sWW}, {HALO}
    ''')
    P.V(f'buffer_load_dwordx4 v{vHD}, s[{sX}:{sX+3}], s{sT0} offen lds', 'a')
    P.I(f'''
    s_cmp_lt_u32 s{sWAVE}, 6
    s_cselect_b32 s{sT1}, 512, 0
    s_cselect_b32 s{sT2}, 8192, 0
    s_add_u32 s{sT0}, s{sT0}, s{sT1}
    s_sub_u32 s{sT1}, s{sT0}, 896
    s_cmp_ge_u32 s{sT0}, 896
    s_cselect_b32 s{sT0}, s{sT1}, s{sT0}
    s_add_u32 s{sT2}, s{sT2}, s{sWW}
    s_add_u32 m0, s{sT2}, {HALO}
    ''')
    P.V(f'buffer_load_dwordx4 v{vHD}, s[{sX}:{sX+3}], s{sT0} offen lds', 'a')
    rot_rest(P, 1, 7)
    P.I('s_barrier')
    for f in dx(1, 'a1') + [dw(0, 1, 'a1')]: f()
    stamp(P, cfg, 'issued')
    srd(P, sWS, 24, WS_SIZE); srd(P, sDBG, 22, 256)
    frag_addrs(P, sPP, sHH, 56, vXa, vWa[0], T)
    for w in (1, 2):
        for s in range(4): P.I(f'v_add_u32 v{vWa[w][s]}, {65536*w}, v{vWa[0][s]}')
    P.I(f'''
    v_mov_b32 v{vROW}, v{T}
    v_and_b32 v{i15}, 15, v{vLANE}
    v_lshrrev_b32 v{g4}, 4, v{vLANE}
    v_lshrrev_b32 v{T}, 1, v{i15}
    v_lshrrev_b32 v{T+1}, 5, v{vLANE}
    v_add_u32 v{mLO}, -1, v{T+1}
    v_xor_b32 v{T}, v{T}, v{T+1}
    s_xor_b32 s{sT0}, s{sT2}, 1
    s_lshl_b32 s{sT0}, s{sT0}, 1
    v_xor_b32 v{T}, s{sT0}, v{T}
    v_lshlrev_b32 v{T}, 4, v{T}
    v_lshl_add_u32 v{T}, v{i15}, 7, v{T}
    v_add_u32 v{vXh}, {HALO}, v{T}
    v_and_b32 v{ME}, 1, v{g4}
    v_add_u32 v{ME}, -1, v{ME}
    s_mul_i32 s{sT0}, s{sHH}, 1536
    s_lshl_b32 s{sT1}, s{sPP}, 2
    s_add_u32 s{sT0}, s{sT0}, s{sT1}
    s_add_u32 s{sT0}, s{sT0}, {CS_LDS}
    v_and_b32 v{T}, 31, v{vLANE}
    v_lshlrev_b32 v{aCSW}, 4, v{T}
    v_add_u32 v{aCSW}, s{sT0}, v{aCSW}
    v_lshlrev_b32 v{vL7}, 7, v{vLANE}
    s_lshl_b32 s{sT0}, s{sMT}, 2
    s_add_u32 s{sT0}, s{sT0}, s{sPP}
    s_lshl_b32 s{sT0}, s{sT0}, 15
    s_lshl_b32 s{sT1}, s{sSUB}, 1
    s_add_u32 s{sT1}, s{sT1}, s{sHH}
    s_lshl_b32 s{sT1}, s{sT1}, 11
    s_add_u32 s{sOB}, s{sT0}, s{sT1}
    s_add_u32 s{sOB}, s{sOB}, {O_OFF}
    ''')
    make_sel(P, SEL, T)
    s2_early_setup(P, T)
    if not cfg.prof: s2_tables(P, cfg)
    Q0 = dx(2, 'a2') + [dw(0, 2, 'a2')] + dx(3, 'b') + [dw(0, 3, 'b')] + dx(4, 'b') + [dw(0, 4, 'b')] + dx(5, 'c')
    E = Eng(P, cfg, XF, WF, NWF, vWa, vXa, wslot, xslot); F = E.F
    def bar(name, vm=(), lg=()):
        if vm: P.wait_vm(*vm)
        if lg: P.wait_lg(*lg)
        stamp(P, cfg, name + 'w'); P.I('s_barrier'); stamp(P, cfg, name + 'b')
    def sites(D): return (lambda: site(P, sHH, 0, D, False)), (lambda: site(P, sHH, 1, D, True))
    def xh_read(c): P.D(f'ds_read_b128 v[{XH}:{XH+3}], v{vXh} offset:{c*2048}', ('xh', c))
    def slot(j, s, hooks):
        gs = 28 * j + s
        for f in hooks.get(s, []): f()
        E.rd(gs + AH, 3)
        w = WF + 4 * (gs % NWF); x = XF + 4 * s
        P.wait_lg(('w', gs), ('x', gs))
        if j < 2 and s % 4 == 0:
            P.wait_lg(('xh', s // 4))
            F.q = [f'v_and_b32 v{XE+d}, v{ME}, v{XH+d}' for d in range(4)] + [f'v_xor_b32 v{XO+d}, v{XE+d}, v{XH+d}' for d in range(4)] + F.q
        P.I(m32(ACC[j], x, w, s == 0) if j == 1 else m32(ACC[j], w, x, s == 0))
        if j == 0:
            E.xreads(2, vis[0])
            for _ in range(2):
                if Q0: Q0.pop(0)()
        b = 32 if j < 2 else (0 if s < 2 else E.budget(s, 0.5 * ((27 - s) // 4 + 1)))
        F.emit(b)
        if j < 2 and s % 4 == 1:
            H = KH if j == 0 else VH
            if j == 0: P.I(m16(H, w, XE, s == 1)); P.I(m16(H + 4, w, XO, s == 1))
            else: P.I(m16(H, XE, w, s == 1)); P.I(m16(H + 4, XO, w, s == 1))
        if j < 2 and s % 4 == 2:
            if s < 24: xh_read(s // 4 + 1)
            elif j == 0: xh_read(0)
        if s % 4 == 3:
            P.I(m16(CSA, SEL, w, s == 3)); F.emit(b // 2)
    def cs_write(j): P.D(f'ds_write_b32 v{aCSW}, v{CSA} offset:{512*j}', 'csw')
    vis = [0]
    def setvis(v): vis[0] = v
    bar('c0', vm=('a',))
    E.xreads(2, 0); xh_read(0)
    for g in range(AH): E.rd(g, 3)
    E.xreads(2, 0)
    H = {1: [lambda: bar('a1', vm=('a1',)), lambda: setvis(1)],
         5: [lambda: bar('a2', vm=('a2',)), lambda: setvis(2)],
         9: [lambda: bar('Bb', vm=('b',), lg=(('x', 11),)), lambda: setvis(4)] + dx(6, 'c') + [dw(0, 5, 'c'), dw(0, 6, 'c'), dw(1, 0, 'c'), lambda: flag_prefetch(P, cfg)],
         13: [dw(1, 1, ('t', 1))],
         17: [lambda: bar('Bc', vm=('c',), lg=(('x', 19),)), lambda: setvis(6)]}
    sa, sb = sites([dw(1, c, ('t', 1)) for c in range(2, 6)])
    H[17].append(sa); H[20] = [sb]
    if cfg.mallc >= 0: H[23] = [lambda: mall_pf(P, vL7)]
    for s in range(28): slot(0, s, H)
    F.flush()
    stamp(P, cfg, 'T0e')
    R, M, RH, MH = 18, 19, 20, 21
    def st_poll():
        flag_check(P, 'a')
        statc_addr(P, sSC, sT1)
        P.I(f'''
        s_cmp_eq_u32 s{sMT}, 0
        s_cselect_b32 s{sT1}, 0, 128
        v_mov_b32 v2, s{sT1}
        v_and_b32 v2, v{mLO}, v2
        v_sub_u32 v2, s{sSC}, v2
        ''')
        svc_load(P, 3, sWS, '0', 2)
    def st_check():
        u = svc_begin(P); spin(P, 3, sWS, '0', cfg.stat_expect, 2); svc_end(P, u)
    sa, sb = sites([dw(1, 6, 'd'), dw(2, 0, 'd')] + [dw(2, c, ('t', 2)) for c in range(1, 6)])
    H = {0: [lambda: cs_write(0)],
         1: [lambda: bar('B1', vm=(('t', 1),), lg=(('x', 27),)), sa], 6: [sb],
         17: [lambda: bar('B1x', vm=('d',))],
         cfg.st_poll: [st_poll]}
    for s in range(28): slot(1, s, H)
    F.flush()
    aHPW, aHPR, aCSR = 5, 22, 23
    P.I(f'''
    v_lshlrev_b32 v{T}, 4, v{vLANE}
    s_lshl_b32 s{sT0}, s{sHH}, 14
    s_lshl_b32 s{sT1}, s{sPP}, 10
    s_add_u32 s{sT1}, s{sT1}, s{sT0}
    v_add_u32 v{aHPW}, s{sT1}, v{T}
    s_lshl_b32 s{sT1}, s{sPP}, 12
    s_add_u32 s{sT1}, s{sT1}, s{sT0}
    v_add_u32 v{aHPR}, s{sT1}, v{T}
    s_lshl_b32 s{sT1}, s{sPP}, 2
    v_subrev_u32 v{aCSR}, s{sT1}, v{aCSW}
    ''')
    cs_write(1)
    for k in range(4): P.D(f'ds_write_b128 v{aHPW}, v[{KH+4*k}:{KH+4*k+3}] offset:{HP_LDS + 4096*k}', 'csw')
    stamp(P, cfg, 'T1e')
    SC, BX, BS = XH, XE, XO; AXK, AXV = T, 6; HA = KH
    RR = XF; KOP = XF + 16; VOP = XF + 28; MKP, MKC, MKP0, ONES = XF + 40, XF + 44, XF + 48, XF + 52
    aEXW, aEXH, aEXR, vO, m48, RQ, RZ, TT = XF + 56, XF + 57, XF + 58, XF + 59, XF + 60, XF + 62, XF + 64, XF + 66
    ws = f's[{sWS}:{sWS+3}]'
    qs = 28 ** -0.5 * LOG2E
    def st_loads():
        stat_addr(P, sSB, sT1)
        P.I(f'''
        s_add_u32 s{sT1}, s{sSB}, 8192
        v_lshlrev_b32 v{vROW}, 2, v{vROW}
        s_cmp_eq_u32 s{sMT}, 0
        s_cselect_b32 s{sT2}, 0x40000000, -64
        s_add_u32 s{sT2}, s{sT2}, s{sSB}
        v_lshlrev_b32 v2, 2, v{i15}
        v_add_u32 v2, s{sT2}, v2
        v_lshlrev_b32 v3, 4, v{g4}
        v_add_u32 v3, s{sT2}, v3
        ''')
        P.V(f'buffer_load_dword v{M}, v{vROW}, {ws}, s{sT1} offen sc1', 'sl')
        P.V(f'buffer_load_dword v{R}, v{vROW}, {ws}, s{sSB} offen sc1', 'sl')
        P.V(f'buffer_load_dword v{RH}, v2, {ws}, 0 offen sc1', 'sl')
        P.I(f's_movk_i32 s{sT1}, 0x2000')
        P.V(f'buffer_load_dword v{MH}, v2, {ws}, s{sT1} offen sc1', 'sl')
        P.V(f'buffer_load_dwordx4 v[{SC}:{SC+3}], v3, {ws}, 0 offen sc1', 'sl')
    def rr_loads():
        P.I(f'v_lshrrev_b32 v2, 5, v{vLANE}\nv_lshlrev_b32 v2, 4, v2\ns_lshl_b32 s{sT0}, s{sPP}, 7\nv_add_u32 v2, s{sT0}, v2')
        for q in range(4): P.V(f'buffer_load_dwordx4 v[{RR+4*q}:{RR+4*q+3}], v2, {ws}, s{sSB} offen offset:{32*q} sc1', 'rr')
    def lds_reads():
        P.D(f'ds_read_b128 v[{AXK}:{AXK+3}], v{aCSR}', 'cs')
        P.D(f'ds_read_b128 v[{AXV}:{AXV+3}], v{aCSR} offset:512', 'cs')
        for k in range(4): P.D(f'ds_read_b128 v[{HA+4*k}:{HA+4*k+3}], v{aHPR} offset:{HP_LDS + 1024*k}', 'hp')
    def ax_ops(a):
        return [f'v_add_f32 v{a}, v{a}, v{a+1}', f'v_add_f32 v{a+2}, v{a+2}, v{a+3}', f'v_mov_b32 v{a+3}, 0', f'v_add_f32 v{a+2}, v{a}, v{a+2}',
                f'v_cvt_pk_bf16_f32 v{a}, v{a+2}, v{a+2}', f'v_lshlrev_b32 v{a+1}, 16, v{a}', f'v_sub_f32 v{a+1}, v{a+2}, v{a+1}',
                f'v_cvt_pk_bf16_f32 v{a+1}, v{a+1}, v{a+3}', f'v_mov_b32 v{a+2}, 0']
    def negm_ops(m, mask, d):
        return [f'v_and_b32 v{m}, v{mask}, v{m}', f'v_mov_b32 v{d+3}, 0', f'v_sub_f32 v{m}, 0, v{m}', f'v_cvt_pk_bf16_f32 v{d+1}, v{m}, v{d+3}',
                f'v_lshlrev_b32 v{d+2}, 16, v{d+1}', f'v_sub_f32 v{d+2}, v{m}, v{d+2}', f'v_cvt_pk_bf16_f32 v{d}, v{m}, v{d+2}', f'v_mov_b32 v{d+2}, 0']
    pmap = [0, 1, 4, 5, 2, 3, 6, 7]
    def swaps(a, b, n): return [f'v_permlane32_swap_b32 v{a+i}, v{b+i}' for i in range(n)] + [f'v_permlane16_swap_b32 v{a+i}, v{b+i}' for i in range(n)]
    def branch2(k_code, v_code):
        def f():
            u = P.uid()
            P.I(f's_cmp_lt_u32 s{sPP}, 2\ns_cbranch_scc0 L_b{u}v')
            for x in k_code: P.I(x)
            P.I(f's_branch L_b{u}e'); P.label(f'L_b{u}v')
            for x in v_code: P.I(x)
            P.label(f'L_b{u}e')
        return f
    ex_addr = f'''s_lshl_b32 s{sT0}, s{sHH}, 13
        s_add_u32 s{sT0}, s{sT0}, {EX_LDS}
        s_lshr_b32 s{sT1}, s{sPP}, 1
        s_lshl_b32 s{sT1}, s{sT1}, 10
        s_and_b32 s{sT2}, s{sPP}, 1
        s_lshl_b32 s{sT2}, s{sT2}, 3
        s_add_u32 s{sT1}, s{sT1}, s{sT2}
        s_add_u32 s{sT1}, s{sT1}, s{sT0}
        v_lshlrev_b32 v{TT}, 4, v{vLANE}
        v_add_u32 v{aEXH}, s{sT1}, v{TT}
        s_lshl_b32 s{sT1}, s{sPP}, 11
        s_add_u32 s{sT0}, s{sT0}, s{sT1}
        v_add_u32 v{aEXR}, s{sT0}, v{TT}
        s_add_u32 s{sT0}, s{sT0}, 2048
        s_cmp_eq_u32 s{sPP}, 3
        s_cselect_b32 s{sT0}, {DUMMY}, s{sT0}
        v_add_u32 v{aEXW}, s{sT0}, v{TT}'''
    A1 = [lambda: P.wait_lg('cs')] + ax_ops(AXK) + ax_ops(AXV) + [lambda: P.wait_lg('hp')]
    A1 += [f'v_add_f32 v{HA+e}, v{HA+e}, v{HA+4+e}' for e in range(4)] + [f'v_add_f32 v{HA+8+e}, v{HA+8+e}, v{HA+12+e}' for e in range(4)]
    A1 += [f'v_add_f32 v{HA+e}, v{HA+e}, v{HA+8+e}' for e in range(4)]
    A1 += [lambda: P.I(f's_and_b32 s{sT0}, s{sPP}, 1\ns_sub_u32 s{sT0}, 0, s{sT0}\nv_xor_b32 v{ME}, s{sT0}, v{ME}\nv_and_b32 v{ME}, v{ME}, v{mLO}')]
    A2 = [lambda: P.wait_vm('sl')] + negm_ops(M, mLO, BX) + negm_ops(MH, ME, BS)
    A2 += ['s_nop 0', m32(AK, AXK, BX, False), m32(AV, BX, AXV, False), branch2([m16(HA, AXK, BS, False)], [m16(HA, BS, AXV, False)])]
    EK = [f'v_mul_f32 v{AK+v}, v{AK+v}, v{R}' for v in range(16)] + [f'v_cvt_pk_bf16_f32 v{KOP+4+pmap[i]}, v{AK+2*i}, v{AK+2*i+1}' for i in range(8)] + swaps(KOP + 4, KOP + 8, 4)
    vmap = [VOP + 2, VOP + 3, VOP + 8, VOP + 9, VOP + 4, VOP + 5, VOP + 10, VOP + 11]
    EV = [lambda: P.wait_vm('rr')] + [f'v_mul_f32 v{AV+v}, v{AV+v}, v{RR+v}' for v in range(16)] + [f'v_cvt_pk_bf16_f32 v{vmap[i]}, v{AV+2*i}, v{AV+2*i+1}' for i in range(8)] + swaps(VOP + 2, VOP + 8, 4)
    EH = [branch2([f'v_mul_f32 v{HA+v}, v{HA+v}, v{RH}' for v in range(4)], [f'v_mul_f32 v{HA+v}, v{HA+v}, v{SC+v}' for v in range(4)]),
          f'v_cvt_pk_bf16_f32 v{HA+4}, v{HA}, v{HA+1}', f'v_cvt_pk_bf16_f32 v{HA+5}, v{HA+2}, v{HA+3}']
    WR = [lambda: P.I(ex_addr),
          lambda: P.D(f'ds_write_b128 v{aEXW}, v[{KOP+8}:{KOP+11}]', 'x'),
          lambda: P.D(f'ds_write_b64 v{aEXW}, v[{VOP+4}:{VOP+5}] offset:1024', 'x'),
          lambda: P.D(f'ds_write_b64 v{aEXW}, v[{VOP+10}:{VOP+11}] offset:1032', 'x'),
          lambda: P.D(f'ds_write_b64 v{aEXH}, v[{HA+4}:{HA+5}]', 'x')]
    MK = [f'v_lshlrev_b32 v{TT}, 2, v{g4}', f'v_sub_u32 v{TT}, v{i15}, v{TT}']
    for v in range(4):
        for base, dst in ((0, MKC), (16, MKP)):
            MK += [f'v_add_u32 v{dst+v}, {base - v}, v{TT}', f'v_and_b32 v{dst+v}, 0xfffffff1, v{dst+v}', f'v_min_u32 v{dst+v}, 1, v{dst+v}',
                   f'v_sub_u32 v{dst+v}, 0, v{dst+v}', f'v_and_b32 v{dst+v}, {f32(NEG)}, v{dst+v}']
    MK += [lambda: P.I(f's_or_b32 s{sT0}, s{sMT}, s{sPP}\ns_cmp_eq_u32 s{sT0}, 0\ns_cselect_b32 s{sT0}, {f32(NEG)}, 0\n' + '\n'.join(f'v_or_b32 v{MKP0+v}, s{sT0}, v{MKP+v}' for v in range(4)))]
    MK += [f'v_mov_b32 v{ONES+i}, 0x3f803f80' for i in range(4)]
    MK += [f'v_lshlrev_b32 v{vO}, 9, v{g4}', f'v_lshl_add_u32 v{vO}, v{i15}, 4, v{vO}', f'v_subrev_u32 v{m48}, 48, v{vLANE}', f'v_ashrrev_i32 v{m48}, 31, v{m48}',
           f'v_mul_f32 v{RQ}, {f32(qs)}, v{R}', f'v_and_b32 v{RZ}, v{mLO}, v{RQ}']
    XQ = ([lambda: s2_srd(P, cfg)] + s2_xy(P, 'X')) if cfg.early_w else []
    def late():
        mix = []; X = list(XQ); L = EV + EH + WR + MK
        k = max(1, len(L) // (len(X) + 1))
        for i, m in enumerate(L):
            if X and i % k == 0: mix.append(X.pop(0))
            mix.append(m)
        F.add(mix + X)
    H = {1: [st_check, lambda: bar('B2', vm=(('t', 2),), lg=('csw',)), st_loads, lds_reads, dw(2, 6, 'e'), lambda: F.add(A1)],
         4: [rr_loads], cfg.a2pos: [lambda: F.flush(), lambda: F.add(A2 + EK)],
         17: [lambda: F.flush(), lambda: bar('Bx', vm=('e',)), late]}
    for s in range(28):
        gs = 56 + s
        for f in H.get(s, []): f()
        E.rd(gs + AH, 3)
        w = WF + 4 * (gs % NWF); x = XF + 4 * s
        P.wait_lg(('w', gs))
        P.I(m32(AQ, w, x, s == 0))
        end = cfg.a2pos if s < cfg.a2pos else 17 if s < 17 else 28
        b = 0 if s < 2 else max(8, int(F.total() / (end - s) + 3))
        F.emit(b)
        if s % 4 == 3: P.I(m16(CSA, SEL, w, s == 3))
    F.flush()
    cs_write(2)
    stamp(P, cfg, 'loop')
    if cfg.hook_late: cfg.hook_late(P)
    P.lg0(); P.I('s_barrier'); stamp(P, cfg, 'e2')
    P.D(f'ds_read_b128 v[{AXK}:{AXK+3}], v{aCSR} offset:1024', 'cs')
    P.D(f'ds_read_b128 v[{KOP}:{KOP+3}], v{aEXR}', 'e')
    for tt in range(2): P.D(f'ds_read_b64 v[{VOP+6*tt}:{VOP+6*tt+1}], v{aEXR} offset:{1024+8*tt}', 'e')
    P.wait_lg('cs')
    for x in ax_ops(AXK): P.I(x)
    P.I(m32(AQ, AXK, BX, False))
    QOP = XF + 68
    for v in range(0, 16, 2): P.I(f'v_pk_mul_f32 {pr(AQ+v)}, {pr(AQ+v)}, {pr(RZ if v >= 12 else RQ)} op_sel_hi:[1,0]')
    for i in range(8): P.I(f'v_cvt_pk_bf16_f32 v{QOP+pmap[i]}, v{AQ+2*i}, v{AQ+2*i+1}')
    for x in swaps(QOP, QOP + 4, 4): P.I(x)
    S = AK; PP = AV; OB = [AQ, KH]
    mfS = lambda d, a, b, c: f'v_mfma_f32_16x16x32_bf16 v[{d}:{d+3}], v[{a}:{a+3}], v[{b}:{b+3}], v[{c}:{c+3}]'
    P.lg0()
    P.I(mfS(S + 8, KOP + 4, QOP + 4, MKP)); P.I(mfS(S + 12, KOP + 8, QOP + 4, MKC)); P.I(mfS(S + 4, KOP + 4, QOP, MKC)); P.I(mfS(S, KOP, QOP, MKP0))
    mx = [XF + 76, XF + 78]
    order = (1, 0)
    for bb in order:
        s = S + 8 * bb; m = mx[bb]
        P.I(f'''
        v_max3_f32 v{m}, v{s}, v{s+1}, v{s+2}
        v_max3_f32 v{m+1}, v{s+3}, v{s+4}, v{s+5}
        v_max3_f32 v{m}, v{m}, v{s+6}, v{s+7}
        v_max_f32 v{m}, v{m}, v{m+1}
        v_mov_b32 v{m+1}, v{m}
        ''')
    for bb in order: P.I(f'v_permlane16_swap_b32 v{mx[bb]}, v{mx[bb]+1}')
    for bb in order: P.I(f'v_max_f32 v{mx[bb]}, v{mx[bb]}, v{mx[bb]+1}\nv_mov_b32 v{mx[bb]+1}, v{mx[bb]}')
    for bb in order: P.I(f'v_permlane32_swap_b32 v{mx[bb]}, v{mx[bb]+1}')
    for bb in order: P.I(f'v_max_f32 v{mx[bb]}, v{mx[bb]}, v{mx[bb]+1}')
    for bb in order:
        s = S + 8 * bb; o = OB[bb]; p = PP + 4 * bb
        for v in range(0, 8, 2): P.I(f'v_pk_add_f32 {pr(s+v)}, {pr(s+v)}, {pr(mx[bb])} op_sel_hi:[1,0] neg_lo:[0,1] neg_hi:[0,1]')
        for v in range(8): P.I(f'v_exp_f32 v{s+v}, v{s+v}')
        for v in range(4): P.I(f'v_cvt_pk_bf16_f32 v{p+v}, v{s+2*v}, v{s+2*v+1}')
        P.I(m16(o + 8, ONES, p, True))
        for tt in range(2): P.I(m16(o + 4 * tt, VOP + 6 * tt + 2 * bb, p, True))
    for bb in order:
        o = OB[bb]
        P.I(f'v_rcp_f32 v{o+8}, v{o+8}')
        P.I(f'v_and_b32 v{o+10}, v{m48}, v{o+8}')
        for v in (0, 2): P.I(f'v_pk_mul_f32 {pr(o+v)}, {pr(o+v)}, {pr(o+8)} op_sel_hi:[1,0]')
        for v in (4, 6): P.I(f'v_pk_mul_f32 {pr(o+v)}, {pr(o+v)}, {pr(o+10)} op_sel_hi:[1,0]')
        for v in range(4): P.I(f'v_cvt_pk_bf16_f32 v{PP+8+4*bb+v}, v{o+2*v}, v{o+2*v+1}')
        P.V(f'buffer_store_dwordx4 v[{PP+8+4*bb}:{PP+8+4*bb+3}], v{vO}, s[{sWS}:{sWS+3}], s{sOB} offen offset:{256*bb}{cfg.sc}', 'st')
    stamp(P, cfg, 'end')
    stamp_flush(P, cfg)
    P.I(f's_branch {after}')
```

```python
from gen import *

def check_flag(P, vreg, soff, expect, lab):
    P.I(f'''
    v_readfirstlane_b32 s{sT1}, v{vreg}
    s_cmp_ge_u32 s{sT1}, {expect}
    s_cbranch_scc1 L_ok{lab}
    s_mov_b32 s{sT2}, {SPIN}
    L_sp{lab}:
    buffer_load_dword v{vreg}, off, s[{sWS}:{sWS+3}], s{soff} sc1
    s_sub_u32 s{sT2}, s{sT2}, 1
    s_cbranch_scc1 L_ok{lab}
    s_waitcnt vmcnt(0)
    v_readfirstlane_b32 s{sT1}, v{vreg}
    s_cmp_ge_u32 s{sT1}, {expect}
    s_cbranch_scc0 L_sp{lab}
    L_ok{lab}:
    ''')

sM2, sN2 = 90, 91
sCA, sCB = 92, 93
vPA = 252

def stage2_ids(P):
    P.I(f'''
    s_mul_i32 s{sT0}, s{sJ}, 37
    s_lshr_b32 s{sT0}, s{sT0}, 8
    s_mul_i32 s{sT1}, s{sT0}, 7
    s_sub_u32 s{sN2}, s{sJ}, s{sT1}
    s_lshl_b32 s{sM2}, s{sXCD}, 2
    s_add_u32 s{sM2}, s{sM2}, s{sT0}
    s_lshr_b32 s{sT0}, s{sM2}, 1
    s_and_b32 s{sT0}, s{sT0}, 15
    s_lshl_b32 s{sT0}, s{sT0}, 7
    s_add_u32 s{sCA}, s{sT0}, {CNT_OFF}
    s_add_u32 s{sCB}, s{sT0}, {CNT_OFF + 2048}
    ''')

NOB0 = [False]
def pollA_prefetch(P):
    svc_load(P, vPA, sWS, f's{sCA}')
    if NOB0[0]:
        P.I(f's_add_u32 s95, s{sCA}, 4096'); svc_load(P, vFLAG, sWS, 's95')

XA, YA, ZA = 0, 65536, 131072
GO_LDS = 163824
vWD2 = 249; sLD2, sRW2 = 98, 99
sROT = [0, 1, 3, 13, 14, 15, 22, 23]
def s2_early_setup(P, t):
    P.I(f'''
    s_lshr_b32 s{sT2}, s{sWAVE}, 1
    s_and_b32 s{sT1}, s{sWAVE}, 1
    v_lshrrev_b32 v{t}, 3, v{vLANE}
    s_lshl_b32 s{sT0}, s{sT1}, 3
    v_add_u32 v{t}, s{sT0}, v{t}
    v_mul_u32_u24 v{t}, {XB}, v{t}
    v_lshrrev_b32 v{t+1}, 2, v{vLANE}
    v_and_b32 v{t+1}, 4, v{t+1}
    v_xor_b32 v{t+1}, v{t+1}, v{vLANE}
    v_and_b32 v{t+1}, 7, v{t+1}
    v_lshl_add_u32 v{vWD2}, v{t+1}, 4, v{t}
    s_lshl_b32 s{sT0}, s{sN2}, 7
    v_add_u32 v{vWD2}, s{sT0}, v{vWD2}
    s_lshl_b32 s{sT0}, s{sT2}, 14
    s_lshl_b32 s{sT1}, s{sT1}, 10
    s_add_u32 s{sLD2}, s{sT0}, s{sT1}
    s_mul_i32 s{sRW2}, s{sT2}, {448*XB}
    ''')
HROT = [False]
sN2R = 25
def s2_srd(P, cfg):
    HROT[0] = cfg.hrot
    srd(P, sW2, 16, 1792 * XB)
    if cfg.prof: s2_tables(P, cfg)
def s2_tables(P, cfg):
    if cfg.norot2: P.I(f's_mov_b32 s{sT0}, 0')
    else: P.I(f's_and_b32 s{sT0}, s{sM2}, 3\ns_lshl_b32 s{sT0}, s{sT0}, 1\ns_and_b32 s{sT1}, s{sXCD}, 1\ns_add_u32 s{sT0}, s{sT0}, s{sT1}\ns_lshl_b32 s{sT0}, s{sT0}, 11')
    for i in range(8):
        P.I(f's_add_u32 s{sROT[i]}, s{sT0}, {2048*i}\ns_and_b32 s{sROT[i]}, s{sROT[i]}, 0x3fff')
        P.I(f's_and_b32 s{sT1}, s{sROT[i]}, 0x2000\ns_mul_i32 s{sT1}, s{sT1}, 3\ns_add_u32 s{sT1}, s{sT1}, s{sROT[i]}\ns_mul_i32 s{sT1}, s{sT1}, 7\ns_add_u32 s{sRO8[i]}, s{sT1}, s{sRW2}')
W2FL = ['']
sRO8 = [4, 5, 6, 7, 10, 11, 12, 24]
def s2_dma_rot(P, srdn, rowreg, row0, area_reg_off, i, tag, split=0, dk=0):
    P.I(f's_add_u32 m0, s{sROT[i]}, s{area_reg_off}')
    if dk: P.I(f's_sub_u32 m0, m0, {dk*16384}'); row0 -= dk * 448
    if split:
        assert split == 192
        so = sRO8[i]
        if row0:
            P.I(f's_add_u32 s{sT0}, s{so}, {(row0 * XB) & 0xffffffff:#x}'); so = sT0
    else:
        P.I(f's_mul_i32 s{sT0}, s{sROT[i]}, 7\ns_add_u32 s{sT0}, s{sT0}, s{rowreg}'); so = sT0
        assert row0 == 0
    P.V(f'buffer_load_dwordx4 v{vWD2}, s[{srdn}:{srdn+3}], s{so} offen{W2FL[0]} lds', tag)
sLDY = 89
def s2_xy(P, which, dk=0):
    if which == 'X': return [lambda i=i: s2_dma_rot(P, sW2, sRW2, 0, sLD2, i, 'X', split=192, dk=dk) for i in range(8)]
    def f(i):
        if i == 0: P.I(f's_add_u32 s{sLDY}, s{sLD2}, {YA}')
        s2_dma_rot(P, sW2, sRW2, 64, sLDY, i, 'Y', split=192, dk=dk)
    return [lambda i=i: f(i) for i in range(8)]
EA = [0, 16, 4, 20]; EB = [8, 12, 24]

sPFO = 25
def dpf_setup(P):
    P.I(f'''
    s_lshl_b32 s{sT0}, s{sJ}, 3
    s_add_u32 s{sT0}, s{sT0}, s{sWAVE}
    s_mul_i32 s{sT1}, s{sT0}, 1561
    s_lshr_b32 s{sT1}, s{sT1}, 16
    s_mul_i32 s{sT2}, s{sT1}, 42
    s_sub_u32 s{sT2}, s{sT0}, s{sT2}
    s_mul_i32 s{sT1}, s{sT1}, {448*XB}
    s_cmp_lt_u32 s{sT2}, 28
    s_mov_b32 s{sPFO}, {128*XB}
    s_cselect_b32 s{sPFO}, s{sPFO}, {384*XB - 28*4096}
    s_lshl_b32 s{sT2}, s{sT2}, 12
    s_add_u32 s{sPFO}, s{sPFO}, s{sT2}
    s_add_u32 s{sPFO}, s{sPFO}, s{sT1}
    s_sub_u32 s{sT1}, s{sT0}, 168
    s_mul_i32 s{sT1}, s{sT1}, 5120
    s_cmp_lt_u32 s{sT0}, 168
    s_cselect_b32 s{sPFO}, s{sPFO}, s{sT1}
    s_cselect_b32 s{sWO}, s16, s8
    s_cselect_b32 s{sWO+1}, s17, s9
    s_mov_b32 s{sWO+2}, {1792*XB}
    s_cselect_b32 s{sWO+2}, s{sWO+2}, {448*XB}
    s_mov_b32 s{sWO+3}, 0x20000
    ''')
def dpf(P, k, dst, voff):
    if k == 4: P.I(f's_add_u32 s{sPFO}, s{sPFO}, 1024')
    P.V(f'buffer_load_dwordx4 v[{dst}:{dst+3}], v{voff}, s[{sWO}:{sWO+3}], s{sPFO} offen offset:{1024*min(k,3)}', 'pf')

def helper(P, cfg):
    sI, sQ, sA, sBk = 74, 75, 76, 77
    vL = 3; vD = 4
    srd(P, sWO, 8, 448 * XB)
    P.I(f'''
    s_sub_u32 s{sI}, s{sJ}, 28
    s_lshl_b32 s{sI}, s{sI}, 3
    s_add_u32 s{sI}, s{sI}, s{sWAVE}
    v_lshlrev_b32 v{vL}, 7, v{vLANE}
    ''')
    nd = [0]
    def ld(srdn, so, fl=''):
        P.I(f'buffer_load_dword v{vD + nd[0]}, v{vL}, s[{srdn}:{srdn+3}], s{so} offen{fl}'); nd[0] += 1
    def wblk(k):
        u = P.uid()
        P.I(f's_add_u32 s{sQ}, s{sI}, {32*k}')
        lo, hi = 32 * k, 32 * k + 31
        def seg(base, per, boff):
            P.I(f'''
            s_sub_u32 s{sA}, s{sQ}, {base}
            s_mul_i32 s{sBk}, s{sA}, {-(-65536 // per)}
            s_lshr_b32 s{sBk}, s{sBk}, 16
            s_mul_i32 s{sT0}, s{sBk}, {per}
            s_sub_u32 s{sA}, s{sA}, s{sT0}
            s_lshl_b32 s{sA}, s{sA}, 13
            s_mul_i32 s{sBk}, s{sBk}, {448*XB}
            s_add_u32 s{sA}, s{sA}, s{sBk}
            s_add_u32 s{sA}, s{sA}, {128*XB + boff*8192}
            ''')
        segs = [(0, 56, 14, 14), (56, 112, 14, 0), (112, 140, 7, 28)]
        act = [x for x in segs if x[0] <= hi and x[1] > lo]
        for n, (a, b, per, boff) in enumerate(act):
            if b <= hi: P.I(f's_cmp_lt_u32 s{sQ}, {b}\ns_cbranch_scc0 L_h{u}_{n}')
            seg(a, per, boff)
            P.I(f'buffer_load_dword v{vD + nd[0]}, v{vL}, s[{sW2}:{sW2+3}], s{sA} offen')
            P.I(f's_branch L_h{u}_e')
            if b <= hi: P.label(f'L_h{u}_{n}')
        if hi >= 140:
            P.I(f's_sub_u32 s{sA}, s{sQ}, 140\ns_lshl_b32 s{sA}, s{sA}, 13')
            P.I(f'buffer_load_dword v{vD + nd[0]}, v{vL}, s[{sWO}:{sWO+3}], s{sA} offen')
        P.label(f'L_h{u}_e'); nd[0] += 1
    def waitflag(off, expect):
        P.I(f'''
        v_lshrrev_b32 v2, 5, v{vLANE}
        v_lshlrev_b32 v2, 7, v2
        s_lshl_b32 s{sT0}, s{sXCD}, 8
        s_add_u32 s{sT0}, s{sT0}, {off}
        v_add_u32 v2, s{sT0}, v2
        v_mov_b32 v{vPA}, 0
        ''')
        u = svc_begin(P); spin(P, vPA, sWS, '0', expect, 2); svc_end(P, u)
        P.I('s_barrier')
    for k in range(2): wblk(k)
    tb = 78
    P.I(f's_mul_i32 s{tb}, s{sXCD}, {8*112*1024}')
    waitflag(CNT_OFF, 8)
    for k in range(2):
        P.I(f'''
        s_add_u32 s{sQ}, s{sI}, {32*k}
        s_lshr_b32 s{sA}, s{sQ}, 3
        s_mul_i32 s{sA}, s{sA}, {112*1024}
        s_bfe_u32 s{sBk}, s{sQ}, 0x20001
        s_mul_i32 s{sBk}, s{sBk}, {28*1024}
        s_add_u32 s{sA}, s{sA}, s{sBk}
        s_and_b32 s{sBk}, s{sQ}, 1
        s_lshl_b32 s{sBk}, s{sBk}, 14
        s_add_u32 s{sA}, s{sA}, s{sBk}
        s_add_u32 s{sA}, s{sA}, s{tb}
        ''')
        ld(sWS, sA, ' sc1')
    for k in range(2, 6): wblk(k)
    waitflag(CNT_OFF + 2048, 16)
    P.I(f'''
    s_lshr_b32 s{sQ}, s{sI}, 2
    s_and_b32 s{sBk}, s{sI}, 3
    s_mul_i32 s{sA}, s{sQ}, {112*1024}
    s_mul_i32 s{sT0}, s{sBk}, {28*1024}
    s_add_u32 s{sA}, s{sA}, s{sT0}
    s_add_u32 s{sA}, s{sA}, s{tb}
    s_add_u32 s{sA}, s{sA}, {8*1024}
    ''')
    ld(sWS, sA, ' sc1')
    P.I(f's_add_u32 s{sA}, s{sA}, {16*1024}\ns_mov_b64 exec, 0xffffffff')
    P.I('s_lshr_b64 exec, -1, 32')
    ld(sWS, sA, ' sc1')
    P.I(f'''
    s_mov_b64 exec, -1
    s_lshl_b32 s{sA}, s{sXCD}, 3
    s_add_u32 s{sA}, s{sA}, s{sQ}
    s_lshl_b32 s{sA}, s{sA}, 15
    s_lshl_b32 s{sT0}, s{sBk}, 13
    s_add_u32 s{sA}, s{sA}, s{sT0}
    s_add_u32 s{sA}, s{sA}, {O_OFF}
    ''')
    ld(sWS, sA, ' sc1')

def stage2_v2(P, cfg, endlabel):
    global spin
    if 's2only' in cfg.exp: spin = lambda *a, **k: None
    sKQ, sTT, sHB, sOB2, sLD, sRW, sRO = 76, 77, 78, 79, sLD2, sRW2, 74
    vWD, vH = vWD2, 3; vA = {XA: [4, 5], YA: [6, 7], ZA: [8, 9]}; vO = 10; vRW, vRR, vSW, vSR = 11, 12, 13, 14; vT = 15
    XR, B2R = 20, 24
    WL = 28
    AM, AS = 52, 84
    HR = 116
    NH = 33
    vP = 251
    P.I(f'''
    s_cmp_ge_u32 s{sJ}, {0 if 's1only' in cfg.exp else 28}
    s_cbranch_scc1 L_nos2
    s_lshr_b32 s{sKQ}, s{sWAVE}, 1
    s_and_b32 s{sTT}, s{sWAVE}, 1
    s_lshl_b32 s{sT1}, s{sTT}, 10
    s_mul_i32 s{sRO}, s{sKQ}, {112*XB}
    ''')
    if not cfg.early_w:
        s2_early_setup(P, vT); s2_srd(P, cfg)
        P.I(f's_lshl_b32 s{sT1}, s{sTT}, 10')
    srd(P, sWO, 8, 448 * XB)
    def pubB():
        u = svc_begin(P)
        P.I(f'''
        s_lshl_b32 s{sT0}, s{sMT}, 7
        s_add_u32 s{sT0}, s{sT0}, {CNT_OFF + 2048}
        s_lshr_b32 s{sT1}, s{sJ}, 4
        s_lshl_b32 s{sT1}, s{sT1}, {12 if cfg.osep else 31}
        s_lshl_b32 s{sT1}, s{sT1}, {0 if cfg.osep else 1}
        s_add_u32 s{sT0}, s{sT0}, s{sT1}
        v_mov_b32 v{vFLAG}, 1
        s_mov_b64 exec, 1
        buffer_atomic_add v{vFLAG}, off, s[{sWS}:{sWS+3}], s{sT0} sc1
        s_mov_b64 exec, -1
        ''')
        svc_end(P, u)
    def dma(srdn, rowreg, rowoff, lds_imm, tag):
        if 'now' in cfg.exp: return
        P.I(f's_add_u32 m0, s{sLD}, {lds_imm}')
        P.I(f's_add_u32 s{sT0}, s{rowreg}, {rowoff}')
        P.V(f'buffer_load_dwordx4 v{vWD}, s[{srdn}:{srdn+3}], s{sT0} offen lds', tag)
    steps = []
    for r in range(4):
        for u in range(4): steps.append(('h', EA[r] + u, XA if r < 2 else YA, 16 * (4 * (r % 2) + u), 1024))
    for r, k0 in enumerate((8, 24)):
        for u in range(4): steps.append(('h', k0 + u, XA, 16 * (4 * r + u), 1024))
    for u in range(4): steps.append(('h', 12 + u, ZA, 16 * u, 1024))
    for e in range(8): steps.append(('o', e, YA, 28 * (e >> 1) + 8 * (e & 1), 2048))
    def dma_group(lo, hi, tag):
        if 'now' in cfg.exp: return []
        if tag in ('X', 'Y'): return s2_xy(P, tag)
        if tag == 'X2': return [lambda i=i: s2_dma_rot(P, sW2, sRW, 16 * 8, sLD, i, tag, split=192) for i in range(8)]
        def y2(i):
            if not cfg.xlds: return s2_dma_rot(P, sWO, sRO, 0, sLDY, i, tag)
            u = P.uid()
            P.I(f's_cmp_eq_u32 s{sROT[i]}, 0x3800\ns_cbranch_scc1 L_xd{u}')
            s2_dma_rot(P, sWO, sRO, 0, sLDY, i, tag)
            P.I(f's_branch L_xe{u}\nL_xd{u}:\ns_add_u32 m0, s{sLDY}, 0x3800\ns_lshl_b32 s{sT0}, s{sM2}, 2\ns_add_u32 s{sT0}, s{sT0}, s{sKQ}\ns_mul_i32 s{sT0}, s{sT0}, {16*XB}')
            P.I(f'buffer_load_dwordx4 v{vWD2}, s[{sX}:{sX+3}], s{sT0} offen lds\nL_xe{u}:')
        return [lambda i=i: y2(i) for i in range(8)]
    sLZ = 75
    P.I(f's_lshl_b32 s{sT0}, s{sKQ}, 13\ns_add_u32 s{sLZ}, s{sT0}, s{sT1}')
    def dma_z1(i):
        kind, ks, area, row, _ = steps[i]
        P.I(f's_add_u32 m0, s{sLZ}, {area + row*128}')
        P.I(f's_add_u32 s{sT0}, s{sRW}, {16*ks*XB}')
        P.V(f'buffer_load_dwordx4 v{vWD}, s[{sW2}:{sW2+3}], s{sT0} offen{W2FL[0]} lds', 'Z')
    if not cfg.early_w:
        for f in dma_group(0, 8, 'X'): f()
    stamp(P, cfg, 'Xiss')
    P.I(f'''
    v_lshlrev_b32 v{vH}, 4, v{vLANE}
    s_lshl_b32 s{sT0}, s{sM2}, 1
    s_add_u32 s{sT0}, s{sT0}, s{sTT}
    s_mul_i32 s{sHB}, s{sT0}, {112*1024}
    s_mul_i32 s{sT1}, s{sKQ}, {28*1024}
    s_add_u32 s{sHB}, s{sHB}, s{sT1}
    s_lshl_b32 s{sOB2}, s{sT0}, 15
    s_lshl_b32 s{sT1}, s{sKQ}, 13
    s_add_u32 s{sOB2}, s{sOB2}, s{sT1}
    s_add_u32 s{sOB2}, s{sOB2}, {O_OFF}
    s_lshl_b32 s{sTT+17}, s{sT0}, 5
    ''')
    sROW = sTT + 17
    def hload(i):
        kind, ks, _, _, _ = steps[i]
        base = sHB if kind == 'h' else sOB2
        go = ks * 1024
        d = HR + 4 * (i % NH)
        if False:
            k0 = steps[i & ~7][1]
            P.I(f'''
            s_add_u32 s{sT1}, s{sN2R}, {(i & 7) * 2048}
            s_and_b32 s{sT1}, s{sT1}, 0x3fff
            s_and_b32 s{sT2}, s{sT1}, 0x2000
            s_mul_i32 s{sT2}, s{sT2}, 3
            s_add_u32 s{sT1}, s{sT1}, s{sT2}
            s_lshr_b32 s{sT1}, s{sT1}, 1
            s_add_u32 s{sT1}, s{sT1}, s{base}
            ''')
            if k0 * 1024 > 4095: P.I(f's_add_u32 s{sT1}, s{sT1}, {k0*1024}'); k0 = 0
            P.V(f'buffer_load_dwordx4 v[{d}:{d+3}], v{vH}, s[{sWS}:{sWS+3}], s{sT1} offen offset:{k0*1024}{cfg.scl}', ('h', i)); return
        if 'noh' in cfg.exp: return
        if 'hhot' in cfg.exp:
            P.V(f'buffer_load_dwordx4 v[{d}:{d+3}], v{vH}, s[{sW2}:{sW2+3}], 0 offen offset:{go & 4095}{cfg.scl}', ('h', i)); return
        if 'hplain' in cfg.exp:
            P.I(f's_add_u32 s{sT1}, s{base}, {go & ~4095}')
            P.V(f'buffer_load_dwordx4 v[{d}:{d+3}], v{vH}, s[{sWS}:{sWS+3}], s{sT1} offen offset:{go & 4095}', ('h', i)); return
        if go & ~4095:
            P.I(f's_add_u32 s{sT1}, s{base}, {go & ~4095}')
            P.V(f'buffer_load_dwordx4 v[{d}:{d+3}], v{vH}, s[{sWS}:{sWS+3}], s{sT1} offen offset:{go & 4095}{cfg.scl}', ('h', i))
        else:
            P.V(f'buffer_load_dwordx4 v[{d}:{d+3}], v{vH}, s[{sWS}:{sWS+3}], s{base} offen offset:{go}{cfg.scl}', ('h', i))
    def share_pf(part):
        if cfg.nopf2: return
        ks = [st for st in steps[(0 if part == 'A' else 16):(16 if part == 'A' else 36)]]
        nb = len(ks)
        P.I(f'''
        v_lshrrev_b32 v{vT+3}, 3, v{vLANE}
        v_mul_u32_u24 v{vT+3}, 7, v{vT+3}
        v_add_u32 v{vT+3}, s{sN2}, v{vT+3}
        ''')
        if part == 'A':
            P.I(f'''
            v_and_b32 v{vT+4}, 8, v{vT+3}
            v_add_u32 v{vT+4}, v{vT+4}, v{vT+3}
            v_lshlrev_b32 v{vT+4}, 10, v{vT+4}
            v_add_u32 v{vT+4}, s{sHB}, v{vT+4}
            ''')
        else:
            P.I(f'''
            v_and_b32 v{vT+4}, 8, v{vT+3}
            v_add_u32 v{vT+4}, v{vT+4}, v{vT+3}
            v_add_u32 v{vT+4}, 8, v{vT+4}
            v_lshlrev_b32 v{vT+4}, 10, v{vT+4}
            v_add_u32 v{vT+4}, s{sHB}, v{vT+4}
            s_sub_u32 s{sT1}, s{sOB2}, {12*1024}
            v_lshlrev_b32 v{vP}, 10, v{vT+3}
            v_add_u32 v{vP}, s{sT1}, v{vP}
            v_cmp_gt_u32 vcc, 12, v{vT+3}
            v_cndmask_b32 v{vT+4}, v{vP}, v{vT+4}, vcc
            ''')
        P.I(f'''
        v_and_b32 v{vP}, 7, v{vLANE}
        v_lshl_add_u32 v{vT+4}, v{vP}, 7, v{vT+4}
        v_cmp_gt_u32 vcc, {nb}, v{vT+3}
        s_and_saveexec_b64 s[96:97], vcc
        ''')
        P.V(f'buffer_load_dword v{vP}, v{vT+4}, s[{sWS}:{sWS+3}], 0 offen sc1', 'pf')
        P.I('s_mov_b64 exec, s[96:97]')
    if cfg.ldsword:
        P.I(f'v_mov_b32 v{vT}, {GO_LDS}\nv_mov_b32 v{vT+1}, 1')
        u = svc_begin(P); spin(P, vPA, sWS, f's{sCA}', 8)
        P.I(f'ds_write_b32 v{vT}, v{vT+1}')
        svc_end(P, u)
        P.I(f'''
        s_mov_b32 s{sT2}, {SPIN * 8}
        L_gow:
        ds_read_b32 v{vT+1}, v{vT}
        s_sub_u32 s{sT2}, s{sT2}, 1
        s_cbranch_scc1 L_gox
        s_waitcnt lgkmcnt(0)
        v_readfirstlane_b32 s{sT1}, v{vT+1}
        s_cmp_eq_u32 s{sT1}, 1
        s_cbranch_scc0 L_gow
        L_gox:
        ''')
    else:
        u = svc_begin(P); spin(P, vPA, sWS, f's{sCA}', 8)
        if cfg.nob0:
            P.I(f's_add_u32 s95, s{sCA}, 4096'); spin(P, vFLAG, sWS, 's95', 8)
        svc_end(P, u)
        P.I('s_barrier')
    stamp(P, cfg, 'Aok')
    share_pf('A')
    Yq = [] if cfg.early_y else dma_group(8, 16, 'Y')
    if cfg.early_y: P.I(f's_add_u32 s{sLDY}, s{sLD2}, {YA}')
    hq = list(range(36))
    P.vm.issue('old')
    P.vm.q.remove('old'); P.vm.q.insert(0, 'old')
    for i in range(cfg.lh): hload(hq.pop(0))
    if not cfg.nob0:
        assert cfg.lh <= 8
        P.I(f's_add_u32 s95, s{sCA}, 4096')
        svc_load(P, vP, sWS, 's95')
    stamp(P, cfg, 'iss')
    srd(P, sOUT, 20, 2048 * XB); srd(P, sB2, 18, 896)
    P.I(f'''
    v_lshrrev_b32 v{vT}, 5, v{vLANE}
    v_lshlrev_b32 v{vT}, 2, v{vT}
    v_bfe_u32 v{vT+1}, v{vLANE}, 2, 2
    v_add_u32 v{vT}, v{vT}, v{vT+1}
    v_lshlrev_b32 v{vT}, 7, v{vT}
    v_and_b32 v{vT+1}, 16, v{vLANE}
    v_lshlrev_b32 v{vT+1}, 1, v{vT+1}
    v_and_b32 v{vT+2}, 3, v{vLANE}
    v_lshl_add_u32 v{vT+1}, v{vT+2}, 3, v{vT+1}
    v_and_b32 v{vT+2}, 8, v{vLANE}
    v_lshlrev_b32 v{vT+2}, 3, v{vT+2}
    v_xor_b32 v{vT+1}, v{vT+1}, v{vT+2}
    v_add_u32 v{vT}, v{vT}, v{vT+1}
    s_lshl_b32 s{sT0}, s{sKQ}, 5
    v_xor_b32 v{vT}, s{sT0}, v{vT}
    s_lshl_b32 s{sT0}, s{sKQ}, 14
    v_add_u32 v{vA[XA][0]}, s{sT0}, v{vT}
    v_xor_b32 v{vA[XA][1]}, 64, v{vA[XA][0]}
    v_add_u32 v{vA[YA][0]}, {YA}, v{vA[XA][0]}
    v_add_u32 v{vA[YA][1]}, {YA}, v{vA[XA][1]}
    s_lshl_b32 s{sT1}, s{sKQ}, 13
    s_add_u32 s{sT1}, s{sT1}, {ZA}
    v_add_u32 v{vA[ZA][0]}, s{sT1}, v{vT}
    v_xor_b32 v{vA[ZA][1]}, 64, v{vA[ZA][0]}
    v_and_b32 v{vT+1}, 31, v{vLANE}
    v_add_u32 v{vT+1}, s{sROW}, v{vT+1}
    v_mul_u32_u24 v{vT+1}, {XB}, v{vT+1}
    v_lshrrev_b32 v{vT+2}, 5, v{vLANE}
    v_lshlrev_b32 v{vT+2}, 4, v{vT+2}
    s_lshl_b32 s{sT1}, s{sN2}, 7
    s_lshl_b32 s{sT2}, s{sKQ}, 5
    s_add_u32 s{sT1}, s{sT1}, s{sT2}
    v_add_u32 v{vT+2}, s{sT1}, v{vT+2}
    v_add_u32 v{vO}, v{vT+1}, v{vT+2}
    ''')
    vMW = [None, 11, 12, 13]; vRR = 14; vSW = [None, 248, 250, 2]; vSR, vSR2 = 18, 19
    P.I(f's_mul_i32 s{sT1}, s{sTT}, 6144\nv_add_u32 v{vT}, s{sT1}, v{vH}\nv_add_u32 v{vRR}, s{sT0}, v{vT}')
    for l in (1, 2, 3):
        P.I(f's_xor_b32 s{sT2}, s{sKQ}, {l}\ns_lshl_b32 s{sT2}, s{sT2}, 14\ns_add_u32 s{sT2}, s{sT2}, {2048*(l-1)}\nv_add_u32 v{vMW[l]}, s{sT2}, v{vT}')
    def s_addr():
        P.I(f's_lshl_b32 s{sT1}, s{sTT}, 12\ns_add_u32 s{sT1}, s{sT1}, {ZA}\nv_add_u32 v{vT}, s{sT1}, v{vH}')
        for l in (1, 2):
            P.I(f's_xor_b32 s{sT2}, s{sKQ}, {l}\ns_lshl_b32 s{sT2}, s{sT2}, 13\ns_add_u32 s{sT2}, s{sT2}, {2048*(l-1)}\nv_add_u32 v{vSW[l]}, s{sT2}, v{vT}')
        P.I(f's_lshl_b32 s{sT2}, s{sKQ}, 13\nv_add_u32 v{vSR}, s{sT2}, v{vT}')
        P.I(f's_lshl_b32 s{sT1}, s{sTT}, 11\ns_add_u32 s{sT1}, s{sT1}, 12288\nv_add_u32 v{vT}, s{sT1}, v{vH}')
        P.I(f's_xor_b32 s{sT2}, s{sKQ}, 3\ns_lshl_b32 s{sT2}, s{sT2}, 14\nv_add_u32 v{vSW[3]}, s{sT2}, v{vT}')
        P.I(f's_lshl_b32 s{sT2}, s{sKQ}, 14\nv_add_u32 v{vSR2}, s{sT2}, v{vT}')
    def pairs(v):
        if cfg.jsplit and v >= 28:
            g0 = 20 if v < 28 else 28; r = v - g0
            return [(g0 + 2 * (r % 4), 1 if r < 4 else 0), (g0 + 2 * (r % 4) + 1, 1 if r < 4 else 0)]
        return [(v, 0), (v, 1)]
    def trr(i):
        dst = WL + 8 * (i % 3)
        for n, (k, j) in enumerate(pairs(i)):
            _, _, area, row, dl = steps[k]
            P.D(f'ds_read_b64_tr_b16 v[{dst+4*n}:{dst+4*n+1}], v{vA[area][j]} offset:{row*128}', ('wl', i))
            P.D(f'ds_read_b64_tr_b16 v[{dst+4*n+2}:{dst+4*n+3}], v{vA[area][j]} offset:{row*128+dl}', ('wl', i))
    if cfg.nob0:
        P.vm.q.remove('old')
    else:
        u = svc_begin(P); spin(P, vP, sWS, 's95', 8); svc_end(P, u)
        n = len(P.vm.q) - 1
        P.vm.q.remove('old')
        P.I(f's_waitcnt vmcnt({n})')
        P.I('s_barrier'); stamp(P, cfg, 'b0')
        pubB()
    trr(0); trr(1)
    seen = set()
    pbc = cfg.pb_check
    H = lambda k: (cfg.pbo if (k >= 28 and cfg.osep) else cfg.pb2 if (k >= 24 and not cfg.noa2) else pbc if k >= 16 else 0, 'h', lambda: hload(k), k)
    order = []
    for k in range(36):
        if k == cfg.ypos: order += [(0, 'Y', f) for f in Yq]
        if k == 16:
            order += [(0, 'Z', lambda k=k2: dma_z1(k)) for k2 in range(24, 28)]
            order += [(6, 'X2', f) for f in dma_group(16, 24, 'X2')]
        if k == (28 if cfg.noa2 else 24): order += [(14, 'Y2', f) for f in dma_group(28, 36, 'Y2')]
        if k in hq: order.append(H(k))
    ptr = [0]
    ops = order
    def issue_next(i):
        order[ptr[0]][2](); ptr[0] += 1
    def wr(acc, regs, l):
        for hf in range(2):
            r = acc + 8 * l + 4 * hf
            P.D(f'ds_write_b128 v{regs[l]}, v[{r}:{r+3}] offset:{1024*hf}', 'rw')
    RD = HR + 12
    XF, BF, G = HR + 36, HR + 44, HR + 52
    pr = lambda r: f'v[{r}:{r+1}]'
    for i in range(36):
        kind = steps[i][0]
        a = AM if kind == 'h' else AS
        if i in (6, 14, 26):
            P.lg0()
            need = {6: ('Y',), 14: ('Z', 'X2'), 26: ('Y2',)}[i]
            while any(o[1] in need for o in order[ptr[0]:]): issue_next(i)
            stamp(P, cfg, f'p@{i}')
            P.wait_vm(*need)
            stamp(P, cfg, f'w@{i}')
            P.I('s_barrier'); stamp(P, cfg, f'b@{i}')
            if i == 6 and cfg.nob0: pubB()
        if i == cfg.pb_check - 3:
            P.I(f's_add_u32 s95, s{sCA}, {2048 if cfg.noa2 else 6144}'); svc_load(P, vP, sWS, 's95')
        if i == cfg.pb_check:
            u = svc_begin(P); spin(P, vP, sWS, 's95', 16 if (cfg.noa2 and not cfg.osep) else 8); svc_end(P, u)
            P.I('s_barrier')
            stamp(P, cfg, 'Bpre')
            if not cfg.xlds: P.V(f'buffer_load_dwordx4 v[{XR}:{XR+3}], v{vO}, s[{sX}:{sX+3}], 0 offen', 'xr')
            P.V(f'buffer_load_dwordx4 v[{B2R}:{B2R+3}], v{vT+2}, s[{sB2}:{sB2+3}], 0 offen', 'xr')
        if i == cfg.pb2 - 3 and not cfg.noa2: svc_load(P, vP, sWS, f's{sCB}')
        if i == cfg.pb2 and not cfg.noa2:
            u = svc_begin(P); spin(P, vP, sWS, f's{sCB}', 16); svc_end(P, u)
            P.I('s_barrier')
            stamp(P, cfg, 'Bok')
        if cfg.osep and i == cfg.pbo - 3:
            P.I(f's_add_u32 s95, s{sCA}, 6144'); svc_load(P, vP, sWS, 's95')
        if cfg.osep and i == cfg.pbo:
            u = svc_begin(P); spin(P, vP, sWS, 's95', 8); svc_end(P, u)
            P.I('s_barrier')
        if i == cfg.bmpos:
            P.wait_lg('rw'); P.I('s_barrier'); stamp(P, cfg, 'bm')
            for k in range(6):
                P.D(f'ds_read_b128 v[{RD+4*k}:{RD+4*k+3}], v{vRR} offset:{1024*k}', 'rr')
        cnt = 0
        while cnt < cfg.quota(i) and ptr[0] + cnt < len(order) and order[ptr[0] + cnt][0] <= i: cnt += 1
        quota = [(cnt + 1) // 2, cnt // 2]
        if i + 2 < 36: trr(i + 2)
        P.wait_lg(('wl', i))
        w = WL + 8 * (i % 3)
        for n, (k, jj) in enumerate(pairs(i)):
            while any(o[1] == 'h' and o[3] == k for o in order[ptr[0]:]): issue_next(i)
            P.wait_vm(('h', k))
            b = HR + 4 * (k % NH); j = n
            c = f'v[{a+16*jj}:{a+16*jj+15}]' if (kind, jj) in seen else '0'
            seen.add((kind, jj))
            P.I(f'v_mfma_f32_32x32x16_bf16 v[{a+16*jj}:{a+16*jj+15}], v[{w+4*n}:{w+4*n+3}], v[{b}:{b+3}], {c}')
            for _ in range(quota[j]):
                issue_next(i)
        if i == 21:
            P.wait_vm('xr')
            if not cfg.xlds: P.I(f'v_permlane32_swap_b32 v{XR}, v{XR+2}\nv_permlane32_swap_b32 v{XR+1}, v{XR+3}')
            P.I(f'v_permlane32_swap_b32 v{B2R}, v{B2R+2}\nv_permlane32_swap_b32 v{B2R+1}, v{B2R+3}')
        if i == 22 and cfg.xlds:
            P.I(f'''
            v_bfe_u32 v{XF}, v{vLANE}, 4, 1
            v_lshlrev_b32 v{XF}, 14, v{XF}
            v_and_b32 v{XF+1}, 15, v{vLANE}
            v_lshl_add_u32 v{XF}, v{XF+1}, 7, v{XF}
            v_lshrrev_b32 v{XF+1}, 5, v{vLANE}
            v_lshlrev_b32 v{XF+1}, 3, v{XF+1}
            s_lshl_b32 s{sT1}, s{sKQ}, 5
            v_add_u32 v{XF+1}, s{sT1}, v{XF+1}
            v_and_b32 v{XF+2}, 2, v{vLANE}
            v_lshlrev_b32 v{XF+2}, 5, v{XF+2}
            v_xor_b32 v{XF+1}, v{XF+1}, v{XF+2}
            s_lshl_b32 s{sT1}, s{sTT}, 15
            s_add_u32 s{sT1}, s{sT1}, {YA + 0x3800}
            v_add3_u32 v{XF+7}, v{XF}, v{XF+1}, s{sT1}
            ''')
        if i == 26 and cfg.xlds:
            P.D(f'ds_read_b64 v[{XR}:{XR+1}], v{XF+7}', 'xl'); P.D(f'ds_read_b64 v[{XR+2}:{XR+3}], v{XF+7} offset:16', 'xl')
        if i == (27 if cfg.xlds else 22):
            P.wait_lg('xl')
            for d in range(4): P.I(f'v_lshlrev_b32 v{XF+2*d}, 16, v{XR+d}\nv_and_b32 v{XF+2*d+1}, 0xffff0000, v{XR+d}')
        if i == 23:
            for d in range(4): P.I(f'v_lshlrev_b32 v{BF+2*d}, 16, v{B2R+d}\nv_and_b32 v{BF+2*d+1}, 0xffff0000, v{B2R+d}')
        if i == 24: s_addr()
        if cfg.jsplit and i == 33: wr(AS, vSW, 3)
        if cfg.jsplit and i == 34: wr(AS, vSW, 2)
        if i == 28: wr(AM, vMW, 3); wr(AM, vMW, 2)
        if i == 29:
            wr(AM, vMW, 1)
            for e in range(8): P.I(f'v_add_f32 v{BF+e}, v{BF+e}, v{AM+e}')
        if i == cfg.bmpos + 1:
            P.wait_lg('rr')
            for e in range(8): P.I(f'v_add_f32 v{BF+e}, v{BF+e}, v{RD+e}')
            for e in range(8): P.I(f'v_add_f32 v{G+e}, v{RD+8+e}, v{RD+16+e}')
            for e in range(8): P.I(f'v_add_f32 v{BF+e}, v{BF+e}, v{G+e}')
        if i == cfg.bmpos + 2:
            for e in range(8): P.I(f'v_mul_f32 v{G+e}, {f32(-LOG2E)}, v{BF+e}')
            for e in range(8): P.I(f'v_exp_f32 v{G+e}, v{G+e}')
        if i == cfg.bmpos + 3:
            for e in range(8): P.I(f'v_add_f32 v{G+e}, 1.0, v{G+e}')
            for e in range(8): P.I(f'v_rcp_f32 v{G+e}, v{G+e}')
    stamp(P, cfg, 'loop')
    for e in range(8): P.I(f'v_mul_f32 v{G+e}, v{G+e}, v{BF+e}')
    for l in ((1,) if cfg.jsplit else (3, 2, 1)): wr(AS, vSW, l)
    for e in range(0, 8, 2): P.I(f'v_pk_fma_f32 {pr(XF+e)}, {pr(G+e)}, {pr(AS+e)}, {pr(XF+e)}')
    P.lg0(); stamp(P, cfg, 'sw'); P.I('s_barrier'); stamp(P, cfg, 'bs')
    for k in range(4): P.D(f'ds_read_b128 v[{RD+4*k}:{RD+4*k+3}], v{vSR} offset:{1024*k}', 'a')
    for k in range(2): P.D(f'ds_read_b128 v[{RD+16+4*k}:{RD+16+4*k+3}], v{vSR2} offset:{1024*k}', 'b')
    P.wait_lg('a')
    for e in range(0, 8, 2): P.I(f'v_pk_add_f32 {pr(RD+e)}, {pr(RD+e)}, {pr(RD+8+e)}')
    P.lg0()
    for e in range(0, 8, 2): P.I(f'v_pk_add_f32 {pr(RD+e)}, {pr(RD+e)}, {pr(RD+16+e)}')
    for e in range(0, 8, 2): P.I(f'v_pk_fma_f32 {pr(XF+e)}, {pr(G+e)}, {pr(RD+e)}, {pr(XF+e)}')
    for d in range(4): P.I(f'v_cvt_pk_bf16_f32 v{XR+d}, v{XF+2*d}, v{XF+2*d+1}')
    P.I(f'v_permlane32_swap_b32 v{XR}, v{XR+2}\nv_permlane32_swap_b32 v{XR+1}, v{XR+3}')
    P.V(f'buffer_store_dwordx4 v[{XR}:{XR+3}], v{vO}, s[{sOUT}:{sOUT+3}], 0 offen{cfg.outsc}', 'out')
    stamp(P, cfg, 'st')
    if cfg.prof: P.vm0()
    stamp(P, cfg, 'drain'); stamp_flush(P, cfg)
    P.I(f's_branch {endlabel}')
    P.label('L_nos2')
    P.I('s_waitcnt vmcnt(0)\ns_barrier')
    pubB()
    if cfg.helper: helper(P, cfg)
```

```python
import sys, argparse, json
from gen import *
import gen
from s2v2 import *

vPF = 250
def w2_prefetch(P):
    P.I(f'''
    s_lshl_b32 s{sT0}, s{sJ}, 3
    s_add_u32 s{sT0}, s{sT0}, s{sWAVE}
    s_lshl_b32 s{sT1}, s{sT0}, 13
    s_mov_b32 s{sW2}, s16
    s_mov_b32 s{sW2+1}, s17
    s_mov_b32 s{sW2+2}, {1792*XB}
    s_mov_b32 s{sW2+3}, 0x20000
    s_cmp_lt_u32 s{sT0}, 196
    s_cbranch_scc1 L_pf{P.uid()}
    s_mov_b32 s{sW2}, s8
    s_mov_b32 s{sW2+1}, s9
    s_mov_b32 s{sW2+2}, {448*XB}
    s_sub_u32 s{sT1}, s{sT1}, {196*8192}
    L_pf{P.uid(False)}:
    v_lshlrev_b32 v{vPF}, 7, v{vLANE}
    ''')
    P.V(f'buffer_load_dword v{vPF}, v{vPF}, s[{sW2}:{sW2+3}], s{sT1} offen', 'pf')

def build2(cfg):
    hdr = open('cdna_kernels/' + NAME + '.s.ref').read().split('; Override launch')[0]
    doc = '''; Design (generated by the author's own scheduler scripts; one persistent workgroup per CU):
'''
    out = [hdr, doc, '; @launch grid=(256,1,1) block=(512,1,1) lds=163840\n']
    P = Prog(); P.pv = 255
    if cfg.prof or 'padabs' in cfg.exp: P.I('s_memrealtime s[100:101]')
    stamp(P, cfg, 'start')
    P.I('s_load_dwordx16 s[4:19], s[0:1], 0\ns_load_dwordx4 s[20:23], s[0:1], 64\ns_load_dwordx2 s[24:25], s[0:1], 80')
    prologue(P, 256, 'L_end')
    P.L = [l for i, l in enumerate(P.L) if not (l.startswith('s_load_dword') and i > 6)]
    stage1_ids(P)
    if cfg.fastx:
        import s1v2
        xdma_addr(P, 244, 245)
        P.I(f's_lshr_b32 s{sT2}, s{sJ}, 4')
        s1v2.rot_first(P, cfg, None)
        P.I(f's_mul_i32 s{sT2}, s{sT2}, {cfg.att_x0}\ns_add_u32 s{sT2}, s{sT2}, s{sWX}')
        stamp(P, cfg, 'prew')
        P.I('s_waitcnt lgkmcnt(0)')
        stamp(P, cfg, 'karg')
        if cfg.tlb:
            P.I(f's_cmp_eq_u32 s{sWAVE}, {cfg.tlbw}\ns_cbranch_scc0 L_notlb')
            P.I('v_mov_b32 v246, s4\nv_mov_b32 v247, s5')
            ptrs = [6, 8, 12, 14, 16, 18, 20, 22]
            for i, r in enumerate(ptrs): P.I(f'v_writelane_b32 v246, s{r}, {i}\nv_writelane_b32 v247, s{r+1}, {i}')
            for k in range(5):
                P.I(f's_add_u32 s{sT0}, s24, {k << 21}\ns_addc_u32 s{sT1}, s25, 0\nv_writelane_b32 v246, s{sT0}, {8+k}\nv_writelane_b32 v247, s{sT1}, {8+k}')
            P.I('s_mov_b64 exec, 0x1fff\nglobal_load_dword v250, v[246:247], off\ns_mov_b64 exec, -1\nL_notlb:')
        srd(P, sX, 4, 2048 * XB)
        P.I(f's_mov_b32 s4, s3\ns_mov_b32 m0, s{sT2}')
        P.V(f'buffer_load_dwordx4 v{vXD0}, s[{sX}:{sX+3}], s4 offen lds', cfg.x0tag)
        P.I(f's_add_u32 m0, s{sT2}, 1024')
        P.V(f'buffer_load_dwordx4 v{vXD1}, s[{sX}:{sX+3}], s4 offen lds', cfg.x0tag)
    if cfg.codepf:
        P.I(f'''
        s_cmp_lt_u32 s{sJ}, 5
        s_cbranch_scc0 L_nocpf
        s_cmp_eq_u32 s{sWAVE}, 7
        s_cbranch_scc0 L_nocpf
        s_getpc_b64 s[94:95]
        L_pc0:
        s_sub_u32 s94, s94, L_pc0-{NAME}_kernel
        s_subb_u32 s95, s95, 0
        s_lshl_b32 s{sT0}, s{sJ}, 13
        v_lshlrev_b32 v250, 7, v1
        v_add_u32 v250, s{sT0}, v250
        v_min_u32 v250, L_code_end-{NAME}_kernel-4, v250
        global_load_dword v250, v250, s[94:95]
        L_nocpf:
        ''')
    stamp(P, cfg, 'x0')
    stage2_ids(P)
    if cfg.prio: P.I(f's_cmp_ge_u32 s{sWAVE}, 4\ns_cbranch_scc{2 - cfg.prio} L_prio\ns_setprio 1\nL_prio:')
    if 's2only' in cfg.exp:
        P.I('s_waitcnt lgkmcnt(0)')
        srd(P, sWS, 24, WS_SIZE); srd(P, sDBG, 22, 256)
        P.I('v_mov_b32 v252, 99')
        s2_early_setup(P, 20); s2_srd(P, cfg)
        for f in s2_xy(P, 'X') + s2_xy(P, 'Y'): f()
        P.I('s_waitcnt vmcnt(0)')
        stamp_flush(P, cfg)
        P.I('s_branch L_s1_done')
    P.I(f's_cmp_ge_u32 s{sJ}, 16\ns_cbranch_scc1 L_att')
    st = P.state()
    i0 = len(P.L)
    cfg.mlp(P, cfg, 'L_s1_done')
    P.restore(st)
    i1 = len(P.L)
    P.label('L_att')
    cfg.att(P, cfg, 'L_s1_done')
    if cfg.relayout:
        M = P.L[i0:i1]; A = P.L[i1:]
        km = M.index('; SETUP_END'); ka = A.index('; SETUP_END')
        P.L = P.L[:i0] + M[:km] + ['s_branch L_mlp_body'] + A[:ka] + ['s_branch L_att_body', 'L_mlp_body:'] + M[km + 1:] + ['L_att_body:'] + A[ka + 1:]
    P.label('L_s1_done')
    P.vm.q = []; P.lg.q = []; P.pv = 254
    for e in cfg.exp:
        if e.startswith('dly'):
            who = e[3]
            if who == 'm': P.I(f's_cmp_ge_u32 s{sJ}, 16\ns_cbranch_scc1 L_dly')
            if who == 'a': P.I(f's_cmp_lt_u32 s{sJ}, 16\ns_cbranch_scc1 L_dly')
            P.I('s_nop 15\n' * 16)
            P.I('L_dly:')
    stamp(P, cfg, 's2')
    stage2_v2(P, cfg, 'L_s2_skip')
    P.label('L_s2_skip')
    if cfg.prof: P.I('v_writelane_b32 v255, s100, 62\ns_memrealtime s[100:101]\ns_waitcnt lgkmcnt(0)\nv_writelane_b32 v255, s100, 61')
    prof_dump(P, cfg, [(0, 255), (1, 254)])
    if 'pad' in cfg.exp:
        P.I('s_mov_b32 s70, 500\nL_pad:\n' + 's_nop 15\n' * 4 + 's_sub_u32 s70, s70, 1\ns_cmp_lg_u32 s70, 0\ns_cbranch_scc1 L_pad')
    if 'padabs' in cfg.exp:
        for e in cfg.exp:
            if e.startswith('only'): P.I(f's_cmp_eq_u32 s2, {int(e[4:])}\ns_cbranch_scc0 L_end')
        P.I('s_waitcnt lgkmcnt(0)')
        P.I('s_add_u32 s72, s100, 4000\nL_padr:\ns_memrealtime s[70:71]\ns_waitcnt lgkmcnt(0)\ns_sub_u32 s73, s70, s72\ns_cmp_lt_i32 s73, 0\ns_cbranch_scc1 L_padr')
    if 'padrt' in cfg.exp:
        P.I('s_memrealtime s[70:71]\ns_waitcnt lgkmcnt(0)\ns_add_u32 s72, s70, 2000\nL_padr:\ns_memrealtime s[70:71]\ns_waitcnt lgkmcnt(0)\ns_sub_u32 s73, s70, s72\ns_cmp_lt_i32 s73, 0\ns_cbranch_scc1 L_padr')
    P.label('L_end')
    P.I('s_endpgm')
    P.label('L_code_end')
    name = NAME + '_kernel'
    out.append('.amdgcn_target "amdgcn-amd-amdhsa--gfx950"\n.text\n')
    out.append(f'.globl {name}\n.p2align 8\n.type {name},@function\n{name}:\n')
    for l in fix_hazards(P.L):
        out.append(l + '\n' if l.endswith(':') else '    ' + l + '\n')
    out.append('.section .rodata,"a"\n')
    out.append(kd(name))
    return ''.join(out)

if __name__ == '__main__':
    ap = argparse.ArgumentParser()
    ap.add_argument('-o', default='cdna_kernels/' + NAME + '.s')
    ap.add_argument('--prof', action='store_true')
    ap.add_argument('--nopf', action='store_true')
    ap.add_argument('--exp', default='')
    ap.add_argument('--pbo', type=int, default=0)
    ap.add_argument('--dpf', type=int, default=0)
    ap.add_argument('--wfl', default='')
    ap.add_argument('--xfl', default='')
    ap.add_argument('--w2fl', default='')
    ap.add_argument('--l2pf', type=int, default=0)
    ap.add_argument('--dot2', type=int, default=1)
    ap.add_argument('--noxlds', action='store_true')
    ap.add_argument('--c1e', type=int, default=3)
    ap.add_argument('--a0e', type=int, default=5)
    ap.add_argument('--a2', action='store_true')
    ap.add_argument('--nob0', action='store_true')
    ap.add_argument('--noob', action='store_true')
    ap.add_argument('--zpad', action='store_true')
    ap.add_argument('--rt', action='store_true')
    ap.add_argument('--hrot', action='store_true')
    ap.add_argument('--tlb', type=int, default=-1)
    ap.add_argument('--norelayout', action='store_true')
    ap.add_argument('--pb2', type=int, default=18)
    ap.add_argument('--a2off', type=int, default=10)
    ap.add_argument('--q4', type=int, default=1)
    ap.add_argument('--ldsword', action='store_true')
    ap.add_argument('--nojsplit', action='store_true')
    ap.add_argument('--nopk3', action='store_true')
    ap.add_argument('--alt', type=int, default=0)
    ap.add_argument('--nofastx', action='store_true')
    ap.add_argument('--uni', type=float, default=0)
    ap.add_argument('--y2pos', type=int, default=28)
    ap.add_argument('--q14', type=int, default=0)
    ap.add_argument('--xy1', type=int, default=8)
    ap.add_argument('--nocodepf', action='store_true')
    ap.add_argument('--a2pos', type=int, default=9)
    ap.add_argument('--padat', default=None)
    ap.add_argument('--outsc', default='')
    ap.add_argument('--prio', type=int, default=0)
    ap.add_argument('--xnt', action='store_true')
    ap.add_argument('--bmpos', type=int, default=31)
    ap.add_argument('--helper', action='store_true')
    ap.add_argument('--mallc', type=int, default=1)
    ap.add_argument('--malls', type=int, default=22)
    ap.add_argument('--apos', type=int, default=8)
    ap.add_argument('--ypos', type=int, default=6)
    ap.add_argument('--sc', default='_sc1')
    ap.add_argument('--scl', default='_sc1')
    ap.add_argument('--mlppf', type=int, default=0)
    ap.add_argument('--norot2', action='store_true')
    ap.add_argument('--attpf', action='store_true')
    ap.add_argument('--pf0', type=int, default=1)
    ap.add_argument('--pfn', type=int, default=4)
    ap.add_argument('--ni0', type=int, default=0)
    ap.add_argument('--v3', default='m')
    ap.add_argument('--sigpos', type=int, default=50)
    ap.add_argument('--stpoll', type=int, default=24)
    ap.add_argument('--ypre', type=int, default=2)
    ap.add_argument('--norot', action='store_true')
    ap.add_argument('--s1pf', action='store_true')
    ap.add_argument('--pf2', action='store_true')
    ap.add_argument('--lh', type=int, default=6)
    ap.add_argument('--q1', type=int, default=3)
    ap.add_argument('--q2', type=int, default=4)
    ap.add_argument('--q3', type=int, default=1)
    ap.add_argument('--q3at', type=int, default=14)
    ap.add_argument('--x2pos', type=int, default=16)
    ap.add_argument('--wnt', action='store_true')
    ap.add_argument('--pbc', type=int, default=9)
    ap.add_argument('--noearlyw', action='store_true')
    ap.add_argument('--fine', action='store_true')
    ap.add_argument('--ni', type=int, default=3)
    ap.add_argument('--oldmlp', action='store_true')
    ap.add_argument('--oldatt', action='store_true')
    a = ap.parse_args()
    cfg = Cfg(); cfg.prof = a.prof; cfg.fused = True
    cfg.hook_late = pollA_prefetch
    cfg.hook_early = None if a.nopf else w2_prefetch
    cfg.nopf = a.nopf
    cfg.osep = a.pbo > 0; cfg.pbo = a.pbo
    cfg.dpf = a.dpf
    import s2v2 as _s2
    _s2.W2FL[0] = a.w2fl.replace('_', ' ')
    if not a.prof: _s2.sRO8[:] = list(range(80, 88))
    cfg.l2pf = a.l2pf
    cfg.dot2 = a.dot2
    cfg.xlds = not a.noxlds
    cfg.c1e = a.c1e; cfg.a0e = a.a0e
    cfg.noa2 = not a.a2
    cfg.nob0 = a.nob0; cfg.noob = a.noob
    import s2v2; s2v2.NOB0[0] = a.nob0
    cfg.zpad = a.zpad
    cfg.rt = a.rt
    if a.rt: cfg.keep = {'start', 'c0b', 'T0e', 'B2b', 'B3b', 'end', 'c3b', 'loop', 'e1', 'e2', 's2', 'b0', 'b@14', 'b@26', 'drain'}
    cfg.hrot = a.hrot
    cfg.tlb = a.tlb >= 0; cfg.tlbw = a.tlb
    cfg.relayout = not a.norelayout
    cfg.codepf2 = a.prof
    cfg.pb2 = a.pb2; cfg.a2off = a.a2off
    cfg.ldsword = a.ldsword; cfg.jsplit = not a.nojsplit
    cfg.pk3 = not a.nopk3; cfg.alt = a.alt
    cfg.fastx = True; cfg.att_x0 = 81920; cfg.x0tag = 'x0'
    cfg.uni = a.uni > 0; cfg.unif = a.uni if a.uni > 0 else 1.0
    cfg.y2pos = a.y2pos
    cfg.early_y = True; cfg.xy1 = a.xy1
    cfg.codepf = not a.nocodepf
    cfg.stat_pub = True
    cfg.a2pos = a.a2pos
    cfg.padat = a.padat
    cfg.prio = a.prio
    cfg.outsc = a.outsc.replace('_', ' ')
    import s1v2 as _s; _s.XNT = a.xfl.replace('_', ' ')
    cfg.bmpos = a.bmpos
    cfg.helper = a.helper
    cfg.mallc = a.mallc; cfg.malls = a.malls
    cfg.apos = a.apos; cfg.ypos = a.ypos
    cfg.sc = a.sc.replace('_', ' '); cfg.scl = a.scl.replace('_', ' ')
    cfg.pf0 = a.pf0; cfg.pfn = a.pfn; cfg.pfl = {3: 42, 4: 31, 5: 25, 6: 21}[a.pfn]
    assert -(-12544//cfg.pfl) + -(-3136//cfg.pfl) <= 128 * cfg.pfn
    cfg.ni0 = a.ni0
    cfg.stat_expect = 4
    cfg.sigpos = a.sigpos; cfg.st_poll = a.stpoll
    cfg.ypre = a.ypre
    cfg.norot = a.norot; cfg.attpf = a.attpf; cfg.mlppf = a.mlppf; cfg.norot2 = a.norot2; cfg.wnt = a.wfl.replace('_', ' ')
    cfg.s1pf = a.s1pf
    cfg.nopf2 = not a.pf2; cfg.lh = a.lh; cfg.quota = lambda i: (a.q14 if (i == 14 and a.q14) else a.q1 if i < a.pbc else a.q2 if i < a.q3at else a.q3 if i < a.pb2 else a.q4); cfg.x2pos = a.x2pos; cfg.pb_check = a.pbc; cfg.pb_issue = a.pbc - 3; cfg.early_w = not a.noearlyw
    cfg.coarse = not a.fine
    cfg.ni = a.ni
    cfg.exp = a.exp.split(',')
    cfg.pubmap = {0: [0, 1], 1: [1]}
    cfg.mlp = mlp_path; cfg.att = att_path
    if not a.oldmlp or not a.oldatt:
        import s1v2
        if not a.oldmlp: cfg.mlp = s1v2.mlp_v2
        if not a.oldatt: cfg.att = s1v2.att_v2
        import s1v3
        if 'm' in a.v3: cfg.mlp = s1v3.mlp_v3
        if 'a' in a.v3: cfg.att = s1v3.att_v3
        import s1v4
        if 'M' in a.v3: cfg.mlp = s1v4.mlp_v4
        if 'A' in a.v3: cfg.att = s1v4.att_v4; cfg.stat_pub = False
    open(a.o, 'w').write(build2(cfg))
    if cfg.prof: json.dump(cfg.paths, open(a.o + '.paths.json', 'w'))
```

```python
import sys, math, argparse
from asmlib import *

NAME = 'recurrent_scan__sliding_local_dilated__mixer_channel_mlp__prompt'
XB = 896; W1S = 3584; WQS = 2688
H_OFF = 0; O_OFF = 0x700000; CNT_OFF = 0x900000; STAT_OFF = 0x910000; WS_SIZE = 0x940000
SLOT = 8192; MISC = 19 * SLOT
EPS = 1e-5
LOG2E = 1.4426950408889634
GK0 = -2.0 * LOG2E * math.sqrt(2.0 / math.pi)
GK1 = GK0 * 0.044715
NEG = -1e30
SPIN = 400000

sX, sW, sWS, sB1, sWO, sW2, sOUT, sB2, sDBG = 28, 32, 36, 40, 44, 48, 52, 56, 60
sWAVE, sXCD, sJ, sMT, sSUB, sT0, sT1, sT2, sWX, sWW = 64, 65, 66, 67, 68, 69, 70, 71, 72, 73

def srd(P, d, ptr, size):
    P.I(f's_mov_b32 s{d}, s{ptr}\ns_mov_b32 s{d+1}, s{ptr+1}\ns_mov_b32 s{d+2}, {size}\ns_mov_b32 s{d+3}, 0x20000')

class Cfg:
    fused = False
    sc = ' sc1'
    prof = False
    dbgprof = False
    coarse = False
    keep = {'start', 'issued', 'c0b', 'T0e', 'B2b', 'B3b', 'B4b', 'end', 'pub', 'loop', 'e1', 'e2', 's2', 'Aok', 'b0', 'Bok', 'b@18', 'bm', 'bs', 'st', 'drain', 'c3b', 'Bbb', 'Bcb', 'B1b', 'Bpre', 'sw', 'setup', 'w0', 'ob', 'prew', 'karg', 'x0', 'c0w', 'c6b', 'B2xb', 'BAb', 'T1e', 'B1xb', 'Bxb', 'p@6', 'w@6', 'b@6', 'p@14', 'w@14', 'b@14', 'p@18', 'w@18', 'p@26', 'w@26', 'b@26', 'iss'}
    pubmap = {0: [0], 1: [1]}
    hook_late = None
    hook_early = None
    paths = []
    def path_id(self, names):
        self.paths.append(list(names)); return len(self.paths) - 1

def stamp(P, cfg, name=None):
    if name == getattr(cfg, 'padat', None): P.I('s_memrealtime s[100:101]')
    if not cfg.prof: return
    if cfg.coarse and name not in cfg.keep: return
    i = P.nst; P.nst += 1
    P.names.append(name)
    if i >= 2: P.I(f'v_writelane_b32 v{P.pv}, s{80+2*((i-2)%4)}, {i-2}')
    P.I(f's_memtime s[{80+2*(i%4)}:{81+2*(i%4)}]')
    if getattr(cfg, 'rt', False) and i < 28:
        if i >= 1: P.I(f'v_writelane_b32 v{P.pv}, s96, {32+i-1}')
        P.I('s_memrealtime s[96:97]')

def stamp_flush(P, cfg):
    if not cfg.prof: return
    P.I('s_waitcnt lgkmcnt(0)')
    for i in range(max(0, P.nst - 2), P.nst): P.I(f'v_writelane_b32 v{P.pv}, s{80+2*(i%4)}, {i}')
    if getattr(cfg, 'rt', False) and P.nst <= 28: P.I(f'v_writelane_b32 v{P.pv}, s96, {32+P.nst-1}')
    P.I(f'v_writelane_b32 v{P.pv}, {cfg.path_id(P.names)}, 63')
    P.nst = 0; P.names = []

def prologue(P, nwg, endlabel):
    P.I(f'''
    s_cmp_ge_u32 s2, {nwg}
    s_cbranch_scc1 {endlabel}
    s_load_dwordx16 s[4:19], s[0:1], 0
    s_load_dwordx4 s[20:23], s[0:1], 64
    s_load_dwordx2 s[24:25], s[0:1], 80
    v_lshrrev_b32 v2, 6, v0
    v_and_b32 v1, 63, v0
    v_readfirstlane_b32 s{sWAVE}, v2
    s_and_b32 s{sXCD}, s2, 7
    s_lshr_b32 s{sJ}, s2, 3
    ''')

MAPB = [2]
def stage1_ids(P):
    P.I(f'''
    s_lshr_b32 s{sT0}, s{sXCD}, {MAPB[0]}
    s_lshl_b32 s{sT0}, s{sT0}, {1 + MAPB[0]}
    s_bfe_u32 s{sT1}, s{sJ}, {((1 + MAPB[0]) << 16) | (3 - MAPB[0])}
    s_add_u32 s{sMT}, s{sT0}, s{sT1}
    s_and_b32 s{sT0}, s{sXCD}, {(1 << MAPB[0]) - 1}
    s_lshl_b32 s{sT0}, s{sT0}, {3 - MAPB[0]}
    s_and_b32 s{sT1}, s{sJ}, {(1 << (3 - MAPB[0])) - 1}
    s_add_u32 s{sSUB}, s{sT0}, s{sT1}
    s_lshl_b32 s{sWX}, s{sWAVE}, 11
    s_lshl_b32 s{sWW}, s{sWAVE}, 10
    ''')

vFLAG = 253
def init_zero(P, cfg, t):
    if not cfg.fused: return
    srd(P, sWS, 24, WS_SIZE); srd(P, sDBG, 22, 256)
    P.I(f'''
    s_or_b32 s{sT0}, s2, s{sWAVE}
    s_cmp_eq_u32 s{sT0}, 0
    s_cbranch_scc0 L_noinit
    v_lshlrev_b32 v{t}, 7, v{vLANE}
    v_mov_b32 v{t+1}, 0
    s_mov_b32 s{sT0}, {CNT_OFF}
    buffer_store_dword v{t+1}, v{t}, s[{sWS}:{sWS+3}], s{sT0} offen sc1
    s_mov_b32 s{sT0}, {CNT_OFF + 8192}
    buffer_store_dword v{t+1}, v{t}, s[{sWS}:{sWS+3}], s{sT0} offen sc1
    s_mov_b32 s{sT0}, {CNT_OFF + 16384}
    buffer_store_dword v{t+1}, v{t}, s[{sWS}:{sWS+3}], s{sT0} offen sc1
    L_noinit:
    ''')
def init_flag(P, cfg, t, lab):
    if not cfg.fused: return
    P.I(f'''
    s_or_b32 s{sT0}, s2, s{sWAVE}
    s_cmp_eq_u32 s{sT0}, 0
    s_cbranch_scc0 L_noflag{lab}
    v_mov_b32 v{t}, 0
    v_mov_b32 v{t+1}, 1
    buffer_store_dword v{t+1}, v{t}, s[{sDBG}:{sDBG+3}], 0 offen sc1
    L_noflag{lab}:
    ''')
SVC = 4
def svc_begin(P):
    u = P.uid(); P.I(f's_cmp_eq_u32 s{sWAVE}, {SVC}\ns_cbranch_scc0 L_svc{u}'); return u
def svc_end(P, u): P.label(f'L_svc{u}')
def svc_load(P, reg, srdn, soff, voff=None):
    u = svc_begin(P)
    P.I(f'v_mov_b32 v{reg}, 0')
    if voff is None: P.I(f'buffer_load_dword v{reg}, off, s[{srdn}:{srdn+3}], {soff} sc1')
    else: P.I(f'buffer_load_dword v{reg}, v{voff}, s[{srdn}:{srdn+3}], {soff} offen sc1')
    svc_end(P, u)
def spin(P, reg, srdn, soff, expect, voff=None):
    u = P.uid()
    ld = (f'buffer_load_dword v{reg}, off, s[{srdn}:{srdn+3}], {soff} sc1' if voff is None
          else f'buffer_load_dword v{reg}, v{voff}, s[{srdn}:{srdn+3}], {soff} offen sc1')
    P.I(f'''
    v_cmp_gt_u32 vcc, {expect}, v{reg}
    s_cbranch_vccz L_so{u}
    s_mov_b32 s{sT2}, {SPIN}
    s_waitcnt vmcnt(0)
    L_sl{u}:
    v_cmp_gt_u32 vcc, {expect}, v{reg}
    s_cbranch_vccz L_so{u}
    {ld}
    s_sub_u32 s{sT2}, s{sT2}, 1
    s_cbranch_scc1 L_sx{u}
    s_waitcnt vmcnt(0)
    s_branch L_sl{u}
    L_sx{u}:
    s_waitcnt vmcnt(0)
    L_so{u}:
    ''')
def flag_prefetch(P, cfg):
    if not cfg.fused: return
    svc_load(P, vFLAG, sDBG, '0')
def publish(P, cfg, which, lab):
    if not cfg.fused: return
    if cfg.hook_late: cfg.hook_late(P)
    P.wait_vm('st', 'flag', 'pa')
    P.I('s_barrier')
    P.I(f'''
    v_readfirstlane_b32 s{sT0}, v{vFLAG}
    s_cmp_lg_u32 s{sT0}, 0
    s_cbranch_scc1 L_fok{lab}
    s_mov_b32 s{sT2}, {SPIN}
    v_mov_b32 v252, 0
    L_fw{lab}:
    buffer_load_dword v{vFLAG}, off, s[{sDBG}:{sDBG+3}], 0 sc1
    s_sub_u32 s{sT2}, s{sT2}, 1
    s_cbranch_scc1 L_fok{lab}
    s_waitcnt vmcnt(0)
    v_readfirstlane_b32 s{sT0}, v{vFLAG}
    s_cmp_lg_u32 s{sT0}, 0
    s_cbranch_scc0 L_fw{lab}
    L_fok{lab}:
    s_cmp_eq_u32 s{sWAVE}, 0
    s_cbranch_scc0 L_np{lab}
    s_lshl_b32 s{sT0}, s{sMT}, 7
    s_add_u32 s{sT0}, s{sT0}, {CNT_OFF}
    v_mov_b32 v{vFLAG}, 1
    s_mov_b64 exec, 1
    {chr(10).join(f'buffer_atomic_add v{vFLAG}, off, s[{sWS}:{sWS+3}], s{sT0} offset:{2048*w} sc1' for w in cfg.pubmap[which])}
    s_mov_b64 exec, -1
    L_np{lab}:
    ''')

vLANE, vXD0, vXD1 = 1, 2, 3
def xdma_addr(P, t0, t1):
    P.I(f'''
    s_lshl_b32 s{sT0}, s{sMT}, 7
    s_lshl_b32 s{sT1}, s{sWAVE}, 4
    s_add_u32 s{sT0}, s{sT0}, s{sT1}
    v_lshrrev_b32 v{t0}, 3, v{vLANE}
    v_add_u32 v{t0}, s{sT0}, v{t0}
    v_mul_u32_u24 v{t0}, {XB}, v{t0}
    v_lshrrev_b32 v{t1}, 4, v{vLANE}
    v_xor_b32 v{t1}, v{t1}, v{vLANE}
    v_and_b32 v{t1}, 7, v{t1}
    v_lshl_add_u32 v{vXD0}, v{t1}, 4, v{t0}
    v_xor_b32 v{t1}, 4, v{t1}
    v_add_u32 v{t0}, {8*XB}, v{t0}
    v_lshl_add_u32 v{vXD1}, v{t1}, 4, v{t0}
    ''')

def dma_x(P, c, base, tag):
    for i in range(2):
        P.I(f's_add_u32 m0, s{sWX}, {base + 1024*i - 128*c}')
        P.V(f'buffer_load_dwordx4 v{vXD0+i}, s[{sX}:{sX+3}], 0 offen offset:{128*c} lds', tag)

def mlp_path(P, cfg, after):
    sCOLP, sCOLS, sHP, sHSG, sBP, sBS, sG = 74, 75, 76, 77, 78, 79, 27
    vWD, vWDs = 4, 5
    vWa = [6, 7, 8]; vWc = [9, 10, 11]; vXa = [12, 13, 14, 15]
    XF = 16; ACC = 128; WF = 144; NWF = 5; WCS = 164; CSA = 168; SEL = 172; BX = 176; AX = 180
    vK0, vK1, vRI = 184, 185, 186; BR = 187; U = 192; PK = 208; vHS = 216; vT = 217; ST = 220; vONE = 224
    vCSW, vCSR, vSTA = 225, 226, 227; T4 = 228
    CS_LDS = MISC; ST_LDS = MISC + 1024
    xdma_addr(P, vT, vT + 1)
    P.I(f'''
    s_lshr_b32 s{sG}, s{sWAVE}, 2
    s_and_b32 s{sT2}, s{sSUB}, 1
    s_mul_i32 s{sT0}, s{sSUB}, 448
    s_lshl_b32 s{sT1}, s{sT2}, 6
    s_add_u32 s{sCOLP}, s{sT0}, s{sT1}
    s_add_u32 s{sCOLS}, s{sT0}, 384
    s_sub_u32 s{sBS}, s{sT0}, 64
    s_cmp_eq_u32 s{sT2}, 0
    s_cselect_b32 s{sCOLS}, s{sCOLS}, s{sBS}
    s_add_u32 s{sBS}, s{sCOLS}, s{sT1}
    v_lshrrev_b32 v{vT}, 3, v{vLANE}
    s_lshl_b32 s{sT0}, s{sWAVE}, 3
    v_add_u32 v{vT}, s{sT0}, v{vT}
    v_mul_u32_u24 v{vT}, {W1S}, v{vT}
    v_lshrrev_b32 v{vT+1}, 2, v{vLANE}
    v_and_b32 v{vT+1}, 4, v{vT+1}
    v_xor_b32 v{vT+1}, v{vT+1}, v{vLANE}
    v_and_b32 v{vT+1}, 7, v{vT+1}
    v_lshl_add_u32 v{vWD}, v{vT+1}, 4, v{vT}
    v_xor_b32 v{vWDs}, s{sT1}, v{vWD}
    s_waitcnt lgkmcnt(0)
    ''')
    srd(P, sX, 4, 2048 * XB)
    srd(P, sW, 12, 448 * W1S)
    init_zero(P, cfg, vT)

    def dma_w(blk, c, slot, tag):
        P.I(f's_add_u32 m0, s{sWW}, {slot*SLOT}')
        if blk < 3:
            P.I(f's_add_u32 s{sT0}, s{sCOLP}, {c*64*W1S + 128*blk}')
            P.V(f'buffer_load_dwordx4 v{vWD}, s[{sW}:{sW+3}], s{sT0} offen lds', tag)
        else:
            P.I(f's_add_u32 s{sT0}, s{sCOLS}, {c*64*W1S}')
            P.V(f'buffer_load_dwordx4 v{vWDs}, s[{sW}:{sW+3}], s{sT0} offen lds', tag)

    wslot = {}
    xbase = {}
    for c in range(7): wslot[(0, c)] = c
    for c in range(6): xbase[c] = (7 + 2 * c) * SLOT
    xbase[6] = xbase[0]
    NI = 3
    for c in range(NI):
        dma_x(P, c, xbase[c], ('c', c))
        dma_w(0, c, c, ('c', c))
    stamp(P, cfg, 'issued')
    if not cfg.fused: srd(P, sWS, 24, WS_SIZE)
    srd(P, sB1, 14, 1792 * 2)
    P.I(f'''
    s_lshl_b32 s{sT0}, s{sMT}, 2
    s_and_b32 s{sT1}, s{sWAVE}, 3
    s_add_u32 s{sT0}, s{sT0}, s{sT1}
    s_mul_i32 s{sT0}, s{sT0}, {112*1024}
    s_lshl_b32 s{sT2}, s{sBS}, 5
    s_add_u32 s{sHSG}, s{sT0}, s{sT2}
    s_lshl_b32 s{sT2}, s{sG}, 6
    s_add_u32 s{sBP}, s{sCOLP}, s{sT2}
    s_lshl_b32 s{sT2}, s{sBP}, 5
    s_add_u32 s{sHP}, s{sT0}, s{sT2}
    v_and_b32 v{vT}, 31, v{vLANE}
    v_lshlrev_b32 v{vT+1}, 1, v{vT}
    ''')
    for t in range(3):
        P.V(f'buffer_load_ushort v{BR+t}, v{vT+1}, s[{sB1}:{sB1+3}], s{sBP} offen offset:{128*t}', 'bias')
    P.V(f'buffer_load_ushort v{BR+3}, v{vT+1}, s[{sB1}:{sB1+3}], s{sBS} offen', 'bias')
    P.I(f'''
    v_lshlrev_b32 v{vHS}, 4, v{vLANE}
    v_lshrrev_b32 v{vT+1}, 5, v{vLANE}
    v_lshlrev_b32 v{vT+1}, 3, v{vT+1}
    v_bfe_u32 v{vT+2}, v{vLANE}, 2, 2
    v_add_u32 v{vT+1}, v{vT+1}, v{vT+2}
    v_lshlrev_b32 v{vT+1}, 7, v{vT+1}
    v_and_b32 v{vT+2}, 16, v{vLANE}
    v_lshlrev_b32 v{vT+2}, 1, v{vT+2}
    v_and_b32 v{T4}, 3, v{vLANE}
    v_lshl_add_u32 v{vT+2}, v{T4}, 3, v{vT+2}
    s_lshl_b32 s{sT2}, s{sG}, 6
    v_add_u32 v{vT+2}, s{sT2}, v{vT+2}
    v_and_b32 v{T4}, 8, v{vLANE}
    v_lshlrev_b32 v{T4}, 3, v{T4}
    v_xor_b32 v{vT+2}, v{vT+2}, v{T4}
    v_add_u32 v{vWa[0]}, v{vT+1}, v{vT+2}
    v_add_u32 v{vWa[1]}, 0x10000, v{vWa[0]}
    v_add_u32 v{vWa[2]}, 0x20000, v{vWa[0]}
    s_lshl_b32 s{sT2}, s{sT1}, 11
    v_add_u32 v{vWc[0]}, s{sT2}, v{vWa[0]}
    v_add_u32 v{vWc[1]}, s{sT2}, v{vWa[1]}
    v_add_u32 v{vWc[2]}, s{sT2}, v{vWa[2]}
    ''')
    P.I(f'''
    s_lshl_b32 s{sT2}, s{sT1}, 5
    v_add_u32 v{vT+1}, s{sT2}, v{vT}
    v_bfe_u32 v{vT+2}, v{vLANE}, 1, 3
    v_lshrrev_b32 v{T4}, 5, v{vLANE}
    v_xor_b32 v{vT+2}, v{vT+2}, v{T4}
    v_lshlrev_b32 v{vT+2}, 4, v{vT+2}
    v_lshl_add_u32 v{vXa[0]}, v{vT+1}, 7, v{vT+2}
    v_xor_b32 v{vXa[1]}, 32, v{vXa[0]}
    v_xor_b32 v{vXa[2]}, 64, v{vXa[0]}
    v_xor_b32 v{vXa[3]}, 0x60, v{vXa[0]}
    v_lshlrev_b32 v{vSTA}, 4, v{vT+1}
    v_add_u32 v{vSTA}, {ST_LDS}, v{vSTA}
    ''')
    P.I(f'''
    s_lshl_b32 s{sT2}, s{sG}, 9
    s_add_u32 s{sT2}, s{sT2}, {CS_LDS}
    v_lshlrev_b32 v{vCSR}, 4, v{vT}
    v_add_u32 v{vCSR}, s{sT2}, v{vCSR}
    s_lshl_b32 s{sT2}, s{sT1}, 2
    v_add_u32 v{vCSW}, s{sT2}, v{vCSR}
    v_mov_b32 v{vONE}, 0x3f803f80
    v_lshrrev_b32 v{vT+1}, 2, v{vLANE}
    v_lshrrev_b32 v{vT+2}, 4, v{vLANE}
    v_xor_b32 v{vT+1}, v{vT+1}, v{vT+2}
    v_and_b32 v{vT+1}, 1, v{vT+1}
    v_sub_u32 v{vT+1}, v{vT+1}, 1
    v_and_b32 v{SEL}, v{vONE}, v{vT+1}
    v_mov_b32 v{SEL+1}, v{SEL}
    v_mov_b32 v{SEL+2}, v{SEL}
    v_mov_b32 v{SEL+3}, v{SEL}
    v_mov_b32 v{AX+3}, 0
    v_mov_b32 v{BX+3}, 0
    s_cmp_eq_u32 s{sG}, 0
    s_cbranch_scc0 L_mlp_g1
    ''')
    wq = [(b, c) for b in (1, 2, 3) for c in range(7)]
    sched = {}
    free = []
    def place(n):
        r = []
        for _ in range(n):
            if not wq: break
            bc = wq.pop(0); s = free.pop(0); wslot[bc] = s; r.append((bc, s))
        return r
    for c in range(2, 7):
        sl = xbase[c - 1] // SLOT; free += [sl, sl + 1]
        sched[('p0', c)] = place(3 if c >= 4 else 0)
    sl = xbase[6] // SLOT; free += [sl, sl + 1]
    sched[('p', 1)] = place(3)
    free += list(range(7)); sched[('p', 2)] = place(4); sched[('p', 3)] = place(3)
    free += [wslot[(1, c)] for c in range(7)]; sched[('p', 4)] = place(7)
    assert not wq
    def do_sched(ev):
        if ev[0] == 'p0' and ev[1] + NI < 7:
            c = ev[1] + NI
            dma_x(P, c, xbase[c], ('c', c)); dma_w(0, c, c, ('c', c))
        for (b, c), s in sched.get(ev, []): dma_w(b, c, s, ('w', b))
        if ev == ('p', 3): flag_prefetch(P, cfg)
        if ev == ('p', 1) and cfg.hook_early: cfg.hook_early(P)

    def tr(dst, areg, slot, s, tag):
        off = (slot % 8) * SLOT + s * 2048
        P.D(f'ds_read_b64_tr_b16 v[{dst}:{dst+1}], v{areg[slot//8]} offset:{off}', tag)
        P.D(f'ds_read_b64_tr_b16 v[{dst+2}:{dst+3}], v{areg[slot//8]} offset:{off+512}', tag)
    def xreads(c):
        for s in range(4):
            P.I(f'v_add_u32 v{vT+s%2}, {xbase[c]}, v{vXa[s]}')
            d = XF + 4 * (4 * c + s)
            P.D(f'ds_read_b128 v[{d}:{d+3}], v{vT+s%2}', ('x', 4 * c + s))
    def mfma(s):
        w = WF + 4 * (s % NWF); x = XF + 4 * s
        c = '0' if s == 0 else f'v[{ACC}:{ACC+15}]'
        P.I(f'v_mfma_f32_32x32x16_bf16 v[{ACC}:{ACC+15}], v[{w}:{w+3}], v[{x}:{x+3}], {c}')
    def mfma_cs(c):
        cc = '0' if c == 0 else f'v[{CSA}:{CSA+3}]'
        P.I(f'v_mfma_f32_16x16x32_bf16 v[{CSA}:{CSA+3}], v[{SEL}:{SEL+3}], v[{WCS}:{WCS+3}], {cc}')
    def m_phase(blk):
        AH = 3
        def rd(s):
            if s < 28: tr(WF + 4 * (s % NWF), vWa, wslot[(blk, s // 4)], s % 4, ('w', s))
        for s in range(AH): rd(s)
        for s in range(28):
            rd(s + AH)
            if s % 4 == 0: tr(WCS, vWc, wslot[(blk, s // 4)], 0, ('cs', s // 4))
            P.wait_lg(('w', s))
            mfma(s)
            if s % 4 == 2:
                P.wait_lg(('cs', s // 4)); mfma_cs(s // 4)
        P.D(f'ds_write_b32 v{vCSW}, v{CSA}', 'csw')
        P.lg0()
    def prep_consts(R, RI, M):
        t = vT
        P.I(f'''
        v_mul_f32 v{vK0}, {f32(GK0)}, v{R}
        v_mul_f32 v{t}, v{R}, v{R}
        v_mul_f32 v{t}, v{t}, v{R}
        v_mul_f32 v{vK1}, {f32(GK1)}, v{t}
        v_mov_b32 v{vRI}, v{RI}
        v_cmp_gt_u32 vcc, 32, v{vLANE}
        v_cndmask_b32 v{t}, 0, v{M}, vcc
        v_cndmask_b32 v{t+1}, 0, v{RI}, vcc
        v_sub_f32 v{t}, 0, v{t}
        v_cvt_pk_bf16_f32 v{BX+1}, v{t}, v{t+1}
        v_lshlrev_b32 v{t+2}, 16, v{BX+1}
        v_sub_f32 v{t+2}, v{t}, v{t+2}
        v_cvt_pk_bf16_f32 v{BX}, v{t}, v{t+2}
        v_and_b32 v{t+2}, 0xffff0000, v{BX+1}
        v_sub_f32 v{t+2}, v{t+1}, v{t+2}
        v_mov_b32 v{t}, 0
        v_cvt_pk_bf16_f32 v{BX+2}, v{t+2}, v{t}
        ''')
    def e_phase(tile, ev):
        P.D(f'ds_read_b128 v[{T4}:{T4+3}], v{vCSR}', 'csr')
        P.wait_vm('bias')
        P.I(f'v_lshlrev_b32 v{vT}, 16, v{BR+tile}\nv_mov_b32 v{AX+2}, v{BR+tile}')
        P.wait_lg('csr')
        P.I(f'''
        v_add_f32 v{T4}, v{T4}, v{T4+1}
        v_add_f32 v{T4+2}, v{T4+2}, v{T4+3}
        v_add_f32 v{T4}, v{T4}, v{T4+2}
        v_cvt_pk_bf16_f32 v{AX}, v{T4}, v{T4}
        v_lshlrev_b32 v{T4+1}, 16, v{AX}
        v_sub_f32 v{T4+1}, v{T4}, v{T4+1}
        v_cvt_pk_bf16_f32 v{AX+1}, v{T4+1}, v{vT}
        v_mfma_f32_32x32x16_bf16 v[{ACC}:{ACC+15}], v[{AX}:{AX+3}], v[{BX}:{BX+3}], v[{ACC}:{ACC+15}]
        ''')
        do_sched(ev)
        if tile < 3: P.I(f's_add_u32 s{sT1}, s{sHP}, {4096*tile}')
        else: P.I(f's_mov_b32 s{sT1}, s{sHSG}')
        for half in range(2):
            E = range(8 * half, 8 * half + 8)
            for e in E: P.I(f'v_mul_f32 v{U+e}, v{ACC+e}, v{ACC+e}')
            for e in E: P.I(f'v_fma_f32 v{U+e}, v{U+e}, v{vK1}, v{vK0}')
            for e in E: P.I(f'v_mul_f32 v{U+e}, v{ACC+e}, v{U+e}')
            for e in E: P.I(f'v_exp_f32 v{U+e}, v{U+e}')
            for e in E: P.I(f'v_fma_f32 v{U+e}, v{U+e}, v{vRI}, v{vRI}')
            for e in E: P.I(f'v_rcp_f32 v{U+e}, v{U+e}')
            for e in E: P.I(f'v_mul_f32 v{U+e}, v{ACC+e}, v{U+e}')
            for e in range(4): P.I(f'v_cvt_pk_bf16_f32 v{PK+4*half+e}, v{U+8*half+2*e}, v{U+8*half+2*e+1}')
            P.V(f'buffer_store_dwordx4 v[{PK+4*half}:{PK+4*half+3}], v{vHS}, s[{sWS}:{sWS+3}], s{sT1} offen offset:{1024*half}{cfg.sc}', 'st')

    st0 = P.state()
    for c in range(7):
        P.wait_vm(('c', c)); stamp(P, cfg, f'c{c}w'); P.I('s_barrier'); stamp(P, cfg, f'c{c}b')
        if c == 0: init_flag(P, cfg, vT, 'a')
        do_sched(('p0', c))
        xreads(c)
        for s in range(4): tr(WF + 4 * ((4 * c + s) % NWF), vWa, c, s, ('w', 4 * c + s))
        tr(WCS, vWc, c, 0, ('cs', c))
        for s in range(4):
            P.wait_lg(('x', 4 * c + s), ('w', 4 * c + s)); mfma(4 * c + s)
        P.wait_lg(('cs', c)); mfma_cs(c)
    P.D(f'ds_write_b32 v{vCSW}, v{CSA}', 'csw'); P.lg0()
    for p in range(1, 8):
        stamp(P, cfg, f'p{p}e')
        if p % 2 == 0: P.wait_vm(('w', p // 2))
        stamp(P, cfg, f'p{p}w')
        P.I('s_barrier')
        stamp(P, cfg, f'p{p}b')
        if p == 1:
            P.D(f'ds_read_b128 v[{ST}:{ST+3}], v{vSTA}', 'st'); P.wait_lg('st')
            prep_consts(ST, ST + 1, ST + 2)
        if p % 2: e_phase((p - 1) // 2, ('p', p))
        else:
            do_sched(('p', p)); m_phase(p // 2)
    stamp(P, cfg, 'end'); publish(P, cfg, 0, 'g0'); stamp(P, cfg, 'pub'); stamp_flush(P, cfg)
    P.I(f's_branch {after}')
    P.restore(st0)
    P.label('L_mlp_g1')
    for i in range(4): P.I(f'v_mov_b32 v{ST+i}, 0')
    for c in range(7):
        P.wait_vm(('c', c)); stamp(P, cfg, f'c{c}w'); P.I('s_barrier'); stamp(P, cfg, f'c{c}b')
        do_sched(('p0', c))
        xreads(c)
        for s in range(4):
            P.wait_lg(('x', 4 * c + s))
            for d in range(4):
                x = XF + 4 * (4 * c + s) + d
                P.I(f'v_dot2c_f32_bf16 v{ST+(d&1)}, v{x}, v{vONE}')
                P.I(f'v_dot2c_f32_bf16 v{ST+2+(d&1)}, v{x}, v{x}')
    t = vT
    P.I(f'''
    v_add_f32 v{ST}, v{ST}, v{ST+1}
    v_add_f32 v{ST+2}, v{ST+2}, v{ST+3}
    v_mov_b32 v{ST+1}, v{ST}
    v_mov_b32 v{ST+3}, v{ST+2}
    v_permlane32_swap_b32 v{ST}, v{ST+1}
    v_permlane32_swap_b32 v{ST+2}, v{ST+3}
    v_add_f32 v{ST}, v{ST}, v{ST+1}
    v_add_f32 v{ST+3}, v{ST+2}, v{ST+3}
    v_mul_f32 v{ST+2}, {f32(1.0/448)}, v{ST}
    v_mul_f32 v{ST+3}, {f32(1.0/448)}, v{ST+3}
    v_fma_f32 v{ST+3}, -v{ST+2}, v{ST+2}, v{ST+3}
    v_max_f32 v{ST+3}, 0, v{ST+3}
    v_add_f32 v{t}, {f32(EPS)}, v{ST+3}
    v_rsq_f32 v{t+1}, v{t}
    v_mul_f32 v{t+2}, v{t+1}, v{t+1}
    v_mul_f32 v{t+2}, v{t+2}, v{ST+3}
    v_add_f32 v{t+2}, {f32(EPS)}, v{t+2}
    v_rsq_f32 v{ST}, v{t+2}
    v_mul_f32 v{ST}, v{ST}, v{t+1}
    v_mul_f32 v{t}, v{t}, v{t+2}
    v_sqrt_f32 v{ST+1}, v{t}
    ''')
    P.D(f'ds_write_b128 v{vSTA}, v[{ST}:{ST+3}]', 'stw')
    prep_consts(ST, ST + 1, ST + 2)
    P.lg0()
    for p in range(1, 8):
        stamp(P, cfg, f'p{p}e')
        if p % 2 == 0: P.wait_vm(('w', p // 2))
        stamp(P, cfg, f'p{p}w')
        P.I('s_barrier')
        stamp(P, cfg, f'p{p}b')
        if p == 7: break
        if p % 2:
            do_sched(('p', p)); m_phase((p - 1) // 2)
        else: e_phase(p // 2 - 1, ('p', p))
    stamp(P, cfg, 'end'); publish(P, cfg, 0, 'g1'); stamp(P, cfg, 'pub'); stamp_flush(P, cfg)
    P.I(f's_branch {after}')

def att_path(P, cfg, after):
    sPP, sHH, sOB, sWC = 74, 75, 76, 77
    AREA = 40960; HALO = 3 * AREA
    AM = HALO + 14336
    HP_LDS = AM
    STR_LDS = AM + 1024
    CS_LDS = AM + 3072
    EX_LDS = AM + 4096
    vWD, vHD = 4, 5
    vXa = [6, 7]; vXs = [8, 9]; vWa = [10, 11]; vWh, vWq = 12, 13; vXh = [14, 15]
    ADV = vXa + vXs + vWa + [vWh, vWq]
    ACC = 16
    AH, CH, CQ, ONES = 64, 68, 72, 76
    FR = 80
    FSZ = 48
    ST = 176; vT = 180
    MKP, MKC, MKP0 = 192, 196, 200
    acc = lambda part, bb, t: ACC + 4 * (part * 4 + bb * 2 + t)
    xdma_addr(P, vT, vT + 1)
    P.I(f'''
    s_and_b32 s{sPP}, s{sWAVE}, 3
    s_lshr_b32 s{sHH}, s{sWAVE}, 2
    s_and_b32 s{sT2}, s{sWAVE}, 1
    s_lshl_b32 s{sT0}, s{sMT}, 7
    s_lshl_b32 s{sT1}, s{sT2}, 3
    s_add_u32 s{sT0}, s{sT0}, s{sT1}
    s_sub_u32 s{sT0}, s{sT0}, 16
    s_mul_i32 s{sT0}, s{sT0}, {XB}
    v_lshrrev_b32 v{vT}, 3, v{vLANE}
    v_mul_u32_u24 v{vT+2}, {XB}, v{vT}
    v_add_u32 v{vT+2}, s{sT0}, v{vT+2}
    v_lshrrev_b32 v{vT+1}, 4, v{vLANE}
    v_xor_b32 v{vT+1}, v{vT+1}, v{vLANE}
    s_lshl_b32 s{sT1}, s{sT2}, 2
    v_xor_b32 v{vT+1}, s{sT1}, v{vT+1}
    v_and_b32 v{vT+1}, 7, v{vT+1}
    v_lshl_add_u32 v{vHD}, v{vT+1}, 4, v{vT+2}
    s_lshl_b32 s{sT0}, s{sWAVE}, 3
    v_add_u32 v{vT}, s{sT0}, v{vT}
    v_mul_u32_u24 v{vT}, {WQS}, v{vT}
    v_lshrrev_b32 v{vT+1}, 3, v{vLANE}
    v_and_b32 v{vT+1}, 2, v{vT+1}
    v_xor_b32 v{vT+1}, s{sT1}, v{vT+1}
    v_xor_b32 v{vT+1}, v{vT+1}, v{vLANE}
    v_and_b32 v{vT+1}, 7, v{vT+1}
    v_min_u32 v{vT+1}, 6, v{vT+1}
    v_lshl_add_u32 v{vWD}, v{vT+1}, 4, v{vT}
    s_mul_i32 s{sWC}, s{sSUB}, 112
    s_waitcnt lgkmcnt(0)
    ''')
    srd(P, sX, 4, 2048 * XB)
    srd(P, sW, 6, 448 * WQS)
    P.I(f'''
    s_lshr_b32 s{sT0}, s{sWAVE}, 1
    s_lshl_b32 s{sT0}, s{sT0}, 7
    s_add_u32 m0, s{sWW}, {HALO}
    ''')
    P.V(f'buffer_load_dwordx4 v{vHD}, s[{sX}:{sX+3}], s{sT0} offen lds', 'halo')
    P.I(f'''
    s_cmp_lt_u32 s{sWAVE}, 6
    s_cselect_b32 s{sT1}, 512, 0
    s_cselect_b32 s{sT2}, 8192, 0
    s_add_u32 s{sT0}, s{sT0}, s{sT1}
    s_add_u32 s{sT2}, s{sT2}, s{sWW}
    s_add_u32 m0, s{sT2}, {HALO}
    ''')
    P.V(f'buffer_load_dwordx4 v{vHD}, s[{sX}:{sX+3}], s{sT0} offen lds', 'halo')
    def dma_chunk(c):
        a = (c % 3) * AREA
        for i in range(2):
            if a + 1024 * i - 128 * c >= 0:
                P.I(f's_add_u32 m0, s{sWX}, {a + 1024*i - 128*c}')
                P.V(f'buffer_load_dwordx4 v{vXD0+i}, s[{sX}:{sX+3}], 0 offen offset:{128*c} lds', ('c', c))
            else:
                P.I(f's_add_u32 m0, s{sWX}, {a + 1024*i}\ns_movk_i32 s{sT0}, {128*c}')
                P.V(f'buffer_load_dwordx4 v{vXD0+i}, s[{sX}:{sX+3}], s{sT0} offen lds', ('c', c))
        for p in range(3):
            P.I(f's_add_u32 m0, s{sWW}, {a + 16384 + p*8192}')
            P.I(f's_add_u32 s{sT0}, s{sWC}, {c*64*WQS + p*896}')
            P.V(f'buffer_load_dwordx4 v{vWD}, s[{sW}:{sW+3}], s{sT0} offen lds', ('c', c))
    for c in range(3): dma_chunk(c)
    stamp(P, cfg, 'issued')
    srd(P, sWS, 24, WS_SIZE); srd(P, sDBG, 22, 256)
    i15, g4 = vT + 4, vT + 5
    P.I(f'''
    v_and_b32 v{i15}, 15, v{vLANE}
    v_lshrrev_b32 v{g4}, 4, v{vLANE}
    v_lshrrev_b32 v{vT}, 1, v{i15}
    v_xor_b32 v{vT}, v{vT}, v{g4}
    v_lshlrev_b32 v{vT}, 4, v{vT}
    v_lshl_add_u32 v{vT}, v{i15}, 7, v{vT}
    v_add_u32 v{vXh[0]}, {HALO}, v{vT}
    v_xor_b32 v{vXh[1]}, 64, v{vXh[0]}
    s_lshl_b32 s{sT0}, s{sPP}, 12
    v_add_u32 v{vXa[0]}, s{sT0}, v{vT}
    v_xor_b32 v{vXa[1]}, 64, v{vXa[0]}
    s_lshl_b32 s{sT0}, s{sHH}, 11
    v_add_u32 v{vXs[0]}, s{sT0}, v{vXa[0]}
    v_add_u32 v{vXs[1]}, s{sT0}, v{vXa[1]}
    v_bfe_u32 v{vT}, v{vLANE}, 2, 2
    v_lshl_add_u32 v{vT+1}, v{g4}, 3, v{vT}
    v_lshlrev_b32 v{vT+1}, 7, v{vT+1}
    v_and_b32 v{vT}, 2, v{vT}
    v_and_b32 v{vT+2}, 1, v{g4}
    v_lshl_add_u32 v{vT}, v{vT+2}, 2, v{vT}
    v_lshlrev_b32 v{vT}, 4, v{vT}
    v_and_b32 v{vT+2}, 3, v{vLANE}
    v_lshlrev_b32 v{vT+2}, 3, v{vT+2}
    s_mul_i32 s{sT0}, s{sHH}, 56
    v_add_u32 v{vT+2}, s{sT0}, v{vT+2}
    v_xor_b32 v{vT+3}, v{vT+2}, v{vT}
    v_add_u32 v{vWa[0]}, v{vT+1}, v{vT+3}
    v_add_u32 v{vT+2}, 32, v{vT+2}
    v_xor_b32 v{vT+3}, v{vT+2}, v{vT}
    v_add_u32 v{vWa[1]}, v{vT+1}, v{vT+3}
    s_and_b32 s{sT0}, s{sPP}, 1
    s_cmp_eq_u32 s{sT0}, 0
    s_cselect_b64 vcc, -1, 0
    v_cndmask_b32 v{vT}, v{vWa[1]}, v{vWa[0]}, vcc
    s_lshr_b32 s{sT0}, s{sPP}, 1
    s_lshl_b32 s{sT1}, s{sT0}, 13
    s_lshl_b32 s{sT0}, s{sT0}, 12
    v_add_u32 v{vWh}, s{sT1}, v{vT}
    v_add_u32 v{vWq}, s{sT0}, v{vT}
    ''')
    for i in range(4): P.I(f'v_mov_b32 v{ONES+i}, 0x3f803f80\nv_mov_b32 v{ST+i}, 0')
    P.I(f'v_lshlrev_b32 v{vT}, 2, v{g4}\nv_sub_u32 v{vT}, v{i15}, v{vT}\nv_mov_b32 v{vT+3}, {f32(NEG)}')
    for v in range(4):
        P.I(f'''
        v_subrev_u32 v{vT+1}, {v}, v{vT}
        v_and_b32 v{vT+2}, 0xfffffff1, v{vT+1}
        v_cmp_eq_u32 vcc, 0, v{vT+2}
        v_cndmask_b32 v{MKC+v}, v{vT+3}, 0, vcc
        v_add_u32 v{vT+1}, 16, v{vT+1}
        v_and_b32 v{vT+2}, 0xfffffff1, v{vT+1}
        v_cmp_eq_u32 vcc, 0, v{vT+2}
        v_cndmask_b32 v{MKP+v}, v{vT+3}, 0, vcc
        ''')
    P.I(f'''
    s_or_b32 s{sT0}, s{sMT}, s{sPP}
    s_cmp_eq_u32 s{sT0}, 0
    s_cselect_b64 vcc, -1, 0
    ''')
    for v in range(4): P.I(f'v_cndmask_b32 v{MKP0+v}, v{MKP+v}, v{vT+3}, vcc')
    P.I(f'''
    s_lshl_b32 s{sT0}, s{sMT}, 2
    s_add_u32 s{sT0}, s{sT0}, s{sPP}
    s_lshl_b32 s{sT0}, s{sT0}, 15
    s_lshl_b32 s{sT1}, s{sSUB}, 1
    s_add_u32 s{sT1}, s{sT1}, s{sHH}
    s_lshl_b32 s{sT1}, s{sT1}, 11
    s_add_u32 s{sOB}, s{sT0}, s{sT1}
    s_add_u32 s{sOB}, s{sOB}, {O_OFF}
    ''')
    def reduce4(a, tmp):
        P.I(f'''
        v_mov_b32 v{tmp}, v{a}
        v_permlane16_swap_b32 v{a}, v{tmp}
        v_add_f32 v{a}, v{a}, v{tmp}
        v_mov_b32 v{tmp}, v{a}
        v_permlane32_swap_b32 v{a}, v{tmp}
        v_add_f32 v{a}, v{a}, v{tmp}
        ''')
    def finish_stats(sm, sq, r, mr, t):
        P.I(f'''
        v_mul_f32 v{sm}, {f32(1.0/448)}, v{sm}
        v_mul_f32 v{sq}, {f32(1.0/448)}, v{sq}
        v_fma_f32 v{sq}, -v{sm}, v{sm}, v{sq}
        v_max_f32 v{sq}, 0, v{sq}
        v_add_f32 v{t}, {f32(EPS)}, v{sq}
        v_rsq_f32 v{r}, v{t}
        v_mul_f32 v{mr}, v{sm}, v{r}
        ''')
    P.wait_vm('halo'); P.I('s_barrier')
    P.I(f'''
    s_and_b32 s{sT0}, s{sWAVE}, 1
    s_lshl_b32 s{sT0}, s{sT0}, 6
    s_lshr_b32 s{sT1}, s{sWAVE}, 1
    s_lshl_b32 s{sT1}, s{sT1}, 11
    v_xor_b32 v{vT}, s{sT0}, v{vXh[0]}
    v_add_u32 v{vT}, s{sT1}, v{vT}
    s_cmp_lt_u32 s{sWAVE}, 6
    s_cselect_b32 s{sT1}, 8192, 0
    s_cselect_b32 s{sT2}, 1.0, 0
    v_add_u32 v{vT+1}, s{sT1}, v{vT}
    ''')
    P.D(f'ds_read_b128 v[{FR}:{FR+3}], v{vT}', 'h0'); P.D(f'ds_read_b128 v[{FR+4}:{FR+7}], v{vT+1}', 'h1')
    P.lg0()
    for k in range(2):
        for d in range(4):
            P.I(f'v_dot2c_f32_bf16 v{ST+k}, v{FR+4*k+d}, v{ONES}\nv_dot2c_f32_bf16 v{ST+2+k}, v{FR+4*k+d}, v{FR+4*k+d}')
    P.I(f'v_fma_f32 v{ST}, v{ST+1}, s{sT2}, v{ST}\nv_fma_f32 v{ST+1}, v{ST+3}, s{sT2}, v{ST+2}')
    reduce4(ST, vT); reduce4(ST + 1, vT)
    P.I(f'''
    s_lshl_b32 s{sT0}, s{sWAVE}, 3
    s_add_u32 s{sT0}, s{sT0}, {HP_LDS}
    v_lshlrev_b32 v{vT}, 6, v{i15}
    v_add_u32 v{vT}, s{sT0}, v{vT}
    ''')
    P.D(f'ds_write_b64 v{vT}, v[{ST}:{ST+1}]', 'hw')
    for i in range(4): P.I(f'v_mov_b32 v{ST+i}, 0')
    P.I(f's_cmp_lt_u32 s{sPP}, 2\ns_cbranch_scc0 L_att_v')
    st0 = P.state()

    def fr(set_, k): return FR + FSZ * set_ + 4 * k
    def reads(n):
        c, s2 = divmod(n, 2); se = n % 2; L = []
        def b128(k, a, off): L.append(lambda: P.D(f'ds_read_b128 v[{fr(se,k)}:{fr(se,k)+3}], v{a} offset:{off}', ('r', n)))
        def trr(k, a, off):
            L.append(lambda: P.D(f'ds_read_b64_tr_b16 v[{fr(se,k)}:{fr(se,k)+1}], v{a} offset:{off}', ('r', n)))
            L.append(lambda: P.D(f'ds_read_b64_tr_b16 v[{fr(se,k)+2}:{fr(se,k)+3}], v{a} offset:{off+512}', ('r', n)))
        b128(0, vXa[s2], 0); b128(1, vXa[s2], 2048)
        for p in range(3):
            for t in range(2): trr(4 + 2 * p + t, vWa[t], 16384 + p * 8192 + s2 * 4096)
        b128(2, vXh[s2], c * 2048); trr(10, vWh, 16384 + 8192 + s2 * 4096)
        b128(3, vXs[s2], 0)
        if s2 == 0: trr(11, vWq, 16384)
        return L
    def mf(d, a, b, first):
        c = '0' if first else f'v[{d}:{d+3}]'
        return f'v_mfma_f32_16x16x32_bf16 v[{d}:{d+3}], v[{a}:{a+3}], v[{b}:{b+3}], {c}'
    def body(vvar):
        P.wait_vm(('c', 0)); P.lg0(); stamp(P, cfg, 'c0w'); P.I('s_barrier'); stamp(P, cfg, 'c0b')
        for f in reads(0): f()
        for n in range(14):
            c, s2 = divmod(n, 2); se = n % 2; first = n == 0
            P.lg0()
            if s2 == 1 and c < 6:
                stamp(P, cfg, f'c{c+1}e'); P.wait_vm(('c', c + 1)); stamp(P, cfg, f'c{c+1}w'); P.I('s_barrier'); stamp(P, cfg, f'c{c+1}b')
                if c + 3 < 7: dma_chunk(c + 3)
                if c == 4: flag_prefetch(P, cfg)
                if c == 3 and cfg.hook_early: cfg.hook_early(P)
                delta = AREA if (c + 1) % 3 else -2 * AREA
                for a in ADV: P.I(f'v_add_u32 v{a}, {delta & 0xffffffff:#x}, v{a}')
            if n == 1:
                P.I(f'v_lshlrev_b32 v{vT}, 6, v{i15}\nv_add_u32 v{vT}, {HP_LDS}, v{vT}')
                for k in range(4): P.D(f'ds_read_b128 v[{204+4*k}:{204+4*k+3}], v{vT} offset:{16*k}', 'hp')
                P.lg0()
                for k in (0, 1):
                    P.I(f'v_add_f32 v{204+k}, v{204+k}, v{206+k}\nv_add_f32 v{208+k}, v{208+k}, v{210+k}\nv_add_f32 v{212+k}, v{212+k}, v{214+k}\nv_add_f32 v{216+k}, v{216+k}, v{218+k}')
                    P.I(f'v_add_f32 v{204+k}, v{204+k}, v{208+k}\nv_add_f32 v{212+k}, v{212+k}, v{216+k}\nv_add_f32 v{204+k}, v{204+k}, v{212+k}')
                finish_stats(204, 205, 206, 207, vT + 1)
                P.I(f'v_lshlrev_b32 v{vT}, 2, v{i15}\nv_add_u32 v{vT}, {STR_LDS}, v{vT}')
                P.D(f'ds_write_b32 v{vT}, v206', 'x'); P.D(f'ds_write_b32 v{vT}, v207 offset:1024', 'x')
            nxt = reads(n + 1) if n < 13 else []
            M = []
            for p in range(3):
                for t in range(2):
                    for bb in range(2):
                        w = fr(se, 4 + 2 * p + t); x = fr(se, bb)
                        M.append(mf(acc(p, bb, t), w, x, first) if p < 2 else mf(acc(p, bb, t), x, w, first))
            M.append(mf(AH, fr(se, 2), fr(se, 10), first) if vvar else mf(AH, fr(se, 10), fr(se, 2), first))
            M.append(mf(CH, ONES, fr(se, 10), first))
            if s2 == 0: M.append(mf(CQ, ONES, fr(se, 11), first))
            for i, m in enumerate(M):
                P.I(m)
                for _ in range(2):
                    if nxt: nxt.pop(0)()
            assert not nxt
            for d in range(4):
                x = fr(se, 3) + d
                P.I(f'v_dot2c_f32_bf16 v{ST+(d&1)}, v{x}, v{ONES}\nv_dot2c_f32_bf16 v{ST+2+(d&1)}, v{x}, v{x}')
        stamp(P, cfg, 'loop')
        P.I(f'v_add_f32 v{ST}, v{ST}, v{ST+1}\nv_add_f32 v{ST+1}, v{ST+2}, v{ST+3}')
        reduce4(ST, vT); reduce4(ST + 1, vT)
        finish_stats(ST, ST + 1, ST + 2, ST + 3, vT)
        P.I(f'''
        s_lshl_b32 s{sT0}, s{sPP}, 1
        s_add_u32 s{sT0}, s{sT0}, s{sHH}
        s_lshl_b32 s{sT0}, s{sT0}, 6
        s_add_u32 s{sT0}, s{sT0}, {STR_LDS + 64}
        v_lshlrev_b32 v{vT+1}, 2, v{i15}
        v_add_u32 v{vT}, s{sT0}, v{vT+1}
        ''')
        P.D(f'ds_write_b32 v{vT}, v{ST+2}', 'x'); P.D(f'ds_write_b32 v{vT}, v{ST+3} offset:1024', 'x')
        P.I(f'''
        s_lshl_b32 s{sT0}, s{sHH}, 9
        s_lshl_b32 s{sT1}, s{sPP}, 6
        s_add_u32 s{sT0}, s{sT0}, {CS_LDS}
        s_add_u32 s{sT1}, s{sT1}, s{sT0}
        v_add_u32 v{vT}, s{sT1}, v{vT+1}
        ''')
        P.D(f'ds_write_b32 v{vT}, v{CQ}', 'x'); P.D(f'ds_write_b32 v{vT}, v{CH} offset:256', 'x')
        P.lg0(); P.I('s_barrier'); stamp(P, cfg, 'e1')
        F = FR
        rL, mL = F, F + 3
        rR, mR = F + 8, F + 20
        csR = F + 32
        csL = F + 56
        csH = F + 58
        P.I(f'''
        s_lshl_b32 s{sT1}, s{sPP}, 7
        s_add_u32 s{sT1}, s{sT1}, {STR_LDS + 64}
        v_add_u32 v{vT}, s{sT1}, v{vT+1}
        v_add_u32 v{vT+2}, {STR_LDS}, v{vT+1}
        v_lshlrev_b32 v{vT+3}, 4, v{g4}
        v_add_u32 v{vT+6}, s{sT1}, v{vT+3}
        v_add_u32 v{vT+7}, {STR_LDS}, v{vT+3}
        v_add_u32 v{vT+8}, s{sT0}, v{vT+3}
        v_add_u32 v{vT+9}, s{sT0}, v{vT+1}
        s_lshl_b32 s{sT1}, s{sPP}, 6
        v_add_u32 v{vT+10}, s{sT1}, v{vT+9 if vvar else vT+8}
        ''')
        for bb in range(2):
            P.D(f'ds_read_b32 v{rL+bb}, v{vT} offset:{64*bb}', 'a'); P.D(f'ds_read_b32 v{mL+bb}, v{vT} offset:{1024+64*bb}', 'a')
        for e in range(6): P.D(f'ds_read_b128 v[{csR+4*e}:{csR+4*e+3}], v{vT+8} offset:{64*e}', 'a')
        P.lg0()
        for bb in range(2):
            P.D(f'ds_read_b128 v[{rR+4*bb}:{rR+4*bb+3}], v{vT+6} offset:{64*bb}', 'b'); P.D(f'ds_read_b128 v[{mR+4*bb}:{mR+4*bb+3}], v{vT+6} offset:{1024+64*bb}', 'b')
        for t in range(2): P.D(f'ds_read_b32 v{csL+t}, v{vT+9} offset:{64*(6+t)}', 'b')
        if vvar:
            P.D(f'ds_read_b128 v[{rR+8}:{rR+11}], v{vT+7}', 'b'); P.D(f'ds_read_b128 v[{mR+8}:{mR+11}], v{vT+7} offset:1024', 'b')
            P.D(f'ds_read_b32 v{csH}, v{vT+10} offset:256', 'b')
        else:
            P.D(f'ds_read_b32 v{rL+2}, v{vT+2}', 'b'); P.D(f'ds_read_b32 v{mL+2}, v{vT+2} offset:1024', 'b')
            P.D(f'ds_read_b128 v[{csH}:{csH+3}], v{vT+10} offset:256', 'b')
        for e in range(8): P.I(f'v_add_f32 v{csR+e}, v{csR+e}, v{csR+8+e}')
        QOP = F + 64; KOP = F + 72
        VOP = F + 84
        qs = 28 ** -0.5 * LOG2E
        rq, mq = 204, 208
        P.I(f'v_cmp_gt_u32 vcc, 48, v{vLANE}')
        for bb in range(2):
            P.I(f'''
            v_mul_f32 v{rq+2*bb}, {f32(qs)}, v{rL+bb}
            v_mul_f32 v{mq+2*bb}, {f32(qs)}, v{mL+bb}
            v_cndmask_b32 v{rq+2*bb+1}, 0, v{rq+2*bb}, vcc
            v_cndmask_b32 v{mq+2*bb+1}, 0, v{mq+2*bb}, vcc
            ''')
        def fold_T(a, r, m, cs, dst):
            for v in range(4): P.I(f'v_mul_f32 v{vT+v}, v{m}, v{cs+v}')
            for v in range(4): P.I(f'v_fma_f32 v{a+v}, v{a+v}, v{r}, -v{vT+v}')
            P.I(f'v_cvt_pk_bf16_f32 v{dst}, v{a}, v{a+1}\nv_cvt_pk_bf16_f32 v{dst+1}, v{a+2}, v{a+3}')
        def fold_N(a, r, m, cs, dst):
            for v in range(4): P.I(f'v_mul_f32 v{vT+v}, v{m+v}, v{cs}')
            for v in range(4): P.I(f'v_fma_f32 v{a+v}, v{a+v}, v{r+v}, -v{vT+v}')
            P.I(f'v_cvt_pk_bf16_f32 v{dst}, v{a}, v{a+1}\nv_cvt_pk_bf16_f32 v{dst+1}, v{a+2}, v{a+3}')
        P.I(f'''
        s_mul_i32 s{sT0}, s{sHH}, 10240
        s_add_u32 s{sT0}, s{sT0}, {EX_LDS}
        s_lshl_b32 s{sT1}, s{sPP}, 11
        s_add_u32 s{sT1}, s{sT1}, s{sT0}
        v_lshlrev_b32 v{vT+6}, 4, v{vLANE}
        v_add_u32 v{vT+7}, s{sT1}, v{vT+6}
        s_and_b32 s{sT1}, s{sPP}, 1
        s_lshl_b32 s{sT1}, s{sT1}, 3
        s_add_u32 s{sT1}, s{sT1}, s{sT0}
        v_add_u32 v{vT+8}, s{sT1}, v{vT+6}
        ''')
        for t in range(2): fold_T(acc(1, 1, t), rL + 1, mL + 1, csR + 16 + 4 * t, KOP + 8 + 2 * t)
        P.D(f'ds_write_b128 v{vT+7}, v[{KOP+8}:{KOP+11}] offset:2048', 'x')
        P.wait_lg('b')
        for t in range(2): fold_N(acc(2, 1, t), rR + 4, mR + 4, csL + t, VOP + 6 * t + 4)
        for t in range(2): P.D(f'ds_write_b64 v{vT+7}, v[{VOP+6*t+4}:{VOP+6*t+5}] offset:{2048+1024+8*t}', 'x')
        if vvar:
            fold_N(AH, rR + 8, mR + 8, csH, vT + 10)
            P.D(f'ds_write_b64 v{vT+8}, v[{vT+10}:{vT+11}] offset:1024', 'x')
        else:
            fold_T(AH, rL + 2, mL + 2, csH, vT + 10)
            P.D(f'ds_write_b64 v{vT+8}, v[{vT+10}:{vT+11}]', 'x')
        for t in range(2): fold_T(acc(1, 0, t), rL, mL, csR + 16 + 4 * t, KOP + 4 + 2 * t)
        for t in range(2): fold_N(acc(2, 0, t), rR, mR, csL + t, VOP + 6 * t + 2)
        P.lg0(); P.I('s_barrier'); stamp(P, cfg, 'e2')
        P.D(f'ds_read_b128 v[{KOP}:{KOP+3}], v{vT+7}', 'e')
        for t in range(2): P.D(f'ds_read_b64 v[{VOP+6*t}:{VOP+6*t+1}], v{vT+7} offset:{1024+8*t}', 'e')
        for bb in range(2):
            for t in range(2): fold_T(acc(0, bb, t), rq + 2 * bb + t, mq + 2 * bb + t, csR + 4 * t, QOP + 4 * bb + 2 * t)
        vO = vT + 9
        P.I(f'''
        v_lshlrev_b32 v{vO}, 9, v{g4}
        v_lshl_add_u32 v{vO}, v{i15}, 4, v{vO}
        ''')
        P.lg0()
        S = ACC
        for bb in range(2):
            mp = MKP0 if bb == 0 else MKP
            P.I(f'v_mfma_f32_16x16x32_bf16 v[{S+8*bb}:{S+8*bb+3}], v[{KOP+4*bb}:{KOP+4*bb+3}], v[{QOP+4*bb}:{QOP+4*bb+3}], v[{mp}:{mp+3}]')
            P.I(f'v_mfma_f32_16x16x32_bf16 v[{S+8*bb+4}:{S+8*bb+7}], v[{KOP+4*bb+4}:{KOP+4*bb+7}], v[{QOP+4*bb}:{QOP+4*bb+3}], v[{MKC}:{MKC+3}]')
        PP = ACC + 16; OO = ACC + 24
        mx = [vT, vT + 2]
        for bb in range(2):
            s = S + 8 * bb; m = mx[bb]
            P.I(f'''
            v_max3_f32 v{m}, v{s}, v{s+1}, v{s+2}
            v_max3_f32 v{m+1}, v{s+3}, v{s+4}, v{s+5}
            v_max3_f32 v{m}, v{m}, v{s+6}, v{s+7}
            v_max_f32 v{m}, v{m}, v{m+1}
            v_mov_b32 v{m+1}, v{m}
            ''')
        for bb in range(2): P.I(f'v_permlane16_swap_b32 v{mx[bb]}, v{mx[bb]+1}')
        for bb in range(2): P.I(f'v_max_f32 v{mx[bb]}, v{mx[bb]}, v{mx[bb]+1}\nv_mov_b32 v{mx[bb]+1}, v{mx[bb]}')
        for bb in range(2): P.I(f'v_permlane32_swap_b32 v{mx[bb]}, v{mx[bb]+1}')
        for bb in range(2): P.I(f'v_max_f32 v{mx[bb]}, v{mx[bb]}, v{mx[bb]+1}')
        for bb in range(2):
            s = S + 8 * bb
            for v in range(8): P.I(f'v_sub_f32 v{s+v}, v{s+v}, v{mx[bb]}')
            for v in range(8): P.I(f'v_exp_f32 v{s+v}, v{s+v}')
            for v in range(4): P.I(f'v_cvt_pk_bf16_f32 v{PP+4*bb+v}, v{s+2*v}, v{s+2*v+1}')
        for bb in range(2):
            o = OO + 12 * bb; p = PP + 4 * bb
            P.I(f'v_mfma_f32_16x16x32_bf16 v[{o+8}:{o+11}], v[{ONES}:{ONES+3}], v[{p}:{p+3}], 0')
            for t in range(2):
                a = VOP + 6 * t + 2 * bb
                P.I(f'v_mfma_f32_16x16x32_bf16 v[{o+4*t}:{o+4*t+3}], v[{a}:{a+3}], v[{p}:{p+3}], 0')
        for bb in range(2):
            o = OO + 12 * bb
            P.I(f'v_rcp_f32 v{o+8}, v{o+8}')
            P.I(f'v_cndmask_b32 v{o+9}, 0, v{o+8}, vcc')
            for v in range(4): P.I(f'v_mul_f32 v{o+v}, v{o+v}, v{o+8}')
            for v in range(4): P.I(f'v_mul_f32 v{o+4+v}, v{o+4+v}, v{o+9}')
            for v in range(4): P.I(f'v_cvt_pk_bf16_f32 v{PP+4*bb+v}, v{o+2*v}, v{o+2*v+1}')
            P.V(f'buffer_store_dwordx4 v[{PP+4*bb}:{PP+4*bb+3}], v{vO}, s[{sWS}:{sWS+3}], s{sOB} offen offset:{256*bb}{cfg.sc}', 'st')
        stamp(P, cfg, 'end'); publish(P, cfg, 1, 'av' if vvar else 'ak'); stamp(P, cfg, 'pub'); stamp_flush(P, cfg)
        P.I(f's_branch {after}')
    body(False)
    P.restore(st0)
    P.label('L_att_v')
    body(True)

def stage2(P, cfg, endlabel):
    sM2, sN2, sKQ, sTT, sHB, sOB2, sLD, sRW = 74, 75, 76, 77, 78, 79, 27, 26
    vWD, vH = 2, 3; vA = [4, 5]; vT = 6
    WR = 16
    AM, AS = 144, 176
    HR = 208; NH = 8
    XR = 240; B2R = 244
    WL = 16
    NR = 16
    P.I(f'''
    s_cmp_ge_u32 s{sJ}, 28
    s_cbranch_scc1 {endlabel}
    s_mul_i32 s{sT0}, s{sJ}, 37
    s_lshr_b32 s{sT0}, s{sT0}, 8
    s_mul_i32 s{sT1}, s{sT0}, 7
    s_sub_u32 s{sN2}, s{sJ}, s{sT1}
    s_lshl_b32 s{sM2}, s{sXCD}, 2
    s_add_u32 s{sM2}, s{sM2}, s{sT0}
    s_lshr_b32 s{sKQ}, s{sWAVE}, 1
    s_and_b32 s{sTT}, s{sWAVE}, 1
    v_lshrrev_b32 v{vT}, 3, v{vLANE}
    s_lshl_b32 s{sT0}, s{sTT}, 3
    v_add_u32 v{vT}, s{sT0}, v{vT}
    v_mul_u32_u24 v{vT}, {XB}, v{vT}
    v_lshrrev_b32 v{vT+1}, 2, v{vLANE}
    v_and_b32 v{vT+1}, 4, v{vT+1}
    v_xor_b32 v{vT+1}, v{vT+1}, v{vLANE}
    v_and_b32 v{vT+1}, 7, v{vT+1}
    v_lshl_add_u32 v{vWD}, v{vT+1}, 4, v{vT}
    s_lshl_b32 s{sT0}, s{sN2}, 7
    v_add_u32 v{vWD}, s{sT0}, v{vWD}
    v_lshlrev_b32 v{vH}, 4, v{vLANE}
    ''')
    if not cfg.fused:
        P.I('s_waitcnt lgkmcnt(0)')
        srd(P, sX, 4, 2048 * XB); srd(P, sWS, 24, WS_SIZE)
    srd(P, sWO, 8, 448 * XB); srd(P, sW2, 16, 1792 * XB); srd(P, sOUT, 20, 2048 * XB); srd(P, sB2, 18, 896)
    P.I(f'''
    v_lshrrev_b32 v{vT}, 5, v{vLANE}
    v_lshlrev_b32 v{vT}, 2, v{vT}
    v_bfe_u32 v{vT+1}, v{vLANE}, 2, 2
    v_add_u32 v{vT}, v{vT}, v{vT+1}
    v_lshlrev_b32 v{vT}, 7, v{vT}
    v_and_b32 v{vT+1}, 16, v{vLANE}
    v_lshlrev_b32 v{vT+1}, 1, v{vT+1}
    v_and_b32 v{vT+2}, 3, v{vLANE}
    v_lshl_add_u32 v{vT+1}, v{vT+2}, 3, v{vT+1}
    v_and_b32 v{vT+2}, 8, v{vLANE}
    v_lshlrev_b32 v{vT+2}, 3, v{vT+2}
    v_xor_b32 v{vT+1}, v{vT+1}, v{vT+2}
    v_add_u32 v{vT}, v{vT}, v{vT+1}
    s_lshl_b32 s{sT0}, s{sKQ}, 15
    v_add_u32 v{vA[0]}, s{sT0}, v{vT}
    v_xor_b32 v{vA[1]}, 64, v{vA[0]}
    s_lshl_b32 s{sT1}, s{sTT}, 10
    s_add_u32 s{sLD}, s{sT0}, s{sT1}
    s_lshl_b32 s{sT0}, s{sM2}, 1
    s_add_u32 s{sT0}, s{sT0}, s{sTT}
    s_mul_i32 s{sHB}, s{sT0}, {112*1024}
    s_lshl_b32 s{sOB2}, s{sT0}, 15
    s_add_u32 s{sOB2}, s{sOB2}, {O_OFF}
    s_mul_i32 s{sT1}, s{sKQ}, {36*1024}
    s_sub_u32 s{sT1}, s{sT1}, {32*1024}
    s_mul_i32 s{sRW}, s{sKQ}, {576*XB}
    s_sub_u32 s{sRW}, s{sRW}, {512*XB}
    ''')
    vO = 248
    P.I(f'''
    v_and_b32 v{vT+1}, 31, v{vLANE}
    s_lshl_b32 s{sT0}, s{sT0}, 5
    v_add_u32 v{vT+1}, s{sT0}, v{vT+1}
    v_mul_u32_u24 v{vT+1}, {XB}, v{vT+1}
    v_lshrrev_b32 v{vT+2}, 5, v{vLANE}
    v_lshlrev_b32 v{vT+2}, 4, v{vT+2}
    s_lshl_b32 s{sT0}, s{sN2}, 7
    s_lshl_b32 s{sT2}, s{sKQ}, 5
    s_add_u32 s{sT0}, s{sT0}, s{sT2}
    v_add_u32 v{vT+2}, s{sT0}, v{vT+2}
    v_add_u32 v{vO}, v{vT+1}, v{vT+2}
    s_cmp_eq_u32 s{sKQ}, 0
    s_cbranch_scc1 L_s2_k0
    s_add_u32 s{sHB}, s{sHB}, s{sT1}
    ''')
    st0 = P.state()
    def dma(srdn, rowoff_expr_imm, rowreg, lds_imm, tag):
        P.I(f's_add_u32 m0, s{sLD}, {lds_imm}')
        if rowreg is None: P.I(f's_mov_b32 s{sT0}, {rowoff_expr_imm}')
        else: P.I(f's_add_u32 s{sT0}, s{rowreg}, {rowoff_expr_imm}')
        P.V(f'buffer_load_dwordx4 v{vWD}, s[{srdn}:{srdn+3}], s{sT0} offen lds', tag)
    def body(k0):
        lab = 'k0' if k0 else 'kn'
        steps = []
        if k0:
            for i in range(4): steps.append(('h', i * 1024, 176 + 16 * i, 1024))
            for e in range(32):
                row = 28 * (e >> 1) + 8 * (e & 1)
                steps.append(('o', e * 1024, row if e < 12 else row - 168, 2048))
            for ii in range(11): dma(sWO, 16 * ii * XB, None, 2048 * ii, 'R')
            for ii in range(4): dma(sW2, 16 * ii * XB, None, 2048 * (11 + ii), 'R')
        else:
            for i in range(36): steps.append(('h', i * 1024, 16 * i if i < NR else 16 * (i - NR), 1024))
            for ii in range(16): dma(sW2, 16 * ii * XB, sRW, 2048 * ii, 'R')
        P.V(f'buffer_load_dwordx4 v[{XR}:{XR+3}], v{vO}, s[{sX}:{sX+3}], 0 offen', 'xr')
        P.V(f'buffer_load_dwordx4 v[{B2R}:{B2R+3}], v{vT+2}, s[{sB2}:{sB2+3}], 0 offen', 'xr')
        def hload(i):
            if i >= 36: return
            kind, go, _, _ = steps[i]
            base = sHB if kind == 'h' else sOB2
            d = HR + 4 * (i % NH)
            P.I(f's_add_u32 s{sT1}, s{base}, {go & ~4095}')
            P.V(f'buffer_load_dwordx4 v[{d}:{d+3}], v{vH}, s[{sWS}:{sWS+3}], s{sT1} offen offset:{go & 4095}{cfg.sc}', ('h', i))
        if not cfg.fused:
            for i in range(NH): hload(i)
        stamp(P, cfg, 'Riss'); P.wait_vm('R'); stamp(P, cfg, 'Rw'); P.I('s_barrier'); stamp(P, cfg, 'Rb')
        def trr(dst, i, tag):
            _, _, row, dl = steps[i]
            for j in range(2):
                P.D(f'ds_read_b64_tr_b16 v[{dst+4*j}:{dst+4*j+1}], v{vA[j]} offset:{row*128}', tag)
                P.D(f'ds_read_b64_tr_b16 v[{dst+4*j+2}:{dst+4*j+3}], v{vA[j]} offset:{row*128+dl}', tag)
        for i in range(NR): trr(WR + 8 * i, i, 'wr')
        if not k0:
            P.I(f'''
            s_lshl_b32 s{sT0}, s{sKQ}, 13
            s_sub_u32 s{sT0}, s{sT0}, 4096
            s_add_u32 s{sLD}, s{sLD}, s{sT0}
            ''')
        P.lg0(); P.I('s_barrier'); stamp(P, cfg, 'trb')
        if not k0: P.I(f'v_add_u32 v{vA[0]}, s{sT0}, v{vA[0]}\nv_add_u32 v{vA[1]}, s{sT0}, v{vA[1]}')
        if k0:
            for ii in range(18): dma(sWO, (168 + 16 * ii) * XB, None, 2048 * ii, 'L')
        else:
            for ii in range(20): dma(sW2, (256 + 16 * ii) * XB, sRW, 2048 * ii, 'L')
        stamp(P, cfg, 'Liss')
        if cfg.fused:
            poll(P, 0, 'h', k0, True)
            n0 = 4 if k0 else NH
            for i in range(n0): hload(i)
            if k0:
                poll(P, 1, 'o', True, False)
                for i in range(4, NH): hload(i)
        stamp(P, cfg, 'go')
        seen = {'h': False, 'o': False}
        AHL = 2
        def wl(i): return WL + 8 * ((i - NR) % 4)
        for i in range(36):
            kind = steps[i][0]
            a = AM if kind == 'h' else AS
            if i == NR - AHL:
                stamp(P, cfg, 'Le'); P.wait_vm('L'); P.I('s_barrier'); stamp(P, cfg, 'Lb')
            if NR <= i + AHL < 36: trr(wl(i + AHL), i + AHL, ('wl', i + AHL))
            w = WR + 8 * i if i < NR else wl(i)
            if i >= NR: P.wait_lg(('wl', i))
            P.wait_vm(('h', i))
            b = HR + 4 * (i % NH)
            for j in range(2):
                c = f'v[{a+16*j}:{a+16*j+15}]' if seen[kind] else '0'
                P.I(f'v_mfma_f32_32x32x16_bf16 v[{a+16*j}:{a+16*j+15}], v[{w+4*j}:{w+4*j+3}], v[{b}:{b+3}], {c}')
            seen[kind] = True
            hload(i + NH)
        stamp(P, cfg, 'loop')
        P.I('s_barrier')
        stamp(P, cfg, 'endb')
        P.I(f'''
        s_mul_i32 s{sT0}, s{sTT}, 40960
        s_lshl_b32 s{sT1}, s{sKQ}, 11
        s_add_u32 s{sT1}, s{sT1}, s{sT0}
        v_add_u32 v{vT}, s{sT1}, v{vH}
        s_mul_i32 s{sT1}, s{sKQ}, 10240
        s_add_u32 s{sT1}, s{sT1}, s{sT0}
        v_add_u32 v{vT+1}, s{sT1}, v{vH}
        ''')
        for p in range(4):
            for q in range(2):
                r = AM + 8 * p + 4 * q
                P.D(f'ds_write_b128 v{vT}, v[{r}:{r+3}] offset:{10240*p + 1024*q}', 'rw')
        if k0:
            for p in range(4):
                for q in range(2):
                    r = AS + 8 * p + 4 * q
                    P.D(f'ds_write_b128 v{vT}, v[{r}:{r+3}] offset:{10240*p + 8192 + 1024*q}', 'rw')
        P.lg0(); stamp(P, cfg, 'rw'); P.I('s_barrier'); stamp(P, cfg, 'rb')
        P.I('s_branch L_s2_fin')
    body(False)
    P.restore(st0)
    P.label('L_s2_k0')
    body(True)
    P.label('L_s2_fin')
    RD = 16
    for src in range(5):
        for q in range(2):
            r = RD + 8 * src + 4 * q
            P.D(f'ds_read_b128 v[{r}:{r+3}], v{vT+1} offset:{2048*src + 1024*q}', 'rr')
    P.vm0()
    P.I(f'''
    v_permlane32_swap_b32 v{XR}, v{XR+2}
    v_permlane32_swap_b32 v{XR+1}, v{XR+3}
    v_permlane32_swap_b32 v{B2R}, v{B2R+2}
    v_permlane32_swap_b32 v{B2R+1}, v{B2R+3}
    ''')
    XF, BF, G = 64, 72, 80
    for d in range(4):
        P.I(f'v_lshlrev_b32 v{XF+2*d}, 16, v{XR+d}\nv_and_b32 v{XF+2*d+1}, 0xffff0000, v{XR+d}')
        P.I(f'v_lshlrev_b32 v{BF+2*d}, 16, v{B2R+d}\nv_and_b32 v{BF+2*d+1}, 0xffff0000, v{B2R+d}')
    P.lg0()
    for e in range(8): P.I(f'v_add_f32 v{RD+e}, v{RD+e}, v{RD+8+e}')
    for e in range(8): P.I(f'v_add_f32 v{RD+16+e}, v{RD+16+e}, v{RD+24+e}')
    for e in range(8): P.I(f'v_add_f32 v{BF+e}, v{BF+e}, v{RD+e}')
    for e in range(8): P.I(f'v_add_f32 v{BF+e}, v{BF+e}, v{RD+16+e}')
    for e in range(8): P.I(f'v_mul_f32 v{G+e}, {f32(-LOG2E)}, v{BF+e}')
    for e in range(8): P.I(f'v_exp_f32 v{G+e}, v{G+e}')
    for e in range(8): P.I(f'v_add_f32 v{G+e}, 1.0, v{G+e}')
    for e in range(8): P.I(f'v_rcp_f32 v{G+e}, v{G+e}')
    for e in range(8): P.I(f'v_mul_f32 v{G+e}, v{G+e}, v{BF+e}')
    for e in range(8): P.I(f'v_fma_f32 v{G+e}, v{G+e}, v{RD+32+e}, v{XF+e}')
    for d in range(4): P.I(f'v_cvt_pk_bf16_f32 v{XR+d}, v{G+2*d}, v{G+2*d+1}')
    P.I(f'v_permlane32_swap_b32 v{XR}, v{XR+2}\nv_permlane32_swap_b32 v{XR+1}, v{XR+3}')
    P.V(f'buffer_store_dwordx4 v[{XR}:{XR+3}], v{vO}, s[{sOUT}:{sOUT+3}], 0 offen', 'out')
    stamp(P, cfg, 'st'); P.vm0(); stamp(P, cfg, 'drain'); stamp_flush(P, cfg)

def poll(P, which, lab, do_poll, wg_barrier):
    sM2 = 74; t = 252
    if do_poll:
        P.I(f'''
        s_lshr_b32 s{sT0}, s{sM2}, 1
        s_lshl_b32 s{sT0}, s{sT0}, 7
        s_add_u32 s{sT0}, s{sT0}, {CNT_OFF + which * 2048}
        s_mov_b32 s{sT2}, {SPIN}
        L_poll{lab}:
        buffer_load_dword v{t}, off, s[{sWS}:{sWS+3}], s{sT0} sc1
        s_sub_u32 s{sT2}, s{sT2}, 1
        s_cbranch_scc1 L_pollx{lab}
        s_waitcnt vmcnt(0)
        v_readfirstlane_b32 s{sT1}, v{t}
        s_cmp_ge_u32 s{sT1}, 8
        s_cbranch_scc0 L_poll{lab}
        L_pollx{lab}:
        s_waitcnt vmcnt(0)
        ''')
        P.vm.q = []
    if wg_barrier: P.I('s_barrier')

def prof_dump(P, cfg, regs):
    if not cfg.prof: return
    P.I(f'''
    s_lshl_b32 s{sT0}, s2, 3
    s_add_u32 s{sT0}, s{sT0}, s{sWAVE}
    s_lshl_b32 s{sT0}, s{sT0}, 8
    s_mov_b32 s{sWS+2}, 0x2000000
    v_and_b32 v1, 63, v0
    v_lshlrev_b32 v1, 2, v1
    ''')
    for slot, r in regs:
        P.I(f's_add_u32 s{sT1}, s{sT0}, {0x1000000 + slot * 0x100000}')
        P.I(f'buffer_store_dword v{r}, v1, s[{sWS}:{sWS+3}], s{sT1} offen')

def kd(name, vg=256, sg=102):
    return f'''.p2align 6
.amdhsa_kernel {name}
  .amdhsa_next_free_vgpr {vg}
  .amdhsa_next_free_sgpr {sg}
  .amdhsa_accum_offset {vg}
  .amdhsa_group_segment_fixed_size 0
  .amdhsa_kernarg_size 88
  .amdhsa_user_sgpr_count 2
  .amdhsa_user_sgpr_kernarg_segment_ptr 1
  .amdhsa_system_sgpr_workgroup_id_x 1
  .amdhsa_float_denorm_mode_32 3
.end_amdhsa_kernel
'''

def build(cfg):
    hdr = open('cdna_kernels/' + NAME + '.s.ref').read().split('; Override launch')[0]
    out = [hdr]
    kernels = []
    if not cfg.fused:
        out.append('; @launch kernel=stage1_kernel grid=(256,1,1) block=(512,1,1) lds=163840\n')
        out.append('; @launch kernel=stage2_kernel grid=(256,1,1) block=(512,1,1) lds=163840\n')
        P = Prog(); P.pv = 255
        stamp(P, cfg, 'start')
        prologue(P, 256, 'L_end1')
        stage1_ids(P)
        P.I(f's_cmp_ge_u32 s{sJ}, 16\ns_cbranch_scc1 L_att')
        st = P.state()
        mlp_path(P, cfg, 'L_s1_done')
        P.restore(st)
        P.label('L_att')
        att_path(P, cfg, 'L_s1_done')
        P.label('L_s1_done')
        prof_dump(P, cfg, [(0, 255)])
        P.label('L_end1')
        P.I('s_endpgm')
        kernels.append(('stage1_kernel', P))
        P = Prog(); P.pv = 254
        stamp(P, cfg, 'start')
        prologue(P, 256, 'L_end2')
        stage2(P, cfg, 'L_end2')
        prof_dump(P, cfg, [(1, 254)])
        P.label('L_end2')
        P.I('s_endpgm')
        kernels.append(('stage2_kernel', P))
    else:
        out.append('; @launch grid=(256,1,1) block=(512,1,1) lds=163840\n')
        P = Prog(); P.pv = 255
        if cfg.dbgprof: P.I('s_memrealtime s[90:91]')
        stamp(P, cfg, 'start')
        prologue(P, 256, 'L_end')
        stage1_ids(P)
        P.I(f's_cmp_ge_u32 s{sJ}, 16\ns_cbranch_scc1 L_att')
        st = P.state()
        mlp_path(P, cfg, 'L_s1_done')
        P.restore(st)
        P.label('L_att')
        att_path(P, cfg, 'L_s1_done')
        P.label('L_s1_done')
        P.vm.q = []; P.lg.q = []; P.pv = 254
        stamp(P, cfg, 's2')
        stage2(P, cfg, 'L_s2_skip')
        P.label('L_s2_skip')
        prof_dump(P, cfg, [(0, 255), (1, 254)])
        if cfg.dbgprof:
            P.I(f'''
            s_memrealtime s[92:93]
            s_waitcnt lgkmcnt(0)
            s_not_b32 s94, s90
            v_mov_b32 v2, s94
            v_mov_b32 v3, s92
            v_mov_b32 v4, s90
            s_mov_b64 exec, 1
            buffer_atomic_umax v2, off, s[{sDBG}:{sDBG+3}], 0 offset:8
            buffer_atomic_umax v3, off, s[{sDBG}:{sDBG+3}], 0 offset:12
            buffer_atomic_umax v4, off, s[{sDBG}:{sDBG+3}], 0 offset:4
            s_mov_b64 exec, -1
            s_lshl_b32 s94, s2, 3
            s_add_u32 s94, s94, s{sWAVE}
            s_cmp_eq_u32 s94, {8*8+2}
            s_cbranch_scc0 L_end
            v_readlane_b32 s94, v255, 0
            s_mov_b64 exec, 1
            ''')
            sel = [(255, 3), (255, 15), (255, 24), (255, 38), (254, 3), (254, 4), (254, 6), (254, 8), (254, 9), (254, 14)]
            for i, (r, l) in enumerate(sel):
                P.I(f'v_readlane_b32 s95, v{r}, {l}\ns_sub_u32 s95, s95, s94\nv_mov_b32 v2, s95\nbuffer_store_dword v2, off, s[{sDBG}:{sDBG+3}], 0 offset:{16+4*i}')
            P.I(f's_sub_u32 s95, s92, s90\nv_mov_b32 v2, s95\nbuffer_store_dword v2, off, s[{sDBG}:{sDBG+3}], 0 offset:{16+4*len(sel)}')
        P.label('L_end')
        P.I('s_endpgm')
        kernels.append((NAME + '_kernel', P))
    out.append('.amdgcn_target "amdgcn-amd-amdhsa--gfx950"\n.text\n')
    for name, P in kernels:
        out.append(f'.globl {name}\n.p2align 8\n.type {name},@function\n{name}:\n')
        for l in fix_hazards(P.L):
            out.append(l + '\n' if l.endswith(':') else '    ' + l + '\n')
    out.append('.section .rodata,"a"\n')
    for name, _ in kernels: out.append(kd(name))
    return ''.join(out)

if __name__ == '__main__':
    ap = argparse.ArgumentParser()
    ap.add_argument('-o', default='cdna_kernels/' + NAME + '.s')
    ap.add_argument('--prof', action='store_true')
    ap.add_argument('--fused', action='store_true')
    ap.add_argument('--dbgprof', action='store_true')
    a = ap.parse_args()
    cfg = Cfg(); cfg.dbgprof = a.dbgprof; cfg.prof = a.prof or a.dbgprof; cfg.fused = a.fused
    open(a.o, 'w').write(build(cfg))
    if cfg.prof:
        import json; json.dump(cfg.paths, open(a.o + '.paths.json', 'w'))
```

```python
from gen import *
from s2v2 import *
import gen

vPF = 250

def s1_prefetch(P, cfg, role, t):
    if cfg.nopf or not cfg.s1pf: return
    u = P.uid()
    P.I(f'''
    s_and_b32 s{sT0}, s{sJ}, 15
    s_lshl_b32 s{sT0}, s{sT0}, 3
    s_add_u32 s{sT0}, s{sT0}, s{sWAVE}
    ''')
    if role == 0:
        P.I(f'''
        s_lshr_b32 s{sT1}, s{sXCD}, 2
        s_mul_i32 s{sT1}, s{sT1}, {1024*XB}
        s_lshl_b32 s{sT2}, s{sT0}, 13
        s_add_u32 s{sT1}, s{sT1}, s{sT2}
        v_lshlrev_b32 v{vPF}, 7, v{vLANE}
        s_cmp_lt_u32 s{sT0}, 112
        s_cbranch_scc0 L_pfc{u}
        buffer_load_dword v{vPF}, v{vPF}, s[{sX}:{sX+3}], s{sT1} offen
        s_branch L_pfd{u}
        L_pfc{u}:
        s_getpc_b64 s[94:95]
        L_pc{u}:
        s_sub_u32 s{sT2}, s{sT2}, {112*8192}
        s_sub_u32 s94, s94, L_pc{u}-{NAME}_kernel
        s_subb_u32 s95, s95, 0
        v_add_u32 v{vPF}, s{sT2}, v{vPF}
        v_min_u32 v{vPF}, L_code_end-{NAME}_kernel-4, v{vPF}
        global_load_dword v{vPF}, v{vPF}, s[94:95]
        L_pfd{u}:
        ''')
        P.vm.issue('pf')
    else:
        P.I(f'''
        s_and_b32 s{sT2}, s{sXCD}, 3
        s_mov_b32 s{sW2}, s12
        s_mov_b32 s{sW2+1}, s13
        s_mov_b32 s{sW2+2}, {448*W1S}
        s_mov_b32 s{sW2+3}, 0x20000
        s_cmp_lt_u32 s{sT0}, 49
        s_cbranch_scc0 L_pfc{u}
        s_lshl_b32 s{sT0}, s{sT0}, 6
        v_add_u32 v{t}, s{sT0}, v{vLANE}
        v_mul_u32_u24 v{t+1}, 9363, v{t}
        v_lshrrev_b32 v{t+1}, 16, v{t+1}
        v_mul_u32_u24 v{vPF}, {W1S - 7*128}, v{t+1}
        v_lshl_add_u32 v{vPF}, v{t}, 7, v{vPF}
        s_mul_i32 s{sT1}, s{sT2}, 896
        s_branch L_pfd{u}
        L_pfc{u}:
        s_mov_b32 s{sW2}, s6
        s_mov_b32 s{sW2+1}, s7
        s_mov_b32 s{sW2+2}, {448*WQS}
        s_sub_u32 s{sT0}, s{sT0}, 49
        s_lshl_b32 s{sT0}, s{sT0}, 6
        v_add_u32 v{t}, s{sT0}, v{vLANE}
        v_mul_u32_u24 v{t+1}, 21846, v{t}
        v_lshrrev_b32 v{t+1}, 16, v{t+1}
        v_mul_u32_u24 v{vPF}, {896 - 3*128}, v{t+1}
        v_lshl_add_u32 v{vPF}, v{t}, 7, v{vPF}
        s_mul_i32 s{sT1}, s{sT2}, 224
        s_and_b32 s{sT1}, s{sT1}, 0xffffff80
        L_pfd{u}:
        ''')
        P.V(f'buffer_load_dword v{vPF}, v{vPF}, s[{sW2}:{sW2+3}], s{sT1} offen', 'pf')

sKX = [4, 5, 6, 7, 10, 11, 12]
def rot_first(P, cfg, role):
    dst = 3 if role is None else sKX[0]
    if cfg.fastx and role is not None: return
    if cfg.norot:
        P.I(f's_mov_b32 s{dst}, 0'); return
    if MAPB[0] == 2:
        P.I(f'''
        s_bfe_u32 s{sT0}, s{sJ}, 0x30001
        s_and_b32 s{sT1}, s{sJ}, 1
        s_lshl_b32 s{sT1}, s{sT1}, 1
        s_add_u32 s{sT0}, s{sT0}, s{sT1}
        s_lshl_b32 s{sT1}, s{sT2}, 2
        s_add_u32 s{sT0}, s{sT0}, s{sT1}
        ''')
    else:
        P.I(f'''
        s_lshl_b32 s{sT0}, s{sMT}, {MAPB[0] if MAPB[0] else 2}
        s_add_u32 s{sT0}, s{sT0}, s{sSUB}
        s_lshl_b32 s{sT1}, s{sT2}, 2
        s_add_u32 s{sT0}, s{sT0}, s{sT1}
        s_and_b32 s{sT0}, s{sT0}, 7
        ''')
    P.I(f'''
    s_sub_u32 s{sT1}, s{sT0}, 7
    s_cmp_ge_u32 s{sT0}, 7
    s_cselect_b32 s{sT0}, s{sT1}, s{sT0}
    s_lshl_b32 s{dst}, s{sT0}, 7
    ''')
def rot_rest(P, lo, hi):
    for c in range(lo, hi):
        P.I(f'''
        s_add_u32 s{sKX[c]}, s{sKX[c-1]}, 128
        s_cmp_eq_u32 s{sKX[c]}, 896
        s_cselect_b32 s{sKX[c]}, 0, s{sKX[c]}
        ''')
XNT = ''
def dmax(P, c, base, i, tag):
    P.I(f's_add_u32 m0, s{sWX}, {base + 1024*i}')
    P.V(f'buffer_load_dwordx4 v{vXD0+i}, s[{sX}:{sX+3}], s{sKX[c]} offen{XNT} lds', tag)

def w2pf_mlp(P, k, t):
    u = P.uid()
    P.I(f'''
    s_lshl_b32 s{sT0}, s{sJ}, 4
    s_lshl_b32 s{sT1}, s{sWAVE}, 1
    s_add_u32 s{sT0}, s{sT0}, s{sT1}
    s_add_u32 s{sT0}, s{sT0}, {k}
    s_lshl_b32 s{sT1}, s{sT0}, 13
    s_mov_b32 s{sW2}, s16
    s_mov_b32 s{sW2+1}, s17
    s_mov_b32 s{sW2+2}, {1792*XB}
    s_mov_b32 s{sW2+3}, 0x20000
    s_cmp_lt_u32 s{sT0}, 196
    s_cbranch_scc1 L_pf{u}
    s_mov_b32 s{sW2}, s8
    s_mov_b32 s{sW2+1}, s9
    s_mov_b32 s{sW2+2}, {448*XB}
    s_sub_u32 s{sT1}, s{sT1}, {196*8192}
    L_pf{u}:
    v_lshlrev_b32 v{t}, 7, v{vLANE}
    ''')
    P.V(f'buffer_load_dword v{vPF}, v{t}, s[{sW2}:{sW2+3}], s{sT1} offen', 'pf')

def mall_pf(P, t):
    u = P.uid()
    P.I(f'''
    s_lshl_b32 s{sT0}, s2, 3
    s_add_u32 s{sT0}, s{sT0}, s{sWAVE}
    s_lshl_b32 s{sT1}, s{sT0}, 10
    s_mov_b32 s{sW2}, s16
    s_mov_b32 s{sW2+1}, s17
    s_mov_b32 s{sW2+2}, {1792*XB}
    s_mov_b32 s{sW2+3}, 0x20000
    s_cmp_lt_u32 s{sT0}, 1568
    s_cbranch_scc1 L_pf{u}
    s_mov_b32 s{sW2}, s8
    s_mov_b32 s{sW2+1}, s9
    s_mov_b32 s{sW2+2}, {448*XB}
    s_sub_u32 s{sT1}, s{sT1}, {1568*1024}
    L_pf{u}:
    s_mov_b64 exec, 0xff
    ''')
    P.V(f'buffer_load_dword v{vPF}, v{t}, s[{sW2}:{sW2+3}], s{sT1} offen', 'pf')
    P.I('s_mov_b64 exec, -1')

def mall_pf1(P, t):
    P.I(f'''
    s_lshl_b32 s{sT0}, s2, 3
    s_add_u32 s{sT0}, s{sT0}, s{sWAVE}
    s_mul_i32 s{sT1}, s{sT0}, 896
    s_mov_b32 s{sW2}, s100
    s_mov_b32 s{sW2+1}, s101
    s_mov_b32 s{sW2+2}, {448*W1S}
    s_mov_b32 s{sW2+3}, 0x20000
    s_mov_b64 exec, 0x7f
    ''')
    P.V(f'buffer_load_dword v{vPF}, v{t}, s[{sW2}:{sW2+3}], s{sT1} offen', 'pf')
    P.I('s_mov_b64 exec, -1')

def wdma_addr(P, dst, stride, t, clamp6=False):
    P.I(f'''
    v_lshrrev_b32 v{t}, 3, v{vLANE}
    s_lshl_b32 s{sT0}, s{sWAVE}, 3
    v_add_u32 v{t}, s{sT0}, v{t}
    v_mul_u32_u24 v{t}, {stride}, v{t}
    v_lshrrev_b32 v{t+1}, 2, v{vLANE}
    v_and_b32 v{t+1}, 4, v{t+1}
    v_xor_b32 v{t+1}, v{t+1}, v{vLANE}
    v_and_b32 v{t+1}, 7, v{t+1}
    ''')
    if clamp6 == 'zero':
        P.I(f'v_add_u32 v{dst}, 1, v{t+1}\nv_lshlrev_b32 v{dst}, 27, v{dst}\nv_and_b32 v{dst}, 0x40000000, v{dst}\nv_add_u32 v{t}, v{t}, v{dst}')
    elif clamp6: P.I(f'v_min_u32 v{t+1}, 6, v{t+1}')
    P.I(f'v_lshl_add_u32 v{dst}, v{t+1}, 4, v{t}')

def frag_addrs(P, sLO, sHI, colstep, vXa, vW0, t, zpad=False):
    sR = sT2
    P.I(f'''
    s_xor_b32 s{sR}, s{sHI}, s{sLO}
    v_and_b32 v{t}, 31, v{vLANE}
    s_lshl_b32 s{sT0}, s{sLO}, 5
    v_add_u32 v{t}, s{sT0}, v{t}
    v_bfe_u32 v{t+1}, v{vLANE}, 1, 3
    v_lshrrev_b32 v{t+2}, 5, v{vLANE}
    v_xor_b32 v{t+1}, v{t+1}, v{t+2}
    v_lshlrev_b32 v{t+1}, 4, v{t+1}
    v_lshl_add_u32 v{t+1}, v{t}, 7, v{t+1}
    s_lshl_b32 s{sT0}, s{sR}, 5
    v_xor_b32 v{vXa[0]}, s{sT0}, v{t+1}
    v_xor_b32 v{vXa[1]}, 32, v{vXa[0]}
    v_xor_b32 v{vXa[2]}, 64, v{vXa[0]}
    v_xor_b32 v{vXa[3]}, 0x60, v{vXa[0]}
    v_lshlrev_b32 v{t+2}, 3, v{t+2}
    v_bfe_u32 v{t+1}, v{vLANE}, 2, 2
    v_add_u32 v{t+2}, v{t+2}, v{t+1}
    v_lshlrev_b32 v{t+2}, 7, v{t+2}
    v_and_b32 v{t+1}, 16, v{vLANE}
    v_lshlrev_b32 v{t+1}, 1, v{t+1}
    v_and_b32 v{t+3}, 3, v{vLANE}
    v_lshl_add_u32 v{t+1}, v{t+3}, 3, v{t+1}
    s_mul_i32 s{sT0}, s{sHI}, {colstep}
    v_add_u32 v{t+1}, s{sT0}, v{t+1}
    ''')
    if zpad:
        P.I(f'v_and_b32 v{t+3}, 19, v{vLANE}\nv_cmp_eq_u32 vcc, 19, v{t+3}\ns_lshl_b32 s{sT0}, s{sHI}, 3\ns_sub_u32 s{sT0}, 120, s{sT0}\nv_mov_b32 v{t+3}, s{sT0}\nv_cndmask_b32 v{t+1}, v{t+1}, v{t+3}, vcc')
    P.I(f'''
    v_and_b32 v{t+3}, 8, v{vLANE}
    v_lshlrev_b32 v{t+3}, 3, v{t+3}
    v_xor_b32 v{t+1}, v{t+1}, v{t+3}
    v_add_u32 v{t+2}, v{t+2}, v{t+1}
    s_lshl_b32 s{sT0}, s{sR}, 11
    v_xor_b32 v{vW0[0]}, s{sT0}, v{t+2}
    v_xor_b32 v{vW0[1]}, 0x800, v{vW0[0]}
    v_xor_b32 v{vW0[2]}, 0x1000, v{vW0[0]}
    v_xor_b32 v{vW0[3]}, 0x1800, v{vW0[0]}
    ''')

def make_sel(P, SEL, t):
    P.I(f'''
    v_lshrrev_b32 v{t}, 2, v{vLANE}
    v_lshrrev_b32 v{t+1}, 4, v{vLANE}
    v_xor_b32 v{t}, v{t}, v{t+1}
    v_and_b32 v{t}, 1, v{t}
    v_add_u32 v{t}, -1, v{t}
    v_and_b32 v{SEL}, 0x3f803f80, v{t}
    v_mov_b32 v{SEL+1}, v{SEL}
    v_mov_b32 v{SEL+2}, v{SEL}
    v_mov_b32 v{SEL+3}, v{SEL}
    ''')

def sq_ops(x, t, sq, sm=None):
    L = []
    for d in range(4):
        a, b = t + 2 * (d & 1), t + 2 * (d & 1) + 1
        L += [f'v_lshlrev_b32 v{a}, 16, v{x+d}', f'v_and_b32 v{b}, 0xffff0000, v{x+d}',
              f'v_fmac_f32 v{sq}, v{a}, v{a}', f'v_fmac_f32 v{sq+1}, v{b}, v{b}']
        if sm is not None: L += [f'v_add_f32 v{sm}, v{sm}, v{a}', f'v_add_f32 v{sm+1}, v{sm+1}, v{b}']
    return L

def cost(ins):
    if callable(ins): return 4
    mn = ins.split()[0]
    if mn in TRANS or mn.startswith('v_permlane'): return 8
    return 4

class Filler:
    def __init__(self, P): self.P = P; self.q = []
    def add(self, xs): self.q += list(xs)
    def total(self): return sum(cost(x) for x in self.q)
    def emit(self, budget):
        while self.q and budget > 0:
            x = self.q.pop(0); budget -= cost(x)
            if callable(x): x()
            else: self.P.I(x)
    def flush(self): self.emit(1 << 30)

def site(P, sreg, val, fns, register):
    if not fns: return
    u = P.uid()
    P.I(f's_cmp_eq_u32 s{sreg}, {val}\ns_cbranch_scc0 L_site{u}')
    q = list(P.vm.q)
    for f in fns: f()
    if not register: P.vm.q = q
    P.label(f'L_site{u}')

def m32(d, a, b, first):
    c = '0' if first else f'v[{d}:{d+15}]'
    return f'v_mfma_f32_32x32x16_bf16 v[{d}:{d+15}], v[{a}:{a+3}], v[{b}:{b+3}], {c}'
NOM16 = False
def m16(d, a, b, first):
    if NOM16: return 's_nop 0'
    c = '0' if first else f'v[{d}:{d+3}]'
    return f'v_mfma_f32_16x16x32_bf16 v[{d}:{d+3}], v[{a}:{a+3}], v[{b}:{b+3}], {c}'

def atomic_inc(P, soff):
    P.I(f'''
    v_mov_b32 v{vFLAG}, 1
    s_mov_b64 exec, 1
    buffer_atomic_add v{vFLAG}, off, s[{sWS}:{sWS+3}], s{soff} sc1
    s_mov_b64 exec, -1
    ''')
def publish2(P, cfg, which, lab, wave, barrier=True, tags=('st',)):
    if tags: P.wait_vm(*tags)
    if barrier: P.I('s_barrier')
    u = svc_begin(P)
    P.I(f's_lshl_b32 s{sT0}, s{sMT}, 7\ns_add_u32 s{sT0}, s{sT0}, {CNT_OFF + 2048*which}')
    atomic_inc(P, sT0)
    svc_end(P, u)
def flag_check(P, lab, wrap=True):
    if wrap: u = svc_begin(P)
    spin(P, vFLAG, sDBG, '0', 1)
    if wrap: svc_end(P, u)

def mlp_v2(P, cfg, after):
    sCOLP, sCOLS, sHP, sHSG, sBP, sBS, sG, sTT = 74, 75, 76, 77, 78, 79, 27, 26
    vWD, vWDs = 4, 5
    vWa = [[6 + 4 * w + s for s in range(4)] for w in range(3)]
    vXa = [18, 19, 20, 21]
    vHS, vCSW = 22, 23
    XF = 24; ACC = [136, 152]; WF = 168; NWF = 8
    CSA, SEL, BX, AX = 200, 204, 208, 212
    vK0, vK1, vRI = 216, 217, 218; BR = 219; vCSR, vSTW, vSTR = 223, 224, 225
    SQ = 226; SUMA = 228; T = 232; U = 236; PK = 244
    CS_LDS = MISC; ST_LDS = MISC + 2048
    xdma_addr(P, T, T + 1)
    wdma_addr(P, vWD, W1S, T)
    P.I(f'''
    s_lshr_b32 s{sG}, s{sWAVE}, 2
    s_and_b32 s{sTT}, s{sWAVE}, 3
    s_and_b32 s{sT2}, s{sSUB}, 1
    s_mul_i32 s{sT0}, s{sSUB}, 448
    s_lshl_b32 s{sT1}, s{sT2}, 6
    s_add_u32 s{sCOLP}, s{sT0}, s{sT1}
    s_add_u32 s{sCOLS}, s{sT0}, 384
    s_sub_u32 s{sBS}, s{sT0}, 64
    s_cmp_eq_u32 s{sT2}, 0
    s_cselect_b32 s{sCOLS}, s{sCOLS}, s{sBS}
    s_add_u32 s{sBS}, s{sCOLS}, s{sT1}
    v_xor_b32 v{vWDs}, s{sT1}, v{vWD}
    s_waitcnt lgkmcnt(0)
    ''')
    srd(P, sX, 4, 2048 * XB)
    srd(P, sW, 12, 448 * W1S)
    def dma_w(blk, c, slot, tag):
        P.I(f's_add_u32 m0, s{sWW}, {slot*SLOT}')
        P.L[-1] = f's_add_u32 m0, s{sWW}, {slot*SLOT - (128*blk if blk < 3 else 0)}' if slot * SLOT >= 128 * blk else P.L[-1]
        P.I(f's_mul_i32 s{sT0}, s{sKX[c]}, {64*W1S//128}')
        if blk < 3:
            P.I(f's_add_u32 s{sT0}, s{sT0}, s{sCOLP}')
            P.V(f'buffer_load_dwordx4 v{vWD}, s[{sW}:{sW+3}], s{sT0} offen offset:{128*blk}{cfg.wnt} lds', tag)
        else:
            P.I(f's_add_u32 s{sT0}, s{sT0}, s{sCOLS}')
            P.V(f'buffer_load_dwordx4 v{vWDs}, s[{sW}:{sW+3}], s{sT0} offen{cfg.wnt} lds', tag)
    def dma_x1(c, i): dmax(P, c, xbase[c], i, ('c', c))
    def dma_x(P, c, base, tag):
        for i in range(2): dmax(P, c, base, i, tag)
    wslot = {(0, c): c for c in range(7)}
    xbase = {c: (7 + 2 * c) * SLOT for c in range(6)}; xbase[6] = xbase[0]
    NI = cfg.ni
    rot_first(P, cfg, 0)
    dma_x(P, 0, xbase[0], ('c', 0)); dma_w(0, 0, 0, ('c', 0))
    rot_rest(P, 1, 7)
    P.I('s_barrier')
    dma_x(P, 1, xbase[1], ('c', 1)); dma_w(0, 1, 1, ('c', 1))
    init_zero(P, cfg, T)
    s1_prefetch(P, cfg, 0, T)
    stamp(P, cfg, 'issued')
    srd(P, sB1, 14, 1792 * 2)
    P.I(f'''
    s_lshl_b32 s{sT0}, s{sMT}, 2
    s_add_u32 s{sT0}, s{sT0}, s{sTT}
    s_mul_i32 s{sT0}, s{sT0}, {112*1024}
    s_lshl_b32 s{sT2}, s{sBS}, 5
    s_add_u32 s{sHSG}, s{sT0}, s{sT2}
    s_lshl_b32 s{sT2}, s{sG}, 6
    s_add_u32 s{sBP}, s{sCOLP}, s{sT2}
    s_lshl_b32 s{sT2}, s{sBP}, 5
    s_add_u32 s{sHP}, s{sT0}, s{sT2}
    v_and_b32 v{U}, 31, v{vLANE}
    v_lshlrev_b32 v{U+1}, 1, v{U}
    ''')
    for t in range(3):
        P.V(f'buffer_load_ushort v{BR+t}, v{U+1}, s[{sB1}:{sB1+3}], s{sBP} offen offset:{128*t}', 'bias')
    P.V(f'buffer_load_ushort v{BR+3}, v{U+1}, s[{sB1}:{sB1+3}], s{sBS} offen', 'bias')
    frag_addrs(P, sTT, sG, 64, vXa, vWa[0], T)
    for s in range(4): P.I(f'v_add_u32 v{vXa[s]}, {xbase[0]}, v{vXa[s]}')
    for w in (1, 2):
        for s in range(4): P.I(f'v_add_u32 v{vWa[w][s]}, {65536*w}, v{vWa[0][s]}')
    P.I(f'''
    v_lshlrev_b32 v{vHS}, 4, v{vLANE}
    s_lshl_b32 s{sT2}, s{sG}, 9
    s_add_u32 s{sT2}, s{sT2}, {CS_LDS}
    v_lshlrev_b32 v{vCSR}, 4, v{U}
    v_add_u32 v{vCSR}, s{sT2}, v{vCSR}
    s_lshl_b32 s{sT2}, s{sTT}, 2
    v_add_u32 v{vCSW}, s{sT2}, v{vCSR}
    v_lshlrev_b32 v{T}, 3, v{T}
    s_lshl_b32 s{sT2}, s{sG}, 10
    s_add_u32 s{sT2}, s{sT2}, {ST_LDS}
    v_add_u32 v{vSTW}, s{sT2}, v{T}
    v_xor_b32 v{vSTR}, 0x400, v{vSTW}
    v_mov_b32 v{AX+3}, 0
    v_mov_b32 v{BX+3}, 0
    v_mov_b32 v{SQ}, 0
    v_mov_b32 v{SQ+1}, 0
    ''')
    make_sel(P, SEL, T)
    s2_early_setup(P, T)
    for c in range(2, NI):
        dma_x(P, c, xbase[c], ('c', c)); dma_w(0, c, c, ('c', c))
    free = []; sched = {}
    def place(items):
        r = []
        for bc in items:
            s = free.pop(0); wslot[bc] = s; r.append((bc, s))
        return r
    head = lambda b: [(b, 0)]
    tail = lambda b: [(b, c) for c in range(1, 7)]
    q = head(2) + head(1) + tail(1)
    q = [q[1], q[0]] + q[2:]
    avail = []
    plan = {(2, 0): 9, (1, 0): 10}
    for k, c in enumerate(range(1, 7)): plan[(1, c)] = 11 + k
    for k, c in enumerate(range(1, 7)): plan[(2, c)] = [7, 8, 6, 5, 4, 3][k]
    plan[(3, 0)] = 17
    for k, c in enumerate(range(1, 7)): plan[(3, c)] = [18, 12, 13, 14, 15, 16][k]
    def place(items):
        for bc in items: wslot[bc] = plan[bc]
        return [(bc, plan[bc]) for bc in items]
    for c in range(3, 7):
        sl = xbase[c - 2] // SLOT; avail += [sl, sl + 1]
        n = 0
        if c >= 7 - NI:
            while n < 3 and n < len(q) and plan[q[n]] in avail: n += 1
        sched[('c', c)] = place(q[:n]); q = q[n:]
    assert not q, q
    sched[('B', 1)] = place(tail(2) + head(3))
    sched[('B', 2)] = place(tail(3))
    wtag = lambda b, c: ('h' if c < 1 else 't', b)
    def dmas(ev): return [(lambda b=b, c=c, s=s: dma_w(b, c, s, wtag(b, c))) for (b, c), s in sched.get(ev, [])]
    def rd(gs):
        blk, s = divmod(gs, 28)
        if blk > 3: return
        slot = wslot[(blk, s // 4)]; dst = WF + 4 * (gs % NWF)
        off = (slot % 8) * SLOT; a = vWa[slot // 8][s % 4]
        P.D(f'ds_read_b64_tr_b16 v[{dst}:{dst+1}], v{a} offset:{off}', ('w', gs))
        P.D(f'ds_read_b64_tr_b16 v[{dst+2}:{dst+3}], v{a} offset:{off+512}', ('w', gs))
    def xread(c, s):
        d = XF + 4 * (4 * c + s)
        P.D(f'ds_read_b128 v[{d}:{d+3}], v{vXa[s]} offset:{(xbase[c] - xbase[0]) & 0xffff}', ('x', 4 * c + s))
    F = Filler(P)
    def mstep(gs, budget):
        blk, s = divmod(gs, 28)
        w = WF + 4 * (gs % NWF); x = XF + 4 * s
        P.wait_lg(('w', gs), ('x', gs))
        P.I(m32(ACC[blk % 2], w, x, s == 0))
        F.emit(budget)
        if s % 4 == 0:
            P.I(m16(CSA, SEL, w, s == 0))
            F.emit(budget // 2)
    def cs_write(blk): P.D(f'ds_write_b32 v{vCSW}, v{CSA} offset:{1024*(blk%2)}', 'csw')
    for c in range(8):
        DQ = []
        if c < 7:
            P.wait_vm(('c', c))
            if c == 6: P.wait_vm(('h', 1))
            stamp(P, cfg, f'c{c}w')
            if c == 0 or 't0nobar' not in cfg.exp: P.I('s_barrier')
            stamp(P, cfg, f'c{c}b')
            if c == 2: init_flag(P, cfg, PK, 'a')
            if c in (4, 6):
                for s in range(4): P.I(f'v_add_u32 v{vXa[s]}, {(65536 if c == 4 else -65536) & 0xffffffff:#x}, v{vXa[s]}')
            if c + NI < 7:
                cc = c + NI
                DQ = [lambda cc=cc: dma_x1(cc, 0), lambda cc=cc: dma_x1(cc, 1), lambda cc=cc: dma_w(0, cc, cc, ('c', cc))]
            DQ += dmas(('c', c))
            if 't0nodma' in cfg.exp: DQ = []
        def rds(s):
            if c < 7:
                if 't0nox' not in cfg.exp: xread(c, s)
                rd(4 * c + s)
            elif s < 3: rd(28 + s)
        if c == 0:
            for s in range(4): rds(s)
            for f in DQ: f()
            continue
        cc = c - 1
        for s in range(4):
            gs = 4 * cc + s
            w = WF + 4 * (gs % NWF); x = XF + 4 * gs
            P.wait_lg(('w', gs), ('x', gs))
            if s in (0, 2) and 'nosq' not in cfg.exp: F.add(sq_ops(x, T, SQ))
            P.I(m32(ACC[0], w, x, gs == 0))
            if s == 0: site(P, sG, 0, DQ, False)
            rds(s)
            F.emit(20)
            if 't0nom16' not in cfg.exp:
                if s == 0: P.I(m16(CSA, SEL, w, gs == 0))
                if s in (1, 3): P.I(m16(SUMA, SEL, x - 4, gs == 1))
            F.emit(12)
            if s == 3: site(P, sG, 1, DQ, True)
        F.flush()
    P.I(f'''
    v_add_f32 v{SQ}, v{SQ}, v{SQ+1}
    v_mov_b32 v{SQ+1}, v{SQ}
    v_permlane32_swap_b32 v{SQ}, v{SQ+1}
    v_add_f32 v{SQ+1}, v{SQ}, v{SQ+1}
    v_mov_b32 v{SQ}, v{SUMA}
    ''')
    P.D(f'ds_write_b64 v{vSTW}, v[{SQ}:{SQ+1}]', 'csw')
    cs_write(0)
    stamp(P, cfg, 'T0e')

    def stats_ops():
        t = T; R, RI, M, V = U, U + 1, U + 2, U + 3
        L = [lambda: P.wait_lg('str')]
        L += f'''v_add_f32 v{M}, v{SQ}, v{U+4}
        v_add_f32 v{V}, v{SQ+1}, v{U+5}
        v_mul_f32 v{M}, {f32(1.0/448)}, v{M}
        v_mul_f32 v{V}, {f32(1.0/448)}, v{V}
        v_fma_f32 v{V}, -v{M}, v{M}, v{V}
        v_max_f32 v{V}, 0, v{V}
        v_add_f32 v{t}, {f32(EPS)}, v{V}
        v_rsq_f32 v{t+1}, v{t}
        v_cmp_gt_u32 vcc, 32, v{vLANE}
        v_mul_f32 v{t+2}, v{t+1}, v{t+1}
        v_mul_f32 v{t+2}, v{t+2}, v{V}
        v_add_f32 v{t+2}, {f32(EPS)}, v{t+2}
        v_rsq_f32 v{R}, v{t+2}
        v_mul_f32 v{t}, v{t}, v{t+2}
        v_sqrt_f32 v{vRI}, v{t}
        v_mul_f32 v{R}, v{R}, v{t+1}
        v_mul_f32 v{vK0}, {f32(GK0)}, v{R}
        v_mul_f32 v{t}, v{R}, v{R}
        v_mul_f32 v{t}, v{t}, v{R}
        v_mul_f32 v{vK1}, {f32(GK1)}, v{t}
        v_cndmask_b32 v{t}, 0, v{M}, vcc
        v_cndmask_b32 v{t+1}, 0, v{vRI}, vcc
        v_sub_f32 v{t}, 0, v{t}
        v_cvt_pk_bf16_f32 v{BX+1}, v{t}, v{t+1}
        v_lshlrev_b32 v{t+2}, 16, v{BX+1}
        v_sub_f32 v{t+2}, v{t}, v{t+2}
        v_cvt_pk_bf16_f32 v{BX}, v{t}, v{t+2}
        v_and_b32 v{t+2}, 0xffff0000, v{BX+1}
        v_sub_f32 v{t+2}, v{t+1}, v{t+2}
        v_cvt_pk_bf16_f32 v{BX+2}, v{t+2}, v{BX+3}'''.split('\n        ')
        k = [i for i, x in enumerate(L) if isinstance(x, str) and x.startswith('v_cmp_gt_u32')][0]
        L.insert(k + 1, f'v_mov_b32 v{SUMA}, v{t+1}')
        L.append(stat_store)
        return L
    def stat_store():
        u = P.uid()
        P.I(f'''
        s_cmp_eq_u32 s{sG}, 0
        s_cbranch_scc0 L_ss{u}
        s_lshl_b32 s{sT0}, s{sSUB}, 14
        s_lshl_b32 s{sT2}, s{sMT}, 9
        s_add_u32 s{sT0}, s{sT0}, s{sT2}
        s_add_u32 s{sT0}, s{sT0}, {STAT_OFF}
        v_subrev_u32 v{SUMA+1}, {ST_LDS}, v{vSTW}
        v_lshrrev_b32 v{SUMA+1}, 1, v{SUMA+1}
        s_add_u32 s{sT2}, s{sT0}, 8192
        s_mov_b64 exec, 0xffffffff
        buffer_store_dword v{SUMA}, v{SUMA+1}, s[{sWS}:{sWS+3}], s{sT0} offen sc1
        buffer_store_dword v{U+2}, v{SUMA+1}, s[{sWS}:{sWS+3}], s{sT2} offen sc1
        s_mov_b64 exec, -1
        L_ss{u}:
        ''')
    def stat_signal(nD):
        u = P.uid()
        n = len(P.vm.q) - 1 - P.vm.q.index('flag') + nD
        P.I(f's_cmp_eq_u32 s{sG}, 0\ns_cbranch_scc0 L_sg{u}\ns_waitcnt vmcnt({n})')
        q = list(P.vm.q); P.vm.q = []
        flag_check(P, 'ms')
        P.vm.q = q
        P.I(f'''
        s_lshl_b32 s{sT0}, s{sSUB}, 11
        s_lshl_b32 s{sT2}, s{sMT}, 7
        s_add_u32 s{sT0}, s{sT0}, s{sT2}
        s_add_u32 s{sT0}, s{sT0}, {CNT_OFF + 8192}
        v_mov_b32 v{vPF}, 1
        s_mov_b64 exec, 1
        buffer_atomic_add v{vPF}, off, s[{sWS}:{sWS+3}], s{sT0} sc1
        s_mov_b64 exec, -1
        L_sg{u}:
        ''')
    def e_ops(tile, stag):
        A = ACC[tile % 2]
        P.D(f'ds_read_b128 v[{PK}:{PK+3}], v{vCSR} offset:{1024*(tile%2)}', 'csr')
        L = [lambda: P.wait_vm('bias'),
             f'v_lshlrev_b32 v{U}, 16, v{BR+tile}', f'v_mov_b32 v{AX+2}, v{BR+tile}',
             lambda: P.wait_lg('csr'),
             f'v_add_f32 v{T}, v{PK}, v{PK+1}', f'v_add_f32 v{T+2}, v{PK+2}, v{PK+3}', f'v_add_f32 v{T}, v{T}, v{T+2}',
             f'v_cvt_pk_bf16_f32 v{AX}, v{T}, v{T}', f'v_lshlrev_b32 v{T+1}, 16, v{AX}', f'v_sub_f32 v{T+1}, v{T}, v{T+1}',
             f'v_cvt_pk_bf16_f32 v{AX+1}, v{T+1}, v{U}',
             (f's_add_u32 s88, s{sHP}, {4096*tile}' if tile < 3 else f's_mov_b32 s88, s{sHSG}'),
             f's_nop 0',
             m32(A, AX, BX, False)]
        M = []
        for half in range(2):
            E = range(8)
            a = A + 8 * half
            M += [f'v_mul_f32 v{U+e}, v{a+e}, v{a+e}' for e in E]
            M += [f'v_fma_f32 v{U+e}, v{U+e}, v{vK1}, v{vK0}' for e in E]
            M += [f'v_mul_f32 v{U+e}, v{a+e}, v{U+e}' for e in E]
            M += [f'v_exp_f32 v{U+e}, v{U+e}' for e in E]
            M += [f'v_fma_f32 v{U+e}, v{U+e}, v{vRI}, v{vRI}' for e in E]
            M += [f'v_rcp_f32 v{U+e}, v{U+e}' for e in E]
            M += [f'v_mul_f32 v{U+e}, v{a+e}, v{U+e}' for e in E]
            M += [f'v_cvt_pk_bf16_f32 v{PK+e}, v{U+2*e}, v{U+2*e+1}' for e in range(4)]
            if 'nost' not in cfg.exp: M.append(lambda half=half: P.V(f'buffer_store_dwordx4 v[{PK}:{PK+3}], v{vHS}, s[{sWS}:{sWS+3}], s88 offen offset:{1024*half}{cfg.sc}', stag))
        return L, M
    AH = 3
    def barrier_B(j):
        P.wait_vm(('t', j), ('h', j + 1))
        P.wait_lg('csw')
        stamp(P, cfg, f'B{j}w'); P.I('s_barrier'); stamp(P, cfg, f'B{j}b')
    def period(j):
        D = []
        for s in range(28):
            gs = 28 * j + s
            if s == 1:
                barrier_B(j)
                if j == 1: P.D(f'ds_read_b64 v[{U+4}:{U+5}], v{vSTR}', 'str')
                pre, main = e_ops(j - 1, 'stA' if j <= 2 else 'st')
                if j == 1: F.add(stats_ops() + [lambda: flag_prefetch(P, cfg)])
                F.add(pre)
                D = dmas(('B', j))
                if 'nodma' in cfg.exp: D = []
                if j == 3 and cfg.early_w: D = [lambda: s2_srd(P, cfg)] + s2_xy(P, 'X')
                h = len(main) // 2
                if j == 1: main.insert(cfg.sigpos, lambda D=D: stat_signal(len(D))); h += 1
                if j < 3: F.add([lambda D=D: site(P, sG, 0, D, False)] + main[:h] + [lambda D=D: site(P, sG, 1, D, True)] + main[h:])
                else:
                    k = len(main) // (len(D) + 1); mix = []
                    for i, m in enumerate(main):
                        if D and i % k == 0: mix.append(D.pop(0))
                        mix.append(m)
                    F.add(mix + D)
            rd(gs + AH)
            left = 28 - s
            budget = 0 if s < 3 else max(8, int(F.total() / (left + 0.5 * ((27 - s) // 4 + 1)) + 3))
            mstep(gs, budget)
        F.flush()
        cs_write(j)
        stamp(P, cfg, f'T{j}e')
    period(1)
    period(2)
    flag_check(P, 'm')
    P.I(f's_cmp_eq_u32 s{sG}, 0\ns_cbranch_scc0 L_mlp_g1')
    st0 = P.state()
    period(3)
    P.wait_vm('stA'); P.wait_lg('csw'); P.I('s_barrier'); stamp(P, cfg, 'B4b')
    pre, main = e_ops(3, 'st')
    F.add(pre + main); F.flush()
    stamp(P, cfg, 'end')
    if cfg.hook_late: cfg.hook_late(P)
    YQ = s2_xy(P, 'Y') if cfg.early_w else []
    for f in YQ[:cfg.ypre]: f()
    publish2(P, cfg, 1, 'g0', 4, tags=('st',))
    for f in YQ[cfg.ypre:]: f()
    stamp(P, cfg, 'pub'); stamp_flush(P, cfg)
    P.I(f's_branch {after}')
    P.restore(st0)
    P.label('L_mlp_g1')
    barrier_B(3)
    pre, main = e_ops(2, 'st')
    F.add(pre + main); F.flush()
    stamp(P, cfg, 'T3e')
    if cfg.early_w:
        s2_srd(P, cfg)
        for f in s2_xy(P, 'X'): f()
    P.wait_vm('stA'); P.lg0(); P.I('s_barrier'); stamp(P, cfg, 'B4b')
    publish2(P, cfg, 0, 'gA', 4, barrier=False, tags=())
    stamp(P, cfg, 'end')
    if cfg.early_w:
        for f in s2_xy(P, 'Y'): f()
    if cfg.hook_late: cfg.hook_late(P)
    publish2(P, cfg, 1, 'g1', 4, tags=('st',))
    stamp(P, cfg, 'pub'); stamp_flush(P, cfg)
    P.I(f's_branch {after}')

def att_v2(P, cfg, after):
    if 'noatt' in cfg.exp:
        P.L.append('; SETUP_END'); P.I('s_endpgm'); return
    sPP, sHH, sOB, sWC, sPFI = 74, 75, 76, 77, 78
    AREA = 40960; HALO = 3 * AREA
    AM = HALO + 14336
    ST_LDS = AM
    HS_LDS = AM + 2048
    CS_LDS = HALO
    R_LDS = AM + 6144
    EX_LDS = 131072
    HP_LDS = 131072
    vWD, vHD = 4, 5
    vXa = [6, 7, 8, 9]; vWa = [10, 11, 12, 13]; vXh = 14; vT = 15
    AQ, AK, AV = 24, 40, 56
    KH, VH = 72, 80
    CSA = 88
    SEL, ONES = 100, 104
    MKP, MKC, MKP0 = 108, 112, 116
    SQ, SM, HQ, HM = 120, 122, 124, 126
    ME, MO = 128, 129; T = 130
    XH, XE, XO = 136, 140, 144
    FR = 148; NS = 4
    fr = lambda n, k: FR + 16 * (n % NS) + 4 * k
    if not cfg.fastx: xdma_addr(P, vT, vT + 1)
    wdma_addr(P, vWD, WQS, vT, 'zero' if cfg.zpad else True)
    P.I(f'''
    s_and_b32 s{sPP}, s{sWAVE}, 3
    s_lshr_b32 s{sHH}, s{sWAVE}, 2
    s_and_b32 s{sT2}, s{sWAVE}, 1
    s_lshl_b32 s{sT0}, s{sMT}, 7
    s_lshl_b32 s{sT1}, s{sT2}, 3
    s_add_u32 s{sT0}, s{sT0}, s{sT1}
    s_sub_u32 s{sT0}, s{sT0}, 16
    s_mul_i32 s{sT0}, s{sT0}, {XB}
    v_lshrrev_b32 v{vT}, 3, v{vLANE}
    v_mul_u32_u24 v{vT+2}, {XB}, v{vT}
    v_add_u32 v{vT+2}, s{sT0}, v{vT+2}
    v_lshrrev_b32 v{vT+1}, 4, v{vLANE}
    v_xor_b32 v{vT+1}, v{vT+1}, v{vLANE}
    s_lshl_b32 s{sT1}, s{sT2}, 2
    v_xor_b32 v{vT+1}, s{sT1}, v{vT+1}
    v_and_b32 v{vT+1}, 7, v{vT+1}
    v_lshl_add_u32 v{vHD}, v{vT+1}, 4, v{vT+2}
    s_mul_i32 s{sWC}, s{sSUB}, 112
    s_nop 0
    ''')
    if not cfg.fastx: srd(P, sX, 4, 2048 * XB)
    srd(P, sW, 6, 448 * WQS)
    def chunk_dmas(c):
        a = ((c + 2) % 3) * AREA; L = []
        def fx(i): dmax(P, c, a, i, ('c', c))
        def fw(p):
            P.I(f's_add_u32 m0, s{sWW}, {a + 16384 + p*8192 - p*896}')
            if p == 0: P.I(f's_mul_i32 s89, s{sKX[c]}, {64*WQS//128}\ns_add_u32 s89, s89, s{sWC}')
            P.V(f'buffer_load_dwordx4 v{vWD}, s[{sW}:{sW+3}], s89 offen offset:{p*896}{cfg.wnt} lds', ('c', c))
        if 'attidle' in cfg.exp: return []
        return [lambda: fx(0), lambda: fx(1), lambda: fw(0), lambda: fw(1), lambda: fw(2)]
    rot_first(P, cfg, 1)
    C0 = chunk_dmas(0)[2:]
    for _ in range(min(3, cfg.a0e)): C0.pop(0)()
    def halo_dma():
        P.I(f'''
    s_lshr_b32 s{sT0}, s{sWAVE}, 1
    s_lshl_b32 s{sT0}, s{sT0}, 7
    s_add_u32 s{sT0}, s{sT0}, s{sKX[0]}
    s_sub_u32 s{sT1}, s{sT0}, 896
    s_cmp_ge_u32 s{sT0}, 896
    s_cselect_b32 s{sT0}, s{sT1}, s{sT0}
    s_add_u32 m0, s{sWW}, {HALO}
    ''')
        P.V(f'buffer_load_dwordx4 v{vHD}, s[{sX}:{sX+3}], s{sT0} offen lds', ('c', 0))
        P.I(f'''
    s_cmp_lt_u32 s{sWAVE}, 6
    s_cselect_b32 s{sT1}, 512, 0
    s_cselect_b32 s{sT2}, 8192, 0
    s_add_u32 s{sT0}, s{sT0}, s{sT1}
    s_sub_u32 s{sT1}, s{sT0}, 896
    s_cmp_ge_u32 s{sT0}, 896
    s_cselect_b32 s{sT0}, s{sT1}, s{sT0}
    s_add_u32 s{sT2}, s{sT2}, s{sWW}
    s_add_u32 m0, s{sT2}, {HALO}
    ''')
        P.V(f'buffer_load_dwordx4 v{vHD}, s[{sX}:{sX+3}], s{sT0} offen lds', ('c', 0))
    if cfg.a0e >= 5: halo_dma()
    stamp(P, cfg, 'w0')
    rot_rest(P, 1, 7)
    if not cfg.noob: P.I('s_barrier')
    s1_prefetch(P, cfg, 1, vT)
    stamp(P, cfg, 'issued')
    srd(P, sWS, 24, WS_SIZE); srd(P, sDBG, 22, 256)
    frag_addrs(P, sPP, sHH, 56, vXa, vWa, vT, cfg.zpad)
    vROW = 240; i15, g4 = 241, 242
    P.I(f'''
    v_mov_b32 v{vROW}, v{vT}
    v_and_b32 v{i15}, 15, v{vLANE}
    v_lshrrev_b32 v{g4}, 4, v{vLANE}
    v_lshrrev_b32 v{vT}, 1, v{i15}
    v_lshrrev_b32 v{vT+1}, 5, v{vLANE}
    v_xor_b32 v{vT}, v{vT}, v{vT+1}
    s_xor_b32 s{sT0}, s{sT2}, 1
    s_lshl_b32 s{sT0}, s{sT0}, 1
    v_xor_b32 v{vT}, s{sT0}, v{vT}
    v_lshlrev_b32 v{vT}, 4, v{vT}
    v_lshl_add_u32 v{vT}, v{i15}, 7, v{vT}
    v_add_u32 v{vXh}, {HALO}, v{vT}
    v_and_b32 v{MO}, 1, v{g4}
    v_add_u32 v{ME}, -1, v{MO}
    v_not_b32 v{MO}, v{ME}
    ''')
    for s in range(4): P.I(f'v_add_u32 v{vWa[s]}, {16384 + 2*AREA}, v{vWa[s]}\nv_add_u32 v{vXa[s]}, {2*AREA}, v{vXa[s]}')
    make_sel(P, SEL, vT)
    for i in range(4): P.I(f'v_mov_b32 v{ONES+i}, 0x3f803f80')
    P.I(f'v_lshlrev_b32 v{vT}, 2, v{g4}\nv_sub_u32 v{vT}, v{i15}, v{vT}\nv_mov_b32 v{vT+3}, {f32(NEG)}')
    for v in range(4):
        P.I(f'''
        v_subrev_u32 v{vT+1}, {v}, v{vT}
        v_and_b32 v{vT+2}, 0xfffffff1, v{vT+1}
        v_cmp_eq_u32 vcc, 0, v{vT+2}
        v_cndmask_b32 v{MKC+v}, v{vT+3}, 0, vcc
        v_add_u32 v{vT+1}, 16, v{vT+1}
        v_and_b32 v{vT+2}, 0xfffffff1, v{vT+1}
        v_cmp_eq_u32 vcc, 0, v{vT+2}
        v_cndmask_b32 v{MKP+v}, v{vT+3}, 0, vcc
        ''')
    P.I(f's_or_b32 s{sT0}, s{sMT}, s{sPP}\ns_cmp_eq_u32 s{sT0}, 0\ns_cselect_b64 vcc, -1, 0')
    for v in range(4): P.I(f'v_cndmask_b32 v{MKP0+v}, v{MKP+v}, v{vT+3}, vcc')
    P.I(f'''
    s_lshl_b32 s{sT0}, s{sMT}, 2
    s_add_u32 s{sT0}, s{sT0}, s{sPP}
    s_lshl_b32 s{sT0}, s{sT0}, 15
    s_lshl_b32 s{sT1}, s{sSUB}, 1
    s_add_u32 s{sT1}, s{sT1}, s{sHH}
    s_lshl_b32 s{sT1}, s{sT1}, 11
    s_add_u32 s{sOB}, s{sT0}, s{sT1}
    s_add_u32 s{sOB}, s{sOB}, {O_OFF}
    s_and_b32 s{sPFI}, s{sJ}, 15
    s_lshl_b32 s{sPFI}, s{sPFI}, 3
    s_add_u32 s{sPFI}, s{sPFI}, s{sWAVE}
    s_mul_i32 s{sPFI}, s{sPFI}, {cfg.pfn}
    v_lshlrev_b32 v{vT+8}, 7, v{vLANE}
    ''')
    aST, aHSW, aHSR, aCSW, aCSR, aHPW, aHPR, aRW = 236, 237, 238, 239, 243, 244, 245, 246
    aRR, aRHW, aRHR, aEXW, aEXR, aEXH, vO = 247, 248, 134, 135, 16, 17, 18
    aEXR, aEXH, vO, mLO, mS, m48 = 19, 20, 21, 22, 251, 5
    P.I(f'''
    s_mul_i32 s{sT0}, s{sHH}, 1536
    s_add_u32 s{sT0}, s{sT0}, {CS_LDS}
    v_and_b32 v{vT}, 31, v{vLANE}
    v_lshlrev_b32 v{aCSR}, 4, v{vT}
    v_add_u32 v{aCSR}, s{sT0}, v{aCSR}
    s_lshl_b32 s{sT1}, s{sPP}, 2
    v_add_u32 v{aCSW}, s{sT1}, v{aCSR}
    v_lshlrev_b32 v{vT+1}, 4, v{vLANE}
    s_lshl_b32 s{sT0}, s{sHH}, 14
    s_add_u32 s{sT0}, s{sT0}, {HP_LDS}
    s_lshl_b32 s{sT1}, s{sPP}, 10
    s_add_u32 s{sT1}, s{sT1}, s{sT0}
    v_add_u32 v{aHPW}, s{sT1}, v{vT+1}
    s_lshl_b32 s{sT1}, s{sPP}, 12
    s_add_u32 s{sT1}, s{sT1}, s{sT0}
    v_add_u32 v{aHPR}, s{sT1}, v{vT+1}
    s_lshl_b32 s{sT0}, s{sPP}, 7
    v_lshrrev_b32 v{aRR}, 5, v{vLANE}
    v_add_u32 v{mLO}, -1, v{aRR}
    v_lshlrev_b32 v{aRR}, 4, v{aRR}
    v_add_u32 v{aRR}, s{sT0}, v{aRR}
    s_lshl_b32 s{sT0}, s{sHH}, 13
    s_add_u32 s{sT0}, s{sT0}, {EX_LDS}
    s_lshr_b32 s{sT1}, s{sPP}, 1
    s_lshl_b32 s{sT1}, s{sT1}, 10
    s_and_b32 s{sT2}, s{sPP}, 1
    s_lshl_b32 s{sT2}, s{sT2}, 3
    s_add_u32 s{sT1}, s{sT1}, s{sT2}
    s_add_u32 s{sT1}, s{sT1}, s{sT0}
    v_add_u32 v{aEXH}, s{sT1}, v{vT+1}
    s_lshl_b32 s{sT1}, s{sPP}, 11
    s_add_u32 s{sT0}, s{sT0}, s{sT1}
    v_add_u32 v{aEXR}, s{sT0}, v{vT+1}
    s_add_u32 s{sT0}, s{sT0}, 2048
    s_cmp_eq_u32 s{sPP}, 3
    s_cselect_b32 s{sT0}, {EX_LDS + 16384}, s{sT0}
    v_add_u32 v{aEXW}, s{sT0}, v{vT+1}
    v_lshlrev_b32 v{vO}, 9, v{g4}
    v_lshl_add_u32 v{vO}, v{i15}, 4, v{vO}
    s_and_b32 s{sT0}, s{sPP}, 1
    s_sub_u32 s{sT0}, 0, s{sT0}
    v_xor_b32 v{mS}, s{sT0}, v{ME}
    v_and_b32 v{mS}, v{mS}, v{mLO}
    ''')
    def w2pf(c):
        u = P.uid()
        P.I(f'''
        s_add_u32 s{sT0}, s{sPFI}, {c}
        s_mul_i32 s{sT1}, s{sT0}, {cfg.pfl*128}
        s_mov_b32 s{sW2}, s16
        s_mov_b32 s{sW2+1}, s17
        s_mov_b32 s{sW2+2}, {1792*XB}
        s_mov_b32 s{sW2+3}, 0x20000
        s_cmp_lt_u32 s{sT0}, {-(-12544//cfg.pfl)}
        s_cbranch_scc1 L_pf{u}
        s_mov_b32 s{sW2}, s8
        s_mov_b32 s{sW2+1}, s9
        s_mov_b32 s{sW2+2}, {448*XB}
        s_sub_u32 s{sT1}, s{sT1}, {-(-12544//cfg.pfl)*cfg.pfl*128}
        L_pf{u}:
        s_mov_b64 exec, {(1 << cfg.pfl) - 1:#x}
        ''')
        P.V(f'buffer_load_dword v{vPF}, v{vT+8}, s[{sW2}:{sW2+3}], s{sT1} offen', 'pf')
        P.I('s_mov_b64 exec, -1')
    sSC, sSB = 79, 26
    R, M, RH, MH = 120, 121, 122, 123
    RR, SC = 212, 228
    RR, SC = 180, 124
    def st_poll():
        flag_check(P, 'a')
        P.I(f'''
        s_lshl_b32 s{sT0}, s{sSUB}, 11
        s_lshl_b32 s{sT1}, s{sMT}, 7
        s_add_u32 s{sSC}, s{sT0}, s{sT1}
        s_add_u32 s{sSC}, s{sSC}, {CNT_OFF + 8192}
        s_cmp_eq_u32 s{sMT}, 0
        s_cselect_b32 s{sT1}, 0, 128
        v_mov_b32 v{T}, s{sT1}
        v_and_b32 v{T}, v{mLO}, v{T}
        v_sub_u32 v{T}, s{sSC}, v{T}
        ''')
        svc_load(P, T + 1, sWS, '0', T)
    def st_check():
        if 'nomlp' in cfg.exp: return
        u = svc_begin(P)
        spin(P, T + 1, sWS, '0', cfg.stat_expect, T)
        svc_end(P, u)
    def st_loads():
        P.I(f'''
        s_lshl_b32 s{sT0}, s{sSUB}, 14
        s_lshl_b32 s{sT1}, s{sMT}, 9
        s_add_u32 s{sSB}, s{sT0}, s{sT1}
        s_add_u32 s{sSB}, s{sSB}, {STAT_OFF}
        s_add_u32 s{sT1}, s{sSB}, 8192
        v_lshlrev_b32 v{T}, 2, v{vROW}
        s_cmp_eq_u32 s{sMT}, 0
        s_cselect_b32 s{sT2}, 0x40000000, -64
        v_lshlrev_b32 v{T+1}, 2, v{i15}
        v_add_u32 v{T+1}, s{sT2}, v{T+1}
        v_lshlrev_b32 v{T+2}, 4, v{g4}
        v_add_u32 v{T+2}, s{sT2}, v{T+2}
        v_add_u32 v{T+1}, s{sSB}, v{T+1}
        v_add_u32 v{T+2}, s{sSB}, v{T+2}
        ''')
        ws = f's[{sWS}:{sWS+3}]'
        P.V(f'buffer_load_dword v{R}, v{T}, {ws}, s{sSB} offen sc1', 'sl')
        P.V(f'buffer_load_dword v{M}, v{T}, {ws}, s{sT1} offen sc1', 'sl')
        P.V(f'buffer_load_dword v{RH}, v{T+1}, {ws}, 0 offen sc1', 'sl')
        P.I(f'v_add_u32 v{T+3}, 8192, v{T+1}')
        P.V(f'buffer_load_dword v{MH}, v{T+3}, {ws}, 0 offen sc1', 'sl')
        P.V(f'buffer_load_dwordx4 v[{SC}:{SC+3}], v{T+2}, {ws}, 0 offen sc1', 'sl')
        for q in range(4): P.V(f'buffer_load_dwordx4 v[{RRG+4*q}:{RRG+4*q+3}], v{aRR}, {ws}, s{sSB} offen offset:{32*q} sc1', 'sl')
    RRG = 212
    def reads(n):
        c, s = divmod(n, 4); L = []
        L.append(lambda: P.D(f'ds_read_b128 v[{fr(n,0)}:{fr(n,0)+3}], v{vXa[s]}', ('r', n)))
        for p in range(3):
            d = fr(n, 1 + p)
            L.append(lambda d=d, p=p: P.D(f'ds_read_b64_tr_b16 v[{d}:{d+1}], v{vWa[s]} offset:{p*8192}', ('r', n)))
            L.append(lambda d=d, p=p: P.D(f'ds_read_b64_tr_b16 v[{d+2}:{d+3}], v{vWa[s]} offset:{p*8192+512}', ('r', n)))
        if s == 1 and not (cfg.fasttail and c == 6): L.append(lambda: P.D(f'ds_read_b128 v[{XH}:{XH+3}], v{vXh} offset:{c*2048}', ('r', n)))
        delta = AREA if c % 3 else -2 * AREA
        if c < 6:
            L.append(f'v_add_u32 v{vXa[s]}, {delta & 0xffffffff:#x}, v{vXa[s]}')
            L.append(f'v_add_u32 v{vWa[s]}, {delta & 0xffffffff:#x}, v{vWa[s]}')
        return L
    def run(L, k):
        for _ in range(k):
            if L:
                x = L.pop(0)
                if callable(x): x()
                else: P.I(x)
    F = Filler(P)
    s2_early_setup(P, vT)
    if not cfg.prof: s2_tables(P, cfg)
    if cfg.dpf: dpf_setup(P); P.I(f'v_lshlrev_b32 v236, 4, v{vLANE}')
    stamp(P, cfg, 'setup')
    for f in C0: f()
    if cfg.a0e < 5: halo_dma()
    P.I(f'v_subrev_u32 v{m48}, 48, v{vLANE}\nv_ashrrev_i32 v{m48}, 31, v{m48}')
    for f in chunk_dmas(1): f()
    P.L.append('; SETUP_END')
    P.wait_vm(('c', 0)); P.I('s_barrier'); stamp(P, cfg, 'c0b')
    for n in (0, 1): run(reads(n), 99)
    for f in chunk_dmas(2): f()
    DQ = []
    global NOM16
    NOM16 = 'a_nom16' in cfg.exp
    t = vT
    Fq = FR
    CP = Fq; AX = Fq + 16; BX = Fq + 28
    HA = KH
    QOP, KOP, VOP = 204, 212, 224
    BS = XE; RR = RRG
    RQ, RZ = T, T + 2
    qs = 28 ** -0.5 * LOG2E
    def negm_ops(m, mask, d0, d1, tmp, zero):
        return [f'v_and_b32 v{m}, v{mask}, v{m}', f'v_sub_f32 v{m}, 0, v{m}', f'v_cvt_pk_bf16_f32 v{d1}, v{m}, v{zero}',
                f'v_lshlrev_b32 v{tmp}, 16, v{d1}', f'v_sub_f32 v{tmp}, v{m}, v{tmp}', f'v_cvt_pk_bf16_f32 v{d0}, v{m}, v{tmp}']
    def e0_writes():
        L = [lambda p=p: P.D(f'ds_write_b32 v{aCSW}, v{CSA+4*p} offset:{512*p}', 'w') for p in range(3)]
        return L + [lambda k=k: P.D(f'ds_write_b128 v{aHPW}, v[{KH+4*k}:{KH+4*k+3}] offset:{4096*k}', 'w') for k in range(4)]
    def e0_prep():
        L = [f'v_mov_b32 v{AX+4*p+2+d}, 0' for p in range(3) for d in range(2)] + [f'v_mov_b32 v{r}, 0' for r in (BX + 2, BX + 3, BS + 2, BS + 3)]
        L += [lambda: P.wait_vm('sl')] + negm_ops(M, mLO, BX, BX + 1, t, BX + 3) + negm_ops(MH, mS, BS, BS + 1, t, BX + 3)
        return L + [f'v_mul_f32 v{RQ}, {f32(qs)}, v{R}', f'v_and_b32 v{RZ}, v{mLO}, v{RQ}']
    def e1_reads():
        for p in (2, 1, 0): P.D(f'ds_read_b128 v[{CP+4*p}:{CP+4*p+3}], v{aCSR} offset:{512*p}', ('b', p))
        for k in range(4): P.D(f'ds_read_b128 v[{HA+4*k}:{HA+4*k+3}], v{aHPR} offset:{1024*k}', 'hp')
    FT = cfg.fasttail
    for n in range(28):
        c, s = divmod(n, 4); first = n == 0
        if s == 2 and c < 6:
            P.wait_vm(('c', c + 1)); P.wait_lg(('r', n + 1), 'xh6')
            if FT and n == 22: st_check()
            P.I('s_barrier'); stamp(P, cfg, f'c{c+1}b')
            if FT and n == 22: st_loads()
            DQ = chunk_dmas(c + 3) if c + 3 < 7 else []
            if 'a_nodma' in cfg.exp: DQ = []
            if cfg.attpf and cfg.pf0 <= c < cfg.pf0 + cfg.pfn: DQ = DQ + [lambda c=c: w2pf(c - cfg.pf0)]
            if c == 5:
                s2_srd(P, cfg); DQ = DQ + s2_xy(P, 'X')
            if cfg.dpf and 1 <= c <= 5: DQ = DQ + [lambda c=c: dpf(P, c - 1, 232, 236)]
            if c == cfg.m1c: DQ = DQ + [lambda: mall_pf1(P, vT + 8)]
            if c == 2: flag_prefetch(P, cfg)
            if c == cfg.mallc: DQ = DQ + [lambda: mall_pf(P, vT + 8)]
        nxt = reads(n + 2) if n + 2 < 28 else []
        P.wait_lg(('r', n))
        x, wq, wk, wv = fr(n, 0), fr(n, 1), fr(n, 2), fr(n, 3)
        f1 = n == 1; f3 = n == 3
        if s == 1:
            F.flush()
            F.add([f'v_and_b32 v{XE+d}, v{ME}, v{XH+d}' for d in range(4)] + [f'v_and_b32 v{XO+d}, v{MO}, v{XH+d}' for d in range(4)])
        B = 32
        if n == (cfg.ftpoll if FT else cfg.st_poll): st_poll()
        if FT and n == 26: F.add(e0_writes() + e0_prep()); B = 48
        if FT and n == 27:
            F.flush(); P.lg0(); P.I('s_barrier'); stamp(P, cfg, 'e1'); e1_reads()
        cs_here = (s == 3 and not (FT and c == 6)) or (FT and n == 24)
        if n == cfg.st_poll + 2 and not FT:
            stamp(P, cfg, 'sc0'); st_check(); P.I('s_barrier'); stamp(P, cfg, 'sc1'); st_loads()
        P.I(m32(AQ, wq, x, first))
        if s == 2: site(P, sHH, 0, DQ, False)
        run(nxt, 3); F.emit(B)
        if cs_here: P.I(m16(CSA, SEL, wq, f3))
        P.I(m32(AK, wk, x, first))
        run(nxt, 3); F.emit(B)
        if s == 1: P.I(m16(KH, wk, XE, f1)); P.I(m16(KH + 4, wk, XO, f1)); F.emit(16)
        if cs_here: P.I(m16(CSA + 4, SEL, wk, f3))
        P.I(m32(AV, x, wv, first))
        run(nxt, 99); F.emit(B)
        if s == 1: P.I(m16(VH, XE, wv, f1)); P.I(m16(VH + 4, XO, wv, f1)); F.emit(16)
        if cs_here: P.I(m16(CSA + 8, SEL, wv, f3))
        if FT and n == 21:
            F.flush(); P.D(f'ds_read_b128 v[{XH}:{XH+3}], v{vXh} offset:{6*2048}', 'xh6')
        if s == 3:
            F.flush()
            site(P, sHH, 1, DQ, True); DQ = []
    NOM16 = False
    stamp(P, cfg, 'loop')
    if not FT:
        F.add(e0_writes() + e0_prep()); F.flush()
        P.wait_vm('X')
        P.lg0(); P.I('s_barrier'); stamp(P, cfg, 'e1')
        e1_reads()
    P.lg0(); P.I('s_barrier')
    P.I(f'v_mov_b32 v{t}, {GO_LDS}')
    P.D(f'ds_write_b32 v{t}, v{BX+3}', 'z')
    XQ = s2_xy(P, 'Y')
    run(XQ, 2)
    for p in (2, 1, 0):
        P.wait_lg(('b', p))
        c = CP + 4 * p; a = AX + 4 * p
        P.I(f'''
        v_add_f32 v{c}, v{c}, v{c+1}
        v_add_f32 v{c+2}, v{c+2}, v{c+3}
        v_add_f32 v{c}, v{c}, v{c+2}
        v_cvt_pk_bf16_f32 v{a}, v{c}, v{c}
        v_lshlrev_b32 v{c+1}, 16, v{a}
        v_sub_f32 v{c+1}, v{c}, v{c+1}
        v_cvt_pk_bf16_f32 v{a+1}, v{c+1}, v{BX+3}
        ''')
        run(XQ, 1)
        P.I(m32(AV, BX, AX + 8, False) if p == 2 else m32(AK, AX + 4, BX, False) if p == 1 else m32(AQ, AX, BX, False))
    P.wait_lg('hp')
    pr = lambda r: f'v[{r}:{r+1}]'
    for e in (0, 2): P.I(f'v_pk_add_f32 {pr(HA+e)}, {pr(HA+e)}, {pr(HA+4+e)}')
    for e in (0, 2): P.I(f'v_pk_add_f32 {pr(HA+8+e)}, {pr(HA+8+e)}, {pr(HA+12+e)}')
    for e in (0, 2): P.I(f'v_pk_add_f32 {pr(HA+e)}, {pr(HA+e)}, {pr(HA+8+e)}')
    run(XQ, 3)
    P.I(f's_cmp_lt_u32 s{sPP}, 2\ns_cbranch_scc0 L_hv')
    P.I(m16(HA, AX + 4, BS, False))
    P.I('s_branch L_hd')
    P.label('L_hv')
    P.I(m16(HA, BS, AX + 8, False))
    P.label('L_hd')
    pmap = [0, 1, 4, 5, 2, 3, 6, 7]
    pr = lambda r: f'v[{r}:{r+1}]'
    def pack_T(acc, dst, r, rz):
        if 'a_nopack' in cfg.exp: return
        for v in range(0, 16, 2): P.I(f'v_pk_mul_f32 {pr(acc+v)}, {pr(acc+v)}, {pr(rz if v >= 12 else r)} op_sel_hi:[1,0]')
        for i in range(8): P.I(f'v_cvt_pk_bf16_f32 v{dst+pmap[i]}, v{acc+2*i}, v{acc+2*i+1}')
        for i in range(4): P.I(f'v_permlane32_swap_b32 v{dst+i}, v{dst+4+i}')
        for i in range(4): P.I(f'v_permlane16_swap_b32 v{dst+i}, v{dst+4+i}')
    for v in range(0, 16, 2): P.I(f'v_pk_mul_f32 {pr(AV+v)}, {pr(AV+v)}, {pr(RR+v)}')
    vmap = [VOP + 2, VOP + 3, VOP + 8, VOP + 9, VOP + 4, VOP + 5, VOP + 10, VOP + 11]
    for i in range(8): P.I(f'v_cvt_pk_bf16_f32 v{vmap[i]}, v{AV+2*i}, v{AV+2*i+1}')
    for i in range(2, 6): P.I(f'v_permlane32_swap_b32 v{VOP+i}, v{VOP+6+i}')
    for i in range(2, 6): P.I(f'v_permlane16_swap_b32 v{VOP+i}, v{VOP+6+i}')
    for tt in range(2): P.D(f'ds_write_b64 v{aEXW}, v[{VOP+6*tt+4}:{VOP+6*tt+5}] offset:{1024+8*tt}', 'x')
    pack_T(AK, KOP + 4, R, R)
    P.D(f'ds_write_b128 v{aEXW}, v[{KOP+8}:{KOP+11}]', 'x')
    P.I(f's_cmp_lt_u32 s{sPP}, 2\ns_cbranch_scc0 L_hv2')
    for v in (0, 2): P.I(f'v_pk_mul_f32 {pr(HA+v)}, {pr(HA+v)}, {pr(RH)} op_sel_hi:[1,0]')
    P.I('s_branch L_hd2')
    P.label('L_hv2')
    for v in (0, 2): P.I(f'v_pk_mul_f32 {pr(HA+v)}, {pr(HA+v)}, {pr(SC+v)}')
    P.label('L_hd2')
    P.I(f'v_cvt_pk_bf16_f32 v{HA+4}, v{HA}, v{HA+1}\nv_cvt_pk_bf16_f32 v{HA+5}, v{HA+2}, v{HA+3}')
    P.D(f'ds_write_b64 v{aEXH}, v[{HA+4}:{HA+5}]', 'x')
    P.wait_vm('X')
    P.lg0(); P.I('s_barrier'); stamp(P, cfg, 'e2')
    P.D(f'ds_read_b128 v[{KOP}:{KOP+3}], v{aEXR}', 'e')
    for tt in range(2): P.D(f'ds_read_b64 v[{VOP+6*tt}:{VOP+6*tt+1}], v{aEXR} offset:{1024+8*tt}', 'e')
    if cfg.hook_late: cfg.hook_late(P)
    pack_T(AQ, QOP, RQ, RZ)
    S = AK; PP = AK + 16; OO = AQ
    OB = [AQ, CSA]
    mfS = lambda d, a, b, c: f'v_mfma_f32_16x16x32_bf16 v[{d}:{d+3}], v[{a}:{a+3}], v[{b}:{b+3}], v[{c}:{c+3}]'
    P.lg0()
    P.I(mfS(S + 8, KOP + 4, QOP + 4, MKP)); P.I(mfS(S + 12, KOP + 8, QOP + 4, MKC)); P.I(mfS(S + 4, KOP + 4, QOP, MKC)); P.I(mfS(S, KOP, QOP, MKP0))
    mx = [t + 1, t + 3]
    order = (1, 0)
    for bb in order:
        s = S + 8 * bb; m = mx[bb]
        P.I(f'''
        v_max3_f32 v{m}, v{s}, v{s+1}, v{s+2}
        v_max3_f32 v{m+1}, v{s+3}, v{s+4}, v{s+5}
        v_max3_f32 v{m}, v{m}, v{s+6}, v{s+7}
        v_max_f32 v{m}, v{m}, v{m+1}
        v_mov_b32 v{m+1}, v{m}
        ''')
    for bb in order: P.I(f'v_permlane16_swap_b32 v{mx[bb]}, v{mx[bb]+1}')
    for bb in order: P.I(f'v_max_f32 v{mx[bb]}, v{mx[bb]}, v{mx[bb]+1}\nv_mov_b32 v{mx[bb]+1}, v{mx[bb]}')
    for bb in order: P.I(f'v_permlane32_swap_b32 v{mx[bb]}, v{mx[bb]+1}')
    for bb in order: P.I(f'v_max_f32 v{mx[bb]}, v{mx[bb]}, v{mx[bb]+1}')
    for bb in order:
        s = S + 8 * bb; o = OB[bb]; p = PP + 4 * bb
        for v in range(0, 8, 2): P.I(f'v_pk_add_f32 {pr(s+v)}, {pr(s+v)}, {pr(mx[bb])} op_sel_hi:[1,0] neg_lo:[0,1] neg_hi:[0,1]')
        for v in range(8): P.I(f'v_exp_f32 v{s+v}, v{s+v}')
        for v in range(4): P.I(f'v_cvt_pk_bf16_f32 v{p+v}, v{s+2*v}, v{s+2*v+1}')
        P.I(m16(o + 8, ONES, p, True))
        for tt in range(2): P.I(m16(o + 4 * tt, VOP + 6 * tt + 2 * bb, p, True))
    for bb in order:
        o = OB[bb]
        P.I(f'v_rcp_f32 v{o+8}, v{o+8}')
        P.I(f'v_and_b32 v{o+10}, v{m48}, v{o+8}')
        for v in (0, 2): P.I(f'v_pk_mul_f32 {pr(o+v)}, {pr(o+v)}, {pr(o+8)} op_sel_hi:[1,0]')
        for v in (4, 6): P.I(f'v_pk_mul_f32 {pr(o+v)}, {pr(o+v)}, {pr(o+10)} op_sel_hi:[1,0]')
        for v in range(4): P.I(f'v_cvt_pk_bf16_f32 v{PP+4*bb+v}, v{o+2*v}, v{o+2*v+1}')
        P.V(f'buffer_store_dwordx4 v[{PP+4*bb}:{PP+4*bb+3}], v{vO}, s[{sWS}:{sWS+3}], s{sOB} offen offset:{256*bb}{cfg.sc}', 'st')
    stamp(P, cfg, 'end')
    assert not XQ
    stamp_flush(P, cfg)
    P.I(f's_branch {after}')
```

```python
from gen import *
from s2v2 import *
from s1v2 import (vPF, sKX, rot_first, rot_rest, dmax, wdma_addr, frag_addrs, make_sel, sq_ops, cost, Filler, site,
                  m32, m16, publish2, flag_check, atomic_inc, mall_pf, mall_pf1)

pr = lambda r: f'v[{r}:{r+1}]'
AH = 3
def set_ah(n):
    global AH
    AH = n

class Eng:
    def __init__(self, P, cfg, XF, WF, NWF, vWa, vXa, wslot, xslot):
        self.__dict__.update(locals()); del self.__dict__['self']
        self.F = Filler(P); self.xq = list(range(28)); self.xwin = 0
    def rd(self, gs, nblk):
        blk, s = divmod(gs, 28)
        if blk >= nblk: return
        slot = self.wslot[(blk, s // 4)]; dst = self.WF + 4 * (gs % self.NWF)
        off = (slot % 8) * SLOT; a = self.vWa[slot // 8][s % 4]
        self.P.D(f'ds_read_b64_tr_b16 v[{dst}:{dst+1}], v{a} offset:{off}', ('w', gs))
        self.P.D(f'ds_read_b64_tr_b16 v[{dst+2}:{dst+3}], v{a} offset:{off+512}', ('w', gs))
    def xreads(self, n, maxchunk):
        for _ in range(n):
            if not self.xq or self.xq[0] // 4 > maxchunk: return
            g = self.xq.pop(0); c, s = divmod(g, 4)
            base = self.xslot[c] * SLOT; win = base // 65536
            if win != self.xwin:
                assert s == 0
                d = (win - self.xwin) * 65536
                for k in range(4): self.P.I(f'v_add_u32 v{self.vXa[k]}, {d & 0xffffffff:#x}, v{self.vXa[k]}')
                self.xwin = win
            d = self.XF + 4 * g
            self.P.D(f'ds_read_b128 v[{d}:{d+3}], v{self.vXa[s]} offset:{base % 65536}', ('x', g))
    def budget(self, s, extra):
        left = 28 - s
        return max(8, int(self.F.total() / (left + extra) + 3))

def stat_addr(P, d, t):
    P.I(f'''
    s_lshl_b32 s{d}, s{sSUB}, 14
    s_lshl_b32 s{t}, s{sMT}, 9
    s_add_u32 s{d}, s{d}, s{t}
    s_add_u32 s{d}, s{d}, {STAT_OFF}
    ''')
def statc_addr(P, d, t):
    P.I(f'''
    s_lshl_b32 s{d}, s{sSUB}, 11
    s_lshl_b32 s{t}, s{sMT}, 7
    s_add_u32 s{d}, s{d}, s{t}
    s_add_u32 s{d}, s{d}, {CNT_OFF + 8192}
    ''')

def w2pf_m(P, k, n, lanes, t):
    u = P.uid(); nw2 = -(-12544 // lanes)
    P.I(f'''
    s_lshl_b32 s{sT0}, s{sJ}, 3
    s_add_u32 s{sT0}, s{sT0}, s{sWAVE}
    s_mul_i32 s{sT0}, s{sT0}, {n}
    s_add_u32 s{sT0}, s{sT0}, {k}
    s_mul_i32 s{sT1}, s{sT0}, {lanes*128}
    s_mov_b32 s{sW2}, s16
    s_mov_b32 s{sW2+1}, s17
    s_mov_b32 s{sW2+2}, {1792*XB}
    s_mov_b32 s{sW2+3}, 0x20000
    s_cmp_lt_u32 s{sT0}, {nw2}
    s_cbranch_scc1 L_pf{u}
    s_mov_b32 s{sW2}, s8
    s_mov_b32 s{sW2+1}, s9
    s_mov_b32 s{sW2+2}, {448*XB}
    s_sub_u32 s{sT1}, s{sT1}, {nw2*lanes*128}
    L_pf{u}:
    s_mov_b64 exec, {-1 if lanes == 64 else (1 << lanes) - 1}
    ''')
    P.V(f'buffer_load_dword v{vPF}, v{t}, s[{sW2}:{sW2+3}], s{sT1} offen', 'pf')
    P.I('s_mov_b64 exec, -1')

def l2pf_late(P, t):
    srd(P, sWO, 8, 448 * XB)
    P.I(f's_lshl_b32 s{sT1}, s{sJ}, 2\ns_and_b32 s{sT0}, s{sWAVE}, 3\ns_add_u32 s{sT1}, s{sT1}, s{sT0}')
    u = P.uid()
    P.I(f'''
    s_mul_i32 s{sT0}, s{sT1}, 4682
    s_lshr_b32 s{sT0}, s{sT0}, 16
    s_mul_i32 s{sT2}, s{sT0}, {448*XB - 14*8192}
    s_lshl_b32 s{sT0}, s{sT1}, 13
    s_add_u32 s{sT0}, s{sT0}, s{sT2}
    s_add_u32 s{sT0}, s{sT0}, {128*XB}
    s_cmp_lt_u32 s{sT1}, 56
    s_cbranch_scc1 L_lp{u}
    s_sub_u32 s{sT0}, s{sT1}, 56
    s_lshl_b32 s{sT0}, s{sT0}, 13
    L_lp{u}:
    s_cselect_b32 s{sT2}, 0, 1
    ''')
    u2 = P.uid()
    P.I(f's_cbranch_scc0 L_lq{u2}\nbuffer_load_dword v{vPF}, v{t}, s[{sW2}:{sW2+3}], s{sT0} offen\ns_branch L_lr{u2}\nL_lq{u2}:\nbuffer_load_dword v{vPF}, v{t}, s[{sWO}:{sWO+3}], s{sT0} offen\nL_lr{u2}:')
    P.vm.issue('pf')
    u = P.uid()
    P.I(f'''
    s_mul_i32 s{sT0}, s{sT1}, 9363
    s_lshr_b32 s{sT0}, s{sT0}, 16
    s_mul_i32 s{sT2}, s{sT0}, {448*XB - 7*8192}
    s_lshl_b32 s{sT0}, s{sT1}, 13
    s_add_u32 s{sT0}, s{sT0}, s{sT2}
    s_add_u32 s{sT0}, s{sT0}, {384*XB}
    s_cmp_lt_u32 s{sT1}, 28
    s_cbranch_scc0 L_lq{u}
    buffer_load_dword v{vPF}, v{t}, s[{sW2}:{sW2+3}], s{sT0} offen
    s_branch L_lr{u}
    L_lq{u}:
    s_sub_u32 s{sT0}, s{sT1}, 20
    s_lshl_b32 s{sT0}, s{sT0}, 13
    buffer_load_dword v{vPF}, v{t}, s[{sWO}:{sWO+3}], s{sT0} offen
    L_lr{u}:
    ''')
    P.vm.issue('pf')

def mlp_v3(P, cfg, after):
    if 'nomlp' in cfg.exp:
        init_zero(P, cfg, 224); P.L.append('; SETUP_END'); P.I('s_waitcnt vmcnt(0)'); init_flag(P, cfg, 224, 'a'); P.I('s_endpgm'); return
    sCOLP, sCOLS, sHP, sHSG, sBP, sBS, sG, sTT = 74, 75, 76, 77, 78, 79, 27, 26
    vWD, vWDs = 4, 5
    vWa = [[6 + 4 * w + s for s in range(4)] for w in range(3)]
    vXa = [18, 19, 20, 21]
    vHS, vCSW = 22, 23
    XF = 24; ACC = [136, 152]; WF = 168; NWF = 6
    CSA, SEL, BX, AX = 192, 196, 200, 204
    vK0, vK1, vRI = 208, 209, 210; BR = 211; vCSR, vSTW, vSTR = 215, 216, 217
    SQ = 218; SUMA = 220; T = 224; U = 228; PK = 236
    B3_LDS = 16 * SLOT; CS_LDS = B3_LDS + 28672; ST_LDS = CS_LDS + 2048; CNT_LDS = ST_LDS
    if not cfg.fastx: xdma_addr(P, T, T + 1)
    wdma_addr(P, vWD, W1S, T)
    P.I(f'''
    s_lshr_b32 s{sG}, s{sWAVE}, 2
    s_and_b32 s{sTT}, s{sWAVE}, 3
    s_and_b32 s{sT2}, s{sSUB}, 1
    s_mul_i32 s{sT0}, s{sSUB}, 448
    s_lshl_b32 s{sT1}, s{sT2}, 6
    s_add_u32 s{sCOLP}, s{sT0}, s{sT1}
    s_add_u32 s{sCOLS}, s{sT0}, 384
    s_sub_u32 s{sBS}, s{sT0}, 64
    s_cmp_eq_u32 s{sT2}, 0
    s_cselect_b32 s{sCOLS}, s{sCOLS}, s{sBS}
    s_add_u32 s{sBS}, s{sCOLS}, s{sT1}
    s_mov_b32 s{sCOLS}, s{sT0}
    v_add_u32 v{vWD}, s{sT1}, v{vWD}
    s_nop 0
    ''')
    if not cfg.fastx: srd(P, sX, 4, 2048 * XB)
    srd(P, sW, 12, 448 * W1S)
    xslot = {c: 2 * c for c in range(7)}
    wslot = {}
    for c, s in zip(range(7), [14, 15, 16, 17, 18, 0, 1]): wslot[(0, c)] = s
    for c, s in zip(range(7), [2, 3, 4, 5, 6, 7, 8]): wslot[(1, c)] = s
    for c, s in zip(range(7), [9, 10, 11, 12, 13, 14, 15]): wslot[(2, c)] = s
    for c, s in zip(range(7), [14, 15, 16, 17, 18, 8, 9]): wslot[(3, c)] = s
    kw_ready = [False]
    def dw(blk, c, tag):
        def f3():
            if c == 0: P.I('s_lshr_b64 exec, -1, 32')
            P.I(f's_add_u32 m0, s59, {B3_LDS + 4096*c}')
            P.V(f'buffer_load_dwordx4 v{vWDs}, s[{sW}:{sW+3}], s{52+c} offen{cfg.wnt} lds', tag)
            if c == 6: P.I('s_mov_b64 exec, -1')
        if blk == 3: return f3
        def f():
            slot = wslot[(blk, c)]
            off = 128 * blk if blk < 3 else 0
            if slot * SLOT < off:
                P.I(f's_add_u32 m0, s{sWW}, {slot*SLOT}\ns_mul_i32 s{sT0}, s{sKX[c]}, {64*W1S//128}\ns_add_u32 s{sT0}, s{sT0}, s{sCOLS}\ns_add_u32 s{sT0}, s{sT0}, {off}')
                off = 0
            else:
                if kw_ready[0]:
                    P.I(f's_add_u32 m0, s{sWW}, {slot*SLOT - off}')
                    P.V(f'buffer_load_dwordx4 v{vWD}, s[{sW}:{sW+3}], s{52+c} offen offset:{off}{cfg.wnt} lds', tag); return
                P.I(f's_add_u32 m0, s{sWW}, {slot*SLOT - off}\ns_mul_i32 s{sT0}, s{sKX[c]}, {64*W1S//128}\ns_add_u32 s{sT0}, s{sT0}, s{sCOLS}')
            P.V(f'buffer_load_dwordx4 v{vWD if blk < 3 else vWDs}, s[{sW}:{sW+3}], s{sT0} offen offset:{off}{cfg.wnt} lds', tag)
        return f
    def dx(c, tag): return [lambda: dmax(P, c, xslot[c] * SLOT, 0, tag), lambda: dmax(P, c, xslot[c] * SLOT, 1, tag)]
    rot_first(P, cfg, 0)
    if not cfg.fastx:
        for f in dx(0, 'a'): f()
    rot_rest(P, 1, 7)
    dw(0, 0, 'a')()
    stamp(P, cfg, 'w0')
    if not cfg.noob: P.I('s_barrier')
    stamp(P, cfg, 'ob')
    init_zero(P, cfg, T)
    C1 = dx(1, 'a1') + [dw(0, 1, 'a1')]
    for _ in range(cfg.c1e): C1.pop(0)()
    srd(P, sB1, 14, 1792 * 2)
    P.I(f'''
    s_lshl_b32 s{sT0}, s{sMT}, 2
    s_add_u32 s{sT0}, s{sT0}, s{sTT}
    s_mul_i32 s{sT0}, s{sT0}, {112*1024}
    s_lshl_b32 s{sT2}, s{sBS}, 5
    s_add_u32 s{sHSG}, s{sT0}, s{sT2}
    s_lshl_b32 s{sT2}, s{sG}, 6
    s_add_u32 s{sBP}, s{sCOLP}, s{sT2}
    s_lshl_b32 s{sT2}, s{sBP}, 5
    s_add_u32 s{sHP}, s{sT0}, s{sT2}
    v_and_b32 v{U}, 31, v{vLANE}
    v_lshlrev_b32 v{U+1}, 1, v{U}
    ''')
    frag_addrs(P, sTT, sG, 64, vXa, vWa[0], T)
    for w in (1, 2):
        for s in range(4): P.I(f'v_add_u32 v{vWa[w][s]}, {65536*w}, v{vWa[0][s]}')
    Q0 = dx(2, 'a2') + [dw(0, 2, 'a2')] + dx(3, 'b') + [dw(0, 3, 'b')] + dx(4, 'b') + [dw(0, 4, 'b')] + dx(5, 'c') + dx(6, 'c')
    for _ in range(cfg.ni0): Q0.pop(0)()
    P.I(f'''
    v_lshlrev_b32 v{vHS}, 4, v{vLANE}
    s_lshl_b32 s{sT2}, s{sG}, 9
    s_add_u32 s{sT2}, s{sT2}, {CS_LDS}
    v_lshlrev_b32 v{vCSR}, 4, v{U}
    v_add_u32 v{vCSR}, s{sT2}, v{vCSR}
    s_lshl_b32 s{sT2}, s{sTT}, 2
    v_add_u32 v{vCSW}, s{sT2}, v{vCSR}
    v_lshlrev_b32 v{T}, 3, v{T}
    s_lshl_b32 s{sT2}, s{sG}, 10
    s_add_u32 s{sT2}, s{sT2}, {ST_LDS}
    v_add_u32 v{vSTW}, s{sT2}, v{T}
    v_xor_b32 v{vSTR}, 0x400, v{vSTW}
    v_mov_b32 v{AX+3}, 0
    v_mov_b32 v{BX+3}, 0
    v_mov_b32 v{SQ}, 0
    v_mov_b32 v{SQ+1}, 0
    ''')
    make_sel(P, SEL, T)
    s2_early_setup(P, T)
    if not cfg.prof: s2_tables(P, cfg)
    if cfg.dpf: dpf_setup(P)
    P.I(f'''
    v_lshrrev_b32 v{T}, 2, v{vLANE}
    s_lshl_b32 s{sT0}, s{sWAVE}, 3
    v_add_u32 v{T}, s{sT0}, v{T}
    v_mul_u32_u24 v{T}, {W1S}, v{T}
    v_and_b32 v{T+1}, 3, v{vLANE}
    v_lshl_add_u32 v{vWDs}, v{T+1}, 4, v{T}
    s_sub_u32 s{sT0}, s{sBS}, s{sCOLS}
    v_add_u32 v{vWDs}, s{sT0}, v{vWDs}
    s_lshr_b32 s59, s{sWW}, 1
    ''')
    for c in range(7): P.I(f's_mul_i32 s{52+c}, s{sKX[c]}, {64*W1S//128}\ns_add_u32 s{52+c}, s{52+c}, s{sCOLS}')
    kw_ready[0] = True
    P.I(f'v_lshlrev_b32 v244, 7, v{vLANE}')
    stamp(P, cfg, 'setup')
    for f in C1: f()
    stamp(P, cfg, 'issued')
    for t in range(3):
        P.V(f'buffer_load_ushort v{BR+t}, v{U+1}, s[{sB1}:{sB1+3}], s{sBP} offen offset:{128*t}', 'bias')
    P.V(f'buffer_load_ushort v{BR+3}, v{U+1}, s[{sB1}:{sB1+3}], s{sBS} offen', 'bias')
    E = Eng(P, cfg, XF, WF, NWF, vWa, vXa, wslot, xslot); F = E.F
    rd_std = E.rd
    def rd(gs, nblk):
        blk, s = divmod(gs, 28)
        if blk != 3: return rd_std(gs, nblk)
        dst = WF + 4 * (gs % NWF); off = 4096 * (s // 4)
        P.D(f'ds_read_b64_tr_b16 v[{dst}:{dst+1}], v{vXa[s%4]} offset:{off}', ('w', gs))
        P.D(f'ds_read_b64_tr_b16 v[{dst+2}:{dst+3}], v{vXa[s%4]} offset:{off+256}', ('w', gs))
    E.rd = rd
    b3_addr = f'''v_lshrrev_b32 v{T}, 5, v{vLANE}
        v_lshlrev_b32 v{T}, 3, v{T}
        v_bfe_u32 v{T+1}, v{vLANE}, 2, 2
        v_add_u32 v{T}, v{T}, v{T+1}
        v_lshlrev_b32 v{T}, 6, v{T}
        v_and_b32 v{T+1}, 16, v{vLANE}
        v_lshl_add_u32 v{T}, v{T+1}, 1, v{T}
        v_and_b32 v{T+1}, 3, v{vLANE}
        v_lshl_add_u32 v{T}, v{T+1}, 3, v{T}
        s_xor_b32 s{sT0}, s{sG}, s{sTT}
        s_lshl_b32 s{sT0}, s{sT0}, 10
        s_add_u32 s{sT0}, s{sT0}, {B3_LDS}
        v_add_u32 v{vXa[0]}, s{sT0}, v{T}
        v_xor_b32 v{vXa[1]}, 0x400, v{vXa[0]}
        v_xor_b32 v{vXa[2]}, 0x800, v{vXa[0]}
        v_xor_b32 v{vXa[3]}, 0xc00, v{vXa[0]}
        v_mov_b32 v{T}, {CNT_LDS}
        v_mov_b32 v{T+2}, 0
        v_mov_b32 v{T+3}, 0
        ds_write_b64 v{T}, v[{T+2}:{T+3}]
        ds_write_b32 v{T}, v{T+2} offset:8
        ds_write_b32 v{T}, v{T+2} offset:{GO_LDS - CNT_LDS}'''
    def arrive(tag='stA', w=0):
        P.wait_vm(tag)
        P.I(f'v_mov_b32 v{SQ}, {CNT_LDS + w}\nv_mov_b32 v{SQ+1}, 1\ns_mov_b64 exec, 1')
        P.D(f'ds_add_rtn_u32 v{SQ+1}, v{SQ}, v{SQ+1}', 'arr')
        P.I('s_mov_b64 exec, -1')
    def hre(tile, tag):
        P.wait_vm(tag)
        P.I(f's_add_u32 s{sT0}, s{sHP}, {4096*tile}\ns_mov_b64 exec, 0xffff')
        P.V(f'buffer_load_dword v{vPF}, v244, s[{sWS}:{sWS+3}], s{sT0} offen{cfg.hrefl}', 'pf')
        P.I('s_mov_b64 exec, -1')
    def arrive_check(off=4096):
        u = P.uid()
        P.wait_lg('arr')
        P.I(f'v_readfirstlane_b32 s{sT0}, v{SQ+1}\ns_cmp_eq_u32 s{sT0}, 7\ns_cbranch_scc0 L_ar{u}')
        P.I(f's_lshl_b32 s{sT0}, s{sMT}, 7\ns_add_u32 s{sT0}, s{sT0}, {CNT_OFF + off}')
        atomic_inc(P, sT0)
        P.label(f'L_ar{u}')
    def bar(name, vm=(), lg=()):
        if vm: P.wait_vm(*vm)
        if lg: P.wait_lg(*lg)
        stamp(P, cfg, name + 'w'); P.I('s_barrier'); stamp(P, cfg, name + 'b')
    def cs_write(blk): P.D(f'ds_write_b32 v{vCSW}, v{CSA} offset:{1024*(blk%2)}', 'csw')
    def sites(D): return (lambda: site(P, sG, 0, D, False)), (lambda: site(P, sG, 1, D, True))
    P.L.append('; SETUP_END')
    bar('c0', vm=('a',))
    E.xreads(2, 0)
    for g in range(AH): E.rd(g, 4)
    E.xreads(2, 0)
    at = {}
    vis = 0
    for s in range(28):
        if s == 1:
            bar('a1', vm=('a1',)); vis = 1
            init_flag(P, cfg, PK, 'a')
        if s == 5: bar('a2', vm=('a2',)); vis = 2
        if s == 9:
            assert not Q0
            bar('Bb', vm=('b',), lg=(('x', 11),)); vis = 4
            for f in [dw(0, 5, 'c'), dw(0, 6, 'c'), dw(1, 0, 'c')]: f()
            flag_prefetch(P, cfg)
            at[10], at[13] = sites([dw(1, c, ('t', 1)) for c in range(1, 4)])
        if s == 17:
            bar('Bc', vm=('c',), lg=(('x', 19),)); vis = 6
            at[17], at[20] = sites([dw(1, c, ('t', 1)) for c in range(4, 7)] + [dw(2, 0, ('h', 2))])
        if s in at: at[s]()
        if s == cfg.malls and cfg.mallc >= 0: mall_pf(P, 244)
        if s == cfg.m1s: mall_pf1(P, 244)
        E.rd(s + AH, 4)
        w = WF + 4 * (s % NWF); x = XF + 4 * s
        P.wait_lg(('w', s), ('x', s))
        if s % 2 == 0 and 'nosq' not in cfg.exp and not cfg.dot2: F.add(sq_ops(x, T, SQ))
        if cfg.dot2 == 1 and s % 2 == 0:
            for d in range(4): P.I(f'v_dot2c_f32_bf16 v{SQ + (d & 1)}, v{x+d}, v{x+d}')
        if cfg.dot2 == 2 and s % 4 == 3:
            for xx in (x - 12, x - 4):
                for d in range(4): P.I(f'v_dot2c_f32_bf16 v{SQ + (d & 1)}, v{xx+d}, v{xx+d}')
        P.I(m32(ACC[0], w, x, s == 0))
        E.xreads(2, vis)
        for _ in range(2):
            if Q0: Q0.pop(0)()
        F.emit(20)
        if s % 4 == 0: P.I(m16(CSA, SEL, w, s == 0))
        if s % 2 == 1: P.I(m16(SUMA, SEL, x - 4, s == 1))
        F.emit(12)
    F.flush()
    P.I(f'''
    v_add_f32 v{SQ}, v{SQ}, v{SQ+1}
    v_mov_b32 v{SQ+1}, v{SQ}
    v_permlane32_swap_b32 v{SQ}, v{SQ+1}
    v_add_f32 v{SQ+1}, v{SQ}, v{SQ+1}
    v_mov_b32 v{SQ}, v{SUMA}
    ''')
    P.D(f'ds_write_b64 v{vSTW}, v[{SQ}:{SQ+1}]', 'csw')
    cs_write(0)
    stamp(P, cfg, 'T0e')

    mark = [0]
    def stat_store():
        P.wait_vm('bias'); assert True
        mark[0] = P.vm.n
        u = P.uid()
        P.I(f's_cmp_eq_u32 s{sG}, 0\ns_cbranch_scc0 L_ss{u}')
        stat_addr(P, sT0, sT2)
        P.I(f'''
        v_subrev_u32 v{SUMA+1}, {ST_LDS}, v{vSTW}
        v_lshrrev_b32 v{SUMA+1}, 1, v{SUMA+1}
        s_add_u32 s{sT2}, s{sT0}, 8192
        buffer_store_dword v{SUMA}, v{SUMA+1}, s[{sWS}:{sWS+3}], s{sT0} offen sc1
        buffer_store_dword v{U+2}, v{SUMA+1}, s[{sWS}:{sWS+3}], s{sT2} offen sc1
        L_ss{u}:
        ''')
    def stats_ops():
        t = T; R, M, V = U, U + 2, U + 3
        L = [lambda: P.wait_lg('str')]
        L += f'''v_add_f32 v{M}, v{SQ}, v{U+4}
        v_add_f32 v{V}, v{SQ+1}, v{U+5}
        v_mul_f32 v{M}, {f32(1.0/448)}, v{M}
        v_mul_f32 v{V}, {f32(1.0/448)}, v{V}
        v_fma_f32 v{V}, -v{M}, v{M}, v{V}
        v_max_f32 v{V}, 0, v{V}
        v_add_f32 v{t}, {f32(EPS)}, v{V}
        v_rsq_f32 v{SUMA}, v{t}'''.split('\n        ')
        L += [stat_store]
        L += f'''v_cmp_gt_u32 vcc, 32, v{vLANE}
        v_mul_f32 v{t+2}, v{SUMA}, v{SUMA}
        v_mul_f32 v{t+2}, v{t+2}, v{V}
        v_add_f32 v{t+2}, {f32(EPS)}, v{t+2}
        v_rsq_f32 v{R}, v{t+2}
        v_mul_f32 v{t}, v{t}, v{t+2}
        v_sqrt_f32 v{vRI}, v{t}
        v_mul_f32 v{R}, v{R}, v{SUMA}
        v_mul_f32 v{vK0}, {f32(GK0)}, v{R}
        v_mul_f32 v{t}, v{R}, v{R}
        v_mul_f32 v{t}, v{t}, v{R}
        v_mul_f32 v{vK1}, {f32(GK1)}, v{t}
        v_cndmask_b32 v{t}, 0, v{M}, vcc
        v_cndmask_b32 v{t+1}, 0, v{vRI}, vcc
        v_sub_f32 v{t}, 0, v{t}
        v_cvt_pk_bf16_f32 v{BX+1}, v{t}, v{t+1}
        v_lshlrev_b32 v{t+2}, 16, v{BX+1}
        v_sub_f32 v{t+2}, v{t}, v{t+2}
        v_cvt_pk_bf16_f32 v{BX}, v{t}, v{t+2}
        v_and_b32 v{t+2}, 0xffff0000, v{BX+1}
        v_sub_f32 v{t+2}, v{t+1}, v{t+2}
        v_cvt_pk_bf16_f32 v{BX+2}, v{t+2}, v{BX+3}'''.split('\n        ')
        return L
    def e_ops(tile, stag):
        A = ACC[tile % 2]
        P.D(f'ds_read_b128 v[{PK}:{PK+3}], v{vCSR} offset:{1024*(tile%2)}', 'csr')
        L = [lambda: P.wait_vm('bias'),
             f'v_lshlrev_b32 v{U}, 16, v{BR+tile}', f'v_mov_b32 v{AX+2}, v{BR+tile}',
             lambda: P.wait_lg('csr'),
             f'v_add_f32 v{T}, v{PK}, v{PK+1}', f'v_add_f32 v{T+2}, v{PK+2}, v{PK+3}', f'v_add_f32 v{T}, v{T}, v{T+2}',
             f'v_cvt_pk_bf16_f32 v{AX}, v{T}, v{T}', f'v_lshlrev_b32 v{T+1}, 16, v{AX}', f'v_sub_f32 v{T+1}, v{T}, v{T+1}',
             f'v_cvt_pk_bf16_f32 v{AX+1}, v{T+1}, v{U}',
             (f's_add_u32 s88, s{sHP}, {4096*tile}' if tile < 3 else f's_mov_b32 s88, s{sHSG}'),
             f's_nop 0',
             m32(A, AX, BX, False)]
        M = []
        for half in (range(2) if (tile == 3 and cfg.pk3) else ()):
            a = A + 8 * half; pk = PK + 4 * half; R4 = range(0, 8, 2)
            M += [f'v_pk_mul_f32 {pr(U+e)}, {pr(a+e)}, {pr(a+e)}' for e in R4]
            M += [f'v_pk_fma_f32 {pr(U+e)}, {pr(U+e)}, {pr(vK0)}, {pr(vK0)} op_sel:[0,1,0] op_sel_hi:[1,1,0]' for e in R4]
            M += [f'v_pk_mul_f32 {pr(U+e)}, {pr(a+e)}, {pr(U+e)}' for e in R4]
            M += [f'v_exp_f32 v{U+e}, v{U+e}' for e in range(8)]
            M += [f'v_pk_fma_f32 {pr(U+e)}, {pr(U+e)}, {pr(vRI)}, {pr(vRI)} op_sel_hi:[1,0,0]' for e in R4]
            M += [f'v_rcp_f32 v{U+e}, v{U+e}' for e in range(8)]
            M += [f'v_pk_mul_f32 {pr(U+e)}, {pr(a+e)}, {pr(U+e)}' for e in R4]
            M += [f'v_cvt_pk_bf16_f32 v{pk+e}, v{U+2*e}, v{U+2*e+1}' for e in range(4)]
            M.append(lambda half=half, pk=pk: P.V(f'buffer_store_dwordx4 v[{pk}:{pk+3}], v{vHS}, s[{sWS}:{sWS+3}], s88 offen offset:{1024*half}{cfg.sc}', stag))
        for half in (() if (tile == 3 and cfg.pk3) else range(2)):
            R8 = range(8); a = A + 8 * half; pk = PK + 4 * half
            M += [f'v_mul_f32 v{U+e}, v{a+e}, v{a+e}' for e in R8]
            M += [f'v_fma_f32 v{U+e}, v{U+e}, v{vK1}, v{vK0}' for e in R8]
            M += [f'v_mul_f32 v{U+e}, v{a+e}, v{U+e}' for e in R8]
            M += [f'v_exp_f32 v{U+e}, v{U+e}' for e in R8]
            M += [f'v_fma_f32 v{U+e}, v{U+e}, v{vRI}, v{vRI}' for e in R8]
            M += [f'v_rcp_f32 v{U+e}, v{U+e}' for e in R8]
            M += [f'v_mul_f32 v{U+e}, v{a+e}, v{U+e}' for e in R8]
            M += [f'v_cvt_pk_bf16_f32 v{pk+e}, v{U+2*e}, v{U+2*e+1}' for e in range(4)]
            if 'nost' in cfg.exp: M.append('s_nop 0')
            else: M.append(lambda half=half, pk=pk: P.V(f'buffer_store_dwordx4 v[{pk}:{pk+3}], v{vHS}, s[{sWS}:{sWS+3}], s88 offen offset:{1024*half}{cfg.sc}', stag))
        if 'nogelu' in cfg.exp: M = [x for x in M if callable(x) or 'cvt' in x or 'exp' in x]
        return L, M
    def barrier_B(j):
        if j == 1: flag_check(P, 'm')
        bar(f'B{j}', vm=(('t', j), ('h', j + 1)) + (('stA0', 'X') if j == 3 else ()), lg=('csw',))
        if j == 3: publish2(P, cfg, 0, 'a0', 4, barrier=False, tags=())
    def stat_signal(nD):
        n = P.vm.n - mark[0]
        u = P.uid()
        P.I(f's_cmp_eq_u32 s{sG}, 0\ns_cbranch_scc0 L_sw{u}\ns_waitcnt vmcnt({n + nD})')
        statc_addr(P, sT0, sT2)
        atomic_inc(P, sT0)
        P.label(f'L_sw{u}')
    def period(j):
        for s in range(28):
            gs = 28 * j + s
            if s == 1:
                barrier_B(j)
                if j == 1: P.D(f'ds_read_b64 v[{U+4}:{U+5}], v{vSTR}', 'str')
                pre, main = e_ops(j - 1, 'stA0' if j == 1 else 'stA' if j == 2 else 'stA2')
                if j == 1: F.add(stats_ops())
                F.add(pre)
                if j == 1: D = [dw(2, c, ('t', 2)) for c in range(1, 7)] + [dw(3, 0, ('h', 3))] + [dw(3, c, ('t', 3)) for c in range(1, 7)]
                if j == 2:
                    s2_srd(P, cfg); D = s2_xy(P, 'X')
                    def b3f():
                        P.I(b3_addr); P.lg.issue('z'); P.lg.issue('z'); P.lg.issue('z')
                    F.q.insert(0, b3f)
                if j == 3: D = []
                h = len(main) // 2
                if j == 1: main.insert(min(cfg.sigpos, len(main) // 2 - 2), lambda D=D: stat_signal(0 if cfg.uni else len(D))); h += 1
                if j < 3 and not cfg.uni:
                    sa, sb = sites(D)
                    rest = main[h:]
                    if cfg.dpf:
                        ks = ([0, 1, 2] if j == 1 else [3, 4]) if cfg.dpf == 1 else ([0, 1, 2, 3, 4] if j == cfg.dpf - 1 else [])
                        for n, k in enumerate(ks): rest.insert(4 + 12 * n, lambda k=k: dpf(P, k, 244, vHS))
                    if j == 1 and cfg.mallc >= 0 and cfg.malls < 0: rest.insert(2, lambda: mall_pf(P, 244))
                    if cfg.mlppf == j:
                        rest += [lambda: w2pf_m(P, 0, 2, 64, 244), lambda: w2pf_m(P, 1, 2, 64, 244)]
                    F.add([sa] + main[:h] + [sb] + rest)
                else:
                    k = max(1, int(len(main) * cfg.unif) // (len(D) + 1)); mix = []
                    for i, m in enumerate(main):
                        if D and i % k == 0: mix.append(D.pop(0))
                        mix.append(m)
                    F.add(mix + D)
            if j == 3 and s == cfg.apos: arrive()
            if j == 3 and s == cfg.apos + 3: arrive_check()
            if cfg.hre and j == 2 and s == cfg.hre: hre(0, 'stA0')
            if cfg.hre and j == 3 and s == cfg.apos + 1: hre(1, 'stA')
            E.rd(gs + AH, 4)
            b = 0 if s < 3 else E.budget(s, 0.5 * ((27 - s) // 4 + 1))
            w = WF + 4 * (gs % NWF); x = XF + 4 * s
            P.wait_lg(('w', gs))
            if cfg.alt and j < 3 and s % cfg.alt == 0:
                u = P.uid(); odd = (s // cfg.alt) % 2
                P.I(f's_setprio 0\ns_cmp_eq_u32 s{sG}, {odd}\ns_cbranch_scc0 L_pr{u}\ns_setprio 1\nL_pr{u}:')
            P.I(m32(ACC[j % 2], w, x, s == 0))
            F.emit(b)
            if s % 4 == 0:
                P.I(m16(CSA, SEL, w, s == 0)); F.emit(b // 2)
        F.flush()
        cs_write(j)
        stamp(P, cfg, f'T{j}e')
    period(1)
    period(2)
    if cfg.alt: P.I('s_setprio 0')
    P.I(f's_cmp_eq_u32 s{sG}, 0\ns_cbranch_scc0 L_mlp_g1')
    st0 = P.state()
    period(3)
    P.lg0()
    P.I(f'''
    v_mov_b32 v{SQ}, {CNT_LDS + 4}
    v_mov_b32 v{SQ+1}, 1
    s_mov_b64 exec, 1
    ds_add_u32 v{SQ}, v{SQ+1}
    s_mov_b64 exec, -1
    s_mov_b32 s{sT2}, {SPIN}
    L_g0s:
    ds_read_b32 v{SQ+1}, v{SQ}
    s_sub_u32 s{sT2}, s{sT2}, 1
    s_cbranch_scc1 L_g0x
    s_waitcnt lgkmcnt(0)
    v_readfirstlane_b32 s{sT0}, v{SQ+1}
    s_cmp_ge_u32 s{sT0}, 4
    s_cbranch_scc0 L_g0s
    L_g0x:
    ''')
    stamp(P, cfg, 'B4b')
    pre, main = e_ops(3, 'st')
    h = len(main) // 2
    if not cfg.noa2:
        main.insert(len(main) - 6, lambda: arrive_check(6144)); main.insert(h + cfg.a2off, lambda: arrive('stA2', 8))
    F.add(pre + main); F.flush()
    stamp(P, cfg, 'end')
    stamp_flush(P, cfg)
    P.I(f's_branch {after}')
    P.restore(st0)
    P.label('L_mlp_g1')
    barrier_B(3)
    pre, main = e_ops(2, 'stA2')
    XY = [f for pair in zip(s2_xy(P, 'Y', 2), s2_xy(P, 'Y')) for f in pair]
    k = len(main) // 9; mix = []
    for i, x in enumerate(main):
        if i and i % k == 0 and len(XY) > 8: mix.append(XY.pop(0))
        if i == len(main) * 7 // 12: mix.append(arrive)
        if i == len(main) * 8 // 12: mix.append(arrive_check)
        if cfg.hre and i == len(main) * 7 // 12 + 2: mix.append(lambda: hre(1, 'stA'))
        mix.append(x)
    F.add(pre + mix); F.flush()
    stamp(P, cfg, 'T3e')
    if cfg.l2pf == 1: l2pf_late(P, 244)
    for f in XY: f()
    if cfg.l2pf == 2: l2pf_late(P, 244)
    if not cfg.noa2: arrive('stA2', 8); arrive_check(6144)
    P.lg0()
    stamp(P, cfg, 'end')
    if cfg.hook_late: cfg.hook_late(P)
    stamp_flush(P, cfg)
    P.I(f's_branch {after}')

def att_v3(P, cfg, after):
    sPP, sHH, sOB, sWC, sSC, sSB = 74, 75, 76, 77, 79, 26
    vWD, vHD = 4, 5
    vWa = [[6 + 4 * w + s for s in range(4)] for w in range(3)]
    vXa = [18, 19, 20, 21]; vXh = 22; vL7 = 23
    XF = 24; AK, AV, AQ = 136, 152, 168; ACC = [AK, AV, AQ]
    WF = 184; NWF = 5
    KH, VH = 204, 212; CSA, SEL, XH, XE, XO = 220, 224, 228, 232, 236
    i15, g4, ME, mLO = 240, 241, 242, 243; T = 244; aCSW = 248; vROW = 251
    HALO = 12 * SLOT; CS_LDS = MISC; HP_LDS = 0; EX_LDS = 8 * SLOT; DUMMY = MISC + 4096
    part = [1, 2, 0]
    xdma_addr(P, T, T + 1)
    wdma_addr(P, vWD, WQS, T, True)
    P.I(f'''
    s_and_b32 s{sPP}, s{sWAVE}, 3
    s_lshr_b32 s{sHH}, s{sWAVE}, 2
    s_and_b32 s{sT2}, s{sWAVE}, 1
    s_lshl_b32 s{sT0}, s{sMT}, 7
    s_lshl_b32 s{sT1}, s{sT2}, 3
    s_add_u32 s{sT0}, s{sT0}, s{sT1}
    s_sub_u32 s{sT0}, s{sT0}, 16
    s_mul_i32 s{sT0}, s{sT0}, {XB}
    v_lshrrev_b32 v{T}, 3, v{vLANE}
    v_mul_u32_u24 v{T+2}, {XB}, v{T}
    v_add_u32 v{T+2}, s{sT0}, v{T+2}
    v_lshrrev_b32 v{T+1}, 4, v{vLANE}
    v_xor_b32 v{T+1}, v{T+1}, v{vLANE}
    s_lshl_b32 s{sT1}, s{sT2}, 2
    v_xor_b32 v{T+1}, s{sT1}, v{T+1}
    v_and_b32 v{T+1}, 7, v{T+1}
    v_lshl_add_u32 v{vHD}, v{T+1}, 4, v{T+2}
    s_mul_i32 s{sWC}, s{sSUB}, 112
    s_waitcnt lgkmcnt(0)
    ''')
    srd(P, sX, 4, 2048 * XB)
    srd(P, sW, 6, 448 * WQS)
    xslot = {c: 2 * c for c in range(6)}; xslot[6] = 0
    wslot = {}
    for c, s in zip(range(7), [14, 15, 16, 17, 18, 2, 3]): wslot[(0, c)] = s
    for c, s in zip(range(7), [4, 5, 6, 7, 8, 9, 10]): wslot[(1, c)] = s
    for c, s in zip(range(7), [11, 14, 15, 16, 17, 18, 12]): wslot[(2, c)] = s
    def dw(blk, c, tag):
        def f():
            off = 896 * part[blk]
            P.I(f's_add_u32 m0, s{sWW}, {wslot[(blk, c)]*SLOT - off}\ns_mul_i32 s{sT0}, s{sKX[c]}, {64*WQS//128}\ns_add_u32 s{sT0}, s{sT0}, s{sWC}')
            P.V(f'buffer_load_dwordx4 v{vWD}, s[{sW}:{sW+3}], s{sT0} offen offset:{off}{cfg.wnt} lds', tag)
        return f
    def dx(c, tag): return [lambda: dmax(P, c, xslot[c] * SLOT, 0, tag), lambda: dmax(P, c, xslot[c] * SLOT, 1, tag)]
    rot_first(P, cfg, 1)
    for f in dx(0, 'a'): f()
    dw(0, 0, 'a')()
    P.I(f'''
    s_lshr_b32 s{sT0}, s{sWAVE}, 1
    s_lshl_b32 s{sT0}, s{sT0}, 7
    s_add_u32 s{sT0}, s{sT0}, s{sKX[0]}
    s_sub_u32 s{sT1}, s{sT0}, 896
    s_cmp_ge_u32 s{sT0}, 896
    s_cselect_b32 s{sT0}, s{sT1}, s{sT0}
    s_add_u32 m0, s{sWW}, {HALO}
    ''')
    P.V(f'buffer_load_dwordx4 v{vHD}, s[{sX}:{sX+3}], s{sT0} offen lds', 'a')
    P.I(f'''
    s_cmp_lt_u32 s{sWAVE}, 6
    s_cselect_b32 s{sT1}, 512, 0
    s_cselect_b32 s{sT2}, 8192, 0
    s_add_u32 s{sT0}, s{sT0}, s{sT1}
    s_sub_u32 s{sT1}, s{sT0}, 896
    s_cmp_ge_u32 s{sT0}, 896
    s_cselect_b32 s{sT0}, s{sT1}, s{sT0}
    s_add_u32 s{sT2}, s{sT2}, s{sWW}
    s_add_u32 m0, s{sT2}, {HALO}
    ''')
    P.V(f'buffer_load_dwordx4 v{vHD}, s[{sX}:{sX+3}], s{sT0} offen lds', 'a')
    rot_rest(P, 1, 7)
    P.I('s_barrier')
    for f in dx(1, 'a1') + [dw(0, 1, 'a1')]: f()
    stamp(P, cfg, 'issued')
    srd(P, sWS, 24, WS_SIZE); srd(P, sDBG, 22, 256)
    frag_addrs(P, sPP, sHH, 56, vXa, vWa[0], T)
    for w in (1, 2):
        for s in range(4): P.I(f'v_add_u32 v{vWa[w][s]}, {65536*w}, v{vWa[0][s]}')
    P.I(f'''
    v_mov_b32 v{vROW}, v{T}
    v_and_b32 v{i15}, 15, v{vLANE}
    v_lshrrev_b32 v{g4}, 4, v{vLANE}
    v_lshrrev_b32 v{T}, 1, v{i15}
    v_lshrrev_b32 v{T+1}, 5, v{vLANE}
    v_add_u32 v{mLO}, -1, v{T+1}
    v_xor_b32 v{T}, v{T}, v{T+1}
    s_xor_b32 s{sT0}, s{sT2}, 1
    s_lshl_b32 s{sT0}, s{sT0}, 1
    v_xor_b32 v{T}, s{sT0}, v{T}
    v_lshlrev_b32 v{T}, 4, v{T}
    v_lshl_add_u32 v{T}, v{i15}, 7, v{T}
    v_add_u32 v{vXh}, {HALO}, v{T}
    v_and_b32 v{ME}, 1, v{g4}
    v_add_u32 v{ME}, -1, v{ME}
    s_mul_i32 s{sT0}, s{sHH}, 1536
    s_lshl_b32 s{sT1}, s{sPP}, 2
    s_add_u32 s{sT0}, s{sT0}, s{sT1}
    s_add_u32 s{sT0}, s{sT0}, {CS_LDS}
    v_and_b32 v{T}, 31, v{vLANE}
    v_lshlrev_b32 v{aCSW}, 4, v{T}
    v_add_u32 v{aCSW}, s{sT0}, v{aCSW}
    v_lshlrev_b32 v{vL7}, 7, v{vLANE}
    s_lshl_b32 s{sT0}, s{sMT}, 2
    s_add_u32 s{sT0}, s{sT0}, s{sPP}
    s_lshl_b32 s{sT0}, s{sT0}, 15
    s_lshl_b32 s{sT1}, s{sSUB}, 1
    s_add_u32 s{sT1}, s{sT1}, s{sHH}
    s_lshl_b32 s{sT1}, s{sT1}, 11
    s_add_u32 s{sOB}, s{sT0}, s{sT1}
    s_add_u32 s{sOB}, s{sOB}, {O_OFF}
    ''')
    make_sel(P, SEL, T)
    s2_early_setup(P, T)
    if not cfg.prof: s2_tables(P, cfg)
    Q0 = dx(2, 'a2') + [dw(0, 2, 'a2')] + dx(3, 'b') + [dw(0, 3, 'b')] + dx(4, 'b') + [dw(0, 4, 'b')] + dx(5, 'c')
    E = Eng(P, cfg, XF, WF, NWF, vWa, vXa, wslot, xslot); F = E.F
    def bar(name, vm=(), lg=()):
        if vm: P.wait_vm(*vm)
        if lg: P.wait_lg(*lg)
        stamp(P, cfg, name + 'w'); P.I('s_barrier'); stamp(P, cfg, name + 'b')
    def sites(D): return (lambda: site(P, sHH, 0, D, False)), (lambda: site(P, sHH, 1, D, True))
    def xh_read(c): P.D(f'ds_read_b128 v[{XH}:{XH+3}], v{vXh} offset:{c*2048}', ('xh', c))
    def slot(j, s, hooks):
        gs = 28 * j + s
        for f in hooks.get(s, []): f()
        E.rd(gs + AH, 3)
        w = WF + 4 * (gs % NWF); x = XF + 4 * s
        P.wait_lg(('w', gs), ('x', gs))
        if j < 2 and s % 4 == 0:
            P.wait_lg(('xh', s // 4))
            F.q = [f'v_and_b32 v{XE+d}, v{ME}, v{XH+d}' for d in range(4)] + [f'v_xor_b32 v{XO+d}, v{XE+d}, v{XH+d}' for d in range(4)] + F.q
        P.I(m32(ACC[j], x, w, s == 0) if j == 1 else m32(ACC[j], w, x, s == 0))
        if j == 0:
            E.xreads(2, vis[0])
            for _ in range(2):
                if Q0: Q0.pop(0)()
        b = 32 if j < 2 else (0 if s < 2 else E.budget(s, 0.5 * ((27 - s) // 4 + 1)))
        F.emit(b)
        if j < 2 and s % 4 == 1:
            H = KH if j == 0 else VH
            if j == 0: P.I(m16(H, w, XE, s == 1)); P.I(m16(H + 4, w, XO, s == 1))
            else: P.I(m16(H, XE, w, s == 1)); P.I(m16(H + 4, XO, w, s == 1))
        if j < 2 and s % 4 == 2:
            if s < 24: xh_read(s // 4 + 1)
            elif j == 0: xh_read(0)
        if s % 4 == 3:
            P.I(m16(CSA, SEL, w, s == 3)); F.emit(b // 2)
    def cs_write(j): P.D(f'ds_write_b32 v{aCSW}, v{CSA} offset:{512*j}', 'csw')
    vis = [0]
    def setvis(v): vis[0] = v
    bar('c0', vm=('a',))
    E.xreads(2, 0); xh_read(0)
    for g in range(AH): E.rd(g, 3)
    E.xreads(2, 0)
    H = {1: [lambda: bar('a1', vm=('a1',)), lambda: setvis(1)],
         5: [lambda: bar('a2', vm=('a2',)), lambda: setvis(2)],
         9: [lambda: bar('Bb', vm=('b',), lg=(('x', 11),)), lambda: setvis(4)] + dx(6, 'c') + [dw(0, 5, 'c'), dw(0, 6, 'c'), dw(1, 0, 'c'), lambda: flag_prefetch(P, cfg)],
         13: [dw(1, 1, ('t', 1))],
         17: [lambda: bar('Bc', vm=('c',), lg=(('x', 19),)), lambda: setvis(6)]}
    sa, sb = sites([dw(1, c, ('t', 1)) for c in range(2, 6)])
    H[17].append(sa); H[20] = [sb]
    if cfg.mallc >= 0: H[23] = [lambda: mall_pf(P, vL7)]
    for s in range(28): slot(0, s, H)
    F.flush()
    stamp(P, cfg, 'T0e')
    R, M, RH, MH = 18, 19, 20, 21
    def st_poll():
        flag_check(P, 'a')
        statc_addr(P, sSC, sT1)
        P.I(f'''
        s_cmp_eq_u32 s{sMT}, 0
        s_cselect_b32 s{sT1}, 0, 128
        v_mov_b32 v2, s{sT1}
        v_and_b32 v2, v{mLO}, v2
        v_sub_u32 v2, s{sSC}, v2
        ''')
        svc_load(P, 3, sWS, '0', 2)
    def st_check():
        u = svc_begin(P); spin(P, 3, sWS, '0', cfg.stat_expect, 2); svc_end(P, u)
    sa, sb = sites([dw(1, 6, 'd'), dw(2, 0, 'd')] + [dw(2, c, ('t', 2)) for c in range(1, 6)])
    H = {0: [lambda: cs_write(0)],
         1: [lambda: bar('B1', vm=(('t', 1),), lg=(('x', 27),)), sa], 6: [sb],
         17: [lambda: bar('B1x', vm=('d',))],
         cfg.st_poll: [st_poll]}
    for s in range(28): slot(1, s, H)
    F.flush()
    aHPW, aHPR, aCSR = 5, 22, 23
    P.I(f'''
    v_lshlrev_b32 v{T}, 4, v{vLANE}
    s_lshl_b32 s{sT0}, s{sHH}, 14
    s_lshl_b32 s{sT1}, s{sPP}, 10
    s_add_u32 s{sT1}, s{sT1}, s{sT0}
    v_add_u32 v{aHPW}, s{sT1}, v{T}
    s_lshl_b32 s{sT1}, s{sPP}, 12
    s_add_u32 s{sT1}, s{sT1}, s{sT0}
    v_add_u32 v{aHPR}, s{sT1}, v{T}
    s_lshl_b32 s{sT1}, s{sPP}, 2
    v_subrev_u32 v{aCSR}, s{sT1}, v{aCSW}
    ''')
    cs_write(1)
    for k in range(4): P.D(f'ds_write_b128 v{aHPW}, v[{KH+4*k}:{KH+4*k+3}] offset:{HP_LDS + 4096*k}', 'csw')
    stamp(P, cfg, 'T1e')
    SC, BX, BS = XH, XE, XO; AXK, AXV = T, 6; HA = KH
    RR = XF; KOP = XF + 16; VOP = XF + 28; MKP, MKC, MKP0, ONES = XF + 40, XF + 44, XF + 48, XF + 52
    aEXW, aEXH, aEXR, vO, m48, RQ, RZ, TT = XF + 56, XF + 57, XF + 58, XF + 59, XF + 60, XF + 62, XF + 64, XF + 66
    ws = f's[{sWS}:{sWS+3}]'
    qs = 28 ** -0.5 * LOG2E
    def st_loads():
        stat_addr(P, sSB, sT1)
        P.I(f'''
        s_add_u32 s{sT1}, s{sSB}, 8192
        v_lshlrev_b32 v{vROW}, 2, v{vROW}
        s_cmp_eq_u32 s{sMT}, 0
        s_cselect_b32 s{sT2}, 0x40000000, -64
        s_add_u32 s{sT2}, s{sT2}, s{sSB}
        v_lshlrev_b32 v2, 2, v{i15}
        v_add_u32 v2, s{sT2}, v2
        v_lshlrev_b32 v3, 4, v{g4}
        v_add_u32 v3, s{sT2}, v3
        ''')
        P.V(f'buffer_load_dword v{M}, v{vROW}, {ws}, s{sT1} offen sc1', 'sl')
        P.V(f'buffer_load_dword v{R}, v{vROW}, {ws}, s{sSB} offen sc1', 'sl')
        P.V(f'buffer_load_dword v{RH}, v2, {ws}, 0 offen sc1', 'sl')
        P.I(f's_movk_i32 s{sT1}, 0x2000')
        P.V(f'buffer_load_dword v{MH}, v2, {ws}, s{sT1} offen sc1', 'sl')
        P.V(f'buffer_load_dwordx4 v[{SC}:{SC+3}], v3, {ws}, 0 offen sc1', 'sl')
    def rr_loads():
        P.I(f'v_lshrrev_b32 v2, 5, v{vLANE}\nv_lshlrev_b32 v2, 4, v2\ns_lshl_b32 s{sT0}, s{sPP}, 7\nv_add_u32 v2, s{sT0}, v2')
        for q in range(4): P.V(f'buffer_load_dwordx4 v[{RR+4*q}:{RR+4*q+3}], v2, {ws}, s{sSB} offen offset:{32*q} sc1', 'rr')
    def lds_reads():
        P.D(f'ds_read_b128 v[{AXK}:{AXK+3}], v{aCSR}', 'cs')
        P.D(f'ds_read_b128 v[{AXV}:{AXV+3}], v{aCSR} offset:512', 'cs')
        for k in range(4): P.D(f'ds_read_b128 v[{HA+4*k}:{HA+4*k+3}], v{aHPR} offset:{HP_LDS + 1024*k}', 'hp')
    def ax_ops(a):
        return [f'v_add_f32 v{a}, v{a}, v{a+1}', f'v_add_f32 v{a+2}, v{a+2}, v{a+3}', f'v_mov_b32 v{a+3}, 0', f'v_add_f32 v{a+2}, v{a}, v{a+2}',
                f'v_cvt_pk_bf16_f32 v{a}, v{a+2}, v{a+2}', f'v_lshlrev_b32 v{a+1}, 16, v{a}', f'v_sub_f32 v{a+1}, v{a+2}, v{a+1}',
                f'v_cvt_pk_bf16_f32 v{a+1}, v{a+1}, v{a+3}', f'v_mov_b32 v{a+2}, 0']
    def negm_ops(m, mask, d):
        return [f'v_and_b32 v{m}, v{mask}, v{m}', f'v_mov_b32 v{d+3}, 0', f'v_sub_f32 v{m}, 0, v{m}', f'v_cvt_pk_bf16_f32 v{d+1}, v{m}, v{d+3}',
                f'v_lshlrev_b32 v{d+2}, 16, v{d+1}', f'v_sub_f32 v{d+2}, v{m}, v{d+2}', f'v_cvt_pk_bf16_f32 v{d}, v{m}, v{d+2}', f'v_mov_b32 v{d+2}, 0']
    pmap = [0, 1, 4, 5, 2, 3, 6, 7]
    def swaps(a, b, n): return [f'v_permlane32_swap_b32 v{a+i}, v{b+i}' for i in range(n)] + [f'v_permlane16_swap_b32 v{a+i}, v{b+i}' for i in range(n)]
    def branch2(k_code, v_code):
        def f():
            u = P.uid()
            P.I(f's_cmp_lt_u32 s{sPP}, 2\ns_cbranch_scc0 L_b{u}v')
            for x in k_code: P.I(x)
            P.I(f's_branch L_b{u}e'); P.label(f'L_b{u}v')
            for x in v_code: P.I(x)
            P.label(f'L_b{u}e')
        return f
    ex_addr = f'''s_lshl_b32 s{sT0}, s{sHH}, 13
        s_add_u32 s{sT0}, s{sT0}, {EX_LDS}
        s_lshr_b32 s{sT1}, s{sPP}, 1
        s_lshl_b32 s{sT1}, s{sT1}, 10
        s_and_b32 s{sT2}, s{sPP}, 1
        s_lshl_b32 s{sT2}, s{sT2}, 3
        s_add_u32 s{sT1}, s{sT1}, s{sT2}
        s_add_u32 s{sT1}, s{sT1}, s{sT0}
        v_lshlrev_b32 v{TT}, 4, v{vLANE}
        v_add_u32 v{aEXH}, s{sT1}, v{TT}
        s_lshl_b32 s{sT1}, s{sPP}, 11
        s_add_u32 s{sT0}, s{sT0}, s{sT1}
        v_add_u32 v{aEXR}, s{sT0}, v{TT}
        s_add_u32 s{sT0}, s{sT0}, 2048
        s_cmp_eq_u32 s{sPP}, 3
        s_cselect_b32 s{sT0}, {DUMMY}, s{sT0}
        v_add_u32 v{aEXW}, s{sT0}, v{TT}'''
    A1 = [lambda: P.wait_lg('cs')] + ax_ops(AXK) + ax_ops(AXV) + [lambda: P.wait_lg('hp')]
    A1 += [f'v_add_f32 v{HA+e}, v{HA+e}, v{HA+4+e}' for e in range(4)] + [f'v_add_f32 v{HA+8+e}, v{HA+8+e}, v{HA+12+e}' for e in range(4)]
    A1 += [f'v_add_f32 v{HA+e}, v{HA+e}, v{HA+8+e}' for e in range(4)]
    A1 += [lambda: P.I(f's_and_b32 s{sT0}, s{sPP}, 1\ns_sub_u32 s{sT0}, 0, s{sT0}\nv_xor_b32 v{ME}, s{sT0}, v{ME}\nv_and_b32 v{ME}, v{ME}, v{mLO}')]
    A2 = [lambda: P.wait_vm('sl')] + negm_ops(M, mLO, BX) + negm_ops(MH, ME, BS)
    A2 += ['s_nop 0', m32(AK, AXK, BX, False), m32(AV, BX, AXV, False), branch2([m16(HA, AXK, BS, False)], [m16(HA, BS, AXV, False)])]
    EK = [f'v_mul_f32 v{AK+v}, v{AK+v}, v{R}' for v in range(16)] + [f'v_cvt_pk_bf16_f32 v{KOP+4+pmap[i]}, v{AK+2*i}, v{AK+2*i+1}' for i in range(8)] + swaps(KOP + 4, KOP + 8, 4)
    vmap = [VOP + 2, VOP + 3, VOP + 8, VOP + 9, VOP + 4, VOP + 5, VOP + 10, VOP + 11]
    EV = [lambda: P.wait_vm('rr')] + [f'v_mul_f32 v{AV+v}, v{AV+v}, v{RR+v}' for v in range(16)] + [f'v_cvt_pk_bf16_f32 v{vmap[i]}, v{AV+2*i}, v{AV+2*i+1}' for i in range(8)] + swaps(VOP + 2, VOP + 8, 4)
    EH = [branch2([f'v_mul_f32 v{HA+v}, v{HA+v}, v{RH}' for v in range(4)], [f'v_mul_f32 v{HA+v}, v{HA+v}, v{SC+v}' for v in range(4)]),
          f'v_cvt_pk_bf16_f32 v{HA+4}, v{HA}, v{HA+1}', f'v_cvt_pk_bf16_f32 v{HA+5}, v{HA+2}, v{HA+3}']
    WR = [lambda: P.I(ex_addr),
          lambda: P.D(f'ds_write_b128 v{aEXW}, v[{KOP+8}:{KOP+11}]', 'x'),
          lambda: P.D(f'ds_write_b64 v{aEXW}, v[{VOP+4}:{VOP+5}] offset:1024', 'x'),
          lambda: P.D(f'ds_write_b64 v{aEXW}, v[{VOP+10}:{VOP+11}] offset:1032', 'x'),
          lambda: P.D(f'ds_write_b64 v{aEXH}, v[{HA+4}:{HA+5}]', 'x')]
    MK = [f'v_lshlrev_b32 v{TT}, 2, v{g4}', f'v_sub_u32 v{TT}, v{i15}, v{TT}']
    for v in range(4):
        for base, dst in ((0, MKC), (16, MKP)):
            MK += [f'v_add_u32 v{dst+v}, {base - v}, v{TT}', f'v_and_b32 v{dst+v}, 0xfffffff1, v{dst+v}', f'v_min_u32 v{dst+v}, 1, v{dst+v}',
                   f'v_sub_u32 v{dst+v}, 0, v{dst+v}', f'v_and_b32 v{dst+v}, {f32(NEG)}, v{dst+v}']
    MK += [lambda: P.I(f's_or_b32 s{sT0}, s{sMT}, s{sPP}\ns_cmp_eq_u32 s{sT0}, 0\ns_cselect_b32 s{sT0}, {f32(NEG)}, 0\n' + '\n'.join(f'v_or_b32 v{MKP0+v}, s{sT0}, v{MKP+v}' for v in range(4)))]
    MK += [f'v_mov_b32 v{ONES+i}, 0x3f803f80' for i in range(4)]
    MK += [f'v_lshlrev_b32 v{vO}, 9, v{g4}', f'v_lshl_add_u32 v{vO}, v{i15}, 4, v{vO}', f'v_subrev_u32 v{m48}, 48, v{vLANE}', f'v_ashrrev_i32 v{m48}, 31, v{m48}',
           f'v_mul_f32 v{RQ}, {f32(qs)}, v{R}', f'v_and_b32 v{RZ}, v{mLO}, v{RQ}']
    XQ = ([lambda: s2_srd(P, cfg)] + s2_xy(P, 'X')) if cfg.early_w else []
    def late():
        mix = []; X = list(XQ); L = EV + EH + WR + MK
        k = max(1, len(L) // (len(X) + 1))
        for i, m in enumerate(L):
            if X and i % k == 0: mix.append(X.pop(0))
            mix.append(m)
        F.add(mix + X)
    H = {1: [st_check, lambda: bar('B2', vm=(('t', 2),), lg=('csw',)), st_loads, lds_reads, dw(2, 6, 'e'), lambda: F.add(A1)],
         4: [rr_loads], cfg.a2pos: [lambda: F.flush(), lambda: F.add(A2 + EK)],
         17: [lambda: F.flush(), lambda: bar('Bx', vm=('e',)), late]}
    for s in range(28):
        gs = 56 + s
        for f in H.get(s, []): f()
        E.rd(gs + AH, 3)
        w = WF + 4 * (gs % NWF); x = XF + 4 * s
        P.wait_lg(('w', gs))
        P.I(m32(AQ, w, x, s == 0))
        end = cfg.a2pos if s < cfg.a2pos else 17 if s < 17 else 28
        b = 0 if s < 2 else max(8, int(F.total() / (end - s) + 3))
        F.emit(b)
        if s % 4 == 3: P.I(m16(CSA, SEL, w, s == 3))
    F.flush()
    cs_write(2)
    stamp(P, cfg, 'loop')
    if cfg.hook_late: cfg.hook_late(P)
    P.lg0(); P.I('s_barrier'); stamp(P, cfg, 'e2')
    P.D(f'ds_read_b128 v[{AXK}:{AXK+3}], v{aCSR} offset:1024', 'cs')
    P.D(f'ds_read_b128 v[{KOP}:{KOP+3}], v{aEXR}', 'e')
    for tt in range(2): P.D(f'ds_read_b64 v[{VOP+6*tt}:{VOP+6*tt+1}], v{aEXR} offset:{1024+8*tt}', 'e')
    P.wait_lg('cs')
    for x in ax_ops(AXK): P.I(x)
    P.I(m32(AQ, AXK, BX, False))
    QOP = XF + 68
    for v in range(0, 16, 2): P.I(f'v_pk_mul_f32 {pr(AQ+v)}, {pr(AQ+v)}, {pr(RZ if v >= 12 else RQ)} op_sel_hi:[1,0]')
    for i in range(8): P.I(f'v_cvt_pk_bf16_f32 v{QOP+pmap[i]}, v{AQ+2*i}, v{AQ+2*i+1}')
    for x in swaps(QOP, QOP + 4, 4): P.I(x)
    S = AK; PP = AV; OB = [AQ, KH]
    mfS = lambda d, a, b, c: f'v_mfma_f32_16x16x32_bf16 v[{d}:{d+3}], v[{a}:{a+3}], v[{b}:{b+3}], v[{c}:{c+3}]'
    P.lg0()
    P.I(mfS(S + 8, KOP + 4, QOP + 4, MKP)); P.I(mfS(S + 12, KOP + 8, QOP + 4, MKC)); P.I(mfS(S + 4, KOP + 4, QOP, MKC)); P.I(mfS(S, KOP, QOP, MKP0))
    mx = [XF + 76, XF + 78]
    order = (1, 0)
    for bb in order:
        s = S + 8 * bb; m = mx[bb]
        P.I(f'''
        v_max3_f32 v{m}, v{s}, v{s+1}, v{s+2}
        v_max3_f32 v{m+1}, v{s+3}, v{s+4}, v{s+5}
        v_max3_f32 v{m}, v{m}, v{s+6}, v{s+7}
        v_max_f32 v{m}, v{m}, v{m+1}
        v_mov_b32 v{m+1}, v{m}
        ''')
    for bb in order: P.I(f'v_permlane16_swap_b32 v{mx[bb]}, v{mx[bb]+1}')
    for bb in order: P.I(f'v_max_f32 v{mx[bb]}, v{mx[bb]}, v{mx[bb]+1}\nv_mov_b32 v{mx[bb]+1}, v{mx[bb]}')
    for bb in order: P.I(f'v_permlane32_swap_b32 v{mx[bb]}, v{mx[bb]+1}')
    for bb in order: P.I(f'v_max_f32 v{mx[bb]}, v{mx[bb]}, v{mx[bb]+1}')
    for bb in order:
        s = S + 8 * bb; o = OB[bb]; p = PP + 4 * bb
        for v in range(0, 8, 2): P.I(f'v_pk_add_f32 {pr(s+v)}, {pr(s+v)}, {pr(mx[bb])} op_sel_hi:[1,0] neg_lo:[0,1] neg_hi:[0,1]')
        for v in range(8): P.I(f'v_exp_f32 v{s+v}, v{s+v}')
        for v in range(4): P.I(f'v_cvt_pk_bf16_f32 v{p+v}, v{s+2*v}, v{s+2*v+1}')
        P.I(m16(o + 8, ONES, p, True))
        for tt in range(2): P.I(m16(o + 4 * tt, VOP + 6 * tt + 2 * bb, p, True))
    for bb in order:
        o = OB[bb]
        P.I(f'v_rcp_f32 v{o+8}, v{o+8}')
        P.I(f'v_and_b32 v{o+10}, v{m48}, v{o+8}')
        for v in (0, 2): P.I(f'v_pk_mul_f32 {pr(o+v)}, {pr(o+v)}, {pr(o+8)} op_sel_hi:[1,0]')
        for v in (4, 6): P.I(f'v_pk_mul_f32 {pr(o+v)}, {pr(o+v)}, {pr(o+10)} op_sel_hi:[1,0]')
        for v in range(4): P.I(f'v_cvt_pk_bf16_f32 v{PP+8+4*bb+v}, v{o+2*v}, v{o+2*v+1}')
        P.V(f'buffer_store_dwordx4 v[{PP+8+4*bb}:{PP+8+4*bb+3}], v{vO}, s[{sWS}:{sWS+3}], s{sOB} offen offset:{256*bb}{cfg.sc}', 'st')
    stamp(P, cfg, 'end')
    stamp_flush(P, cfg)
    P.I(f's_branch {after}')
```

```python
import sys, argparse, json
from gen import *
import gen
from s2v2 import *

vPF = 250
def w2_prefetch(P):
    P.I(f'''
    s_lshl_b32 s{sT0}, s{sJ}, 3
    s_add_u32 s{sT0}, s{sT0}, s{sWAVE}
    s_lshl_b32 s{sT1}, s{sT0}, 13
    s_mov_b32 s{sW2}, s16
    s_mov_b32 s{sW2+1}, s17
    s_mov_b32 s{sW2+2}, {1792*XB}
    s_mov_b32 s{sW2+3}, 0x20000
    s_cmp_lt_u32 s{sT0}, 196
    s_cbranch_scc1 L_pf{P.uid()}
    s_mov_b32 s{sW2}, s8
    s_mov_b32 s{sW2+1}, s9
    s_mov_b32 s{sW2+2}, {448*XB}
    s_sub_u32 s{sT1}, s{sT1}, {196*8192}
    L_pf{P.uid(False)}:
    v_lshlrev_b32 v{vPF}, 7, v{vLANE}
    ''')
    P.V(f'buffer_load_dword v{vPF}, v{vPF}, s[{sW2}:{sW2+3}], s{sT1} offen', 'pf')

def build2(cfg):
    hdr = open('cdna_kernels/' + NAME + '.s.ref').read().split('; Override launch')[0]
    doc = '''; Design (generated by the author's own scheduler scripts; one persistent workgroup per CU):
'''
    out = [hdr, doc, '; @launch grid=(256,1,1) block=(512,1,1) lds=163840\n']
    P = Prog(); P.pv = 255
    if cfg.prof or 'padabs' in cfg.exp: P.I('s_memrealtime s[100:101]')
    stamp(P, cfg, 'start')
    P.I('s_load_dwordx16 s[4:19], s[0:1], 0\ns_load_dwordx4 s[20:23], s[0:1], 64\ns_load_dwordx2 s[24:25], s[0:1], 80')
    prologue(P, 256, 'L_end')
    P.L = [l for i, l in enumerate(P.L) if not (l.startswith('s_load_dword') and i > 6)]
    stage1_ids(P)
    if cfg.fastx:
        import s1v2
        xdma_addr(P, 244, 245)
        P.I(f's_lshr_b32 s{sT2}, s{sJ}, 4')
        s1v2.rot_first(P, cfg, None)
        P.I(f's_mul_i32 s{sT2}, s{sT2}, {cfg.att_x0}\ns_add_u32 s{sT2}, s{sT2}, s{sWX}')
        stamp(P, cfg, 'prew')
        P.I('s_waitcnt lgkmcnt(0)')
        stamp(P, cfg, 'karg')
        if cfg.tlb:
            P.I(f's_cmp_eq_u32 s{sWAVE}, {cfg.tlbw}\ns_cbranch_scc0 L_notlb')
            P.I('v_mov_b32 v246, s4\nv_mov_b32 v247, s5')
            ptrs = [6, 8, 12, 14, 16, 18, 20, 22]
            for i, r in enumerate(ptrs): P.I(f'v_writelane_b32 v246, s{r}, {i}\nv_writelane_b32 v247, s{r+1}, {i}')
            for k in range(5):
                P.I(f's_add_u32 s{sT0}, s24, {k << 21}\ns_addc_u32 s{sT1}, s25, 0\nv_writelane_b32 v246, s{sT0}, {8+k}\nv_writelane_b32 v247, s{sT1}, {8+k}')
            P.I('s_mov_b64 exec, 0x1fff\nglobal_load_dword v250, v[246:247], off\ns_mov_b64 exec, -1\nL_notlb:')
        if cfg.m1s >= 0: P.I('s_mov_b32 s100, s12\ns_mov_b32 s101, s13')
        srd(P, sX, 4, 2048 * XB)
        P.I(f's_mov_b32 s4, s3\ns_mov_b32 m0, s{sT2}')
        P.V(f'buffer_load_dwordx4 v{vXD0}, s[{sX}:{sX+3}], s4 offen lds', cfg.x0tag)
        P.I(f's_add_u32 m0, s{sT2}, 1024')
        P.V(f'buffer_load_dwordx4 v{vXD1}, s[{sX}:{sX+3}], s4 offen lds', cfg.x0tag)
    if cfg.codepf:
        P.I(f'''
        s_cmp_lt_u32 s{sJ}, 5
        s_cbranch_scc0 L_nocpf
        s_cmp_eq_u32 s{sWAVE}, 7
        s_cbranch_scc0 L_nocpf
        s_getpc_b64 s[94:95]
        L_pc0:
        s_sub_u32 s94, s94, L_pc0-{NAME}_kernel
        s_subb_u32 s95, s95, 0
        s_lshl_b32 s{sT0}, s{sJ}, 13
        v_lshlrev_b32 v250, 7, v1
        v_add_u32 v250, s{sT0}, v250
        v_min_u32 v250, L_code_end-{NAME}_kernel-4, v250
        global_load_dword v250, v250, s[94:95]
        L_nocpf:
        ''')
    stamp(P, cfg, 'x0')
    stage2_ids(P)
    if cfg.prio: P.I(f's_cmp_ge_u32 s{sWAVE}, 4\ns_cbranch_scc{2 - cfg.prio} L_prio\ns_setprio 1\nL_prio:')
    if 's2only' in cfg.exp:
        P.I('s_waitcnt lgkmcnt(0)')
        srd(P, sWS, 24, WS_SIZE); srd(P, sDBG, 22, 256)
        P.I('v_mov_b32 v252, 99')
        s2_early_setup(P, 20); s2_srd(P, cfg)
        for f in s2_xy(P, 'X') + s2_xy(P, 'Y'): f()
        P.I('s_waitcnt vmcnt(0)')
        stamp_flush(P, cfg)
        P.I('s_branch L_s1_done')
    P.I(f's_cmp_ge_u32 s{sJ}, 16\ns_cbranch_scc1 L_att')
    st = P.state()
    i0 = len(P.L)
    cfg.mlp(P, cfg, 'L_s1_done')
    P.restore(st)
    i1 = len(P.L)
    P.label('L_att')
    cfg.att(P, cfg, 'L_s1_done')
    if cfg.relayout:
        M = P.L[i0:i1]; A = P.L[i1:]
        km = M.index('; SETUP_END'); ka = A.index('; SETUP_END')
        P.L = P.L[:i0] + M[:km] + ['s_branch L_mlp_body'] + A[:ka] + ['s_branch L_att_body', 'L_mlp_body:'] + M[km + 1:] + ['L_att_body:'] + A[ka + 1:]
    P.label('L_s1_done')
    P.vm.q = []; P.lg.q = []; P.pv = 254
    for e in cfg.exp:
        if e.startswith('dly'):
            who = e[3]
            if who == 'm': P.I(f's_cmp_ge_u32 s{sJ}, 16\ns_cbranch_scc1 L_dly')
            if who == 'a': P.I(f's_cmp_lt_u32 s{sJ}, 16\ns_cbranch_scc1 L_dly')
            P.I('s_nop 15\n' * 16)
            P.I('L_dly:')
    stamp(P, cfg, 's2')
    stage2_v2(P, cfg, 'L_s2_skip')
    P.label('L_s2_skip')
    if cfg.prof: P.I('v_writelane_b32 v255, s100, 62\ns_memrealtime s[100:101]\ns_waitcnt lgkmcnt(0)\nv_writelane_b32 v255, s100, 61')
    prof_dump(P, cfg, [(0, 255), (1, 254)])
    if 'pad' in cfg.exp:
        P.I('s_mov_b32 s70, 500\nL_pad:\n' + 's_nop 15\n' * 4 + 's_sub_u32 s70, s70, 1\ns_cmp_lg_u32 s70, 0\ns_cbranch_scc1 L_pad')
    if 'padabs' in cfg.exp:
        for e in cfg.exp:
            if e.startswith('only'): P.I(f's_cmp_eq_u32 s2, {int(e[4:])}\ns_cbranch_scc0 L_end')
        P.I('s_waitcnt lgkmcnt(0)')
        P.I('s_add_u32 s72, s100, 4000\nL_padr:\ns_memrealtime s[70:71]\ns_waitcnt lgkmcnt(0)\ns_sub_u32 s73, s70, s72\ns_cmp_lt_i32 s73, 0\ns_cbranch_scc1 L_padr')
    if 'padrt' in cfg.exp:
        P.I('s_memrealtime s[70:71]\ns_waitcnt lgkmcnt(0)\ns_add_u32 s72, s70, 2000\nL_padr:\ns_memrealtime s[70:71]\ns_waitcnt lgkmcnt(0)\ns_sub_u32 s73, s70, s72\ns_cmp_lt_i32 s73, 0\ns_cbranch_scc1 L_padr')
    P.label('L_end')
    P.I('s_endpgm')
    P.label('L_code_end')
    name = NAME + '_kernel'
    out.append('.amdgcn_target "amdgcn-amd-amdhsa--gfx950"\n.text\n')
    out.append(f'.globl {name}\n.p2align 8\n.type {name},@function\n{name}:\n')
    for l in fix_hazards(P.L):
        out.append(l + '\n' if l.endswith(':') else '    ' + l + '\n')
    out.append('.section .rodata,"a"\n')
    out.append(kd(name))
    return ''.join(out)

if __name__ == '__main__':
    ap = argparse.ArgumentParser()
    ap.add_argument('-o', default='cdna_kernels/' + NAME + '.s')
    ap.add_argument('--prof', action='store_true')
    ap.add_argument('--nopf', action='store_true')
    ap.add_argument('--exp', default='')
    ap.add_argument('--ft', action='store_true')
    ap.add_argument('--ftpoll', type=int, default=21)
    ap.add_argument('--hre', type=int, default=0)
    ap.add_argument('--hrefl', default='_sc1')
    ap.add_argument('--m1s', type=int, default=-1)
    ap.add_argument('--m1c', type=int, default=-1)
    ap.add_argument('--mapb', type=int, default=2)
    ap.add_argument('--pbo', type=int, default=0)
    ap.add_argument('--dpf', type=int, default=0)
    ap.add_argument('--wfl', default='')
    ap.add_argument('--xfl', default='')
    ap.add_argument('--w2fl', default='')
    ap.add_argument('--l2pf', type=int, default=0)
    ap.add_argument('--dot2', type=int, default=1)
    ap.add_argument('--noxlds', action='store_true')
    ap.add_argument('--c1e', type=int, default=3)
    ap.add_argument('--a0e', type=int, default=5)
    ap.add_argument('--a2', action='store_true')
    ap.add_argument('--nob0', action='store_true')
    ap.add_argument('--noob', action='store_true')
    ap.add_argument('--zpad', action='store_true')
    ap.add_argument('--rt', action='store_true')
    ap.add_argument('--hrot', action='store_true')
    ap.add_argument('--tlb', type=int, default=-1)
    ap.add_argument('--norelayout', action='store_true')
    ap.add_argument('--pb2', type=int, default=18)
    ap.add_argument('--a2off', type=int, default=10)
    ap.add_argument('--q4', type=int, default=1)
    ap.add_argument('--ldsword', action='store_true')
    ap.add_argument('--nojsplit', action='store_true')
    ap.add_argument('--nopk3', action='store_true')
    ap.add_argument('--alt', type=int, default=0)
    ap.add_argument('--nofastx', action='store_true')
    ap.add_argument('--uni', type=float, default=0)
    ap.add_argument('--y2pos', type=int, default=28)
    ap.add_argument('--q14', type=int, default=0)
    ap.add_argument('--xy1', type=int, default=8)
    ap.add_argument('--nocodepf', action='store_true')
    ap.add_argument('--a2pos', type=int, default=9)
    ap.add_argument('--padat', default=None)
    ap.add_argument('--outsc', default='')
    ap.add_argument('--prio', type=int, default=0)
    ap.add_argument('--xnt', action='store_true')
    ap.add_argument('--bmpos', type=int, default=31)
    ap.add_argument('--helper', action='store_true')
    ap.add_argument('--mallc', type=int, default=1)
    ap.add_argument('--malls', type=int, default=22)
    ap.add_argument('--apos', type=int, default=8)
    ap.add_argument('--ypos', type=int, default=6)
    ap.add_argument('--sc', default='_sc1')
    ap.add_argument('--scl', default='_sc1')
    ap.add_argument('--mlppf', type=int, default=0)
    ap.add_argument('--norot2', action='store_true')
    ap.add_argument('--attpf', action='store_true')
    ap.add_argument('--pf0', type=int, default=1)
    ap.add_argument('--pfn', type=int, default=4)
    ap.add_argument('--ni0', type=int, default=0)
    ap.add_argument('--v3', default='m')
    ap.add_argument('--sigpos', type=int, default=50)
    ap.add_argument('--stpoll', type=int, default=24)
    ap.add_argument('--ypre', type=int, default=2)
    ap.add_argument('--norot', action='store_true')
    ap.add_argument('--s1pf', action='store_true')
    ap.add_argument('--pf2', action='store_true')
    ap.add_argument('--lh', type=int, default=6)
    ap.add_argument('--q1', type=int, default=3)
    ap.add_argument('--q2', type=int, default=4)
    ap.add_argument('--q3', type=int, default=1)
    ap.add_argument('--q3at', type=int, default=14)
    ap.add_argument('--x2pos', type=int, default=16)
    ap.add_argument('--wnt', action='store_true')
    ap.add_argument('--pbc', type=int, default=9)
    ap.add_argument('--noearlyw', action='store_true')
    ap.add_argument('--fine', action='store_true')
    ap.add_argument('--ni', type=int, default=3)
    ap.add_argument('--oldmlp', action='store_true')
    ap.add_argument('--oldatt', action='store_true')
    a = ap.parse_args()
    cfg = Cfg(); cfg.prof = a.prof; cfg.fused = True
    cfg.hook_late = pollA_prefetch
    cfg.hook_early = None if a.nopf else w2_prefetch
    cfg.nopf = a.nopf
    cfg.fasttail = a.ft; cfg.ftpoll = a.ftpoll
    cfg.hre = a.hre; cfg.hrefl = a.hrefl.replace('_', ' ')
    cfg.m1s = a.m1s; cfg.m1c = a.m1c
    gen.MAPB[0] = a.mapb
    cfg.osep = a.pbo > 0; cfg.pbo = a.pbo
    cfg.dpf = a.dpf
    import s2v2 as _s2
    _s2.W2FL[0] = a.w2fl.replace('_', ' ')
    if not a.prof: _s2.sRO8[:] = list(range(80, 88))
    cfg.l2pf = a.l2pf
    cfg.dot2 = a.dot2
    cfg.xlds = not a.noxlds
    cfg.c1e = a.c1e; cfg.a0e = a.a0e
    cfg.noa2 = not a.a2
    cfg.nob0 = a.nob0; cfg.noob = a.noob
    import s2v2; s2v2.NOB0[0] = a.nob0
    cfg.zpad = a.zpad
    cfg.rt = a.rt
    if a.rt: cfg.keep = {'start', 'c0b', 'T0e', 'B2b', 'B3b', 'end', 'c3b', 'loop', 'e1', 'e2', 's2', 'b0', 'b@14', 'b@26', 'drain'}
    cfg.hrot = a.hrot
    cfg.tlb = a.tlb >= 0; cfg.tlbw = a.tlb
    cfg.relayout = not a.norelayout
    cfg.codepf2 = a.prof
    cfg.pb2 = a.pb2; cfg.a2off = a.a2off
    cfg.ldsword = a.ldsword; cfg.jsplit = not a.nojsplit
    cfg.pk3 = not a.nopk3; cfg.alt = a.alt
    cfg.fastx = True; cfg.att_x0 = 81920; cfg.x0tag = 'x0'
    cfg.uni = a.uni > 0; cfg.unif = a.uni if a.uni > 0 else 1.0
    cfg.y2pos = a.y2pos
    cfg.early_y = True; cfg.xy1 = a.xy1
    cfg.codepf = not a.nocodepf
    cfg.stat_pub = True
    cfg.a2pos = a.a2pos
    cfg.padat = a.padat
    cfg.prio = a.prio
    cfg.outsc = a.outsc.replace('_', ' ')
    import s1v2 as _s; _s.XNT = a.xfl.replace('_', ' ')
    cfg.bmpos = a.bmpos
    cfg.helper = a.helper
    cfg.mallc = a.mallc; cfg.malls = a.malls
    cfg.apos = a.apos; cfg.ypos = a.ypos
    cfg.sc = a.sc.replace('_', ' '); cfg.scl = a.scl.replace('_', ' ')
    cfg.pf0 = a.pf0; cfg.pfn = a.pfn; cfg.pfl = {3: 42, 4: 31, 5: 25, 6: 21}[a.pfn]
    assert -(-12544//cfg.pfl) + -(-3136//cfg.pfl) <= 128 * cfg.pfn
    cfg.ni0 = a.ni0
    cfg.stat_expect = 4
    cfg.sigpos = a.sigpos; cfg.st_poll = a.stpoll
    cfg.ypre = a.ypre
    cfg.norot = a.norot; cfg.attpf = a.attpf; cfg.mlppf = a.mlppf; cfg.norot2 = a.norot2; cfg.wnt = a.wfl.replace('_', ' ')
    cfg.s1pf = a.s1pf
    cfg.nopf2 = not a.pf2; cfg.lh = a.lh; cfg.quota = lambda i: (a.q14 if (i == 14 and a.q14) else a.q1 if i < a.pbc else a.q2 if i < a.q3at else a.q3 if i < a.pb2 else a.q4); cfg.x2pos = a.x2pos; cfg.pb_check = a.pbc; cfg.pb_issue = a.pbc - 3; cfg.early_w = not a.noearlyw
    cfg.coarse = not a.fine
    cfg.ni = a.ni
    cfg.exp = a.exp.split(',')
    cfg.pubmap = {0: [0, 1], 1: [1]}
    cfg.mlp = mlp_path; cfg.att = att_path
    if not a.oldmlp or not a.oldatt:
        import s1v2
        if not a.oldmlp: cfg.mlp = s1v2.mlp_v2
        if not a.oldatt: cfg.att = s1v2.att_v2
        import s1v3
        if 'm' in a.v3: cfg.mlp = s1v3.mlp_v3
        if 'a' in a.v3: cfg.att = s1v3.att_v3
        import s1v4
        if 'M' in a.v3: cfg.mlp = s1v4.mlp_v4
        if 'A' in a.v3: cfg.att = s1v4.att_v4; cfg.stat_pub = False
    open(a.o, 'w').write(build2(cfg))
    if cfg.prof: json.dump(cfg.paths, open(a.o + '.paths.json', 'w'))
```

```python
from gen import *
from s2v2 import *
import gen

vPF = 250

def s1_prefetch(P, cfg, role, t):
    if cfg.nopf or not cfg.s1pf: return
    u = P.uid()
    P.I(f'''
    s_and_b32 s{sT0}, s{sJ}, 15
    s_lshl_b32 s{sT0}, s{sT0}, 3
    s_add_u32 s{sT0}, s{sT0}, s{sWAVE}
    ''')
    if role == 0:
        P.I(f'''
        s_lshr_b32 s{sT1}, s{sXCD}, 2
        s_mul_i32 s{sT1}, s{sT1}, {1024*XB}
        s_lshl_b32 s{sT2}, s{sT0}, 13
        s_add_u32 s{sT1}, s{sT1}, s{sT2}
        v_lshlrev_b32 v{vPF}, 7, v{vLANE}
        s_cmp_lt_u32 s{sT0}, 112
        s_cbranch_scc0 L_pfc{u}
        buffer_load_dword v{vPF}, v{vPF}, s[{sX}:{sX+3}], s{sT1} offen
        s_branch L_pfd{u}
        L_pfc{u}:
        s_getpc_b64 s[94:95]
        L_pc{u}:
        s_sub_u32 s{sT2}, s{sT2}, {112*8192}
        s_sub_u32 s94, s94, L_pc{u}-{NAME}_kernel
        s_subb_u32 s95, s95, 0
        v_add_u32 v{vPF}, s{sT2}, v{vPF}
        v_min_u32 v{vPF}, L_code_end-{NAME}_kernel-4, v{vPF}
        global_load_dword v{vPF}, v{vPF}, s[94:95]
        L_pfd{u}:
        ''')
        P.vm.issue('pf')
    else:
        P.I(f'''
        s_and_b32 s{sT2}, s{sXCD}, 3
        s_mov_b32 s{sW2}, s12
        s_mov_b32 s{sW2+1}, s13
        s_mov_b32 s{sW2+2}, {448*W1S}
        s_mov_b32 s{sW2+3}, 0x20000
        s_cmp_lt_u32 s{sT0}, 49
        s_cbranch_scc0 L_pfc{u}
        s_lshl_b32 s{sT0}, s{sT0}, 6
        v_add_u32 v{t}, s{sT0}, v{vLANE}
        v_mul_u32_u24 v{t+1}, 9363, v{t}
        v_lshrrev_b32 v{t+1}, 16, v{t+1}
        v_mul_u32_u24 v{vPF}, {W1S - 7*128}, v{t+1}
        v_lshl_add_u32 v{vPF}, v{t}, 7, v{vPF}
        s_mul_i32 s{sT1}, s{sT2}, 896
        s_branch L_pfd{u}
        L_pfc{u}:
        s_mov_b32 s{sW2}, s6
        s_mov_b32 s{sW2+1}, s7
        s_mov_b32 s{sW2+2}, {448*WQS}
        s_sub_u32 s{sT0}, s{sT0}, 49
        s_lshl_b32 s{sT0}, s{sT0}, 6
        v_add_u32 v{t}, s{sT0}, v{vLANE}
        v_mul_u32_u24 v{t+1}, 21846, v{t}
        v_lshrrev_b32 v{t+1}, 16, v{t+1}
        v_mul_u32_u24 v{vPF}, {896 - 3*128}, v{t+1}
        v_lshl_add_u32 v{vPF}, v{t}, 7, v{vPF}
        s_mul_i32 s{sT1}, s{sT2}, 224
        s_and_b32 s{sT1}, s{sT1}, 0xffffff80
        L_pfd{u}:
        ''')
        P.V(f'buffer_load_dword v{vPF}, v{vPF}, s[{sW2}:{sW2+3}], s{sT1} offen', 'pf')

sKX = [4, 5, 6, 7, 10, 11, 12]
def rot_first(P, cfg, role):
    dst = 3 if role is None else sKX[0]
    if cfg.fastx and role is not None: return
    if cfg.norot:
        P.I(f's_mov_b32 s{dst}, 0'); return
    if MAPB[0] == 2:
        P.I(f'''
        s_bfe_u32 s{sT0}, s{sJ}, 0x30001
        s_and_b32 s{sT1}, s{sJ}, 1
        s_lshl_b32 s{sT1}, s{sT1}, 1
        s_add_u32 s{sT0}, s{sT0}, s{sT1}
        s_lshl_b32 s{sT1}, s{sT2}, 2
        s_add_u32 s{sT0}, s{sT0}, s{sT1}
        ''')
    else:
        P.I(f'''
        s_lshl_b32 s{sT0}, s{sMT}, {MAPB[0] if MAPB[0] else 2}
        s_add_u32 s{sT0}, s{sT0}, s{sSUB}
        s_lshl_b32 s{sT1}, s{sT2}, 2
        s_add_u32 s{sT0}, s{sT0}, s{sT1}
        s_and_b32 s{sT0}, s{sT0}, 7
        ''')
    P.I(f'''
    s_sub_u32 s{sT1}, s{sT0}, 7
    s_cmp_ge_u32 s{sT0}, 7
    s_cselect_b32 s{sT0}, s{sT1}, s{sT0}
    s_lshl_b32 s{dst}, s{sT0}, 7
    ''')
def rot_rest(P, lo, hi):
    for c in range(lo, hi):
        P.I(f'''
        s_add_u32 s{sKX[c]}, s{sKX[c-1]}, 128
        s_cmp_eq_u32 s{sKX[c]}, 896
        s_cselect_b32 s{sKX[c]}, 0, s{sKX[c]}
        ''')
XNT = ''
def dmax(P, c, base, i, tag):
    P.I(f's_add_u32 m0, s{sWX}, {base + 1024*i}')
    P.V(f'buffer_load_dwordx4 v{vXD0+i}, s[{sX}:{sX+3}], s{sKX[c]} offen{XNT} lds', tag)

def w2pf_mlp(P, k, t):
    u = P.uid()
    P.I(f'''
    s_lshl_b32 s{sT0}, s{sJ}, 4
    s_lshl_b32 s{sT1}, s{sWAVE}, 1
    s_add_u32 s{sT0}, s{sT0}, s{sT1}
    s_add_u32 s{sT0}, s{sT0}, {k}
    s_lshl_b32 s{sT1}, s{sT0}, 13
    s_mov_b32 s{sW2}, s16
    s_mov_b32 s{sW2+1}, s17
    s_mov_b32 s{sW2+2}, {1792*XB}
    s_mov_b32 s{sW2+3}, 0x20000
    s_cmp_lt_u32 s{sT0}, 196
    s_cbranch_scc1 L_pf{u}
    s_mov_b32 s{sW2}, s8
    s_mov_b32 s{sW2+1}, s9
    s_mov_b32 s{sW2+2}, {448*XB}
    s_sub_u32 s{sT1}, s{sT1}, {196*8192}
    L_pf{u}:
    v_lshlrev_b32 v{t}, 7, v{vLANE}
    ''')
    P.V(f'buffer_load_dword v{vPF}, v{t}, s[{sW2}:{sW2+3}], s{sT1} offen', 'pf')

def mall_pf(P, t):
    u = P.uid()
    P.I(f'''
    s_lshl_b32 s{sT0}, s2, 3
    s_add_u32 s{sT0}, s{sT0}, s{sWAVE}
    s_lshl_b32 s{sT1}, s{sT0}, 10
    s_mov_b32 s{sW2}, s16
    s_mov_b32 s{sW2+1}, s17
    s_mov_b32 s{sW2+2}, {1792*XB}
    s_mov_b32 s{sW2+3}, 0x20000
    s_cmp_lt_u32 s{sT0}, 1568
    s_cbranch_scc1 L_pf{u}
    s_mov_b32 s{sW2}, s8
    s_mov_b32 s{sW2+1}, s9
    s_mov_b32 s{sW2+2}, {448*XB}
    s_sub_u32 s{sT1}, s{sT1}, {1568*1024}
    L_pf{u}:
    s_mov_b64 exec, 0xff
    ''')
    P.V(f'buffer_load_dword v{vPF}, v{t}, s[{sW2}:{sW2+3}], s{sT1} offen', 'pf')
    P.I('s_mov_b64 exec, -1')

def mall_pf1(P, t):
    P.I(f'''
    s_lshl_b32 s{sT0}, s2, 3
    s_add_u32 s{sT0}, s{sT0}, s{sWAVE}
    s_mul_i32 s{sT1}, s{sT0}, 896
    s_mov_b32 s{sW2}, s100
    s_mov_b32 s{sW2+1}, s101
    s_mov_b32 s{sW2+2}, {448*W1S}
    s_mov_b32 s{sW2+3}, 0x20000
    s_mov_b64 exec, 0x7f
    ''')
    P.V(f'buffer_load_dword v{vPF}, v{t}, s[{sW2}:{sW2+3}], s{sT1} offen', 'pf')
    P.I('s_mov_b64 exec, -1')

def wdma_addr(P, dst, stride, t, clamp6=False):
    P.I(f'''
    v_lshrrev_b32 v{t}, 3, v{vLANE}
    s_lshl_b32 s{sT0}, s{sWAVE}, 3
    v_add_u32 v{t}, s{sT0}, v{t}
    v_mul_u32_u24 v{t}, {stride}, v{t}
    v_lshrrev_b32 v{t+1}, 2, v{vLANE}
    v_and_b32 v{t+1}, 4, v{t+1}
    v_xor_b32 v{t+1}, v{t+1}, v{vLANE}
    v_and_b32 v{t+1}, 7, v{t+1}
    ''')
    if clamp6 == 'zero':
        P.I(f'v_add_u32 v{dst}, 1, v{t+1}\nv_lshlrev_b32 v{dst}, 27, v{dst}\nv_and_b32 v{dst}, 0x40000000, v{dst}\nv_add_u32 v{t}, v{t}, v{dst}')
    elif clamp6: P.I(f'v_min_u32 v{t+1}, 6, v{t+1}')
    P.I(f'v_lshl_add_u32 v{dst}, v{t+1}, 4, v{t}')

def frag_addrs(P, sLO, sHI, colstep, vXa, vW0, t, zpad=False):
    sR = sT2
    P.I(f'''
    s_xor_b32 s{sR}, s{sHI}, s{sLO}
    v_and_b32 v{t}, 31, v{vLANE}
    s_lshl_b32 s{sT0}, s{sLO}, 5
    v_add_u32 v{t}, s{sT0}, v{t}
    v_bfe_u32 v{t+1}, v{vLANE}, 1, 3
    v_lshrrev_b32 v{t+2}, 5, v{vLANE}
    v_xor_b32 v{t+1}, v{t+1}, v{t+2}
    v_lshlrev_b32 v{t+1}, 4, v{t+1}
    v_lshl_add_u32 v{t+1}, v{t}, 7, v{t+1}
    s_lshl_b32 s{sT0}, s{sR}, 5
    v_xor_b32 v{vXa[0]}, s{sT0}, v{t+1}
    v_xor_b32 v{vXa[1]}, 32, v{vXa[0]}
    v_xor_b32 v{vXa[2]}, 64, v{vXa[0]}
    v_xor_b32 v{vXa[3]}, 0x60, v{vXa[0]}
    v_lshlrev_b32 v{t+2}, 3, v{t+2}
    v_bfe_u32 v{t+1}, v{vLANE}, 2, 2
    v_add_u32 v{t+2}, v{t+2}, v{t+1}
    v_lshlrev_b32 v{t+2}, 7, v{t+2}
    v_and_b32 v{t+1}, 16, v{vLANE}
    v_lshlrev_b32 v{t+1}, 1, v{t+1}
    v_and_b32 v{t+3}, 3, v{vLANE}
    v_lshl_add_u32 v{t+1}, v{t+3}, 3, v{t+1}
    s_mul_i32 s{sT0}, s{sHI}, {colstep}
    v_add_u32 v{t+1}, s{sT0}, v{t+1}
    ''')
    if zpad:
        P.I(f'v_and_b32 v{t+3}, 19, v{vLANE}\nv_cmp_eq_u32 vcc, 19, v{t+3}\ns_lshl_b32 s{sT0}, s{sHI}, 3\ns_sub_u32 s{sT0}, 120, s{sT0}\nv_mov_b32 v{t+3}, s{sT0}\nv_cndmask_b32 v{t+1}, v{t+1}, v{t+3}, vcc')
    P.I(f'''
    v_and_b32 v{t+3}, 8, v{vLANE}
    v_lshlrev_b32 v{t+3}, 3, v{t+3}
    v_xor_b32 v{t+1}, v{t+1}, v{t+3}
    v_add_u32 v{t+2}, v{t+2}, v{t+1}
    s_lshl_b32 s{sT0}, s{sR}, 11
    v_xor_b32 v{vW0[0]}, s{sT0}, v{t+2}
    v_xor_b32 v{vW0[1]}, 0x800, v{vW0[0]}
    v_xor_b32 v{vW0[2]}, 0x1000, v{vW0[0]}
    v_xor_b32 v{vW0[3]}, 0x1800, v{vW0[0]}
    ''')

def make_sel(P, SEL, t):
    P.I(f'''
    v_lshrrev_b32 v{t}, 2, v{vLANE}
    v_lshrrev_b32 v{t+1}, 4, v{vLANE}
    v_xor_b32 v{t}, v{t}, v{t+1}
    v_and_b32 v{t}, 1, v{t}
    v_add_u32 v{t}, -1, v{t}
    v_and_b32 v{SEL}, 0x3f803f80, v{t}
    v_mov_b32 v{SEL+1}, v{SEL}
    v_mov_b32 v{SEL+2}, v{SEL}
    v_mov_b32 v{SEL+3}, v{SEL}
    ''')

def sq_ops(x, t, sq, sm=None):
    L = []
    for d in range(4):
        a, b = t + 2 * (d & 1), t + 2 * (d & 1) + 1
        L += [f'v_lshlrev_b32 v{a}, 16, v{x+d}', f'v_and_b32 v{b}, 0xffff0000, v{x+d}',
              f'v_fmac_f32 v{sq}, v{a}, v{a}', f'v_fmac_f32 v{sq+1}, v{b}, v{b}']
        if sm is not None: L += [f'v_add_f32 v{sm}, v{sm}, v{a}', f'v_add_f32 v{sm+1}, v{sm+1}, v{b}']
    return L

def cost(ins):
    if callable(ins): return 4
    mn = ins.split()[0]
    if mn in TRANS or mn.startswith('v_permlane'): return 8
    return 4

class Filler:
    def __init__(self, P): self.P = P; self.q = []
    def add(self, xs): self.q += list(xs)
    def total(self): return sum(cost(x) for x in self.q)
    def emit(self, budget):
        while self.q and budget > 0:
            x = self.q.pop(0); budget -= cost(x)
            if callable(x): x()
            else: self.P.I(x)
    def flush(self): self.emit(1 << 30)

def site(P, sreg, val, fns, register):
    if not fns: return
    u = P.uid()
    P.I(f's_cmp_eq_u32 s{sreg}, {val}\ns_cbranch_scc0 L_site{u}')
    q = list(P.vm.q)
    for f in fns: f()
    if not register: P.vm.q = q
    P.label(f'L_site{u}')

def m32(d, a, b, first):
    c = '0' if first else f'v[{d}:{d+15}]'
    return f'v_mfma_f32_32x32x16_bf16 v[{d}:{d+15}], v[{a}:{a+3}], v[{b}:{b+3}], {c}'
NOM16 = False
def m16(d, a, b, first):
    if NOM16: return 's_nop 0'
    c = '0' if first else f'v[{d}:{d+3}]'
    return f'v_mfma_f32_16x16x32_bf16 v[{d}:{d+3}], v[{a}:{a+3}], v[{b}:{b+3}], {c}'

def atomic_inc(P, soff):
    P.I(f'''
    v_mov_b32 v{vFLAG}, 1
    s_mov_b64 exec, 1
    buffer_atomic_add v{vFLAG}, off, s[{sWS}:{sWS+3}], s{soff} sc1
    s_mov_b64 exec, -1
    ''')
def publish2(P, cfg, which, lab, wave, barrier=True, tags=('st',)):
    if tags: P.wait_vm(*tags)
    if barrier: P.I('s_barrier')
    u = svc_begin(P)
    P.I(f's_lshl_b32 s{sT0}, s{sMT}, 7\ns_add_u32 s{sT0}, s{sT0}, {CNT_OFF + 2048*which}')
    atomic_inc(P, sT0)
    svc_end(P, u)
def flag_check(P, lab, wrap=True):
    if wrap: u = svc_begin(P)
    spin(P, vFLAG, sDBG, '0', 1)
    if wrap: svc_end(P, u)

def mlp_v2(P, cfg, after):
    sCOLP, sCOLS, sHP, sHSG, sBP, sBS, sG, sTT = 74, 75, 76, 77, 78, 79, 27, 26
    vWD, vWDs = 4, 5
    vWa = [[6 + 4 * w + s for s in range(4)] for w in range(3)]
    vXa = [18, 19, 20, 21]
    vHS, vCSW = 22, 23
    XF = 24; ACC = [136, 152]; WF = 168; NWF = 8
    CSA, SEL, BX, AX = 200, 204, 208, 212
    vK0, vK1, vRI = 216, 217, 218; BR = 219; vCSR, vSTW, vSTR = 223, 224, 225
    SQ = 226; SUMA = 228; T = 232; U = 236; PK = 244
    CS_LDS = MISC; ST_LDS = MISC + 2048
    xdma_addr(P, T, T + 1)
    wdma_addr(P, vWD, W1S, T)
    P.I(f'''
    s_lshr_b32 s{sG}, s{sWAVE}, 2
    s_and_b32 s{sTT}, s{sWAVE}, 3
    s_and_b32 s{sT2}, s{sSUB}, 1
    s_mul_i32 s{sT0}, s{sSUB}, 448
    s_lshl_b32 s{sT1}, s{sT2}, 6
    s_add_u32 s{sCOLP}, s{sT0}, s{sT1}
    s_add_u32 s{sCOLS}, s{sT0}, 384
    s_sub_u32 s{sBS}, s{sT0}, 64
    s_cmp_eq_u32 s{sT2}, 0
    s_cselect_b32 s{sCOLS}, s{sCOLS}, s{sBS}
    s_add_u32 s{sBS}, s{sCOLS}, s{sT1}
    v_xor_b32 v{vWDs}, s{sT1}, v{vWD}
    s_waitcnt lgkmcnt(0)
    ''')
    srd(P, sX, 4, 2048 * XB)
    srd(P, sW, 12, 448 * W1S)
    def dma_w(blk, c, slot, tag):
        P.I(f's_add_u32 m0, s{sWW}, {slot*SLOT}')
        P.L[-1] = f's_add_u32 m0, s{sWW}, {slot*SLOT - (128*blk if blk < 3 else 0)}' if slot * SLOT >= 128 * blk else P.L[-1]
        P.I(f's_mul_i32 s{sT0}, s{sKX[c]}, {64*W1S//128}')
        if blk < 3:
            P.I(f's_add_u32 s{sT0}, s{sT0}, s{sCOLP}')
            P.V(f'buffer_load_dwordx4 v{vWD}, s[{sW}:{sW+3}], s{sT0} offen offset:{128*blk}{cfg.wnt} lds', tag)
        else:
            P.I(f's_add_u32 s{sT0}, s{sT0}, s{sCOLS}')
            P.V(f'buffer_load_dwordx4 v{vWDs}, s[{sW}:{sW+3}], s{sT0} offen{cfg.wnt} lds', tag)
    def dma_x1(c, i): dmax(P, c, xbase[c], i, ('c', c))
    def dma_x(P, c, base, tag):
        for i in range(2): dmax(P, c, base, i, tag)
    wslot = {(0, c): c for c in range(7)}
    xbase = {c: (7 + 2 * c) * SLOT for c in range(6)}; xbase[6] = xbase[0]
    NI = cfg.ni
    rot_first(P, cfg, 0)
    dma_x(P, 0, xbase[0], ('c', 0)); dma_w(0, 0, 0, ('c', 0))
    rot_rest(P, 1, 7)
    P.I('s_barrier')
    dma_x(P, 1, xbase[1], ('c', 1)); dma_w(0, 1, 1, ('c', 1))
    init_zero(P, cfg, T)
    s1_prefetch(P, cfg, 0, T)
    stamp(P, cfg, 'issued')
    srd(P, sB1, 14, 1792 * 2)
    P.I(f'''
    s_lshl_b32 s{sT0}, s{sMT}, 2
    s_add_u32 s{sT0}, s{sT0}, s{sTT}
    s_mul_i32 s{sT0}, s{sT0}, {112*1024}
    s_lshl_b32 s{sT2}, s{sBS}, 5
    s_add_u32 s{sHSG}, s{sT0}, s{sT2}
    s_lshl_b32 s{sT2}, s{sG}, 6
    s_add_u32 s{sBP}, s{sCOLP}, s{sT2}
    s_lshl_b32 s{sT2}, s{sBP}, 5
    s_add_u32 s{sHP}, s{sT0}, s{sT2}
    v_and_b32 v{U}, 31, v{vLANE}
    v_lshlrev_b32 v{U+1}, 1, v{U}
    ''')
    for t in range(3):
        P.V(f'buffer_load_ushort v{BR+t}, v{U+1}, s[{sB1}:{sB1+3}], s{sBP} offen offset:{128*t}', 'bias')
    P.V(f'buffer_load_ushort v{BR+3}, v{U+1}, s[{sB1}:{sB1+3}], s{sBS} offen', 'bias')
    frag_addrs(P, sTT, sG, 64, vXa, vWa[0], T)
    for s in range(4): P.I(f'v_add_u32 v{vXa[s]}, {xbase[0]}, v{vXa[s]}')
    for w in (1, 2):
        for s in range(4): P.I(f'v_add_u32 v{vWa[w][s]}, {65536*w}, v{vWa[0][s]}')
    P.I(f'''
    v_lshlrev_b32 v{vHS}, 4, v{vLANE}
    s_lshl_b32 s{sT2}, s{sG}, 9
    s_add_u32 s{sT2}, s{sT2}, {CS_LDS}
    v_lshlrev_b32 v{vCSR}, 4, v{U}
    v_add_u32 v{vCSR}, s{sT2}, v{vCSR}
    s_lshl_b32 s{sT2}, s{sTT}, 2
    v_add_u32 v{vCSW}, s{sT2}, v{vCSR}
    v_lshlrev_b32 v{T}, 3, v{T}
    s_lshl_b32 s{sT2}, s{sG}, 10
    s_add_u32 s{sT2}, s{sT2}, {ST_LDS}
    v_add_u32 v{vSTW}, s{sT2}, v{T}
    v_xor_b32 v{vSTR}, 0x400, v{vSTW}
    v_mov_b32 v{AX+3}, 0
    v_mov_b32 v{BX+3}, 0
    v_mov_b32 v{SQ}, 0
    v_mov_b32 v{SQ+1}, 0
    ''')
    make_sel(P, SEL, T)
    s2_early_setup(P, T)
    for c in range(2, NI):
        dma_x(P, c, xbase[c], ('c', c)); dma_w(0, c, c, ('c', c))
    free = []; sched = {}
    def place(items):
        r = []
        for bc in items:
            s = free.pop(0); wslot[bc] = s; r.append((bc, s))
        return r
    head = lambda b: [(b, 0)]
    tail = lambda b: [(b, c) for c in range(1, 7)]
    q = head(2) + head(1) + tail(1)
    q = [q[1], q[0]] + q[2:]
    avail = []
    plan = {(2, 0): 9, (1, 0): 10}
    for k, c in enumerate(range(1, 7)): plan[(1, c)] = 11 + k
    for k, c in enumerate(range(1, 7)): plan[(2, c)] = [7, 8, 6, 5, 4, 3][k]
    plan[(3, 0)] = 17
    for k, c in enumerate(range(1, 7)): plan[(3, c)] = [18, 12, 13, 14, 15, 16][k]
    def place(items):
        for bc in items: wslot[bc] = plan[bc]
        return [(bc, plan[bc]) for bc in items]
    for c in range(3, 7):
        sl = xbase[c - 2] // SLOT; avail += [sl, sl + 1]
        n = 0
        if c >= 7 - NI:
            while n < 3 and n < len(q) and plan[q[n]] in avail: n += 1
        sched[('c', c)] = place(q[:n]); q = q[n:]
    assert not q, q
    sched[('B', 1)] = place(tail(2) + head(3))
    sched[('B', 2)] = place(tail(3))
    wtag = lambda b, c: ('h' if c < 1 else 't', b)
    def dmas(ev): return [(lambda b=b, c=c, s=s: dma_w(b, c, s, wtag(b, c))) for (b, c), s in sched.get(ev, [])]
    def rd(gs):
        blk, s = divmod(gs, 28)
        if blk > 3: return
        slot = wslot[(blk, s // 4)]; dst = WF + 4 * (gs % NWF)
        off = (slot % 8) * SLOT; a = vWa[slot // 8][s % 4]
        P.D(f'ds_read_b64_tr_b16 v[{dst}:{dst+1}], v{a} offset:{off}', ('w', gs))
        P.D(f'ds_read_b64_tr_b16 v[{dst+2}:{dst+3}], v{a} offset:{off+512}', ('w', gs))
    def xread(c, s):
        d = XF + 4 * (4 * c + s)
        P.D(f'ds_read_b128 v[{d}:{d+3}], v{vXa[s]} offset:{(xbase[c] - xbase[0]) & 0xffff}', ('x', 4 * c + s))
    F = Filler(P)
    def mstep(gs, budget):
        blk, s = divmod(gs, 28)
        w = WF + 4 * (gs % NWF); x = XF + 4 * s
        P.wait_lg(('w', gs), ('x', gs))
        P.I(m32(ACC[blk % 2], w, x, s == 0))
        F.emit(budget)
        if s % 4 == 0:
            P.I(m16(CSA, SEL, w, s == 0))
            F.emit(budget // 2)
    def cs_write(blk): P.D(f'ds_write_b32 v{vCSW}, v{CSA} offset:{1024*(blk%2)}', 'csw')
    for c in range(8):
        DQ = []
        if c < 7:
            P.wait_vm(('c', c))
            if c == 6: P.wait_vm(('h', 1))
            stamp(P, cfg, f'c{c}w')
            if c == 0 or 't0nobar' not in cfg.exp: P.I('s_barrier')
            stamp(P, cfg, f'c{c}b')
            if c == 2: init_flag(P, cfg, PK, 'a')
            if c in (4, 6):
                for s in range(4): P.I(f'v_add_u32 v{vXa[s]}, {(65536 if c == 4 else -65536) & 0xffffffff:#x}, v{vXa[s]}')
            if c + NI < 7:
                cc = c + NI
                DQ = [lambda cc=cc: dma_x1(cc, 0), lambda cc=cc: dma_x1(cc, 1), lambda cc=cc: dma_w(0, cc, cc, ('c', cc))]
            DQ += dmas(('c', c))
            if 't0nodma' in cfg.exp: DQ = []
        def rds(s):
            if c < 7:
                if 't0nox' not in cfg.exp: xread(c, s)
                rd(4 * c + s)
            elif s < 3: rd(28 + s)
        if c == 0:
            for s in range(4): rds(s)
            for f in DQ: f()
            continue
        cc = c - 1
        for s in range(4):
            gs = 4 * cc + s
            w = WF + 4 * (gs % NWF); x = XF + 4 * gs
            P.wait_lg(('w', gs), ('x', gs))
            if s in (0, 2) and 'nosq' not in cfg.exp: F.add(sq_ops(x, T, SQ))
            P.I(m32(ACC[0], w, x, gs == 0))
            if s == 0: site(P, sG, 0, DQ, False)
            rds(s)
            F.emit(20)
            if 't0nom16' not in cfg.exp:
                if s == 0: P.I(m16(CSA, SEL, w, gs == 0))
                if s in (1, 3): P.I(m16(SUMA, SEL, x - 4, gs == 1))
            F.emit(12)
            if s == 3: site(P, sG, 1, DQ, True)
        F.flush()
    P.I(f'''
    v_add_f32 v{SQ}, v{SQ}, v{SQ+1}
    v_mov_b32 v{SQ+1}, v{SQ}
    v_permlane32_swap_b32 v{SQ}, v{SQ+1}
    v_add_f32 v{SQ+1}, v{SQ}, v{SQ+1}
    v_mov_b32 v{SQ}, v{SUMA}
    ''')
    P.D(f'ds_write_b64 v{vSTW}, v[{SQ}:{SQ+1}]', 'csw')
    cs_write(0)
    stamp(P, cfg, 'T0e')

    def stats_ops():
        t = T; R, RI, M, V = U, U + 1, U + 2, U + 3
        L = [lambda: P.wait_lg('str')]
        L += f'''v_add_f32 v{M}, v{SQ}, v{U+4}
        v_add_f32 v{V}, v{SQ+1}, v{U+5}
        v_mul_f32 v{M}, {f32(1.0/448)}, v{M}
        v_mul_f32 v{V}, {f32(1.0/448)}, v{V}
        v_fma_f32 v{V}, -v{M}, v{M}, v{V}
        v_max_f32 v{V}, 0, v{V}
        v_add_f32 v{t}, {f32(EPS)}, v{V}
        v_rsq_f32 v{t+1}, v{t}
        v_cmp_gt_u32 vcc, 32, v{vLANE}
        v_mul_f32 v{t+2}, v{t+1}, v{t+1}
        v_mul_f32 v{t+2}, v{t+2}, v{V}
        v_add_f32 v{t+2}, {f32(EPS)}, v{t+2}
        v_rsq_f32 v{R}, v{t+2}
        v_mul_f32 v{t}, v{t}, v{t+2}
        v_sqrt_f32 v{vRI}, v{t}
        v_mul_f32 v{R}, v{R}, v{t+1}
        v_mul_f32 v{vK0}, {f32(GK0)}, v{R}
        v_mul_f32 v{t}, v{R}, v{R}
        v_mul_f32 v{t}, v{t}, v{R}
        v_mul_f32 v{vK1}, {f32(GK1)}, v{t}
        v_cndmask_b32 v{t}, 0, v{M}, vcc
        v_cndmask_b32 v{t+1}, 0, v{vRI}, vcc
        v_sub_f32 v{t}, 0, v{t}
        v_cvt_pk_bf16_f32 v{BX+1}, v{t}, v{t+1}
        v_lshlrev_b32 v{t+2}, 16, v{BX+1}
        v_sub_f32 v{t+2}, v{t}, v{t+2}
        v_cvt_pk_bf16_f32 v{BX}, v{t}, v{t+2}
        v_and_b32 v{t+2}, 0xffff0000, v{BX+1}
        v_sub_f32 v{t+2}, v{t+1}, v{t+2}
        v_cvt_pk_bf16_f32 v{BX+2}, v{t+2}, v{BX+3}'''.split('\n        ')
        k = [i for i, x in enumerate(L) if isinstance(x, str) and x.startswith('v_cmp_gt_u32')][0]
        L.insert(k + 1, f'v_mov_b32 v{SUMA}, v{t+1}')
        L.append(stat_store)
        return L
    def stat_store():
        u = P.uid()
        P.I(f'''
        s_cmp_eq_u32 s{sG}, 0
        s_cbranch_scc0 L_ss{u}
        s_lshl_b32 s{sT0}, s{sSUB}, 14
        s_lshl_b32 s{sT2}, s{sMT}, 9
        s_add_u32 s{sT0}, s{sT0}, s{sT2}
        s_add_u32 s{sT0}, s{sT0}, {STAT_OFF}
        v_subrev_u32 v{SUMA+1}, {ST_LDS}, v{vSTW}
        v_lshrrev_b32 v{SUMA+1}, 1, v{SUMA+1}
        s_add_u32 s{sT2}, s{sT0}, 8192
        s_mov_b64 exec, 0xffffffff
        buffer_store_dword v{SUMA}, v{SUMA+1}, s[{sWS}:{sWS+3}], s{sT0} offen sc1
        buffer_store_dword v{U+2}, v{SUMA+1}, s[{sWS}:{sWS+3}], s{sT2} offen sc1
        s_mov_b64 exec, -1
        L_ss{u}:
        ''')
    def stat_signal(nD):
        u = P.uid()
        n = len(P.vm.q) - 1 - P.vm.q.index('flag') + nD
        P.I(f's_cmp_eq_u32 s{sG}, 0\ns_cbranch_scc0 L_sg{u}\ns_waitcnt vmcnt({n})')
        q = list(P.vm.q); P.vm.q = []
        flag_check(P, 'ms')
        P.vm.q = q
        P.I(f'''
        s_lshl_b32 s{sT0}, s{sSUB}, 11
        s_lshl_b32 s{sT2}, s{sMT}, 7
        s_add_u32 s{sT0}, s{sT0}, s{sT2}
        s_add_u32 s{sT0}, s{sT0}, {CNT_OFF + 8192}
        v_mov_b32 v{vPF}, 1
        s_mov_b64 exec, 1
        buffer_atomic_add v{vPF}, off, s[{sWS}:{sWS+3}], s{sT0} sc1
        s_mov_b64 exec, -1
        L_sg{u}:
        ''')
    def e_ops(tile, stag):
        A = ACC[tile % 2]
        P.D(f'ds_read_b128 v[{PK}:{PK+3}], v{vCSR} offset:{1024*(tile%2)}', 'csr')
        L = [lambda: P.wait_vm('bias'),
             f'v_lshlrev_b32 v{U}, 16, v{BR+tile}', f'v_mov_b32 v{AX+2}, v{BR+tile}',
             lambda: P.wait_lg('csr'),
             f'v_add_f32 v{T}, v{PK}, v{PK+1}', f'v_add_f32 v{T+2}, v{PK+2}, v{PK+3}', f'v_add_f32 v{T}, v{T}, v{T+2}',
             f'v_cvt_pk_bf16_f32 v{AX}, v{T}, v{T}', f'v_lshlrev_b32 v{T+1}, 16, v{AX}', f'v_sub_f32 v{T+1}, v{T}, v{T+1}',
             f'v_cvt_pk_bf16_f32 v{AX+1}, v{T+1}, v{U}',
             (f's_add_u32 s88, s{sHP}, {4096*tile}' if tile < 3 else f's_mov_b32 s88, s{sHSG}'),
             f's_nop 0',
             m32(A, AX, BX, False)]
        M = []
        for half in range(2):
            E = range(8)
            a = A + 8 * half
            M += [f'v_mul_f32 v{U+e}, v{a+e}, v{a+e}' for e in E]
            M += [f'v_fma_f32 v{U+e}, v{U+e}, v{vK1}, v{vK0}' for e in E]
            M += [f'v_mul_f32 v{U+e}, v{a+e}, v{U+e}' for e in E]
            M += [f'v_exp_f32 v{U+e}, v{U+e}' for e in E]
            M += [f'v_fma_f32 v{U+e}, v{U+e}, v{vRI}, v{vRI}' for e in E]
            M += [f'v_rcp_f32 v{U+e}, v{U+e}' for e in E]
            M += [f'v_mul_f32 v{U+e}, v{a+e}, v{U+e}' for e in E]
            M += [f'v_cvt_pk_bf16_f32 v{PK+e}, v{U+2*e}, v{U+2*e+1}' for e in range(4)]
            if 'nost' not in cfg.exp: M.append(lambda half=half: P.V(f'buffer_store_dwordx4 v[{PK}:{PK+3}], v{vHS}, s[{sWS}:{sWS+3}], s88 offen offset:{1024*half}{cfg.sc}', stag))
        return L, M
    AH = 3
    def barrier_B(j):
        P.wait_vm(('t', j), ('h', j + 1))
        P.wait_lg('csw')
        stamp(P, cfg, f'B{j}w'); P.I('s_barrier'); stamp(P, cfg, f'B{j}b')
    def period(j):
        D = []
        for s in range(28):
            gs = 28 * j + s
            if s == 1:
                barrier_B(j)
                if j == 1: P.D(f'ds_read_b64 v[{U+4}:{U+5}], v{vSTR}', 'str')
                pre, main = e_ops(j - 1, 'stA' if j <= 2 else 'st')
                if j == 1: F.add(stats_ops() + [lambda: flag_prefetch(P, cfg)])
                F.add(pre)
                D = dmas(('B', j))
                if 'nodma' in cfg.exp: D = []
                if j == 3 and cfg.early_w: D = [lambda: s2_srd(P, cfg)] + s2_xy(P, 'X')
                h = len(main) // 2
                if j == 1: main.insert(cfg.sigpos, lambda D=D: stat_signal(len(D))); h += 1
                if j < 3: F.add([lambda D=D: site(P, sG, 0, D, False)] + main[:h] + [lambda D=D: site(P, sG, 1, D, True)] + main[h:])
                else:
                    k = len(main) // (len(D) + 1); mix = []
                    for i, m in enumerate(main):
                        if D and i % k == 0: mix.append(D.pop(0))
                        mix.append(m)
                    F.add(mix + D)
            rd(gs + AH)
            left = 28 - s
            budget = 0 if s < 3 else max(8, int(F.total() / (left + 0.5 * ((27 - s) // 4 + 1)) + 3))
            mstep(gs, budget)
        F.flush()
        cs_write(j)
        stamp(P, cfg, f'T{j}e')
    period(1)
    period(2)
    flag_check(P, 'm')
    P.I(f's_cmp_eq_u32 s{sG}, 0\ns_cbranch_scc0 L_mlp_g1')
    st0 = P.state()
    period(3)
    P.wait_vm('stA'); P.wait_lg('csw'); P.I('s_barrier'); stamp(P, cfg, 'B4b')
    pre, main = e_ops(3, 'st')
    F.add(pre + main); F.flush()
    stamp(P, cfg, 'end')
    if cfg.hook_late: cfg.hook_late(P)
    YQ = s2_xy(P, 'Y') if cfg.early_w else []
    for f in YQ[:cfg.ypre]: f()
    publish2(P, cfg, 1, 'g0', 4, tags=('st',))
    for f in YQ[cfg.ypre:]: f()
    stamp(P, cfg, 'pub'); stamp_flush(P, cfg)
    P.I(f's_branch {after}')
    P.restore(st0)
    P.label('L_mlp_g1')
    barrier_B(3)
    pre, main = e_ops(2, 'st')
    F.add(pre + main); F.flush()
    stamp(P, cfg, 'T3e')
    if cfg.early_w:
        s2_srd(P, cfg)
        for f in s2_xy(P, 'X'): f()
    P.wait_vm('stA'); P.lg0(); P.I('s_barrier'); stamp(P, cfg, 'B4b')
    publish2(P, cfg, 0, 'gA', 4, barrier=False, tags=())
    stamp(P, cfg, 'end')
    if cfg.early_w:
        for f in s2_xy(P, 'Y'): f()
    if cfg.hook_late: cfg.hook_late(P)
    publish2(P, cfg, 1, 'g1', 4, tags=('st',))
    stamp(P, cfg, 'pub'); stamp_flush(P, cfg)
    P.I(f's_branch {after}')

def att_v2(P, cfg, after):
    if 'noatt' in cfg.exp:
        P.L.append('; SETUP_END'); P.I('s_endpgm'); return
    sPP, sHH, sOB, sWC, sPFI = 74, 75, 76, 77, 78
    AREA = 40960; HALO = 3 * AREA
    AM = HALO + 14336
    ST_LDS = AM
    HS_LDS = AM + 2048
    CS_LDS = HALO
    R_LDS = AM + 6144
    EX_LDS = 131072
    HP_LDS = 131072
    vWD, vHD = 4, 5
    vXa = [6, 7, 8, 9]; vWa = [10, 11, 12, 13]; vXh = 14; vT = 15
    AQ, AK, AV = 24, 40, 56
    KH, VH = 72, 80
    CSA = 88
    SEL, ONES = 100, 104
    MKP, MKC, MKP0 = 108, 112, 116
    SQ, SM, HQ, HM = 120, 122, 124, 126
    ME, MO = 128, 129; T = 130
    XH, XE, XO = 136, 140, 144
    FR = 148; NS = 4
    fr = lambda n, k: FR + 16 * (n % NS) + 4 * k
    if not cfg.fastx: xdma_addr(P, vT, vT + 1)
    wdma_addr(P, vWD, WQS, vT, 'zero' if cfg.zpad else True)
    P.I(f'''
    s_and_b32 s{sPP}, s{sWAVE}, 3
    s_lshr_b32 s{sHH}, s{sWAVE}, 2
    s_and_b32 s{sT2}, s{sWAVE}, 1
    s_lshl_b32 s{sT0}, s{sMT}, 7
    s_lshl_b32 s{sT1}, s{sT2}, 3
    s_add_u32 s{sT0}, s{sT0}, s{sT1}
    s_sub_u32 s{sT0}, s{sT0}, 16
    s_mul_i32 s{sT0}, s{sT0}, {XB}
    v_lshrrev_b32 v{vT}, 3, v{vLANE}
    v_mul_u32_u24 v{vT+2}, {XB}, v{vT}
    v_add_u32 v{vT+2}, s{sT0}, v{vT+2}
    v_lshrrev_b32 v{vT+1}, 4, v{vLANE}
    v_xor_b32 v{vT+1}, v{vT+1}, v{vLANE}
    s_lshl_b32 s{sT1}, s{sT2}, 2
    v_xor_b32 v{vT+1}, s{sT1}, v{vT+1}
    v_and_b32 v{vT+1}, 7, v{vT+1}
    v_lshl_add_u32 v{vHD}, v{vT+1}, 4, v{vT+2}
    s_mul_i32 s{sWC}, s{sSUB}, 112
    s_nop 0
    ''')
    if not cfg.fastx: srd(P, sX, 4, 2048 * XB)
    srd(P, sW, 6, 448 * WQS)
    def chunk_dmas(c):
        a = ((c + 2) % 3) * AREA; L = []
        def fx(i): dmax(P, c, a, i, ('c', c))
        def fw(p):
            P.I(f's_add_u32 m0, s{sWW}, {a + 16384 + p*8192 - p*896}')
            if p == 0: P.I(f's_mul_i32 s89, s{sKX[c]}, {64*WQS//128}\ns_add_u32 s89, s89, s{sWC}')
            P.V(f'buffer_load_dwordx4 v{vWD}, s[{sW}:{sW+3}], s89 offen offset:{p*896}{cfg.wnt} lds', ('c', c))
        if 'attidle' in cfg.exp: return []
        return [lambda: fx(0), lambda: fx(1), lambda: fw(0), lambda: fw(1), lambda: fw(2)]
    rot_first(P, cfg, 1)
    C0 = chunk_dmas(0)[2:]
    for _ in range(min(3, cfg.a0e)): C0.pop(0)()
    def halo_dma():
        P.I(f'''
    s_lshr_b32 s{sT0}, s{sWAVE}, 1
    s_lshl_b32 s{sT0}, s{sT0}, 7
    s_add_u32 s{sT0}, s{sT0}, s{sKX[0]}
    s_sub_u32 s{sT1}, s{sT0}, 896
    s_cmp_ge_u32 s{sT0}, 896
    s_cselect_b32 s{sT0}, s{sT1}, s{sT0}
    s_add_u32 m0, s{sWW}, {HALO}
    ''')
        P.V(f'buffer_load_dwordx4 v{vHD}, s[{sX}:{sX+3}], s{sT0} offen lds', ('c', 0))
        P.I(f'''
    s_cmp_lt_u32 s{sWAVE}, 6
    s_cselect_b32 s{sT1}, 512, 0
    s_cselect_b32 s{sT2}, 8192, 0
    s_add_u32 s{sT0}, s{sT0}, s{sT1}
    s_sub_u32 s{sT1}, s{sT0}, 896
    s_cmp_ge_u32 s{sT0}, 896
    s_cselect_b32 s{sT0}, s{sT1}, s{sT0}
    s_add_u32 s{sT2}, s{sT2}, s{sWW}
    s_add_u32 m0, s{sT2}, {HALO}
    ''')
        P.V(f'buffer_load_dwordx4 v{vHD}, s[{sX}:{sX+3}], s{sT0} offen lds', ('c', 0))
    if cfg.a0e >= 5: halo_dma()
    stamp(P, cfg, 'w0')
    rot_rest(P, 1, 7)
    if not cfg.noob: P.I('s_barrier')
    s1_prefetch(P, cfg, 1, vT)
    stamp(P, cfg, 'issued')
    srd(P, sWS, 24, WS_SIZE); srd(P, sDBG, 22, 256)
    frag_addrs(P, sPP, sHH, 56, vXa, vWa, vT, cfg.zpad)
    vROW = 240; i15, g4 = 241, 242
    P.I(f'''
    v_mov_b32 v{vROW}, v{vT}
    v_and_b32 v{i15}, 15, v{vLANE}
    v_lshrrev_b32 v{g4}, 4, v{vLANE}
    v_lshrrev_b32 v{vT}, 1, v{i15}
    v_lshrrev_b32 v{vT+1}, 5, v{vLANE}
    v_xor_b32 v{vT}, v{vT}, v{vT+1}
    s_xor_b32 s{sT0}, s{sT2}, 1
    s_lshl_b32 s{sT0}, s{sT0}, 1
    v_xor_b32 v{vT}, s{sT0}, v{vT}
    v_lshlrev_b32 v{vT}, 4, v{vT}
    v_lshl_add_u32 v{vT}, v{i15}, 7, v{vT}
    v_add_u32 v{vXh}, {HALO}, v{vT}
    v_and_b32 v{MO}, 1, v{g4}
    v_add_u32 v{ME}, -1, v{MO}
    v_not_b32 v{MO}, v{ME}
    ''')
    for s in range(4): P.I(f'v_add_u32 v{vWa[s]}, {16384 + 2*AREA}, v{vWa[s]}\nv_add_u32 v{vXa[s]}, {2*AREA}, v{vXa[s]}')
    if not cfg.dcsa: make_sel(P, SEL, vT)
    for i in range(4): P.I(f'v_mov_b32 v{ONES+i}, 0x3f803f80')
    for p in range(3): P.I(f'v_mov_b32 v{CSA+4*p}, 0\nv_mov_b32 v{CSA+4*p+1}, 0')
    P.I(f'v_lshlrev_b32 v{vT}, 2, v{g4}\nv_sub_u32 v{vT}, v{i15}, v{vT}\nv_mov_b32 v{vT+3}, {f32(NEG)}')
    for v in range(4):
        P.I(f'''
        v_subrev_u32 v{vT+1}, {v}, v{vT}
        v_and_b32 v{vT+2}, 0xfffffff1, v{vT+1}
        v_cmp_eq_u32 vcc, 0, v{vT+2}
        v_cndmask_b32 v{MKC+v}, v{vT+3}, 0, vcc
        v_add_u32 v{vT+1}, 16, v{vT+1}
        v_and_b32 v{vT+2}, 0xfffffff1, v{vT+1}
        v_cmp_eq_u32 vcc, 0, v{vT+2}
        v_cndmask_b32 v{MKP+v}, v{vT+3}, 0, vcc
        ''')
    P.I(f's_or_b32 s{sT0}, s{sMT}, s{sPP}\ns_cmp_eq_u32 s{sT0}, 0\ns_cselect_b64 vcc, -1, 0')
    for v in range(4): P.I(f'v_cndmask_b32 v{MKP0+v}, v{MKP+v}, v{vT+3}, vcc')
    P.I(f'''
    s_lshl_b32 s{sT0}, s{sMT}, 2
    s_add_u32 s{sT0}, s{sT0}, s{sPP}
    s_lshl_b32 s{sT0}, s{sT0}, 15
    s_lshl_b32 s{sT1}, s{sSUB}, 1
    s_add_u32 s{sT1}, s{sT1}, s{sHH}
    s_lshl_b32 s{sT1}, s{sT1}, 11
    s_add_u32 s{sOB}, s{sT0}, s{sT1}
    s_add_u32 s{sOB}, s{sOB}, {O_OFF}
    s_and_b32 s{sPFI}, s{sJ}, 15
    s_lshl_b32 s{sPFI}, s{sPFI}, 3
    s_add_u32 s{sPFI}, s{sPFI}, s{sWAVE}
    s_mul_i32 s{sPFI}, s{sPFI}, {cfg.pfn}
    v_lshlrev_b32 v{vT+8}, 7, v{vLANE}
    ''')
    aST, aHSW, aHSR, aCSW, aCSR, aHPW, aHPR, aRW = 236, 237, 238, 239, 243, 244, 245, 246
    aRR, aRHW, aRHR, aEXW, aEXR, aEXH, vO = 247, 248, 134, 135, 16, 17, 18
    aEXR, aEXH, vO, mLO, mS, m48 = 19, 20, 21, 22, 251, 5
    P.I(f'''
    s_mul_i32 s{sT0}, s{sHH}, 1536
    s_add_u32 s{sT0}, s{sT0}, {CS_LDS}
    v_and_b32 v{vT}, 31, v{vLANE}
    v_lshlrev_b32 v{aCSR}, 4, v{vT}
    v_add_u32 v{aCSR}, s{sT0}, v{aCSR}
    s_lshl_b32 s{sT1}, s{sPP}, 2
    v_add_u32 v{aCSW}, s{sT1}, v{aCSR}
    v_lshlrev_b32 v{vT+1}, 4, v{vLANE}
    s_lshl_b32 s{sT0}, s{sHH}, 14
    s_add_u32 s{sT0}, s{sT0}, {HP_LDS}
    s_lshl_b32 s{sT1}, s{sPP}, 10
    s_add_u32 s{sT1}, s{sT1}, s{sT0}
    v_add_u32 v{aHPW}, s{sT1}, v{vT+1}
    s_lshl_b32 s{sT1}, s{sPP}, 12
    s_add_u32 s{sT1}, s{sT1}, s{sT0}
    v_add_u32 v{aHPR}, s{sT1}, v{vT+1}
    s_lshl_b32 s{sT0}, s{sPP}, 7
    v_lshrrev_b32 v{aRR}, 5, v{vLANE}
    v_add_u32 v{mLO}, -1, v{aRR}
    v_lshlrev_b32 v{aRR}, 4, v{aRR}
    v_add_u32 v{aRR}, s{sT0}, v{aRR}
    s_lshl_b32 s{sT0}, s{sHH}, 13
    s_add_u32 s{sT0}, s{sT0}, {EX_LDS}
    s_lshr_b32 s{sT1}, s{sPP}, 1
    s_lshl_b32 s{sT1}, s{sT1}, 10
    s_and_b32 s{sT2}, s{sPP}, 1
    s_lshl_b32 s{sT2}, s{sT2}, 3
    s_add_u32 s{sT1}, s{sT1}, s{sT2}
    s_add_u32 s{sT1}, s{sT1}, s{sT0}
    v_add_u32 v{aEXH}, s{sT1}, v{vT+1}
    s_lshl_b32 s{sT1}, s{sPP}, 11
    s_add_u32 s{sT0}, s{sT0}, s{sT1}
    v_add_u32 v{aEXR}, s{sT0}, v{vT+1}
    s_add_u32 s{sT0}, s{sT0}, 2048
    s_cmp_eq_u32 s{sPP}, 3
    s_cselect_b32 s{sT0}, {EX_LDS + 16384}, s{sT0}
    v_add_u32 v{aEXW}, s{sT0}, v{vT+1}
    v_lshlrev_b32 v{vO}, 9, v{g4}
    v_lshl_add_u32 v{vO}, v{i15}, 4, v{vO}
    s_and_b32 s{sT0}, s{sPP}, 1
    s_sub_u32 s{sT0}, 0, s{sT0}
    v_xor_b32 v{mS}, s{sT0}, v{ME}
    v_and_b32 v{mS}, v{mS}, v{mLO}
    ''')
    def w2pf(c):
        u = P.uid()
        P.I(f'''
        s_add_u32 s{sT0}, s{sPFI}, {c}
        s_mul_i32 s{sT1}, s{sT0}, {cfg.pfl*128}
        s_mov_b32 s{sW2}, s16
        s_mov_b32 s{sW2+1}, s17
        s_mov_b32 s{sW2+2}, {1792*XB}
        s_mov_b32 s{sW2+3}, 0x20000
        s_cmp_lt_u32 s{sT0}, {-(-12544//cfg.pfl)}
        s_cbranch_scc1 L_pf{u}
        s_mov_b32 s{sW2}, s8
        s_mov_b32 s{sW2+1}, s9
        s_mov_b32 s{sW2+2}, {448*XB}
        s_sub_u32 s{sT1}, s{sT1}, {-(-12544//cfg.pfl)*cfg.pfl*128}
        L_pf{u}:
        s_mov_b64 exec, {(1 << cfg.pfl) - 1:#x}
        ''')
        P.V(f'buffer_load_dword v{vPF}, v{vT+8}, s[{sW2}:{sW2+3}], s{sT1} offen', 'pf')
        P.I('s_mov_b64 exec, -1')
    sSC, sSB = 79, 26
    R, M, RH, MH = 120, 121, 122, 123
    RR, SC = 212, 228
    RR, SC = 180, 124
    def st_poll():
        flag_check(P, 'a')
        P.I(f'''
        s_lshl_b32 s{sT0}, s{sSUB}, 11
        s_lshl_b32 s{sT1}, s{sMT}, 7
        s_add_u32 s{sSC}, s{sT0}, s{sT1}
        s_add_u32 s{sSC}, s{sSC}, {CNT_OFF + 8192}
        s_cmp_eq_u32 s{sMT}, 0
        s_cselect_b32 s{sT1}, 0, 128
        v_mov_b32 v{T}, s{sT1}
        v_and_b32 v{T}, v{mLO}, v{T}
        v_sub_u32 v{T}, s{sSC}, v{T}
        ''')
        svc_load(P, T + 1, sWS, '0', T)
    def st_check():
        if 'nomlp' in cfg.exp: return
        u = svc_begin(P)
        spin(P, T + 1, sWS, '0', cfg.stat_expect, T)
        svc_end(P, u)
    def st_loads():
        P.I(f'''
        s_lshl_b32 s{sT0}, s{sSUB}, 14
        s_lshl_b32 s{sT1}, s{sMT}, 9
        s_add_u32 s{sSB}, s{sT0}, s{sT1}
        s_add_u32 s{sSB}, s{sSB}, {STAT_OFF}
        s_add_u32 s{sT1}, s{sSB}, 8192
        v_lshlrev_b32 v{T}, 2, v{vROW}
        s_cmp_eq_u32 s{sMT}, 0
        s_cselect_b32 s{sT2}, 0x40000000, -64
        v_lshlrev_b32 v{T+1}, 2, v{i15}
        v_add_u32 v{T+1}, s{sT2}, v{T+1}
        v_lshlrev_b32 v{T+2}, 4, v{g4}
        v_add_u32 v{T+2}, s{sT2}, v{T+2}
        v_add_u32 v{T+1}, s{sSB}, v{T+1}
        v_add_u32 v{T+2}, s{sSB}, v{T+2}
        ''')
        ws = f's[{sWS}:{sWS+3}]'
        P.V(f'buffer_load_dword v{R}, v{T}, {ws}, s{sSB} offen sc1', 'sl')
        P.V(f'buffer_load_dword v{M}, v{T}, {ws}, s{sT1} offen sc1', 'sl')
        P.V(f'buffer_load_dword v{RH}, v{T+1}, {ws}, 0 offen sc1', 'sl')
        P.I(f'v_add_u32 v{T+3}, 8192, v{T+1}')
        P.V(f'buffer_load_dword v{MH}, v{T+3}, {ws}, 0 offen sc1', 'sl')
        P.V(f'buffer_load_dwordx4 v[{SC}:{SC+3}], v{T+2}, {ws}, 0 offen sc1', 'sl')
        for q in range(4): P.V(f'buffer_load_dwordx4 v[{RRG+4*q}:{RRG+4*q+3}], v{aRR}, {ws}, s{sSB} offen offset:{32*q} sc1', 'sl')
    RRG = 212
    def reads(n):
        c, s = divmod(n, 4); L = []
        L.append(lambda: P.D(f'ds_read_b128 v[{fr(n,0)}:{fr(n,0)+3}], v{vXa[s]}', ('r', n)))
        for p in range(3):
            d = fr(n, 1 + p)
            L.append(lambda d=d, p=p: P.D(f'ds_read_b64_tr_b16 v[{d}:{d+1}], v{vWa[s]} offset:{p*8192}', ('r', n)))
            L.append(lambda d=d, p=p: P.D(f'ds_read_b64_tr_b16 v[{d+2}:{d+3}], v{vWa[s]} offset:{p*8192+512}', ('r', n)))
        if s == 1 and not (cfg.fasttail and c == 6): L.append(lambda: P.D(f'ds_read_b128 v[{XH}:{XH+3}], v{vXh} offset:{c*2048}', ('r', n)))
        delta = AREA if c % 3 else -2 * AREA
        if c < 6:
            L.append(f'v_add_u32 v{vXa[s]}, {delta & 0xffffffff:#x}, v{vXa[s]}')
            L.append(f'v_add_u32 v{vWa[s]}, {delta & 0xffffffff:#x}, v{vWa[s]}')
        return L
    def run(L, k):
        for _ in range(k):
            if L:
                x = L.pop(0)
                if callable(x): x()
                else: P.I(x)
    F = Filler(P)
    s2_early_setup(P, vT)
    if not cfg.prof: s2_tables(P, cfg)
    if cfg.dpf: dpf_setup(P); P.I(f'v_lshlrev_b32 v236, 4, v{vLANE}')
    stamp(P, cfg, 'setup')
    for f in C0: f()
    if cfg.a0e < 5: halo_dma()
    P.I(f'v_subrev_u32 v{m48}, 48, v{vLANE}\nv_ashrrev_i32 v{m48}, 31, v{m48}')
    for f in chunk_dmas(1): f()
    P.L.append('; SETUP_END')
    P.wait_vm(('c', 0)); P.I('s_barrier'); stamp(P, cfg, 'c0b')
    for n in (0, 1): run(reads(n), 99)
    for f in chunk_dmas(2): f()
    DQ = []
    global NOM16
    NOM16 = 'a_nom16' in cfg.exp
    t = vT
    Fq = FR
    CP = Fq; AX = Fq + 16; BX = Fq + 28
    HA = KH
    QOP, KOP, VOP = 204, 212, 224
    BS = XE; RR = RRG
    RQ, RZ = T, T + 2
    qs = 28 ** -0.5 * LOG2E
    def negm_ops(m, mask, d0, d1, tmp, zero):
        return [f'v_and_b32 v{m}, v{mask}, v{m}', f'v_sub_f32 v{m}, 0, v{m}', f'v_cvt_pk_bf16_f32 v{d1}, v{m}, v{zero}',
                f'v_lshlrev_b32 v{tmp}, 16, v{d1}', f'v_sub_f32 v{tmp}, v{m}, v{tmp}', f'v_cvt_pk_bf16_f32 v{d0}, v{m}, v{tmp}']
    def e0_writes():
        L = []
        if cfg.dcsa:
            L += [f'v_add_f32 v{CSA+4*p}, v{CSA+4*p}, v{CSA+4*p+1}' for p in range(3)] + [f'v_mov_b32 v{CSA+4*p+1}, v{CSA+4*p}' for p in range(3)]
        L += [lambda k=k: P.D(f'ds_write_b128 v{aHPW}, v[{KH+4*k}:{KH+4*k+3}] offset:{4096*k}', 'w') for k in range(4)]
        if cfg.dcsa:
            L += [f'v_permlane32_swap_b32 v{CSA+4*p}, v{CSA+4*p+1}' for p in range(3)] + [f'v_add_f32 v{CSA+4*p}, v{CSA+4*p}, v{CSA+4*p+1}' for p in range(3)]
        return L + [lambda p=p: P.D(f'ds_write_b32 v{aCSW}, v{CSA+4*p} offset:{512*p}', 'w') for p in range(3)]
    def e0_prep():
        L = [f'v_mov_b32 v{AX+4*p+2+d}, 0' for p in range(3) for d in range(2)] + [f'v_mov_b32 v{r}, 0' for r in (BX + 2, BX + 3, BS + 2, BS + 3)]
        L += [lambda: P.wait_vm('sl')] + negm_ops(M, mLO, BX, BX + 1, t, BX + 3) + negm_ops(MH, mS, BS, BS + 1, t, BX + 3)
        return L + [f'v_mul_f32 v{RQ}, {f32(qs)}, v{R}', f'v_and_b32 v{RZ}, v{mLO}, v{RQ}']
    def e1_reads():
        for p in (2, 1, 0): P.D(f'ds_read_b128 v[{CP+4*p}:{CP+4*p+3}], v{aCSR} offset:{512*p}', ('b', p))
        for k in range(4): P.D(f'ds_read_b128 v[{HA+4*k}:{HA+4*k+3}], v{aHPR} offset:{1024*k}', 'hp')
    FT = cfg.fasttail
    for n in range(28):
        c, s = divmod(n, 4); first = n == 0
        if s == 2 and c < 6:
            P.wait_vm(('c', c + 1)); P.wait_lg(('r', n + 1), 'xh6')
            if FT and n == 22: st_check()
            P.I('s_barrier'); stamp(P, cfg, f'c{c+1}b')
            if FT and n == 22: st_loads()
            DQ = chunk_dmas(c + 3) if c + 3 < 7 else []
            if 'a_nodma' in cfg.exp: DQ = []
            if cfg.attpf and cfg.pf0 <= c < cfg.pf0 + cfg.pfn: DQ = DQ + [lambda c=c: w2pf(c - cfg.pf0)]
            if c == 5:
                s2_srd(P, cfg); DQ = DQ + s2_xy(P, 'X')
            if cfg.dpf and 1 <= c <= 5: DQ = DQ + [lambda c=c: dpf(P, c - 1, 232, 236)]
            if c == cfg.m1c: DQ = DQ + [lambda: mall_pf1(P, vT + 8)]
            if c == 2: flag_prefetch(P, cfg)
            if c == cfg.mallc: DQ = DQ + [lambda: mall_pf(P, vT + 8)]
        nxt = reads(n + 2) if n + 2 < 28 else []
        P.wait_lg(('r', n))
        x, wq, wk, wv = fr(n, 0), fr(n, 1), fr(n, 2), fr(n, 3)
        f1 = n == 1; f3 = n == 3
        if s == 1:
            F.flush()
            F.add([f'v_and_b32 v{XE+d}, v{ME}, v{XH+d}' for d in range(4)] + [f'v_and_b32 v{XO+d}, v{MO}, v{XH+d}' for d in range(4)])
        B = 32
        if n == (cfg.ftpoll if FT else cfg.st_poll): st_poll()
        if FT and n == 26: F.add(e0_writes() + e0_prep()); B = 48
        if FT and n == 27:
            F.flush(); P.lg0(); P.I('s_barrier'); stamp(P, cfg, 'e1'); e1_reads()
        cs_here = (s == 3 and not (FT and c == 6)) or (FT and n == 24)
        if n == cfg.st_poll + 2 and not FT:
            stamp(P, cfg, 'sc0'); st_check(); P.I('s_barrier'); stamp(P, cfg, 'sc1'); st_loads()
        if cs_here and cfg.dcsa:
            for p, w in enumerate((wq, wk, wv)):
                for d in range(4): P.I(f'v_dot2c_f32_bf16 v{CSA + 4*p + (d & 1)}, v{w+d}, v{ONES}')
        P.I(m32(AQ, wq, x, first))
        if s == 2: site(P, sHH, 0, DQ, False)
        run(nxt, 3); F.emit(B)
        if cs_here and not cfg.dcsa: P.I(m16(CSA, SEL, wq, f3))
        P.I(m32(AK, wk, x, first))
        run(nxt, 3); F.emit(B)
        if s == 1: P.I(m16(KH, wk, XE, f1)); P.I(m16(KH + 4, wk, XO, f1)); F.emit(16)
        if cs_here and not cfg.dcsa: P.I(m16(CSA + 4, SEL, wk, f3))
        P.I(m32(AV, x, wv, first))
        run(nxt, 99); F.emit(B)
        if s == 1: P.I(m16(VH, XE, wv, f1)); P.I(m16(VH + 4, XO, wv, f1)); F.emit(16)
        if cs_here and not cfg.dcsa: P.I(m16(CSA + 8, SEL, wv, f3))
        if FT and n == 21:
            F.flush(); P.D(f'ds_read_b128 v[{XH}:{XH+3}], v{vXh} offset:{6*2048}', 'xh6')
        if s == 3:
            F.flush()
            site(P, sHH, 1, DQ, True); DQ = []
    NOM16 = False
    stamp(P, cfg, 'loop')
    if not FT:
        F.add(e0_writes() + e0_prep()); F.flush()
        P.wait_vm('X')
        P.lg0(); P.I('s_barrier'); stamp(P, cfg, 'e1')
        e1_reads()
    P.lg0(); P.I('s_barrier')
    P.I(f'v_mov_b32 v{t}, {GO_LDS}')
    P.D(f'ds_write_b32 v{t}, v{BX+3}', 'z')
    XQ = s2_xy(P, 'Y')
    run(XQ, 2)
    for p in (2, 1, 0):
        P.wait_lg(('b', p))
        c = CP + 4 * p; a = AX + 4 * p
        P.I(f'''
        v_add_f32 v{c}, v{c}, v{c+1}
        v_add_f32 v{c+2}, v{c+2}, v{c+3}
        v_add_f32 v{c}, v{c}, v{c+2}
        v_cvt_pk_bf16_f32 v{a}, v{c}, v{c}
        v_lshlrev_b32 v{c+1}, 16, v{a}
        v_sub_f32 v{c+1}, v{c}, v{c+1}
        v_cvt_pk_bf16_f32 v{a+1}, v{c+1}, v{BX+3}
        ''')
        run(XQ, 1)
        P.I(m32(AV, BX, AX + 8, False) if p == 2 else m32(AK, AX + 4, BX, False) if p == 1 else m32(AQ, AX, BX, False))
    P.wait_lg('hp')
    pr = lambda r: f'v[{r}:{r+1}]'
    for e in (0, 2): P.I(f'v_pk_add_f32 {pr(HA+e)}, {pr(HA+e)}, {pr(HA+4+e)}')
    for e in (0, 2): P.I(f'v_pk_add_f32 {pr(HA+8+e)}, {pr(HA+8+e)}, {pr(HA+12+e)}')
    for e in (0, 2): P.I(f'v_pk_add_f32 {pr(HA+e)}, {pr(HA+e)}, {pr(HA+8+e)}')
    run(XQ, 3)
    P.I(f's_cmp_lt_u32 s{sPP}, 2\ns_cbranch_scc0 L_hv')
    P.I(m16(HA, AX + 4, BS, False))
    P.I('s_branch L_hd')
    P.label('L_hv')
    P.I(m16(HA, BS, AX + 8, False))
    P.label('L_hd')
    pmap = [0, 1, 4, 5, 2, 3, 6, 7]
    pr = lambda r: f'v[{r}:{r+1}]'
    def pack_T(acc, dst, r, rz):
        if 'a_nopack' in cfg.exp: return
        for v in range(0, 16, 2): P.I(f'v_pk_mul_f32 {pr(acc+v)}, {pr(acc+v)}, {pr(rz if v >= 12 else r)} op_sel_hi:[1,0]')
        for i in range(8): P.I(f'v_cvt_pk_bf16_f32 v{dst+pmap[i]}, v{acc+2*i}, v{acc+2*i+1}')
        for i in range(4): P.I(f'v_permlane32_swap_b32 v{dst+i}, v{dst+4+i}')
        for i in range(4): P.I(f'v_permlane16_swap_b32 v{dst+i}, v{dst+4+i}')
    for v in range(0, 16, 2): P.I(f'v_pk_mul_f32 {pr(AV+v)}, {pr(AV+v)}, {pr(RR+v)}')
    vmap = [VOP + 2, VOP + 3, VOP + 8, VOP + 9, VOP + 4, VOP + 5, VOP + 10, VOP + 11]
    for i in range(8): P.I(f'v_cvt_pk_bf16_f32 v{vmap[i]}, v{AV+2*i}, v{AV+2*i+1}')
    for i in range(2, 6): P.I(f'v_permlane32_swap_b32 v{VOP+i}, v{VOP+6+i}')
    for i in range(2, 6): P.I(f'v_permlane16_swap_b32 v{VOP+i}, v{VOP+6+i}')
    for tt in range(2): P.D(f'ds_write_b64 v{aEXW}, v[{VOP+6*tt+4}:{VOP+6*tt+5}] offset:{1024+8*tt}', 'x')
    pack_T(AK, KOP + 4, R, R)
    P.D(f'ds_write_b128 v{aEXW}, v[{KOP+8}:{KOP+11}]', 'x')
    P.I(f's_cmp_lt_u32 s{sPP}, 2\ns_cbranch_scc0 L_hv2')
    for v in (0, 2): P.I(f'v_pk_mul_f32 {pr(HA+v)}, {pr(HA+v)}, {pr(RH)} op_sel_hi:[1,0]')
    P.I('s_branch L_hd2')
    P.label('L_hv2')
    for v in (0, 2): P.I(f'v_pk_mul_f32 {pr(HA+v)}, {pr(HA+v)}, {pr(SC+v)}')
    P.label('L_hd2')
    P.I(f'v_cvt_pk_bf16_f32 v{HA+4}, v{HA}, v{HA+1}\nv_cvt_pk_bf16_f32 v{HA+5}, v{HA+2}, v{HA+3}')
    P.D(f'ds_write_b64 v{aEXH}, v[{HA+4}:{HA+5}]', 'x')
    P.wait_vm('X')
    P.lg0(); P.I('s_barrier'); stamp(P, cfg, 'e2')
    P.D(f'ds_read_b128 v[{KOP}:{KOP+3}], v{aEXR}', 'e')
    for tt in range(2): P.D(f'ds_read_b64 v[{VOP+6*tt}:{VOP+6*tt+1}], v{aEXR} offset:{1024+8*tt}', 'e')
    if cfg.hook_late: cfg.hook_late(P)
    pack_T(AQ, QOP, RQ, RZ)
    S = AK; PP = AK + 16; OO = AQ
    OB = [AQ, CSA]
    mfS = lambda d, a, b, c: f'v_mfma_f32_16x16x32_bf16 v[{d}:{d+3}], v[{a}:{a+3}], v[{b}:{b+3}], v[{c}:{c+3}]'
    P.lg0()
    P.I(mfS(S + 8, KOP + 4, QOP + 4, MKP)); P.I(mfS(S + 12, KOP + 8, QOP + 4, MKC)); P.I(mfS(S + 4, KOP + 4, QOP, MKC)); P.I(mfS(S, KOP, QOP, MKP0))
    mx = [t + 1, t + 3]
    order = (1, 0)
    for bb in order:
        s = S + 8 * bb; m = mx[bb]
        P.I(f'''
        v_max3_f32 v{m}, v{s}, v{s+1}, v{s+2}
        v_max3_f32 v{m+1}, v{s+3}, v{s+4}, v{s+5}
        v_max3_f32 v{m}, v{m}, v{s+6}, v{s+7}
        v_max_f32 v{m}, v{m}, v{m+1}
        v_mov_b32 v{m+1}, v{m}
        ''')
    for bb in order: P.I(f'v_permlane16_swap_b32 v{mx[bb]}, v{mx[bb]+1}')
    for bb in order: P.I(f'v_max_f32 v{mx[bb]}, v{mx[bb]}, v{mx[bb]+1}\nv_mov_b32 v{mx[bb]+1}, v{mx[bb]}')
    for bb in order: P.I(f'v_permlane32_swap_b32 v{mx[bb]}, v{mx[bb]+1}')
    for bb in order: P.I(f'v_max_f32 v{mx[bb]}, v{mx[bb]}, v{mx[bb]+1}')
    for bb in order:
        s = S + 8 * bb; o = OB[bb]; p = PP + 4 * bb
        for v in range(0, 8, 2): P.I(f'v_pk_add_f32 {pr(s+v)}, {pr(s+v)}, {pr(mx[bb])} op_sel_hi:[1,0] neg_lo:[0,1] neg_hi:[0,1]')
        for v in range(8): P.I(f'v_exp_f32 v{s+v}, v{s+v}')
        for v in range(4): P.I(f'v_cvt_pk_bf16_f32 v{p+v}, v{s+2*v}, v{s+2*v+1}')
        P.I(m16(o + 8, ONES, p, True))
        for tt in range(2): P.I(m16(o + 4 * tt, VOP + 6 * tt + 2 * bb, p, True))
    for bb in order:
        o = OB[bb]
        P.I(f'v_rcp_f32 v{o+8}, v{o+8}')
        P.I(f'v_and_b32 v{o+10}, v{m48}, v{o+8}')
        for v in (0, 2): P.I(f'v_pk_mul_f32 {pr(o+v)}, {pr(o+v)}, {pr(o+8)} op_sel_hi:[1,0]')
        for v in (4, 6): P.I(f'v_pk_mul_f32 {pr(o+v)}, {pr(o+v)}, {pr(o+10)} op_sel_hi:[1,0]')
        for v in range(4): P.I(f'v_cvt_pk_bf16_f32 v{PP+4*bb+v}, v{o+2*v}, v{o+2*v+1}')
        P.V(f'buffer_store_dwordx4 v[{PP+4*bb}:{PP+4*bb+3}], v{vO}, s[{sWS}:{sWS+3}], s{sOB} offen offset:{256*bb}{cfg.sc}', 'st')
    stamp(P, cfg, 'end')
    assert not XQ
    stamp_flush(P, cfg)
    P.I(f's_branch {after}')
```

```python
from gen import *
from s2v2 import *
from s1v2 import (vPF, sKX, rot_first, rot_rest, dmax, wdma_addr, frag_addrs, make_sel, sq_ops, cost, Filler, site,
                  m32, m16, publish2, flag_check, atomic_inc, mall_pf, mall_pf1)

pr = lambda r: f'v[{r}:{r+1}]'
AH = 3
def set_ah(n):
    global AH
    AH = n

class Eng:
    def __init__(self, P, cfg, XF, WF, NWF, vWa, vXa, wslot, xslot):
        self.__dict__.update(locals()); del self.__dict__['self']
        self.F = Filler(P); self.xq = list(range(28)); self.xwin = 0
    def rd(self, gs, nblk):
        blk, s = divmod(gs, 28)
        if blk >= nblk: return
        slot = self.wslot[(blk, s // 4)]; dst = self.WF + 4 * (gs % self.NWF)
        off = (slot % 8) * SLOT; a = self.vWa[slot // 8][s % 4]
        self.P.D(f'ds_read_b64_tr_b16 v[{dst}:{dst+1}], v{a} offset:{off}', ('w', gs))
        self.P.D(f'ds_read_b64_tr_b16 v[{dst+2}:{dst+3}], v{a} offset:{off+512}', ('w', gs))
    def xreads(self, n, maxchunk):
        for _ in range(n):
            if not self.xq or self.xq[0] // 4 > maxchunk: return
            g = self.xq.pop(0); c, s = divmod(g, 4)
            base = self.xslot[c] * SLOT; win = base // 65536
            if win != self.xwin:
                assert s == 0
                d = (win - self.xwin) * 65536
                for k in range(4): self.P.I(f'v_add_u32 v{self.vXa[k]}, {d & 0xffffffff:#x}, v{self.vXa[k]}')
                self.xwin = win
            d = self.XF + 4 * g
            self.P.D(f'ds_read_b128 v[{d}:{d+3}], v{self.vXa[s]} offset:{base % 65536}', ('x', g))
    def budget(self, s, extra):
        left = 28 - s
        return max(8, int(self.F.total() / (left + extra) + 3))

def stat_addr(P, d, t):
    P.I(f'''
    s_lshl_b32 s{d}, s{sSUB}, 14
    s_lshl_b32 s{t}, s{sMT}, 9
    s_add_u32 s{d}, s{d}, s{t}
    s_add_u32 s{d}, s{d}, {STAT_OFF}
    ''')
def statc_addr(P, d, t):
    P.I(f'''
    s_lshl_b32 s{d}, s{sSUB}, 11
    s_lshl_b32 s{t}, s{sMT}, 7
    s_add_u32 s{d}, s{d}, s{t}
    s_add_u32 s{d}, s{d}, {CNT_OFF + 8192}
    ''')

def w2pf_m(P, k, n, lanes, t):
    u = P.uid(); nw2 = -(-12544 // lanes)
    P.I(f'''
    s_lshl_b32 s{sT0}, s{sJ}, 3
    s_add_u32 s{sT0}, s{sT0}, s{sWAVE}
    s_mul_i32 s{sT0}, s{sT0}, {n}
    s_add_u32 s{sT0}, s{sT0}, {k}
    s_mul_i32 s{sT1}, s{sT0}, {lanes*128}
    s_mov_b32 s{sW2}, s16
    s_mov_b32 s{sW2+1}, s17
    s_mov_b32 s{sW2+2}, {1792*XB}
    s_mov_b32 s{sW2+3}, 0x20000
    s_cmp_lt_u32 s{sT0}, {nw2}
    s_cbranch_scc1 L_pf{u}
    s_mov_b32 s{sW2}, s8
    s_mov_b32 s{sW2+1}, s9
    s_mov_b32 s{sW2+2}, {448*XB}
    s_sub_u32 s{sT1}, s{sT1}, {nw2*lanes*128}
    L_pf{u}:
    s_mov_b64 exec, {-1 if lanes == 64 else (1 << lanes) - 1}
    ''')
    P.V(f'buffer_load_dword v{vPF}, v{t}, s[{sW2}:{sW2+3}], s{sT1} offen', 'pf')
    P.I('s_mov_b64 exec, -1')

def l2pf_late(P, t):
    srd(P, sWO, 8, 448 * XB)
    P.I(f's_lshl_b32 s{sT1}, s{sJ}, 2\ns_and_b32 s{sT0}, s{sWAVE}, 3\ns_add_u32 s{sT1}, s{sT1}, s{sT0}')
    u = P.uid()
    P.I(f'''
    s_mul_i32 s{sT0}, s{sT1}, 4682
    s_lshr_b32 s{sT0}, s{sT0}, 16
    s_mul_i32 s{sT2}, s{sT0}, {448*XB - 14*8192}
    s_lshl_b32 s{sT0}, s{sT1}, 13
    s_add_u32 s{sT0}, s{sT0}, s{sT2}
    s_add_u32 s{sT0}, s{sT0}, {128*XB}
    s_cmp_lt_u32 s{sT1}, 56
    s_cbranch_scc1 L_lp{u}
    s_sub_u32 s{sT0}, s{sT1}, 56
    s_lshl_b32 s{sT0}, s{sT0}, 13
    L_lp{u}:
    s_cselect_b32 s{sT2}, 0, 1
    ''')
    u2 = P.uid()
    P.I(f's_cbranch_scc0 L_lq{u2}\nbuffer_load_dword v{vPF}, v{t}, s[{sW2}:{sW2+3}], s{sT0} offen\ns_branch L_lr{u2}\nL_lq{u2}:\nbuffer_load_dword v{vPF}, v{t}, s[{sWO}:{sWO+3}], s{sT0} offen\nL_lr{u2}:')
    P.vm.issue('pf')
    u = P.uid()
    P.I(f'''
    s_mul_i32 s{sT0}, s{sT1}, 9363
    s_lshr_b32 s{sT0}, s{sT0}, 16
    s_mul_i32 s{sT2}, s{sT0}, {448*XB - 7*8192}
    s_lshl_b32 s{sT0}, s{sT1}, 13
    s_add_u32 s{sT0}, s{sT0}, s{sT2}
    s_add_u32 s{sT0}, s{sT0}, {384*XB}
    s_cmp_lt_u32 s{sT1}, 28
    s_cbranch_scc0 L_lq{u}
    buffer_load_dword v{vPF}, v{t}, s[{sW2}:{sW2+3}], s{sT0} offen
    s_branch L_lr{u}
    L_lq{u}:
    s_sub_u32 s{sT0}, s{sT1}, 20
    s_lshl_b32 s{sT0}, s{sT0}, 13
    buffer_load_dword v{vPF}, v{t}, s[{sWO}:{sWO+3}], s{sT0} offen
    L_lr{u}:
    ''')
    P.vm.issue('pf')

def mlp_v3(P, cfg, after):
    if 'nomlp' in cfg.exp:
        init_zero(P, cfg, 224); P.L.append('; SETUP_END'); P.I('s_waitcnt vmcnt(0)'); init_flag(P, cfg, 224, 'a'); P.I('s_endpgm'); return
    sCOLP, sCOLS, sHP, sHSG, sBP, sBS, sG, sTT = 74, 75, 76, 77, 78, 79, 27, 26
    vWD, vWDs = 4, 5
    vWa = [[6 + 4 * w + s for s in range(4)] for w in range(3)]
    vXa = [18, 19, 20, 21]
    vHS, vCSW = 22, 23
    XF = 24; ACC = [136, 152]; WF = 168; NWF = 6
    CSA, SEL, BX, AX = 192, 196, 200, 204
    vK0, vK1, vRI = 208, 209, 210; BR = 211; vCSR, vSTW, vSTR = 215, 216, 217
    SQ = 218; SUMA = 220; T = 224; U = 228; PK = 236
    B3_LDS = 16 * SLOT; CS_LDS = B3_LDS + 28672; ST_LDS = CS_LDS + 2048; CNT_LDS = ST_LDS
    if not cfg.fastx: xdma_addr(P, T, T + 1)
    wdma_addr(P, vWD, W1S, T)
    P.I(f'''
    s_lshr_b32 s{sG}, s{sWAVE}, 2
    s_and_b32 s{sTT}, s{sWAVE}, 3
    s_and_b32 s{sT2}, s{sSUB}, 1
    s_mul_i32 s{sT0}, s{sSUB}, 448
    s_lshl_b32 s{sT1}, s{sT2}, 6
    s_add_u32 s{sCOLP}, s{sT0}, s{sT1}
    s_add_u32 s{sCOLS}, s{sT0}, 384
    s_sub_u32 s{sBS}, s{sT0}, 64
    s_cmp_eq_u32 s{sT2}, 0
    s_cselect_b32 s{sCOLS}, s{sCOLS}, s{sBS}
    s_add_u32 s{sBS}, s{sCOLS}, s{sT1}
    s_mov_b32 s{sCOLS}, s{sT0}
    v_add_u32 v{vWD}, s{sT1}, v{vWD}
    s_nop 0
    ''')
    if not cfg.fastx: srd(P, sX, 4, 2048 * XB)
    srd(P, sW, 12, 448 * W1S)
    xslot = {c: 2 * c for c in range(7)}
    wslot = {}
    for c, s in zip(range(7), [14, 15, 16, 17, 18, 0, 1]): wslot[(0, c)] = s
    for c, s in zip(range(7), [2, 3, 4, 5, 6, 7, 8]): wslot[(1, c)] = s
    for c, s in zip(range(7), [9, 10, 11, 12, 13, 14, 15]): wslot[(2, c)] = s
    for c, s in zip(range(7), [14, 15, 16, 17, 18, 8, 9]): wslot[(3, c)] = s
    kw_ready = [False]
    def dw(blk, c, tag):
        def f3():
            if c == 0: P.I('s_lshr_b64 exec, -1, 32')
            P.I(f's_add_u32 m0, s59, {B3_LDS + 4096*c}')
            P.V(f'buffer_load_dwordx4 v{vWDs}, s[{sW}:{sW+3}], s{52+c} offen{cfg.wnt} lds', tag)
            if c == 6: P.I('s_mov_b64 exec, -1')
        if blk == 3: return f3
        def f():
            slot = wslot[(blk, c)]
            off = 128 * blk if blk < 3 else 0
            if slot * SLOT < off:
                P.I(f's_add_u32 m0, s{sWW}, {slot*SLOT}\ns_mul_i32 s{sT0}, s{sKX[c]}, {64*W1S//128}\ns_add_u32 s{sT0}, s{sT0}, s{sCOLS}\ns_add_u32 s{sT0}, s{sT0}, {off}')
                off = 0
            else:
                if kw_ready[0]:
                    P.I(f's_add_u32 m0, s{sWW}, {slot*SLOT - off}')
                    P.V(f'buffer_load_dwordx4 v{vWD}, s[{sW}:{sW+3}], s{52+c} offen offset:{off}{cfg.wnt} lds', tag); return
                P.I(f's_add_u32 m0, s{sWW}, {slot*SLOT - off}\ns_mul_i32 s{sT0}, s{sKX[c]}, {64*W1S//128}\ns_add_u32 s{sT0}, s{sT0}, s{sCOLS}')
            P.V(f'buffer_load_dwordx4 v{vWD if blk < 3 else vWDs}, s[{sW}:{sW+3}], s{sT0} offen offset:{off}{cfg.wnt} lds', tag)
        return f
    def dx(c, tag): return [lambda: dmax(P, c, xslot[c] * SLOT, 0, tag), lambda: dmax(P, c, xslot[c] * SLOT, 1, tag)]
    rot_first(P, cfg, 0)
    if not cfg.fastx:
        for f in dx(0, 'a'): f()
    rot_rest(P, 1, 7)
    dw(0, 0, 'a')()
    stamp(P, cfg, 'w0')
    if not cfg.noob: P.I('s_barrier')
    stamp(P, cfg, 'ob')
    init_zero(P, cfg, T)
    C1 = dx(1, 'a1') + [dw(0, 1, 'a1')]
    for _ in range(cfg.c1e): C1.pop(0)()
    srd(P, sB1, 14, 1792 * 2)
    P.I(f'''
    s_lshl_b32 s{sT0}, s{sMT}, 2
    s_add_u32 s{sT0}, s{sT0}, s{sTT}
    s_mul_i32 s{sT0}, s{sT0}, {112*1024}
    s_lshl_b32 s{sT2}, s{sBS}, 5
    s_add_u32 s{sHSG}, s{sT0}, s{sT2}
    s_lshl_b32 s{sT2}, s{sG}, 6
    s_add_u32 s{sBP}, s{sCOLP}, s{sT2}
    s_lshl_b32 s{sT2}, s{sBP}, 5
    s_add_u32 s{sHP}, s{sT0}, s{sT2}
    v_and_b32 v{U}, 31, v{vLANE}
    v_lshlrev_b32 v{U+1}, 1, v{U}
    ''')
    frag_addrs(P, sTT, sG, 64, vXa, vWa[0], T)
    for w in (1, 2):
        for s in range(4): P.I(f'v_add_u32 v{vWa[w][s]}, {65536*w}, v{vWa[0][s]}')
    Q0 = dx(2, 'a2') + [dw(0, 2, 'a2')] + dx(3, 'b') + [dw(0, 3, 'b')] + dx(4, 'b') + [dw(0, 4, 'b')] + dx(5, 'c') + dx(6, 'c')
    for _ in range(cfg.ni0): Q0.pop(0)()
    P.I(f'''
    v_lshlrev_b32 v{vHS}, 4, v{vLANE}
    s_lshl_b32 s{sT2}, s{sG}, 9
    s_add_u32 s{sT2}, s{sT2}, {CS_LDS}
    v_lshlrev_b32 v{vCSR}, 4, v{U}
    v_add_u32 v{vCSR}, s{sT2}, v{vCSR}
    s_lshl_b32 s{sT2}, s{sTT}, 2
    v_add_u32 v{vCSW}, s{sT2}, v{vCSR}
    v_lshlrev_b32 v{T}, 3, v{T}
    s_lshl_b32 s{sT2}, s{sG}, 10
    s_add_u32 s{sT2}, s{sT2}, {ST_LDS}
    v_add_u32 v{vSTW}, s{sT2}, v{T}
    v_xor_b32 v{vSTR}, 0x400, v{vSTW}
    v_mov_b32 v{AX+3}, 0
    v_mov_b32 v{BX+3}, 0
    v_mov_b32 v{SQ}, 0
    v_mov_b32 v{SQ+1}, 0
    ''')
    if not (cfg.dsum and cfg.dcs): make_sel(P, SEL, T)
    vONE = 245
    P.I(f'v_mov_b32 v{vONE}, 0x3f803f80\nv_mov_b32 v{SUMA}, 0\nv_mov_b32 v{SUMA+1}, 0\nv_mov_b32 v{CSA}, 0\nv_mov_b32 v{CSA+1}, 0')
    def cs_op(w, first):
        if not cfg.dcs: return [m16(CSA, SEL, w, first)]
        return [f'v_dot2c_f32_bf16 v{CSA + (d & 1)}, v{w+d}, v{vONE}' for d in range(4)]
    s2_early_setup(P, T)
    if not cfg.prof: s2_tables(P, cfg)
    if cfg.dpf: dpf_setup(P)
    P.I(f'''
    v_lshrrev_b32 v{T}, 2, v{vLANE}
    s_lshl_b32 s{sT0}, s{sWAVE}, 3
    v_add_u32 v{T}, s{sT0}, v{T}
    v_mul_u32_u24 v{T}, {W1S}, v{T}
    v_and_b32 v{T+1}, 3, v{vLANE}
    v_lshl_add_u32 v{vWDs}, v{T+1}, 4, v{T}
    s_sub_u32 s{sT0}, s{sBS}, s{sCOLS}
    v_add_u32 v{vWDs}, s{sT0}, v{vWDs}
    s_lshr_b32 s59, s{sWW}, 1
    ''')
    for c in range(7): P.I(f's_mul_i32 s{52+c}, s{sKX[c]}, {64*W1S//128}\ns_add_u32 s{52+c}, s{52+c}, s{sCOLS}')
    kw_ready[0] = True
    P.I(f'v_lshlrev_b32 v244, 7, v{vLANE}')
    stamp(P, cfg, 'setup')
    for f in C1: f()
    stamp(P, cfg, 'issued')
    for t in range(3):
        P.V(f'buffer_load_ushort v{BR+t}, v{U+1}, s[{sB1}:{sB1+3}], s{sBP} offen offset:{128*t}', 'bias')
    P.V(f'buffer_load_ushort v{BR+3}, v{U+1}, s[{sB1}:{sB1+3}], s{sBS} offen', 'bias')
    E = Eng(P, cfg, XF, WF, NWF, vWa, vXa, wslot, xslot); F = E.F
    rd_std = E.rd
    def rd(gs, nblk):
        blk, s = divmod(gs, 28)
        if blk != 3: return rd_std(gs, nblk)
        dst = WF + 4 * (gs % NWF); off = 4096 * (s // 4)
        P.D(f'ds_read_b64_tr_b16 v[{dst}:{dst+1}], v{vXa[s%4]} offset:{off}', ('w', gs))
        P.D(f'ds_read_b64_tr_b16 v[{dst+2}:{dst+3}], v{vXa[s%4]} offset:{off+256}', ('w', gs))
    E.rd = rd
    b3_addr = f'''v_lshrrev_b32 v{T}, 5, v{vLANE}
        v_lshlrev_b32 v{T}, 3, v{T}
        v_bfe_u32 v{T+1}, v{vLANE}, 2, 2
        v_add_u32 v{T}, v{T}, v{T+1}
        v_lshlrev_b32 v{T}, 6, v{T}
        v_and_b32 v{T+1}, 16, v{vLANE}
        v_lshl_add_u32 v{T}, v{T+1}, 1, v{T}
        v_and_b32 v{T+1}, 3, v{vLANE}
        v_lshl_add_u32 v{T}, v{T+1}, 3, v{T}
        s_xor_b32 s{sT0}, s{sG}, s{sTT}
        s_lshl_b32 s{sT0}, s{sT0}, 10
        s_add_u32 s{sT0}, s{sT0}, {B3_LDS}
        v_add_u32 v{vXa[0]}, s{sT0}, v{T}
        v_xor_b32 v{vXa[1]}, 0x400, v{vXa[0]}
        v_xor_b32 v{vXa[2]}, 0x800, v{vXa[0]}
        v_xor_b32 v{vXa[3]}, 0xc00, v{vXa[0]}
        v_mov_b32 v{T}, {CNT_LDS}
        v_mov_b32 v{T+2}, 0
        v_mov_b32 v{T+3}, 0
        ds_write_b64 v{T}, v[{T+2}:{T+3}]
        ds_write_b32 v{T}, v{T+2} offset:8
        ds_write_b32 v{T}, v{T+2} offset:{GO_LDS - CNT_LDS}'''
    def arrive(tag='stA', w=0):
        P.wait_vm(tag)
        P.I(f'v_mov_b32 v{SQ}, {CNT_LDS + w}\nv_mov_b32 v{SQ+1}, 1\ns_mov_b64 exec, 1')
        P.D(f'ds_add_rtn_u32 v{SQ+1}, v{SQ}, v{SQ+1}', 'arr')
        P.I('s_mov_b64 exec, -1')
    def hre(tile, tag):
        P.wait_vm(tag)
        P.I(f's_add_u32 s{sT0}, s{sHP}, {4096*tile}\ns_mov_b64 exec, 0xffff')
        P.V(f'buffer_load_dword v{vPF}, v244, s[{sWS}:{sWS+3}], s{sT0} offen{cfg.hrefl}', 'pf')
        P.I('s_mov_b64 exec, -1')
    def arrive_check(off=4096):
        u = P.uid()
        P.wait_lg('arr')
        P.I(f'v_readfirstlane_b32 s{sT0}, v{SQ+1}\ns_cmp_eq_u32 s{sT0}, 7\ns_cbranch_scc0 L_ar{u}')
        P.I(f's_lshl_b32 s{sT0}, s{sMT}, 7\ns_add_u32 s{sT0}, s{sT0}, {CNT_OFF + off}')
        atomic_inc(P, sT0)
        P.label(f'L_ar{u}')
    def bar(name, vm=(), lg=()):
        if vm: P.wait_vm(*vm)
        if lg: P.wait_lg(*lg)
        stamp(P, cfg, name + 'w'); P.I('s_barrier'); stamp(P, cfg, name + 'b')
    def cs_write(blk):
        if cfg.dcs:
            P.I(f'v_add_f32 v{CSA+2}, v{CSA}, v{CSA+1}\nv_mov_b32 v{CSA}, 0\nv_mov_b32 v{CSA+3}, v{CSA+2}\nv_mov_b32 v{CSA+1}, 0\nv_permlane32_swap_b32 v{CSA+2}, v{CSA+3}\nv_add_f32 v{CSA+2}, v{CSA+2}, v{CSA+3}')
            P.D(f'ds_write_b32 v{vCSW}, v{CSA+2} offset:{1024*(blk%2)}', 'csw')
        else: P.D(f'ds_write_b32 v{vCSW}, v{CSA} offset:{1024*(blk%2)}', 'csw')
    def sites(D): return (lambda: site(P, sG, 0, D, False)), (lambda: site(P, sG, 1, D, True))
    P.L.append('; SETUP_END')
    bar('c0', vm=('a',))
    E.xreads(2, 0)
    for g in range(AH): E.rd(g, 4)
    E.xreads(2, 0)
    at = {}
    vis = 0
    for s in range(28):
        if s == 1:
            bar('a1', vm=('a1',)); vis = 1
            init_flag(P, cfg, PK, 'a')
        if s == 5: bar('a2', vm=('a2',)); vis = 2
        if s == 9:
            assert not Q0
            bar('Bb', vm=('b',), lg=(('x', 11),)); vis = 4
            for f in [dw(0, 5, 'c'), dw(0, 6, 'c'), dw(1, 0, 'c')]: f()
            flag_prefetch(P, cfg)
            at[10], at[13] = sites([dw(1, c, ('t', 1)) for c in range(1, 4)])
        if s == 17:
            bar('Bc', vm=('c',), lg=(('x', 19),)); vis = 6
            at[17], at[20] = sites([dw(1, c, ('t', 1)) for c in range(4, 7)] + [dw(2, 0, ('h', 2))])
        if s in at: at[s]()
        if s == cfg.malls and cfg.mallc >= 0: mall_pf(P, 244)
        if s == cfg.m1s: mall_pf1(P, 244)
        E.rd(s + AH, 4)
        w = WF + 4 * (s % NWF); x = XF + 4 * s
        P.wait_lg(('w', s), ('x', s))
        if s % 2 == 0 and 'nosq' not in cfg.exp and not cfg.dot2: F.add(sq_ops(x, T, SQ))
        if cfg.dot2 == 1 and s % 2 == 0:
            for d in range(4): P.I(f'v_dot2c_f32_bf16 v{SQ + (d & 1)}, v{x+d}, v{x+d}')
            if cfg.dsum:
                for d in range(4): P.I(f'v_dot2c_f32_bf16 v{SUMA + (d & 1)}, v{x+d}, v{vONE}')
        if cfg.dot2 == 2 and s % 4 == 3:
            for xx in (x - 12, x - 4):
                for d in range(4): P.I(f'v_dot2c_f32_bf16 v{SQ + (d & 1)}, v{xx+d}, v{xx+d}')
        if s % 4 == 0 and cfg.dcs:
            for xx in cs_op(w, False): P.I(xx)
        P.I(m32(ACC[0], w, x, s == 0))
        E.xreads(2, vis)
        for _ in range(2):
            if Q0: Q0.pop(0)()
        F.emit(20)
        if s % 4 == 0 and not cfg.dcs: P.I(m16(CSA, SEL, w, s == 0))
        if s % 2 == 1 and not cfg.dsum: P.I(m16(SUMA, SEL, x - 4, s == 1))
        F.emit(12)
    F.flush()
    if cfg.dsum: P.I(f'v_add_f32 v{SUMA}, v{SUMA}, v{SUMA+1}\nv_mov_b32 v{SUMA+1}, v{SUMA}\nv_permlane32_swap_b32 v{SUMA}, v{SUMA+1}\nv_add_f32 v{SUMA}, v{SUMA}, v{SUMA+1}')
    P.I(f'''
    v_add_f32 v{SQ}, v{SQ}, v{SQ+1}
    v_mov_b32 v{SQ+1}, v{SQ}
    v_permlane32_swap_b32 v{SQ}, v{SQ+1}
    v_add_f32 v{SQ+1}, v{SQ}, v{SQ+1}
    v_mov_b32 v{SQ}, v{SUMA}
    ''')
    P.D(f'ds_write_b64 v{vSTW}, v[{SQ}:{SQ+1}]', 'csw')
    cs_write(0)
    stamp(P, cfg, 'T0e')

    mark = [0]
    def stat_store():
        P.wait_vm('bias'); assert True
        mark[0] = P.vm.n
        u = P.uid()
        P.I(f's_cmp_eq_u32 s{sG}, 0\ns_cbranch_scc0 L_ss{u}')
        stat_addr(P, sT0, sT2)
        P.I(f'''
        v_subrev_u32 v{SUMA+1}, {ST_LDS}, v{vSTW}
        v_lshrrev_b32 v{SUMA+1}, 1, v{SUMA+1}
        s_add_u32 s{sT2}, s{sT0}, 8192
        buffer_store_dword v{SUMA}, v{SUMA+1}, s[{sWS}:{sWS+3}], s{sT0} offen sc1
        buffer_store_dword v{U+2}, v{SUMA+1}, s[{sWS}:{sWS+3}], s{sT2} offen sc1
        L_ss{u}:
        ''')
    def stats_ops():
        t = T; R, M, V = U, U + 2, U + 3
        L = [lambda: P.wait_lg('str')]
        L += f'''v_add_f32 v{M}, v{SQ}, v{U+4}
        v_add_f32 v{V}, v{SQ+1}, v{U+5}
        v_mul_f32 v{M}, {f32(1.0/448)}, v{M}
        v_mul_f32 v{V}, {f32(1.0/448)}, v{V}
        v_fma_f32 v{V}, -v{M}, v{M}, v{V}
        v_max_f32 v{V}, 0, v{V}
        v_add_f32 v{t}, {f32(EPS)}, v{V}
        v_rsq_f32 v{SUMA}, v{t}'''.split('\n        ')
        L += [stat_store]
        L += f'''v_cmp_gt_u32 vcc, 32, v{vLANE}
        v_mul_f32 v{t+2}, v{SUMA}, v{SUMA}
        v_mul_f32 v{t+2}, v{t+2}, v{V}
        v_add_f32 v{t+2}, {f32(EPS)}, v{t+2}
        v_rsq_f32 v{R}, v{t+2}
        v_mul_f32 v{t}, v{t}, v{t+2}
        v_sqrt_f32 v{vRI}, v{t}
        v_mul_f32 v{R}, v{R}, v{SUMA}
        v_mul_f32 v{vK0}, {f32(GK0)}, v{R}
        v_mul_f32 v{t}, v{R}, v{R}
        v_mul_f32 v{t}, v{t}, v{R}
        v_mul_f32 v{vK1}, {f32(GK1)}, v{t}
        v_cndmask_b32 v{t}, 0, v{M}, vcc
        v_cndmask_b32 v{t+1}, 0, v{vRI}, vcc
        v_sub_f32 v{t}, 0, v{t}
        v_cvt_pk_bf16_f32 v{BX+1}, v{t}, v{t+1}
        v_lshlrev_b32 v{t+2}, 16, v{BX+1}
        v_sub_f32 v{t+2}, v{t}, v{t+2}
        v_cvt_pk_bf16_f32 v{BX}, v{t}, v{t+2}
        v_and_b32 v{t+2}, 0xffff0000, v{BX+1}
        v_sub_f32 v{t+2}, v{t+1}, v{t+2}
        v_cvt_pk_bf16_f32 v{BX+2}, v{t+2}, v{BX+3}'''.split('\n        ')
        return L
    def e_ops(tile, stag):
        A = ACC[tile % 2]
        P.D(f'ds_read_b128 v[{PK}:{PK+3}], v{vCSR} offset:{1024*(tile%2)}', 'csr')
        L = [lambda: P.wait_vm('bias'),
             f'v_lshlrev_b32 v{U}, 16, v{BR+tile}', f'v_mov_b32 v{AX+2}, v{BR+tile}',
             lambda: P.wait_lg('csr'),
             f'v_add_f32 v{T}, v{PK}, v{PK+1}', f'v_add_f32 v{T+2}, v{PK+2}, v{PK+3}', f'v_add_f32 v{T}, v{T}, v{T+2}',
             f'v_cvt_pk_bf16_f32 v{AX}, v{T}, v{T}', f'v_lshlrev_b32 v{T+1}, 16, v{AX}', f'v_sub_f32 v{T+1}, v{T}, v{T+1}',
             f'v_cvt_pk_bf16_f32 v{AX+1}, v{T+1}, v{U}',
             (f's_add_u32 s88, s{sHP}, {4096*tile}' if tile < 3 else f's_mov_b32 s88, s{sHSG}'),
             f's_nop 0',
             m32(A, AX, BX, False)]
        M = []
        for half in (range(2) if (tile == 3 and cfg.pk3) else ()):
            a = A + 8 * half; pk = PK + 4 * half; R4 = range(0, 8, 2)
            M += [f'v_pk_mul_f32 {pr(U+e)}, {pr(a+e)}, {pr(a+e)}' for e in R4]
            M += [f'v_pk_fma_f32 {pr(U+e)}, {pr(U+e)}, {pr(vK0)}, {pr(vK0)} op_sel:[0,1,0] op_sel_hi:[1,1,0]' for e in R4]
            M += [f'v_pk_mul_f32 {pr(U+e)}, {pr(a+e)}, {pr(U+e)}' for e in R4]
            M += [f'v_exp_f32 v{U+e}, v{U+e}' for e in range(8)]
            M += [f'v_pk_fma_f32 {pr(U+e)}, {pr(U+e)}, {pr(vRI)}, {pr(vRI)} op_sel_hi:[1,0,0]' for e in R4]
            M += [f'v_rcp_f32 v{U+e}, v{U+e}' for e in range(8)]
            M += [f'v_pk_mul_f32 {pr(U+e)}, {pr(a+e)}, {pr(U+e)}' for e in R4]
            M += [f'v_cvt_pk_bf16_f32 v{pk+e}, v{U+2*e}, v{U+2*e+1}' for e in range(4)]
            M.append(lambda half=half, pk=pk: P.V(f'buffer_store_dwordx4 v[{pk}:{pk+3}], v{vHS}, s[{sWS}:{sWS+3}], s88 offen offset:{1024*half}{cfg.sc}', stag))
        for half in (() if (tile == 3 and cfg.pk3) else range(2)):
            R8 = range(8); a = A + 8 * half; pk = PK + 4 * half
            M += [f'v_mul_f32 v{U+e}, v{a+e}, v{a+e}' for e in R8]
            M += [f'v_fma_f32 v{U+e}, v{U+e}, v{vK1}, v{vK0}' for e in R8]
            M += [f'v_mul_f32 v{U+e}, v{a+e}, v{U+e}' for e in R8]
            M += [f'v_exp_f32 v{U+e}, v{U+e}' for e in R8]
            M += [f'v_fma_f32 v{U+e}, v{U+e}, v{vRI}, v{vRI}' for e in R8]
            M += [f'v_rcp_f32 v{U+e}, v{U+e}' for e in R8]
            M += [f'v_mul_f32 v{U+e}, v{a+e}, v{U+e}' for e in R8]
            M += [f'v_cvt_pk_bf16_f32 v{pk+e}, v{U+2*e}, v{U+2*e+1}' for e in range(4)]
            if 'nost' in cfg.exp: M.append('s_nop 0')
            else: M.append(lambda half=half, pk=pk: P.V(f'buffer_store_dwordx4 v[{pk}:{pk+3}], v{vHS}, s[{sWS}:{sWS+3}], s88 offen offset:{1024*half}{cfg.sc}', stag))
        if 'nogelu' in cfg.exp: M = [x for x in M if callable(x) or 'cvt' in x or 'exp' in x]
        return L, M
    def barrier_B(j):
        if j == 1: flag_check(P, 'm')
        bar(f'B{j}', vm=(('t', j), ('h', j + 1)) + (('stA0', 'X') if j == 3 else ()), lg=('csw',))
        if j == 3: publish2(P, cfg, 0, 'a0', 4, barrier=False, tags=())
    def stat_signal(nD):
        n = P.vm.n - mark[0]
        u = P.uid()
        P.I(f's_cmp_eq_u32 s{sG}, 0\ns_cbranch_scc0 L_sw{u}\ns_waitcnt vmcnt({n + nD})')
        statc_addr(P, sT0, sT2)
        atomic_inc(P, sT0)
        P.label(f'L_sw{u}')
    def period(j):
        for s in range(28):
            gs = 28 * j + s
            if s == 1:
                barrier_B(j)
                if j == 1: P.D(f'ds_read_b64 v[{U+4}:{U+5}], v{vSTR}', 'str')
                pre, main = e_ops(j - 1, 'stA0' if j == 1 else 'stA' if j == 2 else 'stA2')
                if j == 1: F.add(stats_ops())
                F.add(pre)
                if j == 1: D = [dw(2, c, ('t', 2)) for c in range(1, 7)] + [dw(3, 0, ('h', 3))] + [dw(3, c, ('t', 3)) for c in range(1, 7)]
                if j == 2:
                    s2_srd(P, cfg); D = s2_xy(P, 'X')
                    def b3f():
                        P.I(b3_addr); P.lg.issue('z'); P.lg.issue('z'); P.lg.issue('z')
                    F.q.insert(0, b3f)
                if j == 3: D = []
                h = len(main) // 2
                if j == 1: main.insert(min(cfg.sigpos, len(main) // 2 - 2), lambda D=D: stat_signal(0 if cfg.uni else len(D))); h += 1
                if j < 3 and not cfg.uni:
                    sa, sb = sites(D)
                    rest = main[h:]
                    if cfg.dpf:
                        ks = ([0, 1, 2] if j == 1 else [3, 4]) if cfg.dpf == 1 else ([0, 1, 2, 3, 4] if j == cfg.dpf - 1 else [])
                        for n, k in enumerate(ks): rest.insert(4 + 12 * n, lambda k=k: dpf(P, k, 244, vHS))
                    if j == 1 and cfg.mallc >= 0 and cfg.malls < 0: rest.insert(2, lambda: mall_pf(P, 244))
                    if cfg.mlppf == j:
                        rest += [lambda: w2pf_m(P, 0, 2, 64, 244), lambda: w2pf_m(P, 1, 2, 64, 244)]
                    F.add([sa] + main[:h] + [sb] + rest)
                else:
                    k = max(1, int(len(main) * cfg.unif) // (len(D) + 1)); mix = []
                    for i, m in enumerate(main):
                        if D and i % k == 0: mix.append(D.pop(0))
                        mix.append(m)
                    F.add(mix + D)
            if j == 3 and s == cfg.apos: arrive()
            if j == 3 and s == cfg.apos + 3: arrive_check()
            if cfg.hre and j == 2 and s == cfg.hre: hre(0, 'stA0')
            if cfg.hre and j == 3 and s == cfg.apos + 1: hre(1, 'stA')
            E.rd(gs + AH, 4)
            b = 0 if s < 3 else E.budget(s, 0 if cfg.dcs else 0.5 * ((27 - s) // 4 + 1))
            w = WF + 4 * (gs % NWF); x = XF + 4 * s
            P.wait_lg(('w', gs))
            if cfg.alt and j < 3 and s % cfg.alt == 0:
                u = P.uid(); odd = (s // cfg.alt) % 2
                P.I(f's_setprio 0\ns_cmp_eq_u32 s{sG}, {odd}\ns_cbranch_scc0 L_pr{u}\ns_setprio 1\nL_pr{u}:')
            if s % 4 == 0 and cfg.dcs:
                for xx in cs_op(w, False): P.I(xx)
            P.I(m32(ACC[j % 2], w, x, s == 0))
            F.emit(b)
            if s % 4 == 0 and not cfg.dcs:
                P.I(m16(CSA, SEL, w, s == 0)); F.emit(b // 2)
        F.flush()
        cs_write(j)
        stamp(P, cfg, f'T{j}e')
    period(1)
    period(2)
    if cfg.alt: P.I('s_setprio 0')
    P.I(f's_cmp_eq_u32 s{sG}, 0\ns_cbranch_scc0 L_mlp_g1')
    st0 = P.state()
    period(3)
    P.lg0()
    P.I(f'''
    v_mov_b32 v{SQ}, {CNT_LDS + 4}
    v_mov_b32 v{SQ+1}, 1
    s_mov_b64 exec, 1
    ds_add_u32 v{SQ}, v{SQ+1}
    s_mov_b64 exec, -1
    s_mov_b32 s{sT2}, {SPIN}
    L_g0s:
    ds_read_b32 v{SQ+1}, v{SQ}
    s_sub_u32 s{sT2}, s{sT2}, 1
    s_cbranch_scc1 L_g0x
    s_waitcnt lgkmcnt(0)
    v_readfirstlane_b32 s{sT0}, v{SQ+1}
    s_cmp_ge_u32 s{sT0}, 4
    s_cbranch_scc0 L_g0s
    L_g0x:
    ''')
    stamp(P, cfg, 'B4b')
    pre, main = e_ops(3, 'st')
    h = len(main) // 2
    if not cfg.noa2:
        main.insert(len(main) - 6, lambda: arrive_check(6144)); main.insert(h + cfg.a2off, lambda: arrive('stA2', 8))
    F.add(pre + main); F.flush()
    stamp(P, cfg, 'end')
    stamp_flush(P, cfg)
    P.I(f's_branch {after}')
    P.restore(st0)
    P.label('L_mlp_g1')
    barrier_B(3)
    pre, main = e_ops(2, 'stA2')
    XY = [f for pair in zip(s2_xy(P, 'Y', 2), s2_xy(P, 'Y')) for f in pair]
    k = len(main) // 9; mix = []
    for i, x in enumerate(main):
        if i and i % k == 0 and len(XY) > 8: mix.append(XY.pop(0))
        if i == len(main) * 7 // 12: mix.append(arrive)
        if i == len(main) * 8 // 12: mix.append(arrive_check)
        if cfg.hre and i == len(main) * 7 // 12 + 2: mix.append(lambda: hre(1, 'stA'))
        mix.append(x)
    F.add(pre + mix); F.flush()
    stamp(P, cfg, 'T3e')
    if cfg.l2pf == 1: l2pf_late(P, 244)
    for f in XY: f()
    if cfg.l2pf == 2: l2pf_late(P, 244)
    if not cfg.noa2: arrive('stA2', 8); arrive_check(6144)
    P.lg0()
    stamp(P, cfg, 'end')
    if cfg.hook_late: cfg.hook_late(P)
    stamp_flush(P, cfg)
    P.I(f's_branch {after}')

def att_v3(P, cfg, after):
    sPP, sHH, sOB, sWC, sSC, sSB = 74, 75, 76, 77, 79, 26
    vWD, vHD = 4, 5
    vWa = [[6 + 4 * w + s for s in range(4)] for w in range(3)]
    vXa = [18, 19, 20, 21]; vXh = 22; vL7 = 23
    XF = 24; AK, AV, AQ = 136, 152, 168; ACC = [AK, AV, AQ]
    WF = 184; NWF = 5
    KH, VH = 204, 212; CSA, SEL, XH, XE, XO = 220, 224, 228, 232, 236
    i15, g4, ME, mLO = 240, 241, 242, 243; T = 244; aCSW = 248; vROW = 251
    HALO = 12 * SLOT; CS_LDS = MISC; HP_LDS = 0; EX_LDS = 8 * SLOT; DUMMY = MISC + 4096
    part = [1, 2, 0]
    xdma_addr(P, T, T + 1)
    wdma_addr(P, vWD, WQS, T, True)
    P.I(f'''
    s_and_b32 s{sPP}, s{sWAVE}, 3
    s_lshr_b32 s{sHH}, s{sWAVE}, 2
    s_and_b32 s{sT2}, s{sWAVE}, 1
    s_lshl_b32 s{sT0}, s{sMT}, 7
    s_lshl_b32 s{sT1}, s{sT2}, 3
    s_add_u32 s{sT0}, s{sT0}, s{sT1}
    s_sub_u32 s{sT0}, s{sT0}, 16
    s_mul_i32 s{sT0}, s{sT0}, {XB}
    v_lshrrev_b32 v{T}, 3, v{vLANE}
    v_mul_u32_u24 v{T+2}, {XB}, v{T}
    v_add_u32 v{T+2}, s{sT0}, v{T+2}
    v_lshrrev_b32 v{T+1}, 4, v{vLANE}
    v_xor_b32 v{T+1}, v{T+1}, v{vLANE}
    s_lshl_b32 s{sT1}, s{sT2}, 2
    v_xor_b32 v{T+1}, s{sT1}, v{T+1}
    v_and_b32 v{T+1}, 7, v{T+1}
    v_lshl_add_u32 v{vHD}, v{T+1}, 4, v{T+2}
    s_mul_i32 s{sWC}, s{sSUB}, 112
    s_waitcnt lgkmcnt(0)
    ''')
    srd(P, sX, 4, 2048 * XB)
    srd(P, sW, 6, 448 * WQS)
    xslot = {c: 2 * c for c in range(6)}; xslot[6] = 0
    wslot = {}
    for c, s in zip(range(7), [14, 15, 16, 17, 18, 2, 3]): wslot[(0, c)] = s
    for c, s in zip(range(7), [4, 5, 6, 7, 8, 9, 10]): wslot[(1, c)] = s
    for c, s in zip(range(7), [11, 14, 15, 16, 17, 18, 12]): wslot[(2, c)] = s
    def dw(blk, c, tag):
        def f():
            off = 896 * part[blk]
            P.I(f's_add_u32 m0, s{sWW}, {wslot[(blk, c)]*SLOT - off}\ns_mul_i32 s{sT0}, s{sKX[c]}, {64*WQS//128}\ns_add_u32 s{sT0}, s{sT0}, s{sWC}')
            P.V(f'buffer_load_dwordx4 v{vWD}, s[{sW}:{sW+3}], s{sT0} offen offset:{off}{cfg.wnt} lds', tag)
        return f
    def dx(c, tag): return [lambda: dmax(P, c, xslot[c] * SLOT, 0, tag), lambda: dmax(P, c, xslot[c] * SLOT, 1, tag)]
    rot_first(P, cfg, 1)
    for f in dx(0, 'a'): f()
    dw(0, 0, 'a')()
    P.I(f'''
    s_lshr_b32 s{sT0}, s{sWAVE}, 1
    s_lshl_b32 s{sT0}, s{sT0}, 7
    s_add_u32 s{sT0}, s{sT0}, s{sKX[0]}
    s_sub_u32 s{sT1}, s{sT0}, 896
    s_cmp_ge_u32 s{sT0}, 896
    s_cselect_b32 s{sT0}, s{sT1}, s{sT0}
    s_add_u32 m0, s{sWW}, {HALO}
    ''')
    P.V(f'buffer_load_dwordx4 v{vHD}, s[{sX}:{sX+3}], s{sT0} offen lds', 'a')
    P.I(f'''
    s_cmp_lt_u32 s{sWAVE}, 6
    s_cselect_b32 s{sT1}, 512, 0
    s_cselect_b32 s{sT2}, 8192, 0
    s_add_u32 s{sT0}, s{sT0}, s{sT1}
    s_sub_u32 s{sT1}, s{sT0}, 896
    s_cmp_ge_u32 s{sT0}, 896
    s_cselect_b32 s{sT0}, s{sT1}, s{sT0}
    s_add_u32 s{sT2}, s{sT2}, s{sWW}
    s_add_u32 m0, s{sT2}, {HALO}
    ''')
    P.V(f'buffer_load_dwordx4 v{vHD}, s[{sX}:{sX+3}], s{sT0} offen lds', 'a')
    rot_rest(P, 1, 7)
    P.I('s_barrier')
    for f in dx(1, 'a1') + [dw(0, 1, 'a1')]: f()
    stamp(P, cfg, 'issued')
    srd(P, sWS, 24, WS_SIZE); srd(P, sDBG, 22, 256)
    frag_addrs(P, sPP, sHH, 56, vXa, vWa[0], T)
    for w in (1, 2):
        for s in range(4): P.I(f'v_add_u32 v{vWa[w][s]}, {65536*w}, v{vWa[0][s]}')
    P.I(f'''
    v_mov_b32 v{vROW}, v{T}
    v_and_b32 v{i15}, 15, v{vLANE}
    v_lshrrev_b32 v{g4}, 4, v{vLANE}
    v_lshrrev_b32 v{T}, 1, v{i15}
    v_lshrrev_b32 v{T+1}, 5, v{vLANE}
    v_add_u32 v{mLO}, -1, v{T+1}
    v_xor_b32 v{T}, v{T}, v{T+1}
    s_xor_b32 s{sT0}, s{sT2}, 1
    s_lshl_b32 s{sT0}, s{sT0}, 1
    v_xor_b32 v{T}, s{sT0}, v{T}
    v_lshlrev_b32 v{T}, 4, v{T}
    v_lshl_add_u32 v{T}, v{i15}, 7, v{T}
    v_add_u32 v{vXh}, {HALO}, v{T}
    v_and_b32 v{ME}, 1, v{g4}
    v_add_u32 v{ME}, -1, v{ME}
    s_mul_i32 s{sT0}, s{sHH}, 1536
    s_lshl_b32 s{sT1}, s{sPP}, 2
    s_add_u32 s{sT0}, s{sT0}, s{sT1}
    s_add_u32 s{sT0}, s{sT0}, {CS_LDS}
    v_and_b32 v{T}, 31, v{vLANE}
    v_lshlrev_b32 v{aCSW}, 4, v{T}
    v_add_u32 v{aCSW}, s{sT0}, v{aCSW}
    v_lshlrev_b32 v{vL7}, 7, v{vLANE}
    s_lshl_b32 s{sT0}, s{sMT}, 2
    s_add_u32 s{sT0}, s{sT0}, s{sPP}
    s_lshl_b32 s{sT0}, s{sT0}, 15
    s_lshl_b32 s{sT1}, s{sSUB}, 1
    s_add_u32 s{sT1}, s{sT1}, s{sHH}
    s_lshl_b32 s{sT1}, s{sT1}, 11
    s_add_u32 s{sOB}, s{sT0}, s{sT1}
    s_add_u32 s{sOB}, s{sOB}, {O_OFF}
    ''')
    make_sel(P, SEL, T)
    s2_early_setup(P, T)
    if not cfg.prof: s2_tables(P, cfg)
    Q0 = dx(2, 'a2') + [dw(0, 2, 'a2')] + dx(3, 'b') + [dw(0, 3, 'b')] + dx(4, 'b') + [dw(0, 4, 'b')] + dx(5, 'c')
    E = Eng(P, cfg, XF, WF, NWF, vWa, vXa, wslot, xslot); F = E.F
    def bar(name, vm=(), lg=()):
        if vm: P.wait_vm(*vm)
        if lg: P.wait_lg(*lg)
        stamp(P, cfg, name + 'w'); P.I('s_barrier'); stamp(P, cfg, name + 'b')
    def sites(D): return (lambda: site(P, sHH, 0, D, False)), (lambda: site(P, sHH, 1, D, True))
    def xh_read(c): P.D(f'ds_read_b128 v[{XH}:{XH+3}], v{vXh} offset:{c*2048}', ('xh', c))
    def slot(j, s, hooks):
        gs = 28 * j + s
        for f in hooks.get(s, []): f()
        E.rd(gs + AH, 3)
        w = WF + 4 * (gs % NWF); x = XF + 4 * s
        P.wait_lg(('w', gs), ('x', gs))
        if j < 2 and s % 4 == 0:
            P.wait_lg(('xh', s // 4))
            F.q = [f'v_and_b32 v{XE+d}, v{ME}, v{XH+d}' for d in range(4)] + [f'v_xor_b32 v{XO+d}, v{XE+d}, v{XH+d}' for d in range(4)] + F.q
        P.I(m32(ACC[j], x, w, s == 0) if j == 1 else m32(ACC[j], w, x, s == 0))
        if j == 0:
            E.xreads(2, vis[0])
            for _ in range(2):
                if Q0: Q0.pop(0)()
        b = 32 if j < 2 else (0 if s < 2 else E.budget(s, 0.5 * ((27 - s) // 4 + 1)))
        F.emit(b)
        if j < 2 and s % 4 == 1:
            H = KH if j == 0 else VH
            if j == 0: P.I(m16(H, w, XE, s == 1)); P.I(m16(H + 4, w, XO, s == 1))
            else: P.I(m16(H, XE, w, s == 1)); P.I(m16(H + 4, XO, w, s == 1))
        if j < 2 and s % 4 == 2:
            if s < 24: xh_read(s // 4 + 1)
            elif j == 0: xh_read(0)
        if s % 4 == 3:
            P.I(m16(CSA, SEL, w, s == 3)); F.emit(b // 2)
    def cs_write(j): P.D(f'ds_write_b32 v{aCSW}, v{CSA} offset:{512*j}', 'csw')
    vis = [0]
    def setvis(v): vis[0] = v
    bar('c0', vm=('a',))
    E.xreads(2, 0); xh_read(0)
    for g in range(AH): E.rd(g, 3)
    E.xreads(2, 0)
    H = {1: [lambda: bar('a1', vm=('a1',)), lambda: setvis(1)],
         5: [lambda: bar('a2', vm=('a2',)), lambda: setvis(2)],
         9: [lambda: bar('Bb', vm=('b',), lg=(('x', 11),)), lambda: setvis(4)] + dx(6, 'c') + [dw(0, 5, 'c'), dw(0, 6, 'c'), dw(1, 0, 'c'), lambda: flag_prefetch(P, cfg)],
         13: [dw(1, 1, ('t', 1))],
         17: [lambda: bar('Bc', vm=('c',), lg=(('x', 19),)), lambda: setvis(6)]}
    sa, sb = sites([dw(1, c, ('t', 1)) for c in range(2, 6)])
    H[17].append(sa); H[20] = [sb]
    if cfg.mallc >= 0: H[23] = [lambda: mall_pf(P, vL7)]
    for s in range(28): slot(0, s, H)
    F.flush()
    stamp(P, cfg, 'T0e')
    R, M, RH, MH = 18, 19, 20, 21
    def st_poll():
        flag_check(P, 'a')
        statc_addr(P, sSC, sT1)
        P.I(f'''
        s_cmp_eq_u32 s{sMT}, 0
        s_cselect_b32 s{sT1}, 0, 128
        v_mov_b32 v2, s{sT1}
        v_and_b32 v2, v{mLO}, v2
        v_sub_u32 v2, s{sSC}, v2
        ''')
        svc_load(P, 3, sWS, '0', 2)
    def st_check():
        u = svc_begin(P); spin(P, 3, sWS, '0', cfg.stat_expect, 2); svc_end(P, u)
    sa, sb = sites([dw(1, 6, 'd'), dw(2, 0, 'd')] + [dw(2, c, ('t', 2)) for c in range(1, 6)])
    H = {0: [lambda: cs_write(0)],
         1: [lambda: bar('B1', vm=(('t', 1),), lg=(('x', 27),)), sa], 6: [sb],
         17: [lambda: bar('B1x', vm=('d',))],
         cfg.st_poll: [st_poll]}
    for s in range(28): slot(1, s, H)
    F.flush()
    aHPW, aHPR, aCSR = 5, 22, 23
    P.I(f'''
    v_lshlrev_b32 v{T}, 4, v{vLANE}
    s_lshl_b32 s{sT0}, s{sHH}, 14
    s_lshl_b32 s{sT1}, s{sPP}, 10
    s_add_u32 s{sT1}, s{sT1}, s{sT0}
    v_add_u32 v{aHPW}, s{sT1}, v{T}
    s_lshl_b32 s{sT1}, s{sPP}, 12
    s_add_u32 s{sT1}, s{sT1}, s{sT0}
    v_add_u32 v{aHPR}, s{sT1}, v{T}
    s_lshl_b32 s{sT1}, s{sPP}, 2
    v_subrev_u32 v{aCSR}, s{sT1}, v{aCSW}
    ''')
    cs_write(1)
    for k in range(4): P.D(f'ds_write_b128 v{aHPW}, v[{KH+4*k}:{KH+4*k+3}] offset:{HP_LDS + 4096*k}', 'csw')
    stamp(P, cfg, 'T1e')
    SC, BX, BS = XH, XE, XO; AXK, AXV = T, 6; HA = KH
    RR = XF; KOP = XF + 16; VOP = XF + 28; MKP, MKC, MKP0, ONES = XF + 40, XF + 44, XF + 48, XF + 52
    aEXW, aEXH, aEXR, vO, m48, RQ, RZ, TT = XF + 56, XF + 57, XF + 58, XF + 59, XF + 60, XF + 62, XF + 64, XF + 66
    ws = f's[{sWS}:{sWS+3}]'
    qs = 28 ** -0.5 * LOG2E
    def st_loads():
        stat_addr(P, sSB, sT1)
        P.I(f'''
        s_add_u32 s{sT1}, s{sSB}, 8192
        v_lshlrev_b32 v{vROW}, 2, v{vROW}
        s_cmp_eq_u32 s{sMT}, 0
        s_cselect_b32 s{sT2}, 0x40000000, -64
        s_add_u32 s{sT2}, s{sT2}, s{sSB}
        v_lshlrev_b32 v2, 2, v{i15}
        v_add_u32 v2, s{sT2}, v2
        v_lshlrev_b32 v3, 4, v{g4}
        v_add_u32 v3, s{sT2}, v3
        ''')
        P.V(f'buffer_load_dword v{M}, v{vROW}, {ws}, s{sT1} offen sc1', 'sl')
        P.V(f'buffer_load_dword v{R}, v{vROW}, {ws}, s{sSB} offen sc1', 'sl')
        P.V(f'buffer_load_dword v{RH}, v2, {ws}, 0 offen sc1', 'sl')
        P.I(f's_movk_i32 s{sT1}, 0x2000')
        P.V(f'buffer_load_dword v{MH}, v2, {ws}, s{sT1} offen sc1', 'sl')
        P.V(f'buffer_load_dwordx4 v[{SC}:{SC+3}], v3, {ws}, 0 offen sc1', 'sl')
    def rr_loads():
        P.I(f'v_lshrrev_b32 v2, 5, v{vLANE}\nv_lshlrev_b32 v2, 4, v2\ns_lshl_b32 s{sT0}, s{sPP}, 7\nv_add_u32 v2, s{sT0}, v2')
        for q in range(4): P.V(f'buffer_load_dwordx4 v[{RR+4*q}:{RR+4*q+3}], v2, {ws}, s{sSB} offen offset:{32*q} sc1', 'rr')
    def lds_reads():
        P.D(f'ds_read_b128 v[{AXK}:{AXK+3}], v{aCSR}', 'cs')
        P.D(f'ds_read_b128 v[{AXV}:{AXV+3}], v{aCSR} offset:512', 'cs')
        for k in range(4): P.D(f'ds_read_b128 v[{HA+4*k}:{HA+4*k+3}], v{aHPR} offset:{HP_LDS + 1024*k}', 'hp')
    def ax_ops(a):
        return [f'v_add_f32 v{a}, v{a}, v{a+1}', f'v_add_f32 v{a+2}, v{a+2}, v{a+3}', f'v_mov_b32 v{a+3}, 0', f'v_add_f32 v{a+2}, v{a}, v{a+2}',
                f'v_cvt_pk_bf16_f32 v{a}, v{a+2}, v{a+2}', f'v_lshlrev_b32 v{a+1}, 16, v{a}', f'v_sub_f32 v{a+1}, v{a+2}, v{a+1}',
                f'v_cvt_pk_bf16_f32 v{a+1}, v{a+1}, v{a+3}', f'v_mov_b32 v{a+2}, 0']
    def negm_ops(m, mask, d):
        return [f'v_and_b32 v{m}, v{mask}, v{m}', f'v_mov_b32 v{d+3}, 0', f'v_sub_f32 v{m}, 0, v{m}', f'v_cvt_pk_bf16_f32 v{d+1}, v{m}, v{d+3}',
                f'v_lshlrev_b32 v{d+2}, 16, v{d+1}', f'v_sub_f32 v{d+2}, v{m}, v{d+2}', f'v_cvt_pk_bf16_f32 v{d}, v{m}, v{d+2}', f'v_mov_b32 v{d+2}, 0']
    pmap = [0, 1, 4, 5, 2, 3, 6, 7]
    def swaps(a, b, n): return [f'v_permlane32_swap_b32 v{a+i}, v{b+i}' for i in range(n)] + [f'v_permlane16_swap_b32 v{a+i}, v{b+i}' for i in range(n)]
    def branch2(k_code, v_code):
        def f():
            u = P.uid()
            P.I(f's_cmp_lt_u32 s{sPP}, 2\ns_cbranch_scc0 L_b{u}v')
            for x in k_code: P.I(x)
            P.I(f's_branch L_b{u}e'); P.label(f'L_b{u}v')
            for x in v_code: P.I(x)
            P.label(f'L_b{u}e')
        return f
    ex_addr = f'''s_lshl_b32 s{sT0}, s{sHH}, 13
        s_add_u32 s{sT0}, s{sT0}, {EX_LDS}
        s_lshr_b32 s{sT1}, s{sPP}, 1
        s_lshl_b32 s{sT1}, s{sT1}, 10
        s_and_b32 s{sT2}, s{sPP}, 1
        s_lshl_b32 s{sT2}, s{sT2}, 3
        s_add_u32 s{sT1}, s{sT1}, s{sT2}
        s_add_u32 s{sT1}, s{sT1}, s{sT0}
        v_lshlrev_b32 v{TT}, 4, v{vLANE}
        v_add_u32 v{aEXH}, s{sT1}, v{TT}
        s_lshl_b32 s{sT1}, s{sPP}, 11
        s_add_u32 s{sT0}, s{sT0}, s{sT1}
        v_add_u32 v{aEXR}, s{sT0}, v{TT}
        s_add_u32 s{sT0}, s{sT0}, 2048
        s_cmp_eq_u32 s{sPP}, 3
        s_cselect_b32 s{sT0}, {DUMMY}, s{sT0}
        v_add_u32 v{aEXW}, s{sT0}, v{TT}'''
    A1 = [lambda: P.wait_lg('cs')] + ax_ops(AXK) + ax_ops(AXV) + [lambda: P.wait_lg('hp')]
    A1 += [f'v_add_f32 v{HA+e}, v{HA+e}, v{HA+4+e}' for e in range(4)] + [f'v_add_f32 v{HA+8+e}, v{HA+8+e}, v{HA+12+e}' for e in range(4)]
    A1 += [f'v_add_f32 v{HA+e}, v{HA+e}, v{HA+8+e}' for e in range(4)]
    A1 += [lambda: P.I(f's_and_b32 s{sT0}, s{sPP}, 1\ns_sub_u32 s{sT0}, 0, s{sT0}\nv_xor_b32 v{ME}, s{sT0}, v{ME}\nv_and_b32 v{ME}, v{ME}, v{mLO}')]
    A2 = [lambda: P.wait_vm('sl')] + negm_ops(M, mLO, BX) + negm_ops(MH, ME, BS)
    A2 += ['s_nop 0', m32(AK, AXK, BX, False), m32(AV, BX, AXV, False), branch2([m16(HA, AXK, BS, False)], [m16(HA, BS, AXV, False)])]
    EK = [f'v_mul_f32 v{AK+v}, v{AK+v}, v{R}' for v in range(16)] + [f'v_cvt_pk_bf16_f32 v{KOP+4+pmap[i]}, v{AK+2*i}, v{AK+2*i+1}' for i in range(8)] + swaps(KOP + 4, KOP + 8, 4)
    vmap = [VOP + 2, VOP + 3, VOP + 8, VOP + 9, VOP + 4, VOP + 5, VOP + 10, VOP + 11]
    EV = [lambda: P.wait_vm('rr')] + [f'v_mul_f32 v{AV+v}, v{AV+v}, v{RR+v}' for v in range(16)] + [f'v_cvt_pk_bf16_f32 v{vmap[i]}, v{AV+2*i}, v{AV+2*i+1}' for i in range(8)] + swaps(VOP + 2, VOP + 8, 4)
    EH = [branch2([f'v_mul_f32 v{HA+v}, v{HA+v}, v{RH}' for v in range(4)], [f'v_mul_f32 v{HA+v}, v{HA+v}, v{SC+v}' for v in range(4)]),
          f'v_cvt_pk_bf16_f32 v{HA+4}, v{HA}, v{HA+1}', f'v_cvt_pk_bf16_f32 v{HA+5}, v{HA+2}, v{HA+3}']
    WR = [lambda: P.I(ex_addr),
          lambda: P.D(f'ds_write_b128 v{aEXW}, v[{KOP+8}:{KOP+11}]', 'x'),
          lambda: P.D(f'ds_write_b64 v{aEXW}, v[{VOP+4}:{VOP+5}] offset:1024', 'x'),
          lambda: P.D(f'ds_write_b64 v{aEXW}, v[{VOP+10}:{VOP+11}] offset:1032', 'x'),
          lambda: P.D(f'ds_write_b64 v{aEXH}, v[{HA+4}:{HA+5}]', 'x')]
    MK = [f'v_lshlrev_b32 v{TT}, 2, v{g4}', f'v_sub_u32 v{TT}, v{i15}, v{TT}']
    for v in range(4):
        for base, dst in ((0, MKC), (16, MKP)):
            MK += [f'v_add_u32 v{dst+v}, {base - v}, v{TT}', f'v_and_b32 v{dst+v}, 0xfffffff1, v{dst+v}', f'v_min_u32 v{dst+v}, 1, v{dst+v}',
                   f'v_sub_u32 v{dst+v}, 0, v{dst+v}', f'v_and_b32 v{dst+v}, {f32(NEG)}, v{dst+v}']
    MK += [lambda: P.I(f's_or_b32 s{sT0}, s{sMT}, s{sPP}\ns_cmp_eq_u32 s{sT0}, 0\ns_cselect_b32 s{sT0}, {f32(NEG)}, 0\n' + '\n'.join(f'v_or_b32 v{MKP0+v}, s{sT0}, v{MKP+v}' for v in range(4)))]
    MK += [f'v_mov_b32 v{ONES+i}, 0x3f803f80' for i in range(4)]
    MK += [f'v_lshlrev_b32 v{vO}, 9, v{g4}', f'v_lshl_add_u32 v{vO}, v{i15}, 4, v{vO}', f'v_subrev_u32 v{m48}, 48, v{vLANE}', f'v_ashrrev_i32 v{m48}, 31, v{m48}',
           f'v_mul_f32 v{RQ}, {f32(qs)}, v{R}', f'v_and_b32 v{RZ}, v{mLO}, v{RQ}']
    XQ = ([lambda: s2_srd(P, cfg)] + s2_xy(P, 'X')) if cfg.early_w else []
    def late():
        mix = []; X = list(XQ); L = EV + EH + WR + MK
        k = max(1, len(L) // (len(X) + 1))
        for i, m in enumerate(L):
            if X and i % k == 0: mix.append(X.pop(0))
            mix.append(m)
        F.add(mix + X)
    H = {1: [st_check, lambda: bar('B2', vm=(('t', 2),), lg=('csw',)), st_loads, lds_reads, dw(2, 6, 'e'), lambda: F.add(A1)],
         4: [rr_loads], cfg.a2pos: [lambda: F.flush(), lambda: F.add(A2 + EK)],
         17: [lambda: F.flush(), lambda: bar('Bx', vm=('e',)), late]}
    for s in range(28):
        gs = 56 + s
        for f in H.get(s, []): f()
        E.rd(gs + AH, 3)
        w = WF + 4 * (gs % NWF); x = XF + 4 * s
        P.wait_lg(('w', gs))
        P.I(m32(AQ, w, x, s == 0))
        end = cfg.a2pos if s < cfg.a2pos else 17 if s < 17 else 28
        b = 0 if s < 2 else max(8, int(F.total() / (end - s) + 3))
        F.emit(b)
        if s % 4 == 3: P.I(m16(CSA, SEL, w, s == 3))
    F.flush()
    cs_write(2)
    stamp(P, cfg, 'loop')
    if cfg.hook_late: cfg.hook_late(P)
    P.lg0(); P.I('s_barrier'); stamp(P, cfg, 'e2')
    P.D(f'ds_read_b128 v[{AXK}:{AXK+3}], v{aCSR} offset:1024', 'cs')
    P.D(f'ds_read_b128 v[{KOP}:{KOP+3}], v{aEXR}', 'e')
    for tt in range(2): P.D(f'ds_read_b64 v[{VOP+6*tt}:{VOP+6*tt+1}], v{aEXR} offset:{1024+8*tt}', 'e')
    P.wait_lg('cs')
    for x in ax_ops(AXK): P.I(x)
    P.I(m32(AQ, AXK, BX, False))
    QOP = XF + 68
    for v in range(0, 16, 2): P.I(f'v_pk_mul_f32 {pr(AQ+v)}, {pr(AQ+v)}, {pr(RZ if v >= 12 else RQ)} op_sel_hi:[1,0]')
    for i in range(8): P.I(f'v_cvt_pk_bf16_f32 v{QOP+pmap[i]}, v{AQ+2*i}, v{AQ+2*i+1}')
    for x in swaps(QOP, QOP + 4, 4): P.I(x)
    S = AK; PP = AV; OB = [AQ, KH]
    mfS = lambda d, a, b, c: f'v_mfma_f32_16x16x32_bf16 v[{d}:{d+3}], v[{a}:{a+3}], v[{b}:{b+3}], v[{c}:{c+3}]'
    P.lg0()
    P.I(mfS(S + 8, KOP + 4, QOP + 4, MKP)); P.I(mfS(S + 12, KOP + 8, QOP + 4, MKC)); P.I(mfS(S + 4, KOP + 4, QOP, MKC)); P.I(mfS(S, KOP, QOP, MKP0))
    mx = [XF + 76, XF + 78]
    order = (1, 0)
    for bb in order:
        s = S + 8 * bb; m = mx[bb]
        P.I(f'''
        v_max3_f32 v{m}, v{s}, v{s+1}, v{s+2}
        v_max3_f32 v{m+1}, v{s+3}, v{s+4}, v{s+5}
        v_max3_f32 v{m}, v{m}, v{s+6}, v{s+7}
        v_max_f32 v{m}, v{m}, v{m+1}
        v_mov_b32 v{m+1}, v{m}
        ''')
    for bb in order: P.I(f'v_permlane16_swap_b32 v{mx[bb]}, v{mx[bb]+1}')
    for bb in order: P.I(f'v_max_f32 v{mx[bb]}, v{mx[bb]}, v{mx[bb]+1}\nv_mov_b32 v{mx[bb]+1}, v{mx[bb]}')
    for bb in order: P.I(f'v_permlane32_swap_b32 v{mx[bb]}, v{mx[bb]+1}')
    for bb in order: P.I(f'v_max_f32 v{mx[bb]}, v{mx[bb]}, v{mx[bb]+1}')
    for bb in order:
        s = S + 8 * bb; o = OB[bb]; p = PP + 4 * bb
        for v in range(0, 8, 2): P.I(f'v_pk_add_f32 {pr(s+v)}, {pr(s+v)}, {pr(mx[bb])} op_sel_hi:[1,0] neg_lo:[0,1] neg_hi:[0,1]')
        for v in range(8): P.I(f'v_exp_f32 v{s+v}, v{s+v}')
        for v in range(4): P.I(f'v_cvt_pk_bf16_f32 v{p+v}, v{s+2*v}, v{s+2*v+1}')
        P.I(m16(o + 8, ONES, p, True))
        for tt in range(2): P.I(m16(o + 4 * tt, VOP + 6 * tt + 2 * bb, p, True))
    for bb in order:
        o = OB[bb]
        P.I(f'v_rcp_f32 v{o+8}, v{o+8}')
        P.I(f'v_and_b32 v{o+10}, v{m48}, v{o+8}')
        for v in (0, 2): P.I(f'v_pk_mul_f32 {pr(o+v)}, {pr(o+v)}, {pr(o+8)} op_sel_hi:[1,0]')
        for v in (4, 6): P.I(f'v_pk_mul_f32 {pr(o+v)}, {pr(o+v)}, {pr(o+10)} op_sel_hi:[1,0]')
        for v in range(4): P.I(f'v_cvt_pk_bf16_f32 v{PP+8+4*bb+v}, v{o+2*v}, v{o+2*v+1}')
        P.V(f'buffer_store_dwordx4 v[{PP+8+4*bb}:{PP+8+4*bb+3}], v{vO}, s[{sWS}:{sWS+3}], s{sOB} offen offset:{256*bb}{cfg.sc}', 'st')
    stamp(P, cfg, 'end')
    stamp_flush(P, cfg)
    P.I(f's_branch {after}')
```

```python
import sys, argparse, json
from gen import *
import gen
from s2v2 import *

vPF = 250
def w2_prefetch(P):
    P.I(f'''
    s_lshl_b32 s{sT0}, s{sJ}, 3
    s_add_u32 s{sT0}, s{sT0}, s{sWAVE}
    s_lshl_b32 s{sT1}, s{sT0}, 13
    s_mov_b32 s{sW2}, s16
    s_mov_b32 s{sW2+1}, s17
    s_mov_b32 s{sW2+2}, {1792*XB}
    s_mov_b32 s{sW2+3}, 0x20000
    s_cmp_lt_u32 s{sT0}, 196
    s_cbranch_scc1 L_pf{P.uid()}
    s_mov_b32 s{sW2}, s8
    s_mov_b32 s{sW2+1}, s9
    s_mov_b32 s{sW2+2}, {448*XB}
    s_sub_u32 s{sT1}, s{sT1}, {196*8192}
    L_pf{P.uid(False)}:
    v_lshlrev_b32 v{vPF}, 7, v{vLANE}
    ''')
    P.V(f'buffer_load_dword v{vPF}, v{vPF}, s[{sW2}:{sW2+3}], s{sT1} offen', 'pf')

def build2(cfg):
    hdr = open('cdna_kernels/' + NAME + '.s.ref').read().split('; Override launch')[0]
    doc = '''; Design (generated by the author's own scheduler scripts; one persistent workgroup per CU):
'''
    out = [hdr, doc, '; @launch grid=(256,1,1) block=(512,1,1) lds=163840\n']
    P = Prog(); P.pv = 255
    if cfg.prof or 'padabs' in cfg.exp: P.I('s_memrealtime s[100:101]')
    stamp(P, cfg, 'start')
    P.I('s_load_dwordx16 s[4:19], s[0:1], 0\ns_load_dwordx4 s[20:23], s[0:1], 64\ns_load_dwordx2 s[24:25], s[0:1], 80')
    prologue(P, 256, 'L_end')
    P.L = [l for i, l in enumerate(P.L) if not (l.startswith('s_load_dword') and l in P.L[:i])]
    def cpf():
        if cfg.codepf:
            P.I(f'''
            s_sub_u32 s{sT0}, s{sJ}, {cfg.cpfj}
            s_cmp_lt_u32 s{sT0}, 5
            s_cbranch_scc0 L_nocpf
            s_cmp_eq_u32 s{sWAVE}, 7
            s_cbranch_scc0 L_nocpf
            s_getpc_b64 s[94:95]
            L_pc0:
            s_sub_u32 s94, s94, L_pc0-{NAME}_kernel
            s_subb_u32 s95, s95, 0
            s_lshl_b32 s{sT0}, s{sT0}, 13
            v_lshlrev_b32 v250, 7, v1
            v_add_u32 v250, s{sT0}, v250
            v_min_u32 v250, L_code_end-{NAME}_kernel-4, v250
            global_load_dword v250, v250, s[94:95]
            L_nocpf:
            ''')
    if cfg.cpfe: cpf()
    stage1_ids(P)
    if cfg.fastx:
        import s1v2
        xdma_addr(P, 244, 245)
        P.I(f's_lshr_b32 s{sT2}, s{sJ}, 4')
        s1v2.rot_first(P, cfg, None)
        P.I(f's_mul_i32 s{sT2}, s{sT2}, {cfg.att_x0}\ns_add_u32 s{sT2}, s{sT2}, s{sWX}')
        stamp(P, cfg, 'prew')
        P.I('s_waitcnt lgkmcnt(0)')
        stamp(P, cfg, 'karg')
        if cfg.tlb:
            P.I(f's_cmp_eq_u32 s{sWAVE}, {cfg.tlbw}\ns_cbranch_scc0 L_notlb')
            P.I('v_mov_b32 v246, s4\nv_mov_b32 v247, s5')
            ptrs = [6, 8, 12, 14, 16, 18, 20, 22]
            for i, r in enumerate(ptrs): P.I(f'v_writelane_b32 v246, s{r}, {i}\nv_writelane_b32 v247, s{r+1}, {i}')
            for k in range(5):
                P.I(f's_add_u32 s{sT0}, s24, {k << 21}\ns_addc_u32 s{sT1}, s25, 0\nv_writelane_b32 v246, s{sT0}, {8+k}\nv_writelane_b32 v247, s{sT1}, {8+k}')
            P.I('s_mov_b64 exec, 0x1fff\nglobal_load_dword v250, v[246:247], off\ns_mov_b64 exec, -1\nL_notlb:')
        if cfg.m1s >= 0: P.I('s_mov_b32 s100, s12\ns_mov_b32 s101, s13')
        srd(P, sX, 4, 2048 * XB)
        P.I(f's_mov_b32 s4, s3\ns_mov_b32 m0, s{sT2}')
        P.V(f'buffer_load_dwordx4 v{vXD0}, s[{sX}:{sX+3}], s4 offen lds', cfg.x0tag)
        P.I(f's_add_u32 m0, s{sT2}, 1024')
        P.V(f'buffer_load_dwordx4 v{vXD1}, s[{sX}:{sX+3}], s4 offen lds', cfg.x0tag)
    if not cfg.cpfe: cpf()
    stamp(P, cfg, 'x0')
    stage2_ids(P)
    if cfg.prio: P.I(f's_cmp_ge_u32 s{sWAVE}, 4\ns_cbranch_scc{2 - cfg.prio} L_prio\ns_setprio 1\nL_prio:')
    if 's2only' in cfg.exp:
        P.I('s_waitcnt lgkmcnt(0)')
        srd(P, sWS, 24, WS_SIZE); srd(P, sDBG, 22, 256)
        P.I('v_mov_b32 v252, 99')
        s2_early_setup(P, 20); s2_srd(P, cfg)
        for f in s2_xy(P, 'X') + s2_xy(P, 'Y'): f()
        P.I('s_waitcnt vmcnt(0)')
        stamp_flush(P, cfg)
        P.I('s_branch L_s1_done')
    P.I(f's_cmp_ge_u32 s{sJ}, 16\ns_cbranch_scc1 L_att')
    st = P.state()
    i0 = len(P.L)
    cfg.mlp(P, cfg, 'L_s1_done')
    P.restore(st)
    i1 = len(P.L)
    P.label('L_att')
    cfg.att(P, cfg, 'L_s1_done')
    if cfg.relayout:
        M = P.L[i0:i1]; A = P.L[i1:]
        km = M.index('; SETUP_END'); ka = A.index('; SETUP_END')
        P.L = P.L[:i0] + M[:km] + ['s_branch L_mlp_body'] + A[:ka] + ['s_branch L_att_body', 'L_mlp_body:'] + M[km + 1:] + ['L_att_body:'] + A[ka + 1:]
    P.label('L_s1_done')
    P.vm.q = []; P.lg.q = []; P.pv = 254
    for e in cfg.exp:
        if e.startswith('dly'):
            who = e[3]
            if who == 'm': P.I(f's_cmp_ge_u32 s{sJ}, 16\ns_cbranch_scc1 L_dly')
            if who == 'a': P.I(f's_cmp_lt_u32 s{sJ}, 16\ns_cbranch_scc1 L_dly')
            P.I('s_nop 15\n' * 16)
            P.I('L_dly:')
    stamp(P, cfg, 's2')
    stage2_v2(P, cfg, 'L_s2_skip')
    P.label('L_s2_skip')
    if cfg.prof: P.I('v_writelane_b32 v255, s100, 62\ns_memrealtime s[100:101]\ns_waitcnt lgkmcnt(0)\nv_writelane_b32 v255, s100, 61')
    prof_dump(P, cfg, [(0, 255), (1, 254)])
    if 'pad' in cfg.exp:
        P.I('s_mov_b32 s70, 500\nL_pad:\n' + 's_nop 15\n' * 4 + 's_sub_u32 s70, s70, 1\ns_cmp_lg_u32 s70, 0\ns_cbranch_scc1 L_pad')
    if 'padabs' in cfg.exp:
        for e in cfg.exp:
            if e.startswith('only'): P.I(f's_cmp_eq_u32 s2, {int(e[4:])}\ns_cbranch_scc0 L_end')
        P.I('s_waitcnt lgkmcnt(0)')
        P.I('s_add_u32 s72, s100, 4000\nL_padr:\ns_memrealtime s[70:71]\ns_waitcnt lgkmcnt(0)\ns_sub_u32 s73, s70, s72\ns_cmp_lt_i32 s73, 0\ns_cbranch_scc1 L_padr')
    if 'padrt' in cfg.exp:
        P.I('s_memrealtime s[70:71]\ns_waitcnt lgkmcnt(0)\ns_add_u32 s72, s70, 2000\nL_padr:\ns_memrealtime s[70:71]\ns_waitcnt lgkmcnt(0)\ns_sub_u32 s73, s70, s72\ns_cmp_lt_i32 s73, 0\ns_cbranch_scc1 L_padr')
    P.label('L_end')
    P.I('s_endpgm')
    P.label('L_code_end')
    name = NAME + '_kernel'
    out.append('.amdgcn_target "amdgcn-amd-amdhsa--gfx950"\n.text\n')
    out.append(f'.globl {name}\n.p2align 8\n.type {name},@function\n{name}:\n')
    for l in fix_hazards(P.L):
        out.append(l + '\n' if l.endswith(':') else '    ' + l + '\n')
    out.append('.section .rodata,"a"\n')
    out.append(kd(name))
    return ''.join(out)

if __name__ == '__main__':
    ap = argparse.ArgumentParser()
    ap.add_argument('-o', default='cdna_kernels/' + NAME + '.s')
    ap.add_argument('--prof', action='store_true')
    ap.add_argument('--nopf', action='store_true')
    ap.add_argument('--exp', default='')
    ap.add_argument('--nocpfe', action='store_true')
    ap.add_argument('--cpfj', type=int, default=0)
    ap.add_argument('--d2', action='store_true')
    ap.add_argument('--ft', action='store_true')
    ap.add_argument('--ftpoll', type=int, default=21)
    ap.add_argument('--hre', type=int, default=0)
    ap.add_argument('--hrefl', default='_sc1')
    ap.add_argument('--m1s', type=int, default=-1)
    ap.add_argument('--m1c', type=int, default=-1)
    ap.add_argument('--mapb', type=int, default=2)
    ap.add_argument('--pbo', type=int, default=0)
    ap.add_argument('--dpf', type=int, default=0)
    ap.add_argument('--wfl', default='')
    ap.add_argument('--xfl', default='')
    ap.add_argument('--w2fl', default='')
    ap.add_argument('--l2pf', type=int, default=0)
    ap.add_argument('--dot2', type=int, default=1)
    ap.add_argument('--noxlds', action='store_true')
    ap.add_argument('--c1e', type=int, default=3)
    ap.add_argument('--a0e', type=int, default=5)
    ap.add_argument('--a2', action='store_true')
    ap.add_argument('--nob0', action='store_true')
    ap.add_argument('--noob', action='store_true')
    ap.add_argument('--zpad', action='store_true')
    ap.add_argument('--rt', action='store_true')
    ap.add_argument('--hrot', action='store_true')
    ap.add_argument('--tlb', type=int, default=-1)
    ap.add_argument('--norelayout', action='store_true')
    ap.add_argument('--pb2', type=int, default=18)
    ap.add_argument('--a2off', type=int, default=10)
    ap.add_argument('--q4', type=int, default=1)
    ap.add_argument('--ldsword', action='store_true')
    ap.add_argument('--nojsplit', action='store_true')
    ap.add_argument('--nopk3', action='store_true')
    ap.add_argument('--alt', type=int, default=0)
    ap.add_argument('--nofastx', action='store_true')
    ap.add_argument('--uni', type=float, default=0)
    ap.add_argument('--y2pos', type=int, default=28)
    ap.add_argument('--q14', type=int, default=0)
    ap.add_argument('--xy1', type=int, default=8)
    ap.add_argument('--nocodepf', action='store_true')
    ap.add_argument('--a2pos', type=int, default=9)
    ap.add_argument('--padat', default=None)
    ap.add_argument('--outsc', default='')
    ap.add_argument('--prio', type=int, default=0)
    ap.add_argument('--xnt', action='store_true')
    ap.add_argument('--bmpos', type=int, default=31)
    ap.add_argument('--helper', action='store_true')
    ap.add_argument('--mallc', type=int, default=1)
    ap.add_argument('--malls', type=int, default=22)
    ap.add_argument('--apos', type=int, default=8)
    ap.add_argument('--ypos', type=int, default=6)
    ap.add_argument('--sc', default='_sc1')
    ap.add_argument('--scl', default='_sc1')
    ap.add_argument('--mlppf', type=int, default=0)
    ap.add_argument('--norot2', action='store_true')
    ap.add_argument('--attpf', action='store_true')
    ap.add_argument('--pf0', type=int, default=1)
    ap.add_argument('--pfn', type=int, default=4)
    ap.add_argument('--ni0', type=int, default=0)
    ap.add_argument('--v3', default='m')
    ap.add_argument('--sigpos', type=int, default=50)
    ap.add_argument('--stpoll', type=int, default=24)
    ap.add_argument('--ypre', type=int, default=2)
    ap.add_argument('--norot', action='store_true')
    ap.add_argument('--s1pf', action='store_true')
    ap.add_argument('--pf2', action='store_true')
    ap.add_argument('--lh', type=int, default=6)
    ap.add_argument('--q1', type=int, default=3)
    ap.add_argument('--q2', type=int, default=4)
    ap.add_argument('--q3', type=int, default=1)
    ap.add_argument('--q3at', type=int, default=14)
    ap.add_argument('--x2pos', type=int, default=16)
    ap.add_argument('--wnt', action='store_true')
    ap.add_argument('--pbc', type=int, default=9)
    ap.add_argument('--noearlyw', action='store_true')
    ap.add_argument('--fine', action='store_true')
    ap.add_argument('--ni', type=int, default=3)
    ap.add_argument('--oldmlp', action='store_true')
    ap.add_argument('--oldatt', action='store_true')
    a = ap.parse_args()
    cfg = Cfg(); cfg.prof = a.prof; cfg.fused = True
    cfg.hook_late = pollA_prefetch
    cfg.hook_early = None if a.nopf else w2_prefetch
    cfg.nopf = a.nopf
    cfg.cpfe = not a.nocpfe; cfg.cpfj = a.cpfj
    cfg.dsum = cfg.dcs = cfg.dcsa = a.d2
    cfg.fasttail = a.ft; cfg.ftpoll = a.ftpoll
    cfg.hre = a.hre; cfg.hrefl = a.hrefl.replace('_', ' ')
    cfg.m1s = a.m1s; cfg.m1c = a.m1c
    gen.MAPB[0] = a.mapb
    cfg.osep = a.pbo > 0; cfg.pbo = a.pbo
    cfg.dpf = a.dpf
    import s2v2 as _s2
    _s2.W2FL[0] = a.w2fl.replace('_', ' ')
    if not a.prof: _s2.sRO8[:] = list(range(80, 88))
    cfg.l2pf = a.l2pf
    cfg.dot2 = a.dot2
    cfg.xlds = not a.noxlds
    cfg.c1e = a.c1e; cfg.a0e = a.a0e
    cfg.noa2 = not a.a2
    cfg.nob0 = a.nob0; cfg.noob = a.noob
    import s2v2; s2v2.NOB0[0] = a.nob0
    cfg.zpad = a.zpad
    cfg.rt = a.rt
    if a.rt: cfg.keep = {'start', 'c0b', 'T0e', 'B2b', 'B3b', 'end', 'c3b', 'loop', 'e1', 'e2', 's2', 'b0', 'b@14', 'b@26', 'drain'}
    cfg.hrot = a.hrot
    cfg.tlb = a.tlb >= 0; cfg.tlbw = a.tlb
    cfg.relayout = not a.norelayout
    cfg.codepf2 = a.prof
    cfg.pb2 = a.pb2; cfg.a2off = a.a2off
    cfg.ldsword = a.ldsword; cfg.jsplit = not a.nojsplit
    cfg.pk3 = not a.nopk3; cfg.alt = a.alt
    cfg.fastx = True; cfg.att_x0 = 81920; cfg.x0tag = 'x0'
    cfg.uni = a.uni > 0; cfg.unif = a.uni if a.uni > 0 else 1.0
    cfg.y2pos = a.y2pos
    cfg.early_y = True; cfg.xy1 = a.xy1
    cfg.codepf = not a.nocodepf
    cfg.stat_pub = True
    cfg.a2pos = a.a2pos
    cfg.padat = a.padat
    cfg.prio = a.prio
    cfg.outsc = a.outsc.replace('_', ' ')
    import s1v2 as _s; _s.XNT = a.xfl.replace('_', ' ')
    cfg.bmpos = a.bmpos
    cfg.helper = a.helper
    cfg.mallc = a.mallc; cfg.malls = a.malls
    cfg.apos = a.apos; cfg.ypos = a.ypos
    cfg.sc = a.sc.replace('_', ' '); cfg.scl = a.scl.replace('_', ' ')
    cfg.pf0 = a.pf0; cfg.pfn = a.pfn; cfg.pfl = {3: 42, 4: 31, 5: 25, 6: 21}[a.pfn]
    assert -(-12544//cfg.pfl) + -(-3136//cfg.pfl) <= 128 * cfg.pfn
    cfg.ni0 = a.ni0
    cfg.stat_expect = 4
    cfg.sigpos = a.sigpos; cfg.st_poll = a.stpoll
    cfg.ypre = a.ypre
    cfg.norot = a.norot; cfg.attpf = a.attpf; cfg.mlppf = a.mlppf; cfg.norot2 = a.norot2; cfg.wnt = a.wfl.replace('_', ' ')
    cfg.s1pf = a.s1pf
    cfg.nopf2 = not a.pf2; cfg.lh = a.lh; cfg.quota = lambda i: (a.q14 if (i == 14 and a.q14) else a.q1 if i < a.pbc else a.q2 if i < a.q3at else a.q3 if i < a.pb2 else a.q4); cfg.x2pos = a.x2pos; cfg.pb_check = a.pbc; cfg.pb_issue = a.pbc - 3; cfg.early_w = not a.noearlyw
    cfg.coarse = not a.fine
    cfg.ni = a.ni
    cfg.exp = a.exp.split(',')
    cfg.pubmap = {0: [0, 1], 1: [1]}
    cfg.mlp = mlp_path; cfg.att = att_path
    if not a.oldmlp or not a.oldatt:
        import s1v2
        if not a.oldmlp: cfg.mlp = s1v2.mlp_v2
        if not a.oldatt: cfg.att = s1v2.att_v2
        import s1v3
        if 'm' in a.v3: cfg.mlp = s1v3.mlp_v3
        if 'a' in a.v3: cfg.att = s1v3.att_v3
        import s1v4
        if 'M' in a.v3: cfg.mlp = s1v4.mlp_v4
        if 'A' in a.v3: cfg.att = s1v4.att_v4; cfg.stat_pub = False
    open(a.o, 'w').write(build2(cfg))
    if cfg.prof: json.dump(cfg.paths, open(a.o + '.paths.json', 'w'))
```
